```python
import torch

def _softmax(x, axis=-1):
    return torch.softmax(x, dim=axis)
def _gelu(x):
    return torch.nn.functional.gelu(x, approximate="tanh")
def _silu(x):
    return torch.nn.functional.silu(x)
def _sigmoid(x):
    return torch.sigmoid(x)
def _layernorm(x, axis=-1, eps=1e-5):
    m = x.mean(dim=axis, keepdim=True)
    v = x.var(dim=axis, keepdim=True, unbiased=False)
    return (x - m) / torch.sqrt(v + eps)
def _scatter_add(tgt, idx, src, axis=0):
    return tgt.clone().index_add_(axis, idx, src)
def _segment_sum(src, seg, n):
    out = torch.zeros((n,) + src.shape[1:], dtype=src.dtype)
    return out.index_add_(0, seg, src)
def _pad(x, pw):
    flat = tuple(v for pair in reversed(pw) for v in pair)
    return torch.nn.functional.pad(x, flat)

kernel_name = 'gated_mix__grouped_kv_mqa__mixer_s_mlp__prompt'

def setup_inputs():

    _w = (lambda a: (lambda t: t.to(torch.bfloat16) if t.is_floating_point() else t)(torch.as_tensor(a)))
    def _A_setup():
        B, S, D, H = 1, 2048, 640, 32
        Dh = D // H
        return {
            "x": _w((lambda *s: torch.randn(*s, dtype=torch.bfloat16) * 0.05)(B, S, D)),
            "wq": _w((lambda *s: torch.randn(*s, dtype=torch.bfloat16) * 0.8)(D, H * Dh)),
            "wk": _w((lambda *s: torch.randn(*s, dtype=torch.bfloat16) * 0.8)(D, Dh)),
            "wv": _w((lambda *s: torch.randn(*s, dtype=torch.bfloat16) * 1.6)(D, Dh)),
            "wo": _w((lambda *s: torch.randn(*s, dtype=torch.bfloat16) * 1.6)(H * Dh, D)),
        }
    _A_in = _A_setup()

    def _B_setup():
        B, S, D, F = 1, 2048, 640, 1728
        return {
            "x":  _w((lambda *s: torch.randn(*s, dtype=torch.bfloat16) * 0.05)(B, S, D)),
            "w1": _w((lambda *s: torch.randn(*s, dtype=torch.bfloat16) * 3.2)(D, D) * (D ** -0.5)),
            "w2": _w((lambda *s: torch.randn(*s, dtype=torch.bfloat16) * 3.2)(D, D) * (D ** -0.5)),
            "w3": _w((lambda *s: torch.randn(*s, dtype=torch.bfloat16) * 3.2)(D, F) * (D ** -0.5)),
            "w4": _w((lambda *s: torch.randn(*s, dtype=torch.bfloat16) * 1.6)(F, D) * (F ** -0.5)),
        }
    _B_in = _B_setup()

    return {
        "A_x": _A_in["x"],
        "A_wq": _A_in["wq"],
        "A_wk": _A_in["wk"],
        "A_wv": _A_in["wv"],
        "A_wo": _A_in["wo"],
        "B_x": _B_in["x"],
        "B_w1": _B_in["w1"],
        "B_w2": _B_in["w2"],
        "B_w3": _B_in["w3"],
        "B_w4": _B_in["w4"],
        "gate_w": _w((lambda *s: torch.randn(*s, dtype=torch.bfloat16) * 0.1)(640) * 16.0),
    }

def reference(A_x, A_wq, A_wk, A_wv, A_wo, B_x, B_w1, B_w2, B_w3, B_w4, gate_w):
    def _A_ref(x, wq, wk, wv, wo):
        B, S, D = x.shape
        H = 32
        Dh = D // H
        q = (lambda x, *d: x.permute(*d))((x @ wq).reshape(B, S, H, Dh), 0, 2, 1, 3)
        k = x @ wk
        v = x @ wv
        scores = torch.einsum("bhqd,bkd->bhqk", q, k) * (Dh ** -0.5)
        p = _softmax(scores, axis=-1)
        o = torch.einsum("bhqk,bkd->bhqd", p, v)
        return (lambda x, *d: x.permute(*d))(o, 0, 2, 1, 3).reshape(B, S, H * Dh) @ wo

    def _B_ref(x, w1, w2, w3, w4):
        B, S, D = x.shape
        h = _gelu(_layernorm(x, axis=-1) @ w1)
        c = D // 4
        g0 = _pad(h[:, :, 0*c:1*c], ((0, 0), (1, 0), (0, 0)))[:, :S, :]
        g1 = _pad(h[:, :, 1*c:2*c], ((0, 0), (0, 1), (0, 0)))[:, 1:, :]
        g2 = _pad(h[:, :, 2*c:3*c], ((0, 0), (2, 0), (0, 0)))[:, :S, :]
        g3 = _pad(h[:, :, 3*c:   ], ((0, 0), (0, 2), (0, 0)))[:, 2:, :]
        hs = torch.concatenate([g0, g1, g2, g3], axis=-1) @ w2
        x1 = x + hs
        h2 = _gelu(_layernorm(x1, axis=-1) @ w3) @ w4
        return x1 + h2

    x = A_x
    g = _sigmoid((x * gate_w).sum(-1, keepdims=True))
    a = _A_ref(x, A_wq, A_wk, A_wv, A_wo)
    b = _B_ref(x, B_w1, B_w2, B_w3, B_w4)
    return g * a + (1 - g) * b
```

```python
import re

TRANS = ("v_exp_f32", "v_log_f32", "v_rcp_f32", "v_rsq_f32", "v_sqrt_f32", "v_sin_f32", "v_cos_f32",
         "v_exp_f16", "v_rcp_f16", "v_rcp_iflag_f32")

def _split_ops(s):
    out, depth, cur = [], 0, ""
    for ch in s:
        if ch == "[": depth += 1
        if ch == "]": depth -= 1
        if ch == "," and depth == 0:
            out.append(cur.strip()); cur = ""
        else:
            cur += ch
    if cur.strip(): out.append(cur.strip())
    return out

_reg_re = re.compile(r"^(-|\|)?(abs\()?([vsa])(\d+|\[(\d+):(\d+)\])")
def regs_of(op):
    op = op.strip()
    t = op.split()[0] if op else ""
    t = t.lstrip("-").strip("|")
    if t.startswith("abs("): t = t[4:].rstrip(")")
    if t in ("vcc", "vcc_lo", "vcc_hi"): return [("s", "vcc")]
    if t in ("exec", "exec_lo", "exec_hi"): return [("s", "exec")]
    if t == "m0": return [("s", "m0")]
    if t == "scc": return [("s", "scc")]
    m = re.match(r"^([vsa])(\d+)$", t)
    if m: return [(m.group(1), int(m.group(2)))]
    m = re.match(r"^([vsa])\[(\d+):(\d+)\]$", t)
    if m: return [(m.group(1), i) for i in range(int(m.group(2)), int(m.group(3)) + 1)]
    return []

class Ins:
    __slots__ = ("text", "mn", "cls", "vw", "vr", "sw", "sr", "passes", "srcc", "is_store_wide", "ab")
    def __init__(self, text):
        self.text = text
        t = text.split(";")[0].split("//")[0].strip()
        self.vw, self.vr, self.sw, self.sr = set(), set(), set(), set()
        self.passes = 0; self.srcc = set(); self.is_store_wide = False; self.ab = set()
        if not t or t.endswith(":") or t.startswith("."):
            self.mn = t; self.cls = "label" if t.endswith(":") else "dir"; return
        parts = t.split(None, 1)
        mn = parts[0]; self.mn = mn
        ops = _split_ops(parts[1]) if len(parts) > 1 else []
        R = [regs_of(o) for o in ops]
        def V(lst): return {r for r in lst if r[0] in ("v", "a")}
        def S(lst): return {r for r in lst if r[0] == "s"}
        allv = lambda idx: set().union(*[V(R[i]) for i in idx]) if idx else set()
        alls = lambda idx: set().union(*[S(R[i]) for i in idx]) if idx else set()
        n = len(ops)
        if mn.startswith("v_mfma"):
            self.cls = "mfma"
            self.vw = V(R[0]); self.ab = V(R[1]) | V(R[2]); self.srcc = V(R[3]); self.vr = self.ab | self.srcc
            self.passes = 8 if "32x32" in mn else 4
        elif mn.startswith("v_cmp"):
            self.cls = "valu"
            self.sw = S(R[0]); self.vr = allv(range(1, n)); self.sr = alls(range(1, n))
            if mn.startswith("v_cmpx"): self.sw |= {("s", "exec")}
        elif mn in ("v_readfirstlane_b32", "v_readlane_b32"):
            self.cls = "valu"; self.sw = S(R[0]); self.vr = allv(range(1, n)); self.sr = alls(range(1, n))
        elif mn.startswith("v_permlane") and "swap" in mn:
            self.cls = "valu"; self.vw = V(R[0]) | V(R[1]); self.vr = set(self.vw)
        elif mn.startswith("v_"):
            self.cls = "trans" if any(mn.startswith(x) for x in TRANS) else "valu"
            self.vw = V(R[0]); rest = range(1, n)
            if mn.startswith(("v_add_co", "v_sub_co", "v_addc_co", "v_subb_co", "v_subrev_co")):
                self.sw = S(R[1]); rest = range(2, n)
            self.vr = allv(rest); self.sr = alls(rest)
            if mn.startswith(("v_fmac", "v_dot2c", "v_mac", "v_pk_fmac")) or "UNUSED_PRESERVE" in t or "_dpp" in mn or mn.startswith("v_accvgpr_write") and False:
                self.vr |= self.vw
            if mn.startswith("v_cndmask") and n == 3: self.sr |= {("s", "vcc")}
        elif mn.startswith(("buffer_load", "global_load")):
            lds = re.search(r"\blds\b", t) is not None or "load_lds" in mn
            self.cls = "vmem"
            if lds:
                self.vr = allv(range(0, n)); self.sr = alls(range(0, n)) | {("s", "m0")}
                self.cls = "ldsdma"
            else:
                self.vw = V(R[0]); self.vr = allv(range(1, n)); self.sr = alls(range(1, n))
        elif mn.startswith(("buffer_store", "global_store", "buffer_atomic", "global_atomic")):
            self.cls = "vmem"; self.vr = allv(range(0, n)); self.sr = alls(range(0, n))
            if "x4" in mn or "x3" in mn:
                self.is_store_wide = True
                self.srcc = V(R[0]) if mn.startswith("buffer") else V(R[1])
            if "atomic" in mn and re.search(r"\bsc0\b", t):
                self.vw = V(R[0])
        elif mn.startswith("buffer_") :
            self.cls = "vmem"
        elif mn.startswith("ds_"):
            self.cls = "ds"
            if mn.startswith(("ds_read", "ds_bpermute", "ds_permute", "ds_swizzle")) or "_rtn" in mn:
                self.vw = V(R[0]); self.vr = allv(range(1, n))
            else:
                self.vr = allv(range(0, n))
        elif mn.startswith("s_"):
            self.cls = "salu"
            if mn in ("s_nop", "s_waitcnt", "s_barrier", "s_endpgm", "s_branch", "s_setprio", "s_sleep") or mn.startswith("s_cbranch"):
                pass
            elif mn.startswith("s_cmp"):
                self.sr = alls(range(0, n)); self.sw = {("s", "scc")}
            else:
                self.sw = S(R[0]) if R else set(); self.sr = alls(range(1, n))
                if "saveexec" in mn: self.sw |= {("s", "exec")}
        else:
            raise ValueError("unknown instruction: " + text)

    def states(self):
        if self.cls in ("label", "dir"): return 0
        if self.mn == "s_nop":
            return int(self.text.split()[1], 0) + 1
        return 1

def required(prod, cons):
    need = 0
    pv = prod.cls in ("valu", "trans")
    cv = cons.cls in ("valu", "trans")
    if pv:
        if cons.cls == "mfma" and (prod.vw & cons.vr): need = max(need, 2)
        if prod.cls == "trans" and cv and cons.cls != "trans" and (prod.vw & cons.vr): need = max(need, 1)
        if prod.cls == "trans" and cons.cls == "trans" and (prod.vw & cons.vr): need = max(need, 1)
        if prod.sw:
            sw = prod.sw - {("s", "exec")}
            if cons.cls in ("vmem", "ldsdma") and (sw & cons.sr): need = max(need, 5)
            if cv and (sw & cons.sr):
                need = max(need, 4 if cons.mn in ("v_readlane_b32", "v_writelane_b32") else 2)
            if ("s", "exec") in prod.sw and (cv or cons.cls == "mfma"): need = max(need, 4)
        if cons.mn in ("v_readfirstlane_b32", "v_readlane_b32") and (prod.vw & cons.vr): need = max(need, 1)
        if cons.mn.startswith("v_permlane") and (prod.vw & cons.vr): need = max(need, 2)
        if "_dpp" in cons.mn and (prod.vw & cons.vr): need = max(need, 2)
        if ("SDWA" in prod.text or "_sdwa" in prod.mn or "op_sel" in prod.text) and cv and (prod.vw & (cons.vr | cons.vw)): need = max(need, 1)
    if prod.mn.startswith("v_dot"):
        if cons.mn == prod.mn:
            ops = _split_ops(cons.text.split(";")[0].split(None, 1)[1])
            ab = set(regs_of(ops[1])) | set(regs_of(ops[2]))
            if prod.vw & ab: need = max(need, 3)
        elif prod.vw & (cons.vr | cons.vw): need = max(need, 3)
    if prod.cls == "mfma":
        p = prod.passes
        raw = {4: 8, 8: 12}[p]
        if cons.cls == "mfma":
            if prod.vw & cons.ab: need = max(need, raw)
            ov = prod.vw & cons.srcc
            if ov:
                if cons.srcc == prod.vw and cons.passes == p: pass
                else: need = max(need, {4: 6, 8: 10}[p])
            if (prod.vw & cons.vw) and not (cons.vw == prod.vw): need = max(need, raw)
            if (prod.vw & cons.vw) and (cons.vw == prod.vw) and not (cons.srcc == prod.vw): need = max(need, raw)
        elif cv or cons.cls in ("vmem", "ds", "ldsdma"):
            if prod.vw & (cons.vr | cons.vw): need = max(need, raw)
        if cv and (prod.srcc & cons.vw): need = max(need, {4: 3, 8: 7}[p])
    if prod.is_store_wide and (prod.srcc & cons.vw):
        need = max(need, 2 if cv else 1)
    if prod.cls == "salu" and ("s", "m0") in prod.sw and cons.cls == "ldsdma": need = max(need, 1)
    return need

class Kern:
    def __init__(self, name):
        self.name = name; self.lines = []; self._lab = 0
    def e(self, s):
        for ln in s.split("\n"):
            ln = ln.strip()
            if ln: self.lines.append(ln)
    def label(self, base="L"):
        self._lab += 1
        return f"{self.name}_{base}{self._lab}"
    def c(self, s): self.lines.append("; " + s)

    def finalize(self, verbose=True, strict_regions=()):
        ins = [Ins(l) if not l.startswith(";") else None for l in self.lines]
        MAXD = 14
        out = []
        inserted = []
        def pending_need(hist, cur):
            need = 0; dist = 0
            for p in reversed(hist):
                if dist >= MAXD: break
                r = required(p, cur)
                if r > dist: need = max(need, r - dist)
                dist += p.states()
            return need
        hist = []
        labels = {}
        for idx, (i, l) in enumerate(zip(ins, self.lines)):
            if i is None: out.append(l); continue
            if i.cls == "label":
                labels[i.mn[:-1]] = len(out); out.append(l); continue
            if i.cls == "dir": out.append(l); continue
            nd = pending_need(hist, i)
            if nd > 0:
                nop = Ins(f"s_nop {nd-1}")
                out.append(nop.text + " ; hz"); hist.append(nop); inserted.append((l, nd))
            out.append(l); hist.append(i)
            if len(hist) > 64: hist = hist[-32:]
            if (i.mn.startswith("s_cbranch") or i.mn == "s_branch"):
                tgt = l.split()[1]
                if tgt in labels:
                    h2 = list(hist); k = labels[tgt]; seen = 0
                    while k < len(out) and seen < MAXD:
                        t = out[k]; k += 1
                        if t.startswith(";"): continue
                        j = Ins(t)
                        if j.cls in ("label", "dir"): continue
                        nd2 = pending_need(h2, j)
                        if nd2 > 0:
                            raise RuntimeError(f"loop-carried hazard at {tgt}: '{t}' needs {nd2} more states")
                        h2.append(j); seen += j.states()
                else:
                    self._fwd = getattr(self, "_fwd", [])
                    self._fwd.append((tgt, list(hist[-16:])))
        for tgt, h in getattr(self, "_fwd", []):
            if tgt not in labels: raise RuntimeError("unknown label " + tgt)
            h2 = list(h); k = labels[tgt]; seen = 0
            while k < len(out) and seen < MAXD:
                t = out[k]; k += 1
                if t.startswith(";"): continue
                j = Ins(t.replace(" ; hz", ""))
                if j.cls in ("label", "dir"): continue
                nd2 = pending_need(h2, j)
                if nd2 > 0:
                    raise RuntimeError(f"forward-branch hazard at {tgt}: '{t}' needs {nd2} more states")
                h2.append(j); seen += j.states()
        if verbose and inserted:
            print(f"[{self.name}] inserted {len(inserted)} hazard nops")
        self.inserted = inserted
        return out

def kernel_text(k, vgprs, sgprs=100, agprs=0, verbose=True):
    body = k.finalize(verbose)
    s = f".globl {k.name}\n.p2align 8\n.type {k.name},@function\n{k.name}:\n"
    for l in body:
        s += (l if (l.endswith(":") or l.startswith(".")) else "  " + l) + "\n"
    return s

def descriptor(name, vgprs, sgprs=100, agprs=0):
    acc = (vgprs + 3) // 4 * 4
    return f""".p2align 6
.amdhsa_kernel {name}
  .amdhsa_next_free_vgpr {acc + agprs if agprs else vgprs}
  .amdhsa_next_free_sgpr {sgprs}
  .amdhsa_accum_offset {acc}
  .amdhsa_group_segment_fixed_size 0
  .amdhsa_kernarg_size 112
  .amdhsa_user_sgpr_count 2
  .amdhsa_user_sgpr_kernarg_segment_ptr 1
  .amdhsa_system_sgpr_workgroup_id_x 1
  .amdhsa_float_denorm_mode_32 3
.end_amdhsa_kernel
"""
```

```python
import sys
sys.path.insert(0, "work")
from asmfw import *
import layout as L

KA = dict(x=0, wq=8, wk=16, wv=24, wo=32, bx=40, w1=48, w2=56, w3=64, w4=72, gw=80, out=88, dbg=96, ws=104)
OOB = 0x7F000000
def f32bits(x):
    import struct
    return struct.unpack("<I", struct.pack("<f", x))[0]
def srd(k, r, p, off, size):
    if off:
        k.e(f"s_add_u32 s{r}, s{p}, {off}"); k.e(f"s_addc_u32 s{r+1}, s{p+1}, 0")
    else:
        k.e(f"s_mov_b32 s{r}, s{p}"); k.e(f"s_mov_b32 s{r+1}, s{p+1}")
    k.e(f"s_mov_b32 s{r+2}, {size}"); k.e(f"s_mov_b32 s{r+3}, 0x20000")

CH = 4
CHB = CH * 3072
NB = 4
NCH = 64 // CH

def gen_attn(name="attn_kernel"):
    k = Kern(name)
    Q1 = [16, 24]; Q2 = [20, 28]
    O = [32, 48]
    Sx = [64, 80]
    P = [96, 104]
    K1 = [112, 120]; K2r = [116, 124]
    V0 = [128, 136]; V1 = [132, 140]
    vKa, vK2a = 5, 6
    NV = 176
    k.e("s_cmp_ge_u32 s2, 256"); k.e(f"s_cbranch_scc1 {name}_end")
    k.e(f"s_load_dwordx2 s[4:5], s[0:1], {KA['ws']}")
    k.e("v_lshrrev_b32 v1, 6, v0"); k.e("v_and_b32 v2, 63, v0")
    k.e("v_readfirstlane_b32 s3, v1")
    k.e("s_lshr_b32 s40, s2, 3"); k.e("s_and_b32 s41, s2, 7")
    k.e("s_lshl_b32 s42, s41, 2"); k.e("s_add_u32 s42, s42, s3")
    k.e("v_lshlrev_b32 v3, 4, v2")
    k.e("s_waitcnt lgkmcnt(0)")
    srd(k, 8, 4, L.KVF, L.SZ_KVF); srd(k, 12, 4, L.QF, L.SZ_QF); srd(k, 16, 4, L.K2, 8192)
    srd(k, 20, 4, L.G, 8192); srd(k, 24, 4, L.OF, L.SZ_XF)
    k.e("s_mul_i32 s44, s3, 3072")
    def dma(chunk_sreg_off, slot_sreg):
        k.e(f"s_add_u32 s45, s{chunk_sreg_off}, s44"); k.e(f"s_add_u32 m0, s{slot_sreg}, s44")
        k.e("s_nop 0")
        k.e("buffer_load_dwordx4 v3, s[8:11], s45 offen lds")
        k.e("buffer_load_dwordx4 v3, s[8:11], s45 offen offset:1024 lds")
        k.e("buffer_load_dwordx4 v3, s[8:11], s45 offen offset:2048 lds")
    for c in range(NB):
        k.e(f"s_mov_b32 s50, {c*CHB}"); k.e(f"s_mov_b32 s51, {c*CHB}")
        dma(50, 51)
    k.e("v_and_b32 v7, 31, v2"); k.e("v_lshlrev_b32 v8, 3, v7")
    for qb in range(2):
        k.e("s_lshl_b32 s46, s42, 6"); k.e("s_lshl_b32 s47, s40, 1"); k.e("s_add_u32 s46, s46, s47"); k.e(f"s_add_u32 s46, s46, {qb}")
        k.e("s_mul_i32 s46, s46, 1280")
        k.e(f"buffer_load_dwordx4 v[{Q1[qb]}:{Q1[qb]+3}], v3, s[12:15], s46 offen")
        k.e(f"buffer_load_dwordx2 v[{Q2[qb]}:{Q2[qb]+1}], v8, s[12:15], s46 offen offset:1024")
    for i in range(8):
        k.e(f"s_mov_b32 s46, {i*1024}")
        k.e(f"buffer_load_dwordx4 v[{64+4*i}:{67+4*i}], v3, s[16:19], s46 offen")
    k.e("s_lshl_b32 s46, s40, 6"); k.e("v_add_u32 v9, s46, v7"); k.e("v_lshlrev_b32 v10, 2, v9")
    k.e("buffer_load_dword v12, v10, s[20:23], 0 offen"); k.e("buffer_load_dword v13, v10, s[20:23], 0 offen offset:128")
    k.e("s_waitcnt vmcnt(0)")
    for i in range(1, 16):
        k.e(f"v_max3_f32 v64, v64, v{63+2*i}, v{64+2*i}") if i > 0 else None
    k.e("v_max_f32 v64, v64, v95")
    for x in (1, 2, 4, 8, 16, 32):
        k.e(f"v_xor_b32 v11, {x}, v2"); k.e("v_lshlrev_b32 v11, 2, v11")
        k.e("ds_bpermute_b32 v65, v11, v64"); k.e("s_waitcnt lgkmcnt(0)"); k.e("v_max_f32 v64, v64, v65")
    k.e("v_xor_b32 v11, 32, v2"); k.e("v_lshlrev_b32 v11, 2, v11")
    k.e("v_cmp_gt_u32 vcc, 32, v2")
    for qb in range(2):
        k.e(f"v_cndmask_b32 v{Q2[qb]}, 0, v{Q2[qb]}, vcc"); k.e(f"v_cndmask_b32 v{Q2[qb]+1}, 0, v{Q2[qb]+1}, vcc")
        k.e(f"v_dot2_f32_bf16 v66, v{Q1[qb]}, v{Q1[qb]}, 0")
        for j in (1, 2, 3): k.e(f"v_dot2_f32_bf16 v66, v{Q1[qb]+j}, v{Q1[qb]+j}, v66")
        for j in (0, 1): k.e(f"v_dot2_f32_bf16 v66, v{Q2[qb]+j}, v{Q2[qb]+j}, v66")
        k.e("ds_bpermute_b32 v67, v11, v66"); k.e("s_waitcnt lgkmcnt(0)"); k.e("v_add_f32 v66, v66, v67")
        k.e("v_mul_f32 v66, v66, v64"); k.e("v_sqrt_f32 v66, v66"); k.e("s_nop 0")
        k.e(f"v_mul_f32 v66, {f32bits(-1.01)}, v66")
        k.e("v_and_b32 v67, 0xffff0000, v66"); k.e("v_sub_f32 v68, v66, v67")
        k.e("v_cvt_pk_bf16_f32 v68, v67, v68")
        k.e(f"v_cndmask_b32 v{Q2[qb]+2}, 0, v68, vcc"); k.e(f"v_mov_b32 v{Q2[qb]+3}, 0")
    for b in range(2):
        k.e(f"v_mov_b32 v{K2r[b]+2}, 0x3f803f80"); k.e(f"v_mov_b32 v{K2r[b]+3}, 0")
    for qb in range(2):
        for i in range(16): k.e(f"v_mov_b32 v{O[qb]+i}, 0")
    k.e("v_lshrrev_b32 v14, 3, v7"); k.e("v_lshlrev_b32 v15, 9, v14"); k.e("v_add_u32 v15, 1344, v15")
    k.e("v_and_b32 v14, 7, v7"); k.e("v_lshlrev_b32 v14, 3, v14"); k.e("v_add_u32 v15, v15, v14")
    k.e(f"v_mov_b32 v{vKa}, v3"); k.e(f"v_mov_b32 v{vK2a}, v15")
    k.e("s_barrier")
    def reads(tile_in_chunk, b):
        o = tile_in_chunk * 3072
        k.e(f"ds_read_b128 v[{K1[b]}:{K1[b]+3}], v{vKa} offset:{o}")
        k.e(f"ds_read_b64 v[{K2r[b]}:{K2r[b]+1}], v{vK2a} offset:{o}")
        k.e(f"ds_read_b128 v[{V0[b]}:{V0[b]+3}], v{vKa} offset:{o+1024}")
        k.e(f"ds_read_b128 v[{V1[b]}:{V1[b]+3}], v{vKa} offset:{o+2048}")
    def r4(x): return f"v[{x}:{x+3}]"
    def r16(x): return f"v[{x}:{x+15}]"
    MF = "v_mfma_f32_32x32x16_bf16"
    reads(0, 0)
    k.e("s_waitcnt lgkmcnt(0)")
    k.e(f"{MF} {r16(Sx[0])}, {r4(K1[0])}, {r4(Q1[0])}, 0")
    k.e(f"{MF} {r16(Sx[0])}, {r4(K2r[0])}, {r4(Q2[0])}, {r16(Sx[0])}")
    for j in range(4, 8): k.e(f"v_mov_b32 v{P[1]+j}, 0")
    for j in range(4): k.e(f"v_mov_b32 v{V1[1]+j}, 0")
    k.e("s_mov_b32 s52, 0")
    k.e("s_mov_b32 s53, 0")
    k.e(f"s_mov_b32 s54, {NB*CHB}")
    k.e("s_nop 7"); k.e("s_nop 3")
    loop = f"{name}_loop"
    k.e(f"{loop}:")
    def E(i, S): k.e(f"v_exp_f32 v{S+i}, v{S+i}")
    def C(j, S, Pq): k.e(f"v_cvt_pk_bf16_f32 v{Pq+j}, v{S+2*j}, v{S+2*j+1}")
    for T in range(CH):
        b = T % 2; nb = 1 - b
        for qb in range(2):
            S = Sx[qb]; N = Sx[1 - qb]; Pq = P[qb]
            pq_prev = P[1 - qb]; o_prev = O[1 - qb]
            v1_prev = V1[b] if qb == 1 else V1[nb]
            kb = b if qb == 0 else nb
            nq = 1 - qb
            E(0, S); E(1, S)
            k.e(f"{MF} {r16(o_prev)}, {r4(v1_prev)}, {r4(pq_prev+4)}, {r16(o_prev)}")
            if qb == 0:
                if T == CH - 1:
                    k.e(f"s_waitcnt vmcnt({3*(NB-2)}) lgkmcnt(0)")
                    k.e("s_barrier")
                    k.e(f"s_cmp_lt_u32 s54, {NCH*CHB}")
                    k.e(f"s_cselect_b32 s55, s54, {OOB}")
                    dma(55, 53)
                    k.e(f"s_add_u32 s54, s54, {CHB}")
                    k.e(f"s_add_u32 s53, s53, {CHB}"); k.e(f"s_cmp_eq_u32 s53, {NB*CHB}"); k.e("s_cselect_b32 s53, 0, s53")
                    k.e(f"v_add_u32 v{vKa}, s53, v3"); k.e(f"v_add_u32 v{vK2a}, s53, v15")
                    reads(0, nb)
                else:
                    k.e("s_waitcnt lgkmcnt(0)")
                    reads(T + 1, nb)
            E(2, S); E(3, S); C(0, S, Pq); C(1, S, Pq)
            if qb == 1: k.e("s_waitcnt lgkmcnt(2)")
            k.e(f"{MF} {r16(N)}, {r4(K1[kb])}, {r4(Q1[nq])}, 0")
            E(4, S); E(5, S); E(6, S); E(7, S); C(2, S, Pq); C(3, S, Pq)
            k.e(f"{MF} {r16(N)}, {r4(K2r[kb])}, {r4(Q2[nq])}, {r16(N)}")
            E(8, S); E(9, S); E(10, S); E(11, S); C(4, S, Pq); C(5, S, Pq)
            k.e(f"{MF} {r16(O[qb])}, {r4(V0[b])}, {r4(Pq)}, {r16(O[qb])}")
            E(12, S); E(13, S); E(14, S); E(15, S); C(6, S, Pq); C(7, S, Pq)
    k.e("s_add_u32 s52, s52, 1"); k.e(f"s_cmp_lt_u32 s52, {NCH}")
    k.e(f"s_cbranch_scc1 {loop}")
    k.e("s_nop 1")
    k.e(f"{MF} {r16(O[1])}, {r4(V1[(CH-1)%2])}, {r4(P[1]+4)}, {r16(O[1])}")
    k.e("s_nop 7"); k.e("s_nop 7")
    k.e("s_waitcnt vmcnt(0)")
    k.e("v_lshrrev_b32 v14, 5, v2")
    for qb in range(2):
        o = O[qb]; gv = 12 + qb
        k.e(f"v_rcp_f32 v16, v{o+12}"); k.e("s_nop 0"); k.e(f"v_mul_f32 v16, v16, v{gv}")
        k.e(f"v_add_u32 v17, {32*qb}, v9")
        k.e("v_lshrrev_b32 v18, 4, v17"); k.e(f"v_mul_u32_u24 v18, {20*1024}, v18")
        k.e("v_and_b32 v19, 15, v17")
        for i in range(3):
            for q in range(4): k.e(f"v_mul_f32 v{o+4*i+q}, v16, v{o+4*i+q}")
            k.e(f"v_cvt_pk_bf16_f32 v20, v{o+4*i}, v{o+4*i+1}"); k.e(f"v_cvt_pk_bf16_f32 v21, v{o+4*i+2}, v{o+4*i+3}")
            k.e("s_mul_i32 s46, s42, 5"); k.e(f"s_add_u32 s46, s46, {2*i}")
            k.e("v_add_u32 v22, s46, v14")
            k.e("v_lshrrev_b32 v23, 3, v22"); k.e("v_lshlrev_b32 v23, 10, v23")
            k.e("v_and_b32 v24, 3, v22"); k.e("v_lshlrev_b32 v24, 4, v24"); k.e("v_add_u32 v24, v24, v19"); k.e("v_lshlrev_b32 v24, 4, v24")
            k.e("v_add_u32 v23, v23, v24")
            k.e("v_bfe_u32 v24, v22, 2, 1"); k.e("v_lshlrev_b32 v24, 3, v24"); k.e("v_add_u32 v23, v23, v24")
            k.e("v_add_u32 v23, v23, v18")
            if i == 2:
                k.e("v_cmp_eq_u32 vcc, 0, v14"); k.e(f"v_mov_b32 v24, {OOB}"); k.e("v_cndmask_b32 v23, v24, v23, vcc")
            k.e("buffer_store_dwordx2 v[20:21], v23, s[24:27], 0 offen")
            k.e("s_nop 0")
    k.e(f"{name}_end:")
    k.e("s_endpgm")
    return k, NV, 256, NB * CHB
```

```python
S, D, F, H, DH = 2048, 640, 1728, 32, 20
NKD, NKF = D // 32, F // 32
def _al(x, a=4096): return (x + a - 1) // a * a
off = 0
def alloc(n):
    global off
    o = off; off = _al(off + n); return o
WQP = alloc(40 * NKD * 1024)
W1P = alloc(40 * NKD * 1024)
W2P = alloc(40 * NKD * 1024)
WOP = alloc(40 * NKD * 1024)
W3P = alloc(108 * NKD * 1024)
W4P = alloc(40 * NKF * 1024)
WKVP = alloc(4 * NKD * 1024)
XF = alloc(128 * NKD * 1024)
HS = alloc(128 * NKD * 1024)
X1F = alloc(128 * NKD * 1024)
OF = alloc(128 * NKD * 1024)
HF = alloc(128 * NKF * 1024)
QF = alloc(H * 64 * 1280)
KVF = alloc(64 * 3072)
MEAN = alloc(S * 4)
RSTD = alloc(S * 4)
G = alloc(S * 4)
CS1 = alloc(D * 4)
CS3 = alloc(F * 4 + 1024)
K2 = alloc(S * 4)
X1ST = alloc(8 * S * 8)
KMAX = alloc(512)
FLAGS = alloc(4096)
CS3P = alloc(20 * 1728 * 4)
STAMP = alloc(16 * 512 * 4 * 64)
WS_END = off
SZ_WDD = 40 * NKD * 1024
SZ_W3 = 108 * NKD * 1024
SZ_W4 = 40 * NKF * 1024
SZ_XF = 128 * NKD * 1024
SZ_HF = 128 * NKF * 1024
SZ_QF = H * 64 * 1280
SZ_KVF = 64 * 3072
```

```python
import sys
sys.path.insert(0, "work")
from asmfw import *
import layout as L

KA = dict(x=0, wq=8, wk=16, wv=24, wo=32, bx=40, w1=48, w2=56, w3=64, w4=72, gw=80, out=88, dbg=96, ws=104)
OOB = 0x7F000000
LOG2E = 1.4426950408889634

def f32bits(x):
    import struct
    return struct.unpack("<I", struct.pack("<f", x))[0]

def srd(k, r, p, off, size):
    if off:
        k.e(f"s_add_u32 s{r}, s{p}, {off}")
        k.e(f"s_addc_u32 s{r+1}, s{p+1}, 0")
    else:
        k.e(f"s_mov_b32 s{r}, s{p}")
        k.e(f"s_mov_b32 s{r+1}, s{p+1}")
    k.e(f"s_mov_b32 s{r+2}, {size}")
    k.e(f"s_mov_b32 s{r+3}, 0x20000")

def ldptr(k, sreg, name):
    k.e(f"s_load_dwordx2 s[{sreg}:{sreg+1}], s[0:1], {KA[name]}")

def xlane_add(k, v, tmp, addr_xor16, addr_xor32):
    k.e(f"ds_bpermute_b32 v{tmp}, v{addr_xor16}, v{v}")
    k.e("s_waitcnt lgkmcnt(0)")
    k.e(f"v_add_f32 v{v}, v{v}, v{tmp}")
    k.e(f"ds_bpermute_b32 v{tmp}, v{addr_xor32}, v{v}")
    k.e("s_waitcnt lgkmcnt(0)")
    k.e(f"v_add_f32 v{v}, v{v}, v{tmp}")

def gen_prep():
    k = Kern("prep_kernel")
    NA = [("wq", L.WQP, 1280, 10, 20, 50), ("w1", L.W1P, 1280, 10, 20, 50), ("w2", L.W2P, 1280, 10, 20, 50),
          ("wo", L.WOP, 1280, 10, 20, 50), ("w3", L.W3P, 3456, 27, 20, 135), ("w4", L.W4P, 1280, 10, 54, 135)]
    k.e("s_cmp_ge_u32 s2, 532"); k.e(f"s_cbranch_scc1 {k.name}_end")
    ldptr(k, 4, "ws")
    k.e("v_lshrrev_b32 v1, 6, v0"); k.e("v_and_b32 v2, 63, v0")
    k.e("v_readfirstlane_b32 s3, v1")
    start = 0
    labs = []
    for (nm, dst, ld, ncg, nks, nwg) in NA:
        lab = f"{k.name}_A_{nm}"
        labs.append(lab)
        k.e(f"s_cmp_lt_u32 s2, {start+nwg}"); k.e(f"s_cbranch_scc1 {lab}")
        start += nwg
    assert start == 470
    k.e("s_cmp_lt_u32 s2, 480"); k.e(f"s_cbranch_scc1 {k.name}_KV")
    k.e("s_cmp_lt_u32 s2, 512"); k.e(f"s_cbranch_scc1 {k.name}_X")
    k.e("s_cmp_lt_u32 s2, 531"); k.e(f"s_cbranch_scc1 {k.name}_CS")
    k.e(f"s_branch {k.name}_Z")
    start = 0
    for (nm, dst, ld, ncg, nks, nwg), lab in zip(NA, labs):
        k.e(f"{lab}:")
        ldptr(k, 6, nm)
        k.e("s_waitcnt lgkmcnt(0)")
        rows = 32 * nks
        srd(k, 8, 6, 0, rows * ld)
        srd(k, 12, 4, dst, (ncg * 4) * nks * 1024)
        k.e(f"s_mov_b32 s16, {ld}"); k.e(f"s_mov_b32 s17, {ncg}"); k.e(f"s_mov_b32 s18, {nks}")
        k.e(f"s_mov_b32 s19, {(1<<32)//ncg + 1}")
        k.e(f"s_sub_u32 s20, s2, {start}")
        k.e(f"s_branch {k.name}_Acommon")
        start += nwg
    k.e(f"{k.name}_Acommon:")
    k.e("s_lshl_b32 s20, s20, 2"); k.e("s_add_u32 s20, s20, s3")
    k.e("s_mul_hi_u32 s21, s20, s19")
    k.e("s_mul_i32 s22, s21, s17"); k.e("s_sub_u32 s22, s20, s22")
    k.e("v_lshrrev_b32 v3, 3, v2"); k.e("v_mul_lo_u32 v3, v3, s16")
    k.e("v_and_b32 v4, 7, v2"); k.e("v_lshlrev_b32 v4, 4, v4"); k.e("v_add_u32 v3, v3, v4")
    k.e("s_mul_i32 s23, s21, s16"); k.e("s_lshl_b32 s23, s23, 5")
    k.e("s_lshl_b32 s24, s22, 7"); k.e("s_add_u32 s23, s23, s24")
    k.e("s_lshl_b32 s25, s16, 3")
    k.e("s_lshl_b32 s26, s3, 12")
    for i in range(4):
        k.e(f"s_add_u32 m0, s26, {i*1024}")
        k.e("s_nop 0")
        k.e("buffer_load_dwordx4 v3, s[8:11], s23 offen lds")
        if i < 3: k.e("s_add_u32 s23, s23, s25")
    k.e("v_lshrrev_b32 v5, 4, v2"); k.e("v_lshlrev_b32 v5, 2, v5")
    k.e("v_and_b32 v6, 15, v2"); k.e("v_lshrrev_b32 v7, 2, v6"); k.e("v_add_u32 v5, v5, v7")
    k.e("v_lshlrev_b32 v5, 7, v5"); k.e("v_and_b32 v6, 3, v2"); k.e("v_lshlrev_b32 v6, 3, v6")
    k.e("v_add_u32 v5, v5, v6"); k.e("v_add_u32 v5, s26, v5")
    k.e("v_lshlrev_b32 v8, 4, v2")
    k.e("s_waitcnt vmcnt(0)")
    for c in range(4):
        k.e(f"ds_read_b64_tr_b16 v[{16+4*c}:{17+4*c}], v5 offset:{c*32}")
        k.e(f"ds_read_b64_tr_b16 v[{18+4*c}:{19+4*c}], v5 offset:{c*32+2048}")
    k.e("s_waitcnt lgkmcnt(0)")
    k.e("s_lshl_b32 s27, s22, 2"); k.e("s_mul_i32 s27, s27, s18"); k.e("s_add_u32 s27, s27, s21"); k.e("s_lshl_b32 s27, s27, 10")
    k.e("s_lshl_b32 s28, s18, 10")
    for c in range(4):
        k.e(f"buffer_store_dwordx4 v[{16+4*c}:{19+4*c}], v8, s[12:15], s27 offen")
        if c < 3: k.e("s_add_u32 s27, s27, s28")
    k.e("s_endpgm")

    k.e(f"{k.name}_KV:")
    ldptr(k, 6, "wk"); ldptr(k, 8, "wv")
    k.e("s_waitcnt lgkmcnt(0)")
    k.e("s_sub_u32 s20, s2, 470"); k.e("s_lshl_b32 s20, s20, 2"); k.e("s_add_u32 s20, s20, s3")
    k.e("s_cmp_ge_u32 s20, 20")
    k.e("s_cselect_b32 s6, s8, s6"); k.e("s_cselect_b32 s7, s9, s7")
    k.e("s_cselect_b32 s21, 20, 0"); k.e("s_cselect_b32 s22, 2, 0")
    k.e("s_sub_u32 s21, s20, s21")
    srd(k, 8, 6, 0, 640 * 40)
    srd(k, 12, 4, L.WKVP, 4 * 20 * 1024)
    k.e("v_lshlrev_b32 v8, 4, v2")
    k.e("s_mul_i32 s23, s21, 1280")
    k.e("s_lshl_b32 s26, s3, 12")
    k.e("s_mov_b32 m0, s26"); k.e("s_nop 0")
    k.e("buffer_load_dwordx4 v8, s[8:11], s23 offen lds")
    k.e("buffer_load_dwordx4 v8, s[8:11], s23 offen offset:1024 lds")
    k.e("v_lshrrev_b32 v5, 4, v2"); k.e("v_lshlrev_b32 v5, 2, v5")
    k.e("v_and_b32 v6, 15, v2"); k.e("v_lshrrev_b32 v7, 2, v6"); k.e("v_add_u32 v5, v5, v7")
    k.e("v_mul_u32_u24 v5, 40, v5"); k.e("v_and_b32 v6, 3, v2"); k.e("v_lshlrev_b32 v6, 3, v6")
    k.e("v_add_u32 v5, v5, v6"); k.e("v_add_u32 v5, s26, v5")
    k.e("s_waitcnt vmcnt(0)")
    for c in range(2):
        k.e(f"ds_read_b64_tr_b16 v[{16+4*c}:{17+4*c}], v5 offset:{c*32}")
        k.e(f"ds_read_b64_tr_b16 v[{18+4*c}:{19+4*c}], v5 offset:{c*32+640}")
    k.e("s_waitcnt lgkmcnt(0)")
    k.e("s_mul_i32 s27, s22, 20"); k.e("s_add_u32 s27, s27, s21"); k.e("s_lshl_b32 s27, s27, 10")
    k.e("buffer_store_dwordx4 v[16:19], v8, s[12:15], s27 offen")
    k.e(f"s_add_u32 s27, s27, {20*1024}")
    k.e("buffer_store_dwordx4 v[20:23], v8, s[12:15], s27 offen")
    k.e("s_endpgm")

    k.e(f"{k.name}_X:")
    ldptr(k, 6, "x"); ldptr(k, 16, "gw")
    k.e("s_waitcnt lgkmcnt(0)")
    k.e("s_sub_u32 s20, s2, 480"); k.e("s_lshl_b32 s20, s20, 2"); k.e("s_add_u32 s20, s20, s3")
    srd(k, 8, 6, 0, 2048 * 1280)
    srd(k, 12, 4, L.XF, L.SZ_XF)
    k.e("s_mov_b32 s6, s16"); k.e("s_mov_b32 s7, s17")
    srd(k, 16, 6, 0, 1280)
    srd(k, 24, 4, L.MEAN, 3 * 8192)
    assert L.RSTD == L.MEAN + 8192 and L.G == L.MEAN + 16384
    k.e("v_and_b32 v3, 15, v2"); k.e("v_lshrrev_b32 v4, 4, v2")
    k.e("s_lshl_b32 s21, s20, 4"); k.e("v_add_u32 v5, s21, v3")
    k.e("v_mul_u32_u24 v6, 1280, v5"); k.e("v_lshlrev_b32 v7, 3, v4"); k.e("v_add_u32 v6, v6, v7")
    k.e("v_lshlrev_b32 v8, 4, v2")
    k.e("s_mul_i32 s22, s20, 20"); k.e("s_lshl_b32 s22, s22, 10")
    k.e("s_mov_b32 s23, 0x3f803f80")
    k.e("v_mov_b32 v10, 0"); k.e("v_mov_b32 v11, 0"); k.e("v_mov_b32 v12, 0")
    for half in range(2):
        for i in range(10):
            ks = half * 10 + i
            k.e(f"buffer_load_dwordx2 v[{16+4*i}:{17+4*i}], v6, s[8:11], 0 offen offset:{ks*64}")
            k.e(f"buffer_load_dwordx2 v[{18+4*i}:{19+4*i}], v6, s[8:11], 0 offen offset:{ks*64+32}")
            k.e(f"buffer_load_dwordx2 v[{56+4*i}:{57+4*i}], v7, s[16:19], 0 offen offset:{ks*64}")
            k.e(f"buffer_load_dwordx2 v[{58+4*i}:{59+4*i}], v7, s[16:19], 0 offen offset:{ks*64+32}")
        k.e("s_waitcnt vmcnt(0)")
        for i in range(10):
            ks = half * 10 + i
            k.e(f"buffer_store_dwordx4 v[{16+4*i}:{19+4*i}], v8, s[12:15], s22 offen")
            k.e("s_add_u32 s22, s22, 1024")
            for j in range(4):
                k.e(f"v_dot2_f32_bf16 v10, v{16+4*i+j}, s23, v10")
                k.e(f"v_dot2_f32_bf16 v11, v{16+4*i+j}, v{16+4*i+j}, v11")
                k.e(f"v_dot2_f32_bf16 v12, v{16+4*i+j}, v{56+4*i+j}, v12")
        k.e("s_waitcnt vmcnt(0)")
    k.e("v_xor_b32 v13, 16, v2"); k.e("v_lshlrev_b32 v13, 2, v13")
    k.e("v_xor_b32 v14, 32, v2"); k.e("v_lshlrev_b32 v14, 2, v14")
    for v in (10, 11, 12): xlane_add(k, v, 15, 13, 14)
    k.e(f"s_mov_b32 s30, {f32bits(1.0/640)}")
    k.e("v_mul_f32 v10, s30, v10")
    k.e("v_mul_f32 v11, s30, v11")
    k.e("v_fma_f32 v11, -v10, v10, v11")
    k.e(f"v_add_f32 v11, {f32bits(1e-5)}, v11")
    k.e("v_rsq_f32 v11, v11")
    k.e(f"v_mul_f32 v12, {f32bits(-LOG2E)}, v12")
    k.e("v_exp_f32 v12, v12")
    k.e("s_nop 0")
    k.e("v_add_f32 v12, 1.0, v12")
    k.e("v_rcp_f32 v12, v12")
    k.e("v_lshlrev_b32 v5, 2, v5")
    k.e("v_cmp_gt_u32 vcc, 16, v2")
    k.e("s_and_saveexec_b64 s[32:33], vcc")
    k.e("buffer_store_dword v10, v5, s[24:27], 0 offen")
    k.e("s_mov_b32 s34, 8192"); k.e("s_mov_b32 s35, 16384")
    k.e("buffer_store_dword v11, v5, s[24:27], s34 offen")
    k.e("buffer_store_dword v12, v5, s[24:27], s35 offen")
    k.e("s_endpgm")

    k.e(f"{k.name}_CS:")
    ldptr(k, 6, "w1"); ldptr(k, 8, "w3")
    k.e("s_waitcnt lgkmcnt(0)")
    k.e("s_sub_u32 s20, s2, 512")
    k.e("s_cmp_ge_u32 s20, 5")
    k.e("s_cselect_b32 s6, s8, s6"); k.e("s_cselect_b32 s7, s9, s7")
    k.e("s_cselect_b32 s21, 5, 0")
    for (sr, a, b) in ((16, 3456, 1280), (17, 640*3456, 640*1280), (18, L.CS3, L.CS1), (19, 1728*4, 640*4)):
        k.e(f"s_mov_b32 s28, {b}"); k.e(f"s_cselect_b32 s{sr}, {a}, s28")
    k.e("s_sub_u32 s21, s20, s21")
    k.e("s_mov_b32 s8, s6"); k.e("s_mov_b32 s9, s7"); k.e("s_mov_b32 s10, s17"); k.e("s_mov_b32 s11, 0x20000")
    k.e("s_add_u32 s12, s4, s18"); k.e("s_addc_u32 s13, s5, 0"); k.e("s_mov_b32 s14, s19"); k.e("s_mov_b32 s15, 0x20000")
    k.e("v_and_b32 v3, 15, v2"); k.e("v_lshrrev_b32 v4, 4, v2")
    k.e("s_mul_i32 s22, s3, 160"); k.e("v_add_u32 v4, s22, v4")
    k.e("v_mul_lo_u32 v5, v4, s16"); k.e("v_lshlrev_b32 v3, 4, v3"); k.e("v_add_u32 v5, v5, v3")
    k.e("s_lshl_b32 s23, s21, 8")
    k.e("s_lshl_b32 s24, s16, 2")
    for i in range(40):
        k.e(f"buffer_load_dwordx4 v[{32+4*i}:{35+4*i}], v5, s[8:11], s23 offen")
        k.e("s_add_u32 s23, s23, s24")
    for j in range(8): k.e(f"v_mov_b32 v{16+j}, 0")
    k.e("s_mov_b32 s25, 0x00003f80"); k.e("s_mov_b32 s26, 0x3f800000")
    k.e("s_waitcnt vmcnt(0)")
    for i in range(40):
        for j in range(4):
            k.e(f"v_dot2_f32_bf16 v{16+2*j}, v{32+4*i+j}, s25, v{16+2*j}")
            k.e(f"v_dot2_f32_bf16 v{17+2*j}, v{32+4*i+j}, s26, v{17+2*j}")
    k.e("v_xor_b32 v13, 16, v2"); k.e("v_lshlrev_b32 v13, 2, v13")
    k.e("v_xor_b32 v14, 32, v2"); k.e("v_lshlrev_b32 v14, 2, v14")
    for j in range(8): xlane_add(k, 16 + j, 15, 13, 14)
    k.e("v_and_b32 v3, 15, v2"); k.e("v_lshlrev_b32 v3, 5, v3"); k.e("s_lshl_b32 s27, s3, 9"); k.e("v_add_u32 v3, s27, v3")
    k.e("ds_write_b128 v3, v[16:19]"); k.e("ds_write_b128 v3, v[20:23] offset:16")
    k.e("s_waitcnt lgkmcnt(0)"); k.e("s_barrier")
    k.e("v_and_b32 v3, 127, v0"); k.e("v_lshlrev_b32 v3, 2, v3")
    for w in range(4): k.e(f"ds_read_b32 v{16+w}, v3 offset:{w*512}")
    k.e("s_waitcnt lgkmcnt(0)")
    k.e("v_add_f32 v16, v16, v17"); k.e("v_add_f32 v18, v18, v19"); k.e("v_add_f32 v16, v16, v18")
    k.e("s_lshl_b32 s23, s21, 9")
    k.e("buffer_store_dword v16, v3, s[12:15], s23 offen")
    k.e("s_endpgm")

    k.e(f"{k.name}_Z:")
    k.e("s_waitcnt lgkmcnt(0)")
    srd(k, 12, 4, L.HS, L.SZ_XF)
    for j in range(4): k.e(f"v_mov_b32 v{16+j}, 0")
    k.e("v_lshlrev_b32 v3, 4, v0")
    for i in range(5):
        k.e(f"s_mov_b32 s20, {i*4096}")
        k.e("buffer_store_dwordx4 v[16:19], v3, s[12:15], s20 offen")
        k.e(f"s_mov_b32 s20, {127*20*1024 + i*4096}")
        k.e("buffer_store_dwordx4 v[16:19], v3, s[12:15], s20 offen")
    k.e(f"{k.name}_end:")
    k.e("s_endpgm")
    return k, 200, 532, 16384

class G: pass

def gelu(k, y, t0, t1):
    c1 = -2 * LOG2E * 0.7978845608028654 * 0.044715
    c2 = -2 * LOG2E * 0.7978845608028654
    k.e(f"v_mul_f32 v{t0}, v{y}, v{y}")
    k.e(f"v_mul_f32 v{t0}, s{SC_G1}, v{t0}")
    k.e(f"v_add_f32 v{t0}, s{SC_G2}, v{t0}")
    k.e(f"v_mul_f32 v{t0}, v{t0}, v{y}")
    k.e(f"v_exp_f32 v{t0}, v{t0}")
    k.e(f"v_add_f32 v{t0}, 1.0, v{t0}")
    k.e(f"v_rcp_f32 v{t0}, v{t0}")
    k.e(f"v_mul_f32 v{y}, v{y}, v{t0}")
SC_G1, SC_G2 = 90, 91
GELU_C1 = -2 * LOG2E * 0.7978845608028654 * 0.044715
GELU_C2 = -2 * LOG2E * 0.7978845608028654

def gen_gemm(name, nwg, KS, NCB, NSET, segs, decode, epilogue, swap=None):
    k = Kern(name)
    keep = 4 // KS
    swap = swap or [False] * NCB
    k.e(f"s_cmp_ge_u32 s2, {nwg}"); k.e(f"s_cbranch_scc1 {name}_end")
    ldptr(k, 4, "ws"); ldptr(k, 6, "out")
    k.e("v_lshrrev_b32 v1, 6, v0"); k.e("v_and_b32 v2, 63, v0")
    k.e("v_readfirstlane_b32 s3, v1")
    k.e(f"s_mov_b32 s{SC_G1}, {f32bits(GELU_C1)}"); k.e(f"s_mov_b32 s{SC_G2}, {f32bits(GELU_C2)}")
    k.e(f"s_and_b32 s43, s3, {KS-1}"); k.e(f"s_lshr_b32 s44, s3, {KS.bit_length()-1}")
    decode(k)
    k.e("s_mul_i32 s45, s44, s42"); k.e("s_add_u32 s45, s45, s41")
    k.e("s_waitcnt lgkmcnt(0)")
    acc0 = 16
    nl = 4 + NCB
    set0 = acc0 + 16 * NCB
    vx0 = set0 + NSET * nl * 4
    vend = vx0 + len(segs) * nl
    A = lambda r, c: acc0 + (r * NCB + c) * 4
    XS = lambda s, r: set0 + s * nl * 4 + r * 4
    WS = lambda s, c: set0 + s * nl * 4 + (4 + c) * 4
    k.e("v_lshlrev_b32 v3, 4, v2")
    for si, sg in enumerate(segs):
        b = 48 + 8 * si
        srd(k, b, 4, sg["xoff"], sg["xsize"]); srd(k, b + 4, 4, sg["woff"], sg["wsize"])
        for r in range(4):
            k.e(f"s_mul_i32 s46, s43, {keep}"); k.e(f"s_add_u32 s46, s46, {r}"); k.e("s_and_b32 s46, s46, 3")
            k.e("s_lshl_b32 s47, s40, 2"); k.e("s_add_u32 s46, s46, s47")
            k.e(f"s_mul_i32 s46, s46, {sg['nksx']*1024}")
            k.e(f"v_add_u32 v{vx0 + si*nl + r}, s46, v3")
        for c in range(NCB):
            k.e(f"s_add_u32 s46, s45, {c}"); k.e(f"s_mul_i32 s46, s46, {sg['nksw']*1024}")
            k.e(f"v_add_u32 v{vx0 + si*nl + 4 + c}, s46, v3")
    steps = []
    for si, sg in enumerate(segs):
        n = (sg["nks"] + KS - 1) // KS
        for t in range(n): steps.append((si, t))
    T = len(steps)
    def issue(i):
        si, t = steps[i]; sg = segs[si]; b = 48 + 8 * si; s = i % NSET
        k.e(f"s_add_u32 s46, s43, {KS*t}")
        if KS * t + KS - 1 >= sg["nks"]:
            k.e("s_lshl_b32 s47, s46, 10"); k.e(f"s_cmp_lt_u32 s46, {sg['nks']}"); k.e(f"s_cselect_b32 s46, s47, {OOB}")
        else:
            k.e("s_lshl_b32 s46, s46, 10")
        for r in range(4):
            k.e(f"buffer_load_dwordx4 v[{XS(s,r)}:{XS(s,r)+3}], v{vx0+si*nl+r}, s[{b}:{b+3}], s46 offen")
        for c in range(NCB):
            k.e(f"buffer_load_dwordx4 v[{WS(s,c)}:{WS(s,c)+3}], v{vx0+si*nl+4+c}, s[{b+4}:{b+7}], s46 offen")
    for i in range(min(NSET, T)): issue(i)
    for i in range(T):
        ahead = min(T - 1, i + NSET - 1) - i
        k.e(f"s_waitcnt vmcnt({ahead*nl})")
        s = i % NSET
        for c in range(NCB):
            for r in range(4):
                cc = "0" if i == 0 else f"v[{A(r,c)}:{A(r,c)+3}]"
                a, b_ = f"v[{WS(s,c)}:{WS(s,c)+3}]", f"v[{XS(s,r)}:{XS(s,r)+3}]"
                if swap[c]: a, b_ = b_, a
                k.e(f"v_mfma_f32_16x16x32_bf16 v[{A(r,c)}:{A(r,c)+3}], {a}, {b_}, {cc}")
        if i + NSET < T: issue(i + NSET)
    blk = keep * NCB * 1024
    for j in range(1, KS):
        k.e(f"s_add_u32 s46, s43, {j}"); k.e(f"s_and_b32 s46, s46, {KS-1}")
        k.e(f"s_mul_i32 s47, s44, {KS}"); k.e("s_add_u32 s46, s46, s47")
        k.e(f"s_mul_i32 s46, s46, {(KS-1)*blk}"); k.e(f"s_add_u32 s46, s46, {(j-1)*blk}")
        k.e(f"v_add_u32 v4, s46, v3")
        for ro in range(keep):
            r = j * keep + ro
            for c in range(NCB):
                k.e(f"ds_write_b128 v4, v[{A(r,c)}:{A(r,c)+3}] offset:{(ro*NCB+c)*1024}")
    g = G(); g.k = k; g.keep = keep; g.NCB = NCB; g.A = A; g.tmp0 = set0; g.KS = KS
    g.ntmp = NSET * nl * 4
    if hasattr(epilogue, "pre"): epilogue.pre(g)
    k.e("s_waitcnt lgkmcnt(0)"); k.e("s_barrier")
    k.e(f"s_mul_i32 s46, s3, {(KS-1)*blk}"); k.e("v_add_u32 v4, s46, v3")
    t0 = set0 + g.ntmp - 4 * keep * NCB
    for j in range(1, KS):
        for ro in range(keep):
            for c in range(NCB):
                tt = t0 + (ro * NCB + c) * 4
                k.e(f"ds_read_b128 v[{tt}:{tt+3}], v4 offset:{((j-1)*keep*NCB + ro*NCB + c)*1024}")
        k.e("s_waitcnt lgkmcnt(0)")
        for ro in range(keep):
            for c in range(NCB):
                tt = t0 + (ro * NCB + c) * 4
                for q in range(4):
                    k.e(f"v_add_f32 v{A(ro,c)+q}, v{A(ro,c)+q}, v{tt+q}")
    epilogue(g)
    k.e(f"{name}_end:")
    k.e("s_endpgm")
    lds = 4 * (KS - 1) * blk
    return k, max(vend, 64), nwg, lds

def row_setup(g, r, vrow):
    k = g.k
    k.e(f"s_mul_i32 s46, s43, {g.keep}"); k.e(f"s_add_u32 s46, s46, {r}")
    k.e("s_lshl_b32 s47, s40, 2"); k.e("s_add_u32 s46, s46, s47")
    k.e("s_lshl_b32 s47, s46, 4")
    k.e(f"v_and_b32 v{vrow}, 15, v2"); k.e(f"v_add_u32 v{vrow}, s47, v{vrow}")

def pack4(k, a, p):
    k.e(f"v_cvt_pk_bf16_f32 v{p}, v{a}, v{a+1}")
    k.e(f"v_cvt_pk_bf16_f32 v{p+1}, v{a+2}, v{a+3}")

def f16_soff(k, dst, s_rb, s_cb, nks):
    k.e(f"s_mul_i32 s{dst}, s{s_rb}, {nks}")
    k.e(f"s_lshr_b32 s47, s{s_cb}, 1"); k.e(f"s_add_u32 s{dst}, s{dst}, s47"); k.e(f"s_lshl_b32 s{dst}, s{dst}, 10")
    k.e(f"s_and_b32 s47, s{s_cb}, 1"); k.e("s_lshl_b32 s47, s47, 3"); k.e(f"s_add_u32 s{dst}, s{dst}, s47")

def dec_p1q(k):
    k.e("s_lshr_b32 s40, s2, 3"); k.e("s_and_b32 s41, s2, 7"); k.e("s_mul_i32 s41, s41, 5"); k.e("s_mov_b32 s42, 0")
def epi_q(g):
    k = g.k; T = g.tmp0
    srd(k, 72, 4, L.QF, L.SZ_QF)
    row_setup(g, 0, 5)
    k.e(f"s_mov_b32 s70, {f32bits(LOG2E / (20 ** 0.5))}")
    k.e("v_lshrrev_b32 v6, 4, v2")
    k.e("v_lshrrev_b32 v7, 5, v5"); k.e("v_and_b32 v8, 31, v5")
    for c in range(g.NCB):
        a = g.A(0, c)
        for q in range(4): k.e(f"v_mul_f32 v{a+q}, s70, v{a+q}")
        pack4(k, a, T)
        k.e(f"s_add_u32 s46, s45, {c}"); k.e("s_lshl_b32 s46, s46, 2")
        k.e(f"v_add_u32 v9, s46, v6")
        k.e("v_mul_u32_u24 v10, 205, v9"); k.e("v_lshrrev_b32 v10, 10, v10")
        k.e("v_mul_u32_u24 v11, 5, v10"); k.e("v_sub_u32 v11, v9, v11")
        k.e("v_lshlrev_b32 v12, 6, v10"); k.e("v_add_u32 v12, v12, v7"); k.e("v_mul_u32_u24 v12, 1280, v12")
        k.e("v_lshrrev_b32 v13, 1, v11"); k.e("v_lshlrev_b32 v13, 5, v13"); k.e("v_add_u32 v13, v13, v8"); k.e("v_lshlrev_b32 v13, 4, v13")
        k.e("v_and_b32 v14, 1, v11"); k.e("v_lshlrev_b32 v14, 3, v14"); k.e("v_add_u32 v13, v13, v14")
        k.e("v_lshlrev_b32 v14, 3, v8"); k.e("v_add_u32 v14, 1024, v14")
        k.e("v_cmp_eq_u32 vcc, 4, v11")
        k.e("v_cndmask_b32 v13, v13, v14, vcc")
        k.e("v_add_u32 v12, v12, v13")
        k.e(f"buffer_store_dwordx2 v[{T}:{T+1}], v12, s[72:75], 0 offen")
        k.e("s_nop 0")

def dec_p1h(k):
    dec_p1q(k)
def ln_gelu_block(g, a, vmean, vrstd, cs, T):
    k = g.k
    for q in range(4):
        k.e(f"v_fma_f32 v{a+q}, -v{vmean}, v{cs+q}, v{a+q}")
        k.e(f"v_mul_f32 v{a+q}, v{vrstd}, v{a+q}")
        gelu(k, a + q, T, T + 1)
def epi_h(g):
    k = g.k; T = g.tmp0
    srd(k, 72, 4, L.HS, L.SZ_XF); srd(k, 76, 4, L.MEAN, 2 * 8192); srd(k, 80, 4, L.CS1, 640 * 4)
    row_setup(g, 0, 5)
    k.e("v_lshlrev_b32 v6, 2, v5")
    k.e("buffer_load_dword v7, v6, s[76:79], 0 offen"); k.e("s_mov_b32 s70, 8192")
    k.e("buffer_load_dword v8, v6, s[76:79], s70 offen")
    k.e("v_lshrrev_b32 v9, 4, v2"); k.e("v_lshlrev_b32 v10, 4, v9")
    k.e("s_lshl_b32 s71, s45, 6")
    for c in range(g.NCB):
        k.e(f"buffer_load_dwordx4 v[{T+8+4*c}:{T+11+4*c}], v10, s[80:83], s71 offen offset:{c*64}")
    k.e("s_mul_i32 s84, s45, 205"); k.e("s_lshr_b32 s84, s84, 11")
    k.e("s_lshr_b32 s85, s84, 1"); k.e("s_add_u32 s85, s85, 1")
    k.e("s_and_b32 s86, s84, 1"); k.e("s_sub_u32 s87, 0, s85"); k.e("s_cmp_eq_u32 s86, 0"); k.e("s_cselect_b32 s85, s85, s87")
    k.e("v_add_u32 v11, s85, v5")
    k.e("v_lshrrev_b32 v12, 4, v11"); k.e(f"v_mul_u32_u24 v12, {20*1024}, v12")
    k.e("v_and_b32 v13, 15, v11"); k.e("v_lshlrev_b32 v14, 4, v9"); k.e("v_add_u32 v13, v13, v14"); k.e("v_lshlrev_b32 v13, 4, v13")
    k.e("v_add_u32 v12, v12, v13")
    k.e("v_cmp_gt_u32 vcc, 2048, v11"); k.e(f"v_mov_b32 v13, {OOB}"); k.e("v_cndmask_b32 v12, v13, v12, vcc")
    k.e("s_waitcnt vmcnt(0)")
    for c in range(g.NCB):
        a = g.A(0, c)
        ln_gelu_block(g, a, 7, 8, T + 8 + 4 * c, T)
        pack4(k, a, T + 2)
        k.e(f"s_add_u32 s88, s45, {c}")
        k.e("s_lshr_b32 s46, s88, 1"); k.e("s_lshl_b32 s46, s46, 10"); k.e("s_and_b32 s47, s88, 1"); k.e("s_lshl_b32 s47, s47, 3"); k.e("s_add_u32 s46, s46, s47")
        k.e(f"buffer_store_dwordx2 v[{T+2}:{T+3}], v12, s[72:75], s46 offen")
        k.e("s_nop 0")

def dec_kv(k):
    k.e("s_mov_b32 s40, s2"); k.e("s_mov_b32 s41, 0"); k.e("s_mov_b32 s42, 0")
def epi_kv(g):
    k = g.k; T = g.tmp0
    srd(k, 72, 4, L.KVF, L.SZ_KVF); srd(k, 76, 4, L.K2, 8192)
    row_setup(g, 0, 5)
    k.e("s_mov_b32 s70, s46")
    k.e("v_lshrrev_b32 v6, 4, v2")
    k.e("v_and_b32 v7, 15, v2")
    k.e("s_lshr_b32 s71, s70, 1"); k.e("s_mul_i32 s71, s71, 3072")
    k.e("v_and_b32 v8, 31, v5")
    a = g.A(0, 0); pack4(k, a, T)
    k.e("v_lshrrev_b32 v9, 1, v6"); k.e("v_lshlrev_b32 v9, 5, v9"); k.e("v_add_u32 v9, v9, v8"); k.e("v_lshlrev_b32 v9, 4, v9")
    k.e("v_and_b32 v10, 1, v6"); k.e("v_lshlrev_b32 v10, 3, v10"); k.e("v_add_u32 v9, v9, v10")
    k.e(f"buffer_store_dwordx2 v[{T}:{T+1}], v9, s[72:75], s71 offen")
    k.e(f"v_dot2_f32_bf16 v11, v{T}, v{T}, 0"); k.e(f"v_dot2_f32_bf16 v11, v{T+1}, v{T+1}, v11")
    a = g.A(0, 1); pack4(k, a, T + 2)
    k2_addr(k, 8, 12, 13)
    k.e("v_cmp_eq_u32 vcc, 0, v6"); k.e(f"v_mov_b32 v13, {OOB}"); k.e("v_cndmask_b32 v12, v13, v12, vcc")
    k.e(f"buffer_store_dwordx2 v[{T+2}:{T+3}], v12, s[72:75], s71 offen")
    k.e(f"v_dot2_f32_bf16 v14, v{T+2}, v{T+2}, 0"); k.e(f"v_dot2_f32_bf16 v14, v{T+3}, v{T+3}, v14")
    k.e("v_cndmask_b32 v14, 0, v14, vcc"); k.e("v_add_f32 v11, v11, v14")
    k.e("v_xor_b32 v13, 16, v2"); k.e("v_lshlrev_b32 v13, 2, v13"); k.e("v_xor_b32 v14, 32, v2"); k.e("v_lshlrev_b32 v14, 2, v14")
    xlane_add(k, 11, 15, 13, 14)
    k.e("v_lshlrev_b32 v13, 2, v5")
    k.e("buffer_store_dword v11, v13, s[76:79], 0 offen")
    k.e("s_and_b32 s84, s70, 1"); k.e("s_lshl_b32 s84, s84, 10"); k.e("s_add_u32 s84, s84, 1024"); k.e("s_add_u32 s84, s84, s71")
    k.e("v_and_b32 v9, 1, v6"); k.e("v_lshlrev_b32 v9, 5, v9"); k.e("v_add_u32 v9, v9, v7"); k.e("v_lshlrev_b32 v9, 4, v9")
    k.e("v_lshrrev_b32 v10, 1, v6"); k.e("v_lshlrev_b32 v10, 3, v10"); k.e("v_add_u32 v9, v9, v10")
    a = g.A(0, 2); pack4(k, a, T + 4)
    k.e(f"buffer_store_dwordx2 v[{T+4}:{T+5}], v9, s[72:75], s84 offen")
    a = g.A(0, 3); pack4(k, a, T + 6)
    k.e("v_mov_b32 v13, 0x3f803f80")
    k.e("v_cmp_gt_u32 vcc, 4, v7")
    k.e(f"v_cndmask_b32 v{T+6}, v13, v{T+6}, vcc"); k.e(f"v_cndmask_b32 v{T+7}, v13, v{T+7}, vcc")
    k.e("v_add_u32 v9, 256, v9")
    k.e("v_and_b32 v10, 11, v7")
    k.e("v_cmp_eq_u32 s[86:87], 8, v10")
    k.e("s_or_b64 vcc, vcc, s[86:87]")
    k.e(f"v_mov_b32 v13, {OOB}"); k.e("v_cndmask_b32 v9, v13, v9, vcc")
    k.e(f"buffer_store_dwordx2 v[{T+6}:{T+7}], v9, s[72:75], s84 offen")

def k2_addr(k, vkey, vdst, vt):
    k.e(f"v_lshrrev_b32 v{vt}, 3, v{vkey}")
    k.e(f"v_lshlrev_b32 v{vdst}, 9, v{vt}")
    k.e(f"v_add_u32 v{vdst}, 1344, v{vdst}")
    k.e(f"v_and_b32 v{vt}, 7, v{vkey}"); k.e(f"v_lshlrev_b32 v{vt}, 3, v{vt}")
    k.e(f"v_add_u32 v{vdst}, v{vdst}, v{vt}")

def dec_p2(k): dec_p1q(k)
def epi_x1(g):
    k = g.k; T = g.tmp0
    srd(k, 72, 4, L.X1F, L.SZ_XF); srd(k, 76, 4, L.XF, L.SZ_XF); srd(k, 80, 4, L.X1ST, 8 * 2048 * 8)
    row_setup(g, 0, 5)
    k.e("s_mov_b32 s70, s46")
    for c in range(g.NCB):
        k.e(f"s_add_u32 s88, s45, {c}"); f16_soff(k, 84, 70, 88, 20)
        k.e(f"buffer_load_dwordx2 v[{T+8+2*c}:{T+9+2*c}], v3, s[76:79], s84 offen")
    k.e("v_mov_b32 v6, 0"); k.e("v_mov_b32 v7, 0"); k.e("s_mov_b32 s71, 0x3f803f80")
    k.e("s_waitcnt vmcnt(0)")
    for c in range(g.NCB):
        a = g.A(0, c); xr = T + 8 + 2 * c
        k.e(f"v_lshlrev_b32 v8, 16, v{xr}"); k.e(f"v_and_b32 v9, 0xffff0000, v{xr}")
        k.e(f"v_lshlrev_b32 v10, 16, v{xr+1}"); k.e(f"v_and_b32 v11, 0xffff0000, v{xr+1}")
        for q in range(4): k.e(f"v_add_f32 v{a+q}, v{a+q}, v{8+q}")
        pack4(k, a, T)
        k.e(f"s_add_u32 s88, s45, {c}"); f16_soff(k, 84, 70, 88, 20)
        k.e(f"buffer_store_dwordx2 v[{T}:{T+1}], v3, s[72:75], s84 offen")
        for q in range(2):
            k.e(f"v_dot2_f32_bf16 v6, v{T+q}, s71, v6"); k.e(f"v_dot2_f32_bf16 v7, v{T+q}, v{T+q}, v7")
    k.e("v_xor_b32 v13, 16, v2"); k.e("v_lshlrev_b32 v13, 2, v13"); k.e("v_xor_b32 v14, 32, v2"); k.e("v_lshlrev_b32 v14, 2, v14")
    xlane_add(k, 6, 15, 13, 14); xlane_add(k, 7, 15, 13, 14)
    k.e("v_lshlrev_b32 v8, 3, v5"); k.e("s_and_b32 s84, s2, 7"); k.e("s_lshl_b32 s84, s84, 14")
    k.e("buffer_store_dwordx2 v[6:7], v8, s[80:83], s84 offen")

def dec_p3(k):
    k.e("s_lshr_b32 s40, s2, 3"); k.e("s_and_b32 s41, s2, 7")
    k.e("s_sub_u32 s46, s41, 4"); k.e("s_max_i32 s46, s46, 0"); k.e("s_mul_i32 s47, s41, 14"); k.e("s_sub_u32 s92, s47, s46")
    k.e("s_cmp_ge_u32 s41, 4"); k.e("s_cselect_b32 s93, 13, 14")
    k.e("s_mov_b32 s41, s92"); k.e("s_mov_b32 s42, 7")
def epi_hf(g):
    k = g.k; T = g.tmp0
    srd(k, 72, 4, L.HF, L.SZ_HF); srd(k, 76, 4, L.X1ST, 8 * 2048 * 8); srd(k, 80, 4, L.CS3, 1728 * 4); srd(k, 84, 4, L.G, 8192)
    k.e("v_lshrrev_b32 v9, 4, v2"); k.e("v_lshlrev_b32 v10, 4, v9")
    k.e("s_lshl_b32 s71, s45, 6")
    CS = T + 8
    for c in range(g.NCB):
        k.e(f"buffer_load_dwordx4 v[{CS+4*c}:{CS+3+4*c}], v10, s[80:83], s71 offen offset:{c*64}")
    k.e("s_add_u32 s94, s92, s93")
    for r in range(g.keep):
        row_setup(g, r, 5)
        k.e("s_mov_b32 s70, s46")
        k.e("v_lshlrev_b32 v6, 3, v5")
        ST = T + 40
        for j in range(8):
            k.e(f"s_mov_b32 s47, {j*16384}")
            k.e(f"buffer_load_dwordx2 v[{ST+2*j}:{ST+1+2*j}], v6, s[76:79], s47 offen")
        k.e("v_lshlrev_b32 v6, 2, v5")
        k.e("buffer_load_dword v11, v6, s[84:87], 0 offen")
        k.e("s_waitcnt vmcnt(0)")
        for j in range(1, 8):
            k.e(f"v_add_f32 v{ST}, v{ST}, v{ST+2*j}"); k.e(f"v_add_f32 v{ST+1}, v{ST+1}, v{ST+1+2*j}")
        k.e(f"v_mul_f32 v7, {f32bits(1/640)}, v{ST}"); k.e(f"v_mul_f32 v8, {f32bits(1/640)}, v{ST+1}")
        k.e("v_fma_f32 v8, -v7, v7, v8"); k.e(f"v_add_f32 v8, {f32bits(1e-5)}, v8"); k.e("v_rsq_f32 v8, v8")
        k.e("v_sub_f32 v11, 1.0, v11")
        for c in range(g.NCB):
            a = g.A(r, c)
            ln_gelu_block(g, a, 7, 8, CS + 4 * c, T)
            for q in range(4): k.e(f"v_mul_f32 v{a+q}, v11, v{a+q}")
            pack4(k, a, T + 2)
            k.e(f"s_add_u32 s88, s45, {c}"); f16_soff(k, 89, 70, 88, 54)
            k.e(f"s_cmp_lt_u32 s88, s94"); k.e(f"s_cselect_b32 s89, s89, {OOB}")
            k.e(f"buffer_store_dwordx2 v[{T+2}:{T+3}], v3, s[72:75], s89 offen")
            k.e("s_nop 0")

def epi_out(g):
    k = g.k; T = g.tmp0
    srd(k, 72, 6, 0, 2048 * 1280); srd(k, 76, 4, L.X1F, L.SZ_XF); srd(k, 84, 4, L.G, 8192)
    row_setup(g, 0, 5)
    k.e("s_mov_b32 s70, s46")
    for c in range(g.NCB):
        k.e(f"s_add_u32 s88, s45, {c}"); f16_soff(k, 89, 70, 88, 20)
        k.e(f"buffer_load_dwordx2 v[{T+8+2*c}:{T+9+2*c}], v3, s[76:79], s89 offen")
    k.e("v_lshlrev_b32 v6, 2, v5")
    k.e("buffer_load_dword v7, v6, s[84:87], 0 offen")
    k.e("v_mul_u32_u24 v12, 1280, v5"); k.e("v_lshrrev_b32 v13, 4, v2"); k.e("v_lshlrev_b32 v13, 3, v13"); k.e("v_add_u32 v12, v12, v13")
    k.e("s_lshl_b32 s71, s45, 5")
    k.e("s_waitcnt vmcnt(0)")
    k.e("v_sub_f32 v7, 1.0, v7")
    for c in range(g.NCB):
        a = g.A(0, c); xr = T + 8 + 2 * c
        k.e(f"v_lshlrev_b32 v8, 16, v{xr}"); k.e(f"v_and_b32 v9, 0xffff0000, v{xr}")
        k.e(f"v_lshlrev_b32 v10, 16, v{xr+1}"); k.e(f"v_and_b32 v11, 0xffff0000, v{xr+1}")
        for q in range(4): k.e(f"v_fma_f32 v{a+q}, v7, v{8+q}, v{a+q}")
        pack4(k, a, T)
        k.e(f"buffer_store_dwordx2 v[{T}:{T+1}], v12, s[72:75], s71 offen offset:{c*32}")
        k.e("s_nop 0")

from gen_attn import gen_attn

def build_all():
    ks = []
    ks.append(gen_prep())
    segD = lambda xoff, woff, wsize=L.SZ_WDD: dict(xoff=xoff, xsize=L.SZ_XF, nksx=20, woff=woff, wsize=wsize, nksw=20, nks=20)
    ks.append(gen_gemm("p1q_kernel", 256, 4, 5, 3, [segD(L.XF, L.WQP)], dec_p1q, epi_q))
    ks.append(gen_gemm("p1h_kernel", 256, 4, 5, 3, [segD(L.XF, L.W1P)], dec_p1h, epi_h))
    ks.append(gen_gemm("p1kv_kernel", 32, 4, 4, 3, [segD(L.XF, L.WKVP, 4*20*1024)], dec_kv, epi_kv, swap=[False, False, True, True]))
    ks.append(gen_attn())
    ks.append(gen_gemm("p2_kernel", 256, 4, 5, 3, [segD(L.HS, L.W2P)], dec_p2, epi_x1))
    ks.append(gen_gemm("p3_kernel", 256, 2, 7, 2, [segD(L.X1F, L.W3P, L.SZ_W3)], dec_p3, epi_hf))
    segH = dict(xoff=L.HF, xsize=L.SZ_HF, nksx=54, woff=L.W4P, wsize=L.SZ_W4, nksw=54, nks=54)
    ks.append(gen_gemm("p4_kernel", 256, 4, 5, 3, [segH, segD(L.OF, L.WOP)], dec_p2, epi_out))
    return ks

def assemble_text(ks, header_comment=""):
    s = header_comment
    for (k, vg, nwg, lds) in ks:
        s += f"; @launch kernel={k.name} grid=({nwg},1,1) block=(256,1,1) lds={lds}\n"
    s += '.amdgcn_target "amdgcn-amd-amdhsa--gfx950"\n.text\n'
    for (k, vg, nwg, lds) in ks:
        s += kernel_text(k, vg)
    s += '.section .rodata,"a"\n'
    for (k, vg, nwg, lds) in ks:
        s += descriptor(k.name, (vg + 7) // 8 * 8, 100)
    return s

if __name__ == "__main__":
    ks = build_all()
    out = sys.argv[1] if len(sys.argv) > 1 else "base.s"
    open(out, "w").write(assemble_text(ks))
    for (k, vg, nwg, lds) in ks: print(k.name, "vgpr", vg, "wg", nwg, "lds", lds, "lines", len(k.lines))
```

```python
import re

TRANS = ("v_exp_f32", "v_log_f32", "v_rcp_f32", "v_rsq_f32", "v_sqrt_f32", "v_sin_f32", "v_cos_f32",
         "v_exp_f16", "v_rcp_f16", "v_rcp_iflag_f32")

def _split_ops(s):
    out, depth, cur = [], 0, ""
    for ch in s:
        if ch == "[": depth += 1
        if ch == "]": depth -= 1
        if ch == "," and depth == 0:
            out.append(cur.strip()); cur = ""
        else:
            cur += ch
    if cur.strip(): out.append(cur.strip())
    return out

_reg_re = re.compile(r"^(-|\|)?(abs\()?([vsa])(\d+|\[(\d+):(\d+)\])")
def regs_of(op):
    op = op.strip()
    t = op.split()[0] if op else ""
    t = t.lstrip("-").strip("|")
    if t.startswith("abs("): t = t[4:].rstrip(")")
    if t in ("vcc", "vcc_lo", "vcc_hi"): return [("s", "vcc")]
    if t in ("exec", "exec_lo", "exec_hi"): return [("s", "exec")]
    if t == "m0": return [("s", "m0")]
    if t == "scc": return [("s", "scc")]
    m = re.match(r"^([vsa])(\d+)$", t)
    if m: return [(m.group(1), int(m.group(2)))]
    m = re.match(r"^([vsa])\[(\d+):(\d+)\]$", t)
    if m: return [(m.group(1), i) for i in range(int(m.group(2)), int(m.group(3)) + 1)]
    return []

class Ins:
    __slots__ = ("text", "mn", "cls", "vw", "vr", "sw", "sr", "passes", "srcc", "is_store_wide", "ab")
    def __init__(self, text):
        self.text = text
        t = text.split(";")[0].split("//")[0].strip()
        self.vw, self.vr, self.sw, self.sr = set(), set(), set(), set()
        self.passes = 0; self.srcc = set(); self.is_store_wide = False; self.ab = set()
        if not t or t.endswith(":") or t.startswith("."):
            self.mn = t; self.cls = "label" if t.endswith(":") else "dir"; return
        parts = t.split(None, 1)
        mn = parts[0]; self.mn = mn
        ops = _split_ops(parts[1]) if len(parts) > 1 else []
        R = [regs_of(o) for o in ops]
        def V(lst): return {r for r in lst if r[0] in ("v", "a")}
        def S(lst): return {r for r in lst if r[0] == "s"}
        allv = lambda idx: set().union(*[V(R[i]) for i in idx]) if idx else set()
        alls = lambda idx: set().union(*[S(R[i]) for i in idx]) if idx else set()
        n = len(ops)
        if mn.startswith("v_mfma"):
            self.cls = "mfma"
            self.vw = V(R[0]); self.ab = V(R[1]) | V(R[2]); self.srcc = V(R[3]); self.vr = self.ab | self.srcc
            self.passes = 8 if "32x32" in mn else 4
        elif mn.startswith("v_cmp"):
            self.cls = "valu"
            self.sw = S(R[0]); self.vr = allv(range(1, n)); self.sr = alls(range(1, n))
            if mn.startswith("v_cmpx"): self.sw |= {("s", "exec")}
        elif mn in ("v_readfirstlane_b32", "v_readlane_b32"):
            self.cls = "valu"; self.sw = S(R[0]); self.vr = allv(range(1, n)); self.sr = alls(range(1, n))
        elif mn == "v_writelane_b32":
            self.cls = "valu"; self.vw = V(R[0]); self.vr = set(self.vw); self.sr = alls(range(1, n))
        elif mn.startswith("v_permlane") and "swap" in mn:
            self.cls = "valu"; self.vw = V(R[0]) | V(R[1]); self.vr = set(self.vw)
        elif mn.startswith("v_"):
            self.cls = "trans" if any(mn.startswith(x) for x in TRANS) else "valu"
            self.vw = V(R[0]); rest = range(1, n)
            if mn.startswith(("v_add_co", "v_sub_co", "v_addc_co", "v_subb_co", "v_subrev_co")):
                self.sw = S(R[1]); rest = range(2, n)
            self.vr = allv(rest); self.sr = alls(rest)
            if mn.startswith(("v_fmac", "v_dot2c", "v_mac", "v_pk_fmac")) or "UNUSED_PRESERVE" in t or "_dpp" in mn or mn.startswith("v_accvgpr_write") and False:
                self.vr |= self.vw
            if mn.startswith("v_cndmask") and n == 3: self.sr |= {("s", "vcc")}
        elif mn.startswith(("buffer_load", "global_load")):
            lds = re.search(r"\blds\b", t) is not None or "load_lds" in mn
            self.cls = "vmem"
            if lds:
                self.vr = allv(range(0, n)); self.sr = alls(range(0, n)) | {("s", "m0")}
                self.cls = "ldsdma"
            else:
                self.vw = V(R[0]); self.vr = allv(range(1, n)); self.sr = alls(range(1, n))
        elif mn.startswith(("buffer_store", "global_store", "buffer_atomic", "global_atomic")):
            self.cls = "vmem"; self.vr = allv(range(0, n)); self.sr = alls(range(0, n))
            if "x4" in mn or "x3" in mn:
                self.is_store_wide = True
                self.srcc = V(R[0]) if mn.startswith("buffer") else V(R[1])
            if "atomic" in mn and re.search(r"\bsc0\b", t):
                self.vw = V(R[0])
        elif mn.startswith("buffer_") :
            self.cls = "vmem"
        elif mn.startswith("ds_"):
            self.cls = "ds"
            if mn.startswith(("ds_read", "ds_bpermute", "ds_permute", "ds_swizzle")) or "_rtn" in mn:
                self.vw = V(R[0]); self.vr = allv(range(1, n))
            else:
                self.vr = allv(range(0, n))
        elif mn.startswith("s_"):
            self.cls = "salu"
            if mn in ("s_nop", "s_waitcnt", "s_barrier", "s_endpgm", "s_branch", "s_setprio", "s_sleep") or mn.startswith("s_cbranch"):
                pass
            elif mn.startswith("s_cmp"):
                self.sr = alls(range(0, n)); self.sw = {("s", "scc")}
            else:
                self.sw = S(R[0]) if R else set(); self.sr = alls(range(1, n))
                if "saveexec" in mn: self.sw |= {("s", "exec")}
        else:
            raise ValueError("unknown instruction: " + text)

    def states(self):
        if self.cls in ("label", "dir"): return 0
        if self.mn == "s_nop":
            return int(self.text.split()[1], 0) + 1
        return 1

def required(prod, cons):
    need = 0
    pv = prod.cls in ("valu", "trans")
    cv = cons.cls in ("valu", "trans")
    if pv:
        if cons.cls == "mfma" and (prod.vw & cons.vr): need = max(need, 2)
        if prod.cls == "trans" and cv and cons.cls != "trans" and (prod.vw & cons.vr): need = max(need, 1)
        if prod.cls == "trans" and cons.cls == "trans" and (prod.vw & cons.vr): need = max(need, 1)
        if prod.sw:
            sw = prod.sw - {("s", "exec")}
            if cons.cls in ("vmem", "ldsdma") and (sw & cons.sr): need = max(need, 5)
            if cv and (sw & cons.sr):
                need = max(need, 4 if cons.mn in ("v_readlane_b32", "v_writelane_b32") else 2)
            if ("s", "exec") in prod.sw and (cv or cons.cls == "mfma"): need = max(need, 4)
        if cons.mn in ("v_readfirstlane_b32", "v_readlane_b32") and (prod.vw & cons.vr): need = max(need, 1)
        if cons.mn.startswith("v_permlane") and (prod.vw & cons.vr): need = max(need, 2)
        if "_dpp" in cons.mn and (prod.vw & cons.vr): need = max(need, 2)
        if ("SDWA" in prod.text or "_sdwa" in prod.mn or "op_sel" in prod.text) and cv and (prod.vw & (cons.vr | cons.vw)): need = max(need, 1)
    if prod.mn.startswith("v_dot"):
        if cons.mn == prod.mn:
            ops = _split_ops(cons.text.split(";")[0].split(None, 1)[1])
            ab = set(regs_of(ops[1])) | set(regs_of(ops[2]))
            if prod.vw & ab: need = max(need, 3)
        elif prod.vw & (cons.vr | cons.vw): need = max(need, 3)
    if prod.cls == "mfma":
        p = prod.passes
        raw = {4: 8, 8: 12}[p]
        if cons.cls == "mfma":
            if prod.vw & cons.ab: need = max(need, raw)
            ov = prod.vw & cons.srcc
            if ov:
                if cons.srcc == prod.vw and cons.passes == p: pass
                else: need = max(need, {4: 6, 8: 10}[p])
            if (prod.vw & cons.vw) and not (cons.vw == prod.vw): need = max(need, raw)
            if (prod.vw & cons.vw) and (cons.vw == prod.vw) and not (cons.srcc == prod.vw): need = max(need, raw)
        elif cv or cons.cls in ("vmem", "ds", "ldsdma"):
            if prod.vw & (cons.vr | cons.vw): need = max(need, raw)
        if cv and (prod.srcc & cons.vw): need = max(need, {4: 3, 8: 7}[p])
    if prod.is_store_wide and (prod.srcc & cons.vw):
        need = max(need, 2 if cv else 1)
    if prod.cls == "salu" and ("s", "m0") in prod.sw and cons.cls == "ldsdma": need = max(need, 1)
    return need

class Kern:
    def __init__(self, name):
        self.name = name; self.lines = []; self._lab = 0
    def e(self, s):
        for ln in s.split("\n"):
            ln = ln.strip()
            if ln: self.lines.append(ln)
    def label(self, base="L"):
        self._lab += 1
        return f"{self.name}_{base}{self._lab}"
    def c(self, s): self.lines.append("; " + s)

    def finalize(self, verbose=True, strict_regions=()):
        ins = [Ins(l) if not l.startswith(";") else None for l in self.lines]
        MAXD = 14
        out = []
        inserted = []
        def pending_need(hist, cur):
            need = 0; dist = 0
            for p in reversed(hist):
                if dist >= MAXD: break
                r = required(p, cur)
                if r > dist: need = max(need, r - dist)
                dist += p.states()
            return need
        hist = []
        labels = {}
        for idx, (i, l) in enumerate(zip(ins, self.lines)):
            if i is None: out.append(l); continue
            if i.cls == "label":
                labels[i.mn[:-1]] = len(out); out.append(l); continue
            if i.cls == "dir": out.append(l); continue
            nd = pending_need(hist, i)
            if nd > 0:
                nop = Ins(f"s_nop {nd-1}")
                out.append(nop.text + " ; hz"); hist.append(nop); inserted.append((l, nd))
            out.append(l); hist.append(i)
            if len(hist) > 64: hist = hist[-32:]
            if (i.mn.startswith("s_cbranch") or i.mn == "s_branch"):
                tgt = l.split()[1]
                if tgt in labels:
                    h2 = list(hist); k = labels[tgt]; seen = 0
                    while k < len(out) and seen < MAXD:
                        t = out[k]; k += 1
                        if t.startswith(";"): continue
                        j = Ins(t)
                        if j.cls in ("label", "dir"): continue
                        nd2 = pending_need(h2, j)
                        if nd2 > 0:
                            raise RuntimeError(f"loop-carried hazard at {tgt}: '{t}' needs {nd2} more states")
                        h2.append(j); seen += j.states()
                else:
                    self._fwd = getattr(self, "_fwd", [])
                    self._fwd.append((tgt, list(hist[-16:])))
        for tgt, h in getattr(self, "_fwd", []):
            if tgt not in labels: raise RuntimeError("unknown label " + tgt)
            h2 = list(h); k = labels[tgt]; seen = 0
            while k < len(out) and seen < MAXD:
                t = out[k]; k += 1
                if t.startswith(";"): continue
                j = Ins(t.replace(" ; hz", ""))
                if j.cls in ("label", "dir"): continue
                nd2 = pending_need(h2, j)
                if nd2 > 0:
                    raise RuntimeError(f"forward-branch hazard at {tgt}: '{t}' needs {nd2} more states")
                h2.append(j); seen += j.states()
        if verbose and inserted:
            print(f"[{self.name}] inserted {len(inserted)} hazard nops")
        self.inserted = inserted
        return out

def kernel_text(k, vgprs, sgprs=100, agprs=0, verbose=True):
    body = k.finalize(verbose)
    s = f".globl {k.name}\n.p2align 8\n.type {k.name},@function\n{k.name}:\n"
    for l in body:
        s += (l if (l.endswith(":") or l.startswith(".")) else "  " + l) + "\n"
    return s

def descriptor(name, vgprs, sgprs=100, agprs=0):
    acc = (vgprs + 3) // 4 * 4
    return f""".p2align 6
.amdhsa_kernel {name}
  .amdhsa_next_free_vgpr {acc + agprs if agprs else vgprs}
  .amdhsa_next_free_sgpr {sgprs}
  .amdhsa_accum_offset {acc}
  .amdhsa_group_segment_fixed_size 0
  .amdhsa_kernarg_size 112
  .amdhsa_user_sgpr_count 2
  .amdhsa_user_sgpr_kernarg_segment_ptr 1
  .amdhsa_system_sgpr_workgroup_id_x 1
  .amdhsa_float_denorm_mode_32 3
.end_amdhsa_kernel
"""


class Stamps:
    def __init__(self, k, enabled, sbase=60, kidx=0):
        self.k = k; self.on = enabled; self.sb = sbase; self.n = 0; self.kidx = kidx
    def stamp(self, real=False):
        if not self.on: return
        r = self.sb + 2 * self.n; self.n += 1
        self.k.e(f"s_memtime s[{r}:{r+1}]" if not real else f"s_memrealtime s[{r}:{r+1}]")
    def flush(self, ws_sreg, stamp_off, wave_sreg, vtmp=250, stmp=36):
        if not self.on: return
        k = self.k
        k.e("s_waitcnt lgkmcnt(0)")
        k.e(f"s_add_u32 s{stmp}, s{ws_sreg}, {stamp_off + self.kidx*512*4*64}"); k.e(f"s_addc_u32 s{stmp+1}, s{ws_sreg+1}, 0")
        k.e(f"s_lshl_b32 s{stmp+2}, s2, 2"); k.e(f"s_add_u32 s{stmp+2}, s{stmp+2}, s{wave_sreg}"); k.e(f"s_lshl_b32 s{stmp+2}, s{stmp+2}, 6")
        k.e(f"v_mov_b32 v{vtmp}, s{stmp+2}")
        for i in range(self.n):
            k.e(f"v_mov_b32 v{vtmp+1}, s{self.sb+2*i}")
            k.e(f"global_store_dword v{vtmp}, v{vtmp+1}, s[{stmp}:{stmp+1}] offset:{4*i}")
            k.e("s_nop 1")
        k.e("s_waitcnt vmcnt(0)")
```

```python
import sys
sys.path.insert(0, "work")
from asmfw import *
import layout as L

PROF = False
KA = dict(x=0, wq=8, wk=16, wv=24, wo=32, bx=40, w1=48, w2=56, w3=64, w4=72, gw=80, out=88, dbg=96, ws=104)
OOB = 0x7F000000
LOG2E = 1.4426950408889634

def f32bits(x):
    import struct
    return struct.unpack("<I", struct.pack("<f", x))[0]

def srd(k, r, p, off, size):
    if off:
        k.e(f"s_add_u32 s{r}, s{p}, {off}")
        k.e(f"s_addc_u32 s{r+1}, s{p+1}, 0")
    else:
        k.e(f"s_mov_b32 s{r}, s{p}")
        k.e(f"s_mov_b32 s{r+1}, s{p+1}")
    k.e(f"s_mov_b32 s{r+2}, {size}")
    k.e(f"s_mov_b32 s{r+3}, 0x20000")

def ldptr(k, sreg, name):
    k.e(f"s_load_dwordx2 s[{sreg}:{sreg+1}], s[0:1], {KA[name]}")

def xlane_add(k, v, tmp, addr_xor16, addr_xor32):
    k.e(f"ds_bpermute_b32 v{tmp}, v{addr_xor16}, v{v}")
    k.e("s_waitcnt lgkmcnt(0)")
    k.e(f"v_add_f32 v{v}, v{v}, v{tmp}")
    k.e(f"ds_bpermute_b32 v{tmp}, v{addr_xor32}, v{v}")
    k.e("s_waitcnt lgkmcnt(0)")
    k.e(f"v_add_f32 v{v}, v{v}, v{tmp}")

def gen_prep():
    k = Kern("prep_kernel")
    NA = [("wq", L.WQP, 1280, 10, 20, 50), ("w1", L.W1P, 1280, 10, 20, 50), ("w2", L.W2P, 1280, 10, 20, 50),
          ("wo", L.WOP, 1280, 10, 20, 50), ("w3", L.W3P, 3456, 27, 20, 135), ("w4", L.W4P, 1280, 10, 54, 135)]
    k.e("s_cmp_ge_u32 s2, 532"); k.e(f"s_cbranch_scc1 {k.name}_end")
    ldptr(k, 4, "ws")
    k.e("v_lshrrev_b32 v1, 6, v0"); k.e("v_and_b32 v2, 63, v0")
    k.e("v_readfirstlane_b32 s3, v1")
    start = 0
    labs = []
    for (nm, dst, ld, ncg, nks, nwg) in NA:
        lab = f"{k.name}_A_{nm}"
        labs.append(lab)
        k.e(f"s_cmp_lt_u32 s2, {start+nwg}"); k.e(f"s_cbranch_scc1 {lab}")
        start += nwg
    assert start == 470
    k.e("s_cmp_lt_u32 s2, 480"); k.e(f"s_cbranch_scc1 {k.name}_KV")
    k.e("s_cmp_lt_u32 s2, 512"); k.e(f"s_cbranch_scc1 {k.name}_X")
    k.e("s_cmp_lt_u32 s2, 531"); k.e(f"s_cbranch_scc1 {k.name}_CS")
    k.e(f"s_branch {k.name}_Z")
    start = 0
    for (nm, dst, ld, ncg, nks, nwg), lab in zip(NA, labs):
        k.e(f"{lab}:")
        ldptr(k, 6, nm)
        k.e("s_waitcnt lgkmcnt(0)")
        rows = 32 * nks
        srd(k, 8, 6, 0, rows * ld)
        srd(k, 12, 4, dst, (ncg * 4) * nks * 1024)
        k.e(f"s_mov_b32 s16, {ld}"); k.e(f"s_mov_b32 s17, {ncg}"); k.e(f"s_mov_b32 s18, {nks}")
        k.e(f"s_mov_b32 s19, {(1<<32)//ncg + 1}")
        k.e(f"s_sub_u32 s20, s2, {start}")
        k.e(f"s_branch {k.name}_Acommon")
        start += nwg
    k.e(f"{k.name}_Acommon:")
    k.e("s_lshl_b32 s20, s20, 2"); k.e("s_add_u32 s20, s20, s3")
    k.e("s_mul_hi_u32 s21, s20, s19")
    k.e("s_mul_i32 s22, s21, s17"); k.e("s_sub_u32 s22, s20, s22")
    k.e("v_lshrrev_b32 v3, 3, v2"); k.e("v_mul_lo_u32 v3, v3, s16")
    k.e("v_and_b32 v4, 7, v2"); k.e("v_lshlrev_b32 v4, 4, v4"); k.e("v_add_u32 v3, v3, v4")
    k.e("s_mul_i32 s23, s21, s16"); k.e("s_lshl_b32 s23, s23, 5")
    k.e("s_lshl_b32 s24, s22, 7"); k.e("s_add_u32 s23, s23, s24")
    k.e("s_lshl_b32 s25, s16, 3")
    k.e("s_lshl_b32 s26, s3, 12")
    for i in range(4):
        k.e(f"s_add_u32 m0, s26, {i*1024}")
        k.e("s_nop 0")
        k.e("buffer_load_dwordx4 v3, s[8:11], s23 offen lds")
        if i < 3: k.e("s_add_u32 s23, s23, s25")
    k.e("v_lshrrev_b32 v5, 4, v2"); k.e("v_lshlrev_b32 v5, 2, v5")
    k.e("v_and_b32 v6, 15, v2"); k.e("v_lshrrev_b32 v7, 2, v6"); k.e("v_add_u32 v5, v5, v7")
    k.e("v_lshlrev_b32 v5, 7, v5"); k.e("v_and_b32 v6, 3, v2"); k.e("v_lshlrev_b32 v6, 3, v6")
    k.e("v_add_u32 v5, v5, v6"); k.e("v_add_u32 v5, s26, v5")
    k.e("v_lshlrev_b32 v8, 4, v2")
    k.e("s_waitcnt vmcnt(0)")
    for c in range(4):
        k.e(f"ds_read_b64_tr_b16 v[{16+4*c}:{17+4*c}], v5 offset:{c*32}")
        k.e(f"ds_read_b64_tr_b16 v[{18+4*c}:{19+4*c}], v5 offset:{c*32+2048}")
    k.e("s_waitcnt lgkmcnt(0)")
    k.e("s_lshl_b32 s27, s22, 2"); k.e("s_mul_i32 s27, s27, s18"); k.e("s_add_u32 s27, s27, s21"); k.e("s_lshl_b32 s27, s27, 10")
    k.e("s_lshl_b32 s28, s18, 10")
    for c in range(4):
        k.e(f"buffer_store_dwordx4 v[{16+4*c}:{19+4*c}], v8, s[12:15], s27 offen")
        if c < 3: k.e("s_add_u32 s27, s27, s28")
    k.e("s_endpgm")

    k.e(f"{k.name}_KV:")
    ldptr(k, 6, "wk"); ldptr(k, 8, "wv")
    k.e("s_waitcnt lgkmcnt(0)")
    k.e("s_sub_u32 s20, s2, 470"); k.e("s_lshl_b32 s20, s20, 2"); k.e("s_add_u32 s20, s20, s3")
    k.e("s_cmp_ge_u32 s20, 20")
    k.e("s_cselect_b32 s6, s8, s6"); k.e("s_cselect_b32 s7, s9, s7")
    k.e("s_cselect_b32 s21, 20, 0"); k.e("s_cselect_b32 s22, 2, 0")
    k.e("s_sub_u32 s21, s20, s21")
    srd(k, 8, 6, 0, 640 * 40)
    srd(k, 12, 4, L.WKVP, 4 * 20 * 1024)
    k.e("v_lshlrev_b32 v8, 4, v2")
    k.e("s_mul_i32 s23, s21, 1280")
    k.e("s_lshl_b32 s26, s3, 12")
    k.e("s_mov_b32 m0, s26"); k.e("s_nop 0")
    k.e("buffer_load_dwordx4 v8, s[8:11], s23 offen lds")
    k.e("buffer_load_dwordx4 v8, s[8:11], s23 offen offset:1024 lds")
    k.e("v_lshrrev_b32 v5, 4, v2"); k.e("v_lshlrev_b32 v5, 2, v5")
    k.e("v_and_b32 v6, 15, v2"); k.e("v_lshrrev_b32 v7, 2, v6"); k.e("v_add_u32 v5, v5, v7")
    k.e("v_mul_u32_u24 v5, 40, v5"); k.e("v_and_b32 v6, 3, v2"); k.e("v_lshlrev_b32 v6, 3, v6")
    k.e("v_add_u32 v5, v5, v6"); k.e("v_add_u32 v5, s26, v5")
    k.e("s_waitcnt vmcnt(0)")
    for c in range(2):
        k.e(f"ds_read_b64_tr_b16 v[{16+4*c}:{17+4*c}], v5 offset:{c*32}")
        k.e(f"ds_read_b64_tr_b16 v[{18+4*c}:{19+4*c}], v5 offset:{c*32+640}")
    k.e("s_waitcnt lgkmcnt(0)")
    k.e("s_mul_i32 s27, s22, 20"); k.e("s_add_u32 s27, s27, s21"); k.e("s_lshl_b32 s27, s27, 10")
    k.e("buffer_store_dwordx4 v[16:19], v8, s[12:15], s27 offen")
    k.e(f"s_add_u32 s27, s27, {20*1024}")
    k.e("buffer_store_dwordx4 v[20:23], v8, s[12:15], s27 offen")
    k.e("s_endpgm")

    k.e(f"{k.name}_X:")
    ldptr(k, 6, "x"); ldptr(k, 16, "gw")
    k.e("s_waitcnt lgkmcnt(0)")
    k.e("s_sub_u32 s20, s2, 480"); k.e("s_lshl_b32 s20, s20, 2"); k.e("s_add_u32 s20, s20, s3")
    srd(k, 8, 6, 0, 2048 * 1280)
    srd(k, 12, 4, L.XF, L.SZ_XF)
    k.e("s_mov_b32 s6, s16"); k.e("s_mov_b32 s7, s17")
    srd(k, 16, 6, 0, 1280)
    srd(k, 24, 4, L.MEAN, 3 * 8192)
    assert L.RSTD == L.MEAN + 8192 and L.G == L.MEAN + 16384
    k.e("v_and_b32 v3, 15, v2"); k.e("v_lshrrev_b32 v4, 4, v2")
    k.e("s_lshl_b32 s21, s20, 4"); k.e("v_add_u32 v5, s21, v3")
    k.e("v_mul_u32_u24 v6, 1280, v5"); k.e("v_lshlrev_b32 v7, 3, v4"); k.e("v_add_u32 v6, v6, v7")
    k.e("v_lshlrev_b32 v8, 4, v2")
    k.e("s_mul_i32 s22, s20, 20"); k.e("s_lshl_b32 s22, s22, 10")
    k.e("s_mov_b32 s23, 0x3f803f80")
    k.e("v_mov_b32 v10, 0"); k.e("v_mov_b32 v11, 0"); k.e("v_mov_b32 v12, 0")
    for half in range(2):
        for i in range(10):
            ks = half * 10 + i
            k.e(f"buffer_load_dwordx2 v[{16+4*i}:{17+4*i}], v6, s[8:11], 0 offen offset:{ks*64}")
            k.e(f"buffer_load_dwordx2 v[{18+4*i}:{19+4*i}], v6, s[8:11], 0 offen offset:{ks*64+32}")
            k.e(f"buffer_load_dwordx2 v[{56+4*i}:{57+4*i}], v7, s[16:19], 0 offen offset:{ks*64}")
            k.e(f"buffer_load_dwordx2 v[{58+4*i}:{59+4*i}], v7, s[16:19], 0 offen offset:{ks*64+32}")
        k.e("s_waitcnt vmcnt(0)")
        for i in range(10):
            ks = half * 10 + i
            k.e(f"buffer_store_dwordx4 v[{16+4*i}:{19+4*i}], v8, s[12:15], s22 offen")
            k.e("s_add_u32 s22, s22, 1024")
            for j in range(4):
                k.e(f"v_dot2_f32_bf16 v10, v{16+4*i+j}, s23, v10")
                k.e(f"v_dot2_f32_bf16 v11, v{16+4*i+j}, v{16+4*i+j}, v11")
                k.e(f"v_dot2_f32_bf16 v12, v{16+4*i+j}, v{56+4*i+j}, v12")
        k.e("s_waitcnt vmcnt(0)")
    k.e("v_xor_b32 v13, 16, v2"); k.e("v_lshlrev_b32 v13, 2, v13")
    k.e("v_xor_b32 v14, 32, v2"); k.e("v_lshlrev_b32 v14, 2, v14")
    for v in (10, 11, 12): xlane_add(k, v, 15, 13, 14)
    k.e(f"s_mov_b32 s30, {f32bits(1.0/640)}")
    k.e("v_mul_f32 v10, s30, v10")
    k.e("v_mul_f32 v11, s30, v11")
    k.e("v_fma_f32 v11, -v10, v10, v11")
    k.e(f"v_add_f32 v11, {f32bits(1e-5)}, v11")
    k.e("v_rsq_f32 v11, v11")
    k.e(f"v_mul_f32 v12, {f32bits(-LOG2E)}, v12")
    k.e("v_exp_f32 v12, v12")
    k.e("s_nop 0")
    k.e("v_add_f32 v12, 1.0, v12")
    k.e("v_rcp_f32 v12, v12")
    k.e("v_lshlrev_b32 v5, 2, v5")
    k.e("v_cmp_gt_u32 vcc, 16, v2")
    k.e("s_and_saveexec_b64 s[32:33], vcc")
    k.e("buffer_store_dword v10, v5, s[24:27], 0 offen")
    k.e("s_mov_b32 s34, 8192"); k.e("s_mov_b32 s35, 16384")
    k.e("buffer_store_dword v11, v5, s[24:27], s34 offen")
    k.e("buffer_store_dword v12, v5, s[24:27], s35 offen")
    k.e("s_endpgm")

    k.e(f"{k.name}_CS:")
    ldptr(k, 6, "w1"); ldptr(k, 8, "w3")
    k.e("s_waitcnt lgkmcnt(0)")
    k.e("s_sub_u32 s20, s2, 512")
    k.e("s_cmp_ge_u32 s20, 5")
    k.e("s_cselect_b32 s6, s8, s6"); k.e("s_cselect_b32 s7, s9, s7")
    k.e("s_cselect_b32 s21, 5, 0")
    for (sr, a, b) in ((16, 3456, 1280), (17, 640*3456, 640*1280), (18, L.CS3, L.CS1), (19, 1728*4, 640*4)):
        k.e(f"s_mov_b32 s28, {b}"); k.e(f"s_cselect_b32 s{sr}, {a}, s28")
    k.e("s_sub_u32 s21, s20, s21")
    k.e("s_mov_b32 s8, s6"); k.e("s_mov_b32 s9, s7"); k.e("s_mov_b32 s10, s17"); k.e("s_mov_b32 s11, 0x20000")
    k.e("s_add_u32 s12, s4, s18"); k.e("s_addc_u32 s13, s5, 0"); k.e("s_mov_b32 s14, s19"); k.e("s_mov_b32 s15, 0x20000")
    k.e("v_and_b32 v3, 15, v2"); k.e("v_lshrrev_b32 v4, 4, v2")
    k.e("s_mul_i32 s22, s3, 160"); k.e("v_add_u32 v4, s22, v4")
    k.e("v_mul_lo_u32 v5, v4, s16"); k.e("v_lshlrev_b32 v3, 4, v3"); k.e("v_add_u32 v5, v5, v3")
    k.e("s_lshl_b32 s23, s21, 8")
    k.e("s_lshl_b32 s24, s16, 2")
    for i in range(40):
        k.e(f"buffer_load_dwordx4 v[{32+4*i}:{35+4*i}], v5, s[8:11], s23 offen")
        k.e("s_add_u32 s23, s23, s24")
    for j in range(8): k.e(f"v_mov_b32 v{16+j}, 0")
    k.e("s_mov_b32 s25, 0x00003f80"); k.e("s_mov_b32 s26, 0x3f800000")
    k.e("s_waitcnt vmcnt(0)")
    for i in range(40):
        for j in range(4):
            k.e(f"v_dot2_f32_bf16 v{16+2*j}, v{32+4*i+j}, s25, v{16+2*j}")
            k.e(f"v_dot2_f32_bf16 v{17+2*j}, v{32+4*i+j}, s26, v{17+2*j}")
    k.e("v_xor_b32 v13, 16, v2"); k.e("v_lshlrev_b32 v13, 2, v13")
    k.e("v_xor_b32 v14, 32, v2"); k.e("v_lshlrev_b32 v14, 2, v14")
    for j in range(8): xlane_add(k, 16 + j, 15, 13, 14)
    k.e("v_and_b32 v3, 15, v2"); k.e("v_lshlrev_b32 v3, 5, v3"); k.e("s_lshl_b32 s27, s3, 9"); k.e("v_add_u32 v3, s27, v3")
    k.e("ds_write_b128 v3, v[16:19]"); k.e("ds_write_b128 v3, v[20:23] offset:16")
    k.e("s_waitcnt lgkmcnt(0)"); k.e("s_barrier")
    k.e("v_and_b32 v3, 127, v0"); k.e("v_lshlrev_b32 v3, 2, v3")
    for w in range(4): k.e(f"ds_read_b32 v{16+w}, v3 offset:{w*512}")
    k.e("s_waitcnt lgkmcnt(0)")
    k.e("v_add_f32 v16, v16, v17"); k.e("v_add_f32 v18, v18, v19"); k.e("v_add_f32 v16, v16, v18")
    k.e("s_lshl_b32 s23, s21, 9")
    k.e("buffer_store_dword v16, v3, s[12:15], s23 offen")
    k.e("s_endpgm")

    k.e(f"{k.name}_Z:")
    k.e("s_waitcnt lgkmcnt(0)")
    srd(k, 12, 4, L.HS, L.SZ_XF)
    for j in range(4): k.e(f"v_mov_b32 v{16+j}, 0")
    k.e("v_lshlrev_b32 v3, 4, v0")
    srd(k, 16, 4, L.FLAGS, 4096)
    k.e("buffer_store_dwordx4 v[16:19], v3, s[16:19], 0 offen")
    for i in range(5):
        k.e(f"s_mov_b32 s20, {i*4096}")
        k.e("buffer_store_dwordx4 v[16:19], v3, s[12:15], s20 offen")
        k.e(f"s_mov_b32 s20, {127*20*1024 + i*4096}")
        k.e("buffer_store_dwordx4 v[16:19], v3, s[12:15], s20 offen")
    k.e(f"{k.name}_end:")
    k.e("s_endpgm")
    return k, 200, 532, 16384

class G: pass

def gelu(k, y, t0, t1):
    c1 = -2 * LOG2E * 0.7978845608028654 * 0.044715
    c2 = -2 * LOG2E * 0.7978845608028654
    k.e(f"v_mul_f32 v{t0}, v{y}, v{y}")
    k.e(f"v_mul_f32 v{t0}, s{SC_G1}, v{t0}")
    k.e(f"v_add_f32 v{t0}, s{SC_G2}, v{t0}")
    k.e(f"v_mul_f32 v{t0}, v{t0}, v{y}")
    k.e(f"v_exp_f32 v{t0}, v{t0}")
    k.e(f"v_add_f32 v{t0}, 1.0, v{t0}")
    k.e(f"v_rcp_f32 v{t0}, v{t0}")
    k.e(f"v_mul_f32 v{y}, v{y}, v{t0}")
SC_G1, SC_G2 = 90, 91
GELU_C1 = -2 * LOG2E * 0.7978845608028654 * 0.044715
GELU_C2 = -2 * LOG2E * 0.7978845608028654

def gen_gemm(name, nwg, KS, NCB, NSET, segs, decode, epilogue, swap=None, kidx=0):
    k = Kern(name)
    st = Stamps(k, PROF, 8, kidx)
    keep = 4 // KS
    swap = swap or [False] * NCB
    k.e(f"s_cmp_ge_u32 s2, {nwg}"); k.e(f"s_cbranch_scc1 {name}_end")
    st.stamp(); st.stamp(real=True)
    ldptr(k, 4, "ws"); ldptr(k, 6, "out")
    k.e("v_lshrrev_b32 v1, 6, v0"); k.e("v_and_b32 v2, 63, v0")
    k.e("v_readfirstlane_b32 s3, v1")
    k.e(f"s_mov_b32 s{SC_G1}, {f32bits(GELU_C1)}"); k.e(f"s_mov_b32 s{SC_G2}, {f32bits(GELU_C2)}")
    k.e(f"s_and_b32 s43, s3, {KS-1}"); k.e(f"s_lshr_b32 s44, s3, {KS.bit_length()-1}")
    decode(k)
    k.e("s_mul_i32 s45, s44, s42"); k.e("s_add_u32 s45, s45, s41")
    k.e("s_waitcnt lgkmcnt(0)")
    acc0 = 16
    nl = 4 + NCB
    set0 = acc0 + 16 * NCB
    vx0 = set0 + NSET * nl * 4
    vend = vx0 + len(segs) * nl
    A = lambda r, c: acc0 + (r * NCB + c) * 4
    XS = lambda s, r: set0 + s * nl * 4 + r * 4
    WS = lambda s, c: set0 + s * nl * 4 + (4 + c) * 4
    k.e("v_lshlrev_b32 v3, 4, v2")
    for si, sg in enumerate(segs):
        b = 48 + 8 * si
        srd(k, b, 4, sg["xoff"], sg["xsize"]); srd(k, b + 4, 4, sg["woff"], sg["wsize"])
        for r in range(4):
            k.e(f"s_mul_i32 s46, s43, {keep}"); k.e(f"s_add_u32 s46, s46, {r}"); k.e("s_and_b32 s46, s46, 3")
            k.e("s_lshl_b32 s47, s40, 2"); k.e("s_add_u32 s46, s46, s47")
            k.e(f"s_mul_i32 s46, s46, {sg['nksx']*1024}")
            k.e(f"v_add_u32 v{vx0 + si*nl + r}, s46, v3")
        for c in range(NCB):
            k.e(f"s_add_u32 s46, s45, {c}"); k.e(f"s_mul_i32 s46, s46, {sg['nksw']*1024}")
            k.e(f"v_add_u32 v{vx0 + si*nl + 4 + c}, s46, v3")
    steps = []
    for si, sg in enumerate(segs):
        n = (sg["nks"] + KS - 1) // KS
        for t in range(n): steps.append((si, t))
    T = len(steps)
    def issue(i):
        si, t = steps[i]; sg = segs[si]; b = 48 + 8 * si; s = i % NSET
        k.e(f"s_add_u32 s46, s43, {KS*t}")
        if KS * t + KS - 1 >= sg["nks"]:
            k.e("s_lshl_b32 s47, s46, 10"); k.e(f"s_cmp_lt_u32 s46, {sg['nks']}"); k.e(f"s_cselect_b32 s46, s47, {OOB}")
        else:
            k.e("s_lshl_b32 s46, s46, 10")
        for r in range(4):
            k.e(f"buffer_load_dwordx4 v[{XS(s,r)}:{XS(s,r)+3}], v{vx0+si*nl+r}, s[{b}:{b+3}], s46 offen")
        for c in range(NCB):
            k.e(f"buffer_load_dwordx4 v[{WS(s,c)}:{WS(s,c)+3}], v{vx0+si*nl+4+c}, s[{b+4}:{b+7}], s46 offen")
    st.stamp()
    for i in range(min(NSET, T)): issue(i)
    st.stamp()
    for i in range(T):
        ahead = min(T - 1, i + NSET - 1) - i
        k.e(f"s_waitcnt vmcnt({ahead*nl})")
        if i == 0: st.stamp()
        s = i % NSET
        for c in range(NCB):
            for r in range(4):
                cc = "0" if i == 0 else f"v[{A(r,c)}:{A(r,c)+3}]"
                a, b_ = f"v[{WS(s,c)}:{WS(s,c)+3}]", f"v[{XS(s,r)}:{XS(s,r)+3}]"
                if swap[c]: a, b_ = b_, a
                k.e(f"v_mfma_f32_16x16x32_bf16 v[{A(r,c)}:{A(r,c)+3}], {a}, {b_}, {cc}")
        if i + NSET < T: issue(i + NSET)
    st.stamp()
    blk = keep * NCB * 1024
    for j in range(1, KS):
        k.e(f"s_add_u32 s46, s43, {j}"); k.e(f"s_and_b32 s46, s46, {KS-1}")
        k.e(f"s_mul_i32 s47, s44, {KS}"); k.e("s_add_u32 s46, s46, s47")
        k.e(f"s_mul_i32 s46, s46, {(KS-1)*blk}"); k.e(f"s_add_u32 s46, s46, {(j-1)*blk}")
        k.e(f"v_add_u32 v4, s46, v3")
        for ro in range(keep):
            r = j * keep + ro
            for c in range(NCB):
                k.e(f"ds_write_b128 v4, v[{A(r,c)}:{A(r,c)+3}] offset:{(ro*NCB+c)*1024}")
    g = G(); g.k = k; g.keep = keep; g.NCB = NCB; g.A = A; g.tmp0 = set0; g.KS = KS
    g.ntmp = NSET * nl * 4
    if hasattr(epilogue, "pre"): epilogue.pre(g)
    k.e("s_waitcnt lgkmcnt(0)"); k.e("s_barrier")
    k.e(f"s_mul_i32 s46, s3, {(KS-1)*blk}"); k.e("v_add_u32 v4, s46, v3")
    t0 = set0 + g.ntmp - 4 * keep * NCB
    for j in range(1, KS):
        for ro in range(keep):
            for c in range(NCB):
                tt = t0 + (ro * NCB + c) * 4
                k.e(f"ds_read_b128 v[{tt}:{tt+3}], v4 offset:{((j-1)*keep*NCB + ro*NCB + c)*1024}")
        k.e("s_waitcnt lgkmcnt(0)")
        for ro in range(keep):
            for c in range(NCB):
                tt = t0 + (ro * NCB + c) * 4
                for q in range(4):
                    k.e(f"v_add_f32 v{A(ro,c)+q}, v{A(ro,c)+q}, v{tt+q}")
    st.stamp()
    epilogue(g)
    k.e("s_waitcnt vmcnt(0)")
    st.stamp(); st.stamp(real=True)
    st.flush(4, L.STAMP, 3, vtmp=8, stmp=36)
    k.e(f"{name}_end:")
    k.e("s_endpgm")
    lds = 4 * (KS - 1) * blk
    return k, max(vend, 64), nwg, lds

def row_setup(g, r, vrow):
    k = g.k
    k.e(f"s_mul_i32 s46, s43, {g.keep}"); k.e(f"s_add_u32 s46, s46, {r}")
    k.e("s_lshl_b32 s47, s40, 2"); k.e("s_add_u32 s46, s46, s47")
    k.e("s_lshl_b32 s47, s46, 4")
    k.e(f"v_and_b32 v{vrow}, 15, v2"); k.e(f"v_add_u32 v{vrow}, s47, v{vrow}")

def pack4(k, a, p):
    k.e(f"v_cvt_pk_bf16_f32 v{p}, v{a}, v{a+1}")
    k.e(f"v_cvt_pk_bf16_f32 v{p+1}, v{a+2}, v{a+3}")

def f16_soff(k, dst, s_rb, s_cb, nks):
    k.e(f"s_mul_i32 s{dst}, s{s_rb}, {nks}")
    k.e(f"s_lshr_b32 s47, s{s_cb}, 1"); k.e(f"s_add_u32 s{dst}, s{dst}, s47"); k.e(f"s_lshl_b32 s{dst}, s{dst}, 10")
    k.e(f"s_and_b32 s47, s{s_cb}, 1"); k.e("s_lshl_b32 s47, s47, 3"); k.e(f"s_add_u32 s{dst}, s{dst}, s47")

def dec_p1q(k):
    k.e("s_lshr_b32 s40, s2, 3"); k.e("s_and_b32 s41, s2, 7"); k.e("s_mul_i32 s41, s41, 5"); k.e("s_mov_b32 s42, 0")
def epi_q(g):
    k = g.k; T = g.tmp0
    srd(k, 72, 4, L.QF, L.SZ_QF)
    row_setup(g, 0, 5)
    k.e(f"s_mov_b32 s70, {f32bits(LOG2E / (20 ** 0.5))}")
    k.e("v_lshrrev_b32 v6, 4, v2")
    k.e("v_lshrrev_b32 v7, 5, v5"); k.e("v_and_b32 v8, 31, v5")
    for c in range(g.NCB):
        a = g.A(0, c)
        for q in range(4): k.e(f"v_mul_f32 v{a+q}, s70, v{a+q}")
        pack4(k, a, T)
        k.e(f"s_add_u32 s46, s45, {c}"); k.e("s_lshl_b32 s46, s46, 2")
        k.e(f"v_add_u32 v9, s46, v6")
        k.e("v_mul_u32_u24 v10, 205, v9"); k.e("v_lshrrev_b32 v10, 10, v10")
        k.e("v_mul_u32_u24 v11, 5, v10"); k.e("v_sub_u32 v11, v9, v11")
        k.e("v_lshlrev_b32 v12, 6, v10"); k.e("v_add_u32 v12, v12, v7"); k.e("v_mul_u32_u24 v12, 1280, v12")
        k.e("v_lshrrev_b32 v13, 1, v11"); k.e("v_lshlrev_b32 v13, 5, v13"); k.e("v_add_u32 v13, v13, v8"); k.e("v_lshlrev_b32 v13, 4, v13")
        k.e("v_and_b32 v14, 1, v11"); k.e("v_lshlrev_b32 v14, 3, v14"); k.e("v_add_u32 v13, v13, v14")
        k.e("v_lshlrev_b32 v14, 3, v8"); k.e("v_add_u32 v14, 1024, v14")
        k.e("v_cmp_eq_u32 vcc, 4, v11")
        k.e("v_cndmask_b32 v13, v13, v14, vcc")
        k.e("v_add_u32 v12, v12, v13")
        k.e(f"buffer_store_dwordx2 v[{T}:{T+1}], v12, s[72:75], 0 offen")
        k.e("s_nop 0")

def dec_p1h(k):
    dec_p1q(k)
def ln_gelu_block(g, a, vmean, vrstd, cs, T):
    k = g.k
    for q in range(4):
        k.e(f"v_fma_f32 v{a+q}, -v{vmean}, v{cs+q}, v{a+q}")
        k.e(f"v_mul_f32 v{a+q}, v{vrstd}, v{a+q}")
        gelu(k, a + q, T, T + 1)
def epi_h(g):
    k = g.k; T = g.tmp0
    srd(k, 72, 4, L.HS, L.SZ_XF); srd(k, 76, 4, L.MEAN, 2 * 8192); srd(k, 80, 4, L.CS1, 640 * 4)
    row_setup(g, 0, 5)
    k.e("v_lshlrev_b32 v6, 2, v5")
    k.e("buffer_load_dword v7, v6, s[76:79], 0 offen"); k.e("s_mov_b32 s70, 8192")
    k.e("buffer_load_dword v8, v6, s[76:79], s70 offen")
    k.e("v_lshrrev_b32 v9, 4, v2"); k.e("v_lshlrev_b32 v10, 4, v9")
    k.e("s_lshl_b32 s71, s45, 6")
    for c in range(g.NCB):
        k.e(f"buffer_load_dwordx4 v[{T+8+4*c}:{T+11+4*c}], v10, s[80:83], s71 offen offset:{c*64}")
    k.e("s_mul_i32 s84, s45, 205"); k.e("s_lshr_b32 s84, s84, 11")
    k.e("s_lshr_b32 s85, s84, 1"); k.e("s_add_u32 s85, s85, 1")
    k.e("s_and_b32 s86, s84, 1"); k.e("s_sub_u32 s87, 0, s85"); k.e("s_cmp_eq_u32 s86, 0"); k.e("s_cselect_b32 s85, s85, s87")
    k.e("v_add_u32 v11, s85, v5")
    k.e("v_lshrrev_b32 v12, 4, v11"); k.e(f"v_mul_u32_u24 v12, {20*1024}, v12")
    k.e("v_and_b32 v13, 15, v11"); k.e("v_lshlrev_b32 v14, 4, v9"); k.e("v_add_u32 v13, v13, v14"); k.e("v_lshlrev_b32 v13, 4, v13")
    k.e("v_add_u32 v12, v12, v13")
    k.e("v_cmp_gt_u32 vcc, 2048, v11"); k.e(f"v_mov_b32 v13, {OOB}"); k.e("v_cndmask_b32 v12, v13, v12, vcc")
    k.e("s_waitcnt vmcnt(0)")
    for c in range(g.NCB):
        a = g.A(0, c)
        ln_gelu_block(g, a, 7, 8, T + 8 + 4 * c, T)
        pack4(k, a, T + 2)
        k.e(f"s_add_u32 s88, s45, {c}")
        k.e("s_lshr_b32 s46, s88, 1"); k.e("s_lshl_b32 s46, s46, 10"); k.e("s_and_b32 s47, s88, 1"); k.e("s_lshl_b32 s47, s47, 3"); k.e("s_add_u32 s46, s46, s47")
        k.e(f"buffer_store_dwordx2 v[{T+2}:{T+3}], v12, s[72:75], s46 offen")
        k.e("s_nop 0")

def dec_kv(k):
    k.e("s_mov_b32 s40, s2"); k.e("s_mov_b32 s41, 0"); k.e("s_mov_b32 s42, 0")
def epi_kv(g):
    k = g.k; T = g.tmp0
    srd(k, 72, 4, L.KVF, L.SZ_KVF); srd(k, 76, 4, L.K2, 8192)
    row_setup(g, 0, 5)
    k.e("s_mov_b32 s70, s46")
    k.e("v_lshrrev_b32 v6, 4, v2")
    k.e("v_and_b32 v7, 15, v2")
    k.e("s_lshr_b32 s71, s70, 1"); k.e("s_mul_i32 s71, s71, 3072")
    k.e("v_and_b32 v8, 31, v5")
    a = g.A(0, 0); pack4(k, a, T)
    k.e("v_lshrrev_b32 v9, 1, v6"); k.e("v_lshlrev_b32 v9, 5, v9"); k.e("v_add_u32 v9, v9, v8"); k.e("v_lshlrev_b32 v9, 4, v9")
    k.e("v_and_b32 v10, 1, v6"); k.e("v_lshlrev_b32 v10, 3, v10"); k.e("v_add_u32 v9, v9, v10")
    k.e(f"buffer_store_dwordx2 v[{T}:{T+1}], v9, s[72:75], s71 offen")
    k.e(f"v_dot2_f32_bf16 v11, v{T}, v{T}, 0"); k.e(f"v_dot2_f32_bf16 v11, v{T+1}, v{T+1}, v11")
    a = g.A(0, 1); pack4(k, a, T + 2)
    k2_addr(k, 8, 12, 13)
    k.e("v_cmp_eq_u32 vcc, 0, v6"); k.e(f"v_mov_b32 v13, {OOB}"); k.e("v_cndmask_b32 v12, v13, v12, vcc")
    k.e(f"buffer_store_dwordx2 v[{T+2}:{T+3}], v12, s[72:75], s71 offen")
    k.e(f"v_dot2_f32_bf16 v14, v{T+2}, v{T+2}, 0"); k.e(f"v_dot2_f32_bf16 v14, v{T+3}, v{T+3}, v14")
    k.e("v_cndmask_b32 v14, 0, v14, vcc"); k.e("v_add_f32 v11, v11, v14")
    k.e("v_xor_b32 v13, 16, v2"); k.e("v_lshlrev_b32 v13, 2, v13"); k.e("v_xor_b32 v14, 32, v2"); k.e("v_lshlrev_b32 v14, 2, v14")
    xlane_add(k, 11, 15, 13, 14)
    k.e("v_lshlrev_b32 v13, 2, v5")
    k.e("buffer_store_dword v11, v13, s[76:79], 0 offen")
    for ror in (8, 4, 2, 1):
        k.e(f"v_max_f32_dpp v11, v11, v11 row_ror:{ror} row_mask:0xf bank_mask:0xf")
    srd(k, 80, 4, L.KMAX, 512)
    k.e("s_lshl_b32 s85, s70, 2"); k.e("v_mov_b32 v13, 0")
    k.e("buffer_store_dword v11, v13, s[80:83], s85 offen")
    k.e("s_and_b32 s84, s70, 1"); k.e("s_lshl_b32 s84, s84, 10"); k.e("s_add_u32 s84, s84, 1024"); k.e("s_add_u32 s84, s84, s71")
    k.e("v_and_b32 v9, 1, v6"); k.e("v_lshlrev_b32 v9, 5, v9"); k.e("v_add_u32 v9, v9, v7"); k.e("v_lshlrev_b32 v9, 4, v9")
    k.e("v_lshrrev_b32 v10, 1, v6"); k.e("v_lshlrev_b32 v10, 3, v10"); k.e("v_add_u32 v9, v9, v10")
    a = g.A(0, 2); pack4(k, a, T + 4)
    k.e(f"buffer_store_dwordx2 v[{T+4}:{T+5}], v9, s[72:75], s84 offen")
    a = g.A(0, 3); pack4(k, a, T + 6)
    k.e("v_mov_b32 v13, 0x3f803f80")
    k.e("v_cmp_gt_u32 vcc, 4, v7")
    k.e(f"v_cndmask_b32 v{T+6}, v13, v{T+6}, vcc"); k.e(f"v_cndmask_b32 v{T+7}, v13, v{T+7}, vcc")
    k.e("v_add_u32 v9, 256, v9")
    k.e("v_and_b32 v10, 11, v7")
    k.e("v_cmp_eq_u32 s[86:87], 8, v10")
    k.e("s_or_b64 vcc, vcc, s[86:87]")
    k.e(f"v_mov_b32 v13, {OOB}"); k.e("v_cndmask_b32 v9, v13, v9, vcc")
    k.e(f"buffer_store_dwordx2 v[{T+6}:{T+7}], v9, s[72:75], s84 offen")

def k2_addr(k, vkey, vdst, vt):
    k.e(f"v_lshrrev_b32 v{vt}, 3, v{vkey}")
    k.e(f"v_lshlrev_b32 v{vdst}, 9, v{vt}")
    k.e(f"v_add_u32 v{vdst}, 1344, v{vdst}")
    k.e(f"v_and_b32 v{vt}, 7, v{vkey}"); k.e(f"v_lshlrev_b32 v{vt}, 3, v{vt}")
    k.e(f"v_add_u32 v{vdst}, v{vdst}, v{vt}")

def dec_p2(k): dec_p1q(k)
def epi_x1(g):
    k = g.k; T = g.tmp0
    srd(k, 72, 4, L.X1F, L.SZ_XF); srd(k, 76, 4, L.XF, L.SZ_XF); srd(k, 80, 4, L.X1ST, 8 * 2048 * 8)
    row_setup(g, 0, 5)
    k.e("s_mov_b32 s70, s46")
    for c in range(g.NCB):
        k.e(f"s_add_u32 s88, s45, {c}"); f16_soff(k, 84, 70, 88, 20)
        k.e(f"buffer_load_dwordx2 v[{T+8+2*c}:{T+9+2*c}], v3, s[76:79], s84 offen")
    k.e("v_mov_b32 v6, 0"); k.e("v_mov_b32 v7, 0"); k.e("s_mov_b32 s71, 0x3f803f80")
    k.e("s_waitcnt vmcnt(0)")
    for c in range(g.NCB):
        a = g.A(0, c); xr = T + 8 + 2 * c
        k.e(f"v_lshlrev_b32 v8, 16, v{xr}"); k.e(f"v_and_b32 v9, 0xffff0000, v{xr}")
        k.e(f"v_lshlrev_b32 v10, 16, v{xr+1}"); k.e(f"v_and_b32 v11, 0xffff0000, v{xr+1}")
        for q in range(4): k.e(f"v_add_f32 v{a+q}, v{a+q}, v{8+q}")
        pack4(k, a, T)
        k.e(f"s_add_u32 s88, s45, {c}"); f16_soff(k, 84, 70, 88, 20)
        k.e(f"buffer_store_dwordx2 v[{T}:{T+1}], v3, s[72:75], s84 offen")
        for q in range(2):
            k.e(f"v_dot2_f32_bf16 v6, v{T+q}, s71, v6"); k.e(f"v_dot2_f32_bf16 v7, v{T+q}, v{T+q}, v7")
    k.e("v_xor_b32 v13, 16, v2"); k.e("v_lshlrev_b32 v13, 2, v13"); k.e("v_xor_b32 v14, 32, v2"); k.e("v_lshlrev_b32 v14, 2, v14")
    xlane_add(k, 6, 15, 13, 14); xlane_add(k, 7, 15, 13, 14)
    k.e("v_lshlrev_b32 v8, 3, v5"); k.e("s_and_b32 s84, s2, 7"); k.e("s_lshl_b32 s84, s84, 14")
    k.e("buffer_store_dwordx2 v[6:7], v8, s[80:83], s84 offen")

def dec_p3(k):
    k.e("s_lshr_b32 s40, s2, 3"); k.e("s_and_b32 s41, s2, 7")
    k.e("s_sub_u32 s46, s41, 4"); k.e("s_max_i32 s46, s46, 0"); k.e("s_mul_i32 s47, s41, 14"); k.e("s_sub_u32 s92, s47, s46")
    k.e("s_cmp_ge_u32 s41, 4"); k.e("s_cselect_b32 s93, 13, 14")
    k.e("s_mov_b32 s41, s92"); k.e("s_mov_b32 s42, 7")
def epi_hf(g):
    k = g.k; T = g.tmp0
    srd(k, 72, 4, L.HF, L.SZ_HF); srd(k, 76, 4, L.X1ST, 8 * 2048 * 8); srd(k, 80, 4, L.CS3, 1728 * 4); srd(k, 84, 4, L.G, 8192)
    k.e("v_lshrrev_b32 v9, 4, v2"); k.e("v_lshlrev_b32 v10, 4, v9")
    k.e("s_lshl_b32 s71, s45, 6")
    CS = T + 8
    for c in range(g.NCB):
        k.e(f"buffer_load_dwordx4 v[{CS+4*c}:{CS+3+4*c}], v10, s[80:83], s71 offen offset:{c*64}")
    k.e("s_add_u32 s94, s92, s93")
    for r in range(g.keep):
        row_setup(g, r, 5)
        k.e("s_mov_b32 s70, s46")
        k.e("v_lshlrev_b32 v6, 3, v5")
        ST = T + 40
        for j in range(8):
            k.e(f"s_mov_b32 s47, {j*16384}")
            k.e(f"buffer_load_dwordx2 v[{ST+2*j}:{ST+1+2*j}], v6, s[76:79], s47 offen")
        k.e("v_lshlrev_b32 v6, 2, v5")
        k.e("buffer_load_dword v11, v6, s[84:87], 0 offen")
        k.e("s_waitcnt vmcnt(0)")
        for j in range(1, 8):
            k.e(f"v_add_f32 v{ST}, v{ST}, v{ST+2*j}"); k.e(f"v_add_f32 v{ST+1}, v{ST+1}, v{ST+1+2*j}")
        k.e(f"v_mul_f32 v7, {f32bits(1/640)}, v{ST}"); k.e(f"v_mul_f32 v8, {f32bits(1/640)}, v{ST+1}")
        k.e("v_fma_f32 v8, -v7, v7, v8"); k.e(f"v_add_f32 v8, {f32bits(1e-5)}, v8"); k.e("v_rsq_f32 v8, v8")
        k.e("v_sub_f32 v11, 1.0, v11")
        for c in range(g.NCB):
            a = g.A(r, c)
            ln_gelu_block(g, a, 7, 8, CS + 4 * c, T)
            for q in range(4): k.e(f"v_mul_f32 v{a+q}, v11, v{a+q}")
            pack4(k, a, T + 2)
            k.e(f"s_add_u32 s88, s45, {c}"); f16_soff(k, 89, 70, 88, 54)
            k.e(f"s_cmp_lt_u32 s88, s94"); k.e(f"s_cselect_b32 s89, s89, {OOB}")
            k.e(f"buffer_store_dwordx2 v[{T+2}:{T+3}], v3, s[72:75], s89 offen")
            k.e("s_nop 0")

def epi_out(g):
    k = g.k; T = g.tmp0
    srd(k, 72, 6, 0, 2048 * 1280); srd(k, 76, 4, L.X1F, L.SZ_XF); srd(k, 84, 4, L.G, 8192)
    row_setup(g, 0, 5)
    k.e("s_mov_b32 s70, s46")
    for c in range(g.NCB):
        k.e(f"s_add_u32 s88, s45, {c}"); f16_soff(k, 89, 70, 88, 20)
        k.e(f"buffer_load_dwordx2 v[{T+8+2*c}:{T+9+2*c}], v3, s[76:79], s89 offen")
    k.e("v_lshlrev_b32 v6, 2, v5")
    k.e("buffer_load_dword v7, v6, s[84:87], 0 offen")
    k.e("v_mul_u32_u24 v12, 1280, v5"); k.e("v_lshrrev_b32 v13, 4, v2"); k.e("v_lshlrev_b32 v13, 3, v13"); k.e("v_add_u32 v12, v12, v13")
    k.e("s_lshl_b32 s71, s45, 5")
    k.e("s_waitcnt vmcnt(0)")
    k.e("v_sub_f32 v7, 1.0, v7")
    for c in range(g.NCB):
        a = g.A(0, c); xr = T + 8 + 2 * c
        k.e(f"v_lshlrev_b32 v8, 16, v{xr}"); k.e(f"v_and_b32 v9, 0xffff0000, v{xr}")
        k.e(f"v_lshlrev_b32 v10, 16, v{xr+1}"); k.e(f"v_and_b32 v11, 0xffff0000, v{xr+1}")
        for q in range(4): k.e(f"v_fma_f32 v{a+q}, v7, v{8+q}, v{a+q}")
        pack4(k, a, T)
        k.e(f"buffer_store_dwordx2 v[{T}:{T+1}], v12, s[72:75], s71 offen offset:{c*32}")
        k.e("s_nop 0")

from gen_attn import gen_attn

def build_all():
    ks = []
    ks.append(gen_prep())
    segD = lambda xoff, woff, wsize=L.SZ_WDD: dict(xoff=xoff, xsize=L.SZ_XF, nksx=20, woff=woff, wsize=wsize, nksw=20, nks=20)
    ks.append(gen_gemm("p1q_kernel", 256, 4, 5, 3, [segD(L.XF, L.WQP)], dec_p1q, epi_q, kidx=1))
    ks.append(gen_gemm("p1h_kernel", 256, 4, 5, 3, [segD(L.XF, L.W1P)], dec_p1h, epi_h, kidx=2))
    ks.append(gen_gemm("p1kv_kernel", 32, 4, 4, 3, [segD(L.XF, L.WKVP, 4*20*1024)], dec_kv, epi_kv, swap=[False, False, True, True], kidx=3))
    ks.append(gen_attn(prof=PROF))
    ks.append(gen_gemm("p2_kernel", 256, 4, 5, 3, [segD(L.HS, L.W2P)], dec_p2, epi_x1, kidx=5))
    ks.append(gen_gemm("p3_kernel", 256, 2, 7, 2, [segD(L.X1F, L.W3P, L.SZ_W3)], dec_p3, epi_hf, kidx=6))
    segH = dict(xoff=L.HF, xsize=L.SZ_HF, nksx=54, woff=L.W4P, wsize=L.SZ_W4, nksw=54, nks=54)
    ks.append(gen_gemm("p4_kernel", 256, 4, 5, 3, [segH, segD(L.OF, L.WOP)], dec_p2, epi_out, kidx=7))
    return ks

def assemble_text(ks, header_comment=""):
    s = header_comment
    for (k, vg, nwg, lds) in ks:
        s += f"; @launch kernel={k.name} grid=({nwg},1,1) block=(256,1,1) lds={lds}\n"
    s += '.amdgcn_target "amdgcn-amd-amdhsa--gfx950"\n.text\n'
    for (k, vg, nwg, lds) in ks:
        s += kernel_text(k, vg)
    s += '.section .rodata,"a"\n'
    for (k, vg, nwg, lds) in ks:
        s += descriptor(k.name, (vg + 7) // 8 * 8, 100)
    return s

if __name__ == "__main__":
    PROF = "--prof" in sys.argv
    globals()["PROF"] = PROF
    ks = build_all()
    out = sys.argv[1] if len(sys.argv) > 1 else "base.s"
    open(out, "w").write(assemble_text(ks))
    for (k, vg, nwg, lds) in ks: print(k.name, "vgpr", vg, "wg", nwg, "lds", lds, "lines", len(k.lines))
```

```python
import sys
sys.path.insert(0, "work")
from asmfw import *
import layout as L

KA = dict(x=0, wq=8, wk=16, wv=24, wo=32, bx=40, w1=48, w2=56, w3=64, w4=72, gw=80, out=88, dbg=96, ws=104)
OOB = 0x7F000000
def f32bits(x):
    import struct
    return struct.unpack("<I", struct.pack("<f", x))[0]
def srd(k, r, p, off, size):
    if off:
        k.e(f"s_add_u32 s{r}, s{p}, {off}"); k.e(f"s_addc_u32 s{r+1}, s{p+1}, 0")
    else:
        k.e(f"s_mov_b32 s{r}, s{p}"); k.e(f"s_mov_b32 s{r+1}, s{p+1}")
    k.e(f"s_mov_b32 s{r+2}, {size}"); k.e(f"s_mov_b32 s{r+3}, 0x20000")

CH = 4
CHB = CH * 3072
NB = 4
NCH = 64 // CH

def gen_attn(name="attn_kernel", prof=False):
    k = Kern(name)
    st = Stamps(k, prof, 60, 4)
    Q1 = [16, 24]; Q2 = [20, 28]
    O = [32, 48]
    Sx = [64, 80]
    P = [96, 104]
    K1 = [112, 120]; K2r = [116, 124]
    V0 = [128, 136]; V1 = [132, 140]
    vKa, vK2a = 5, 6
    NV = 176
    k.e("s_cmp_ge_u32 s2, 256"); k.e(f"s_cbranch_scc1 {name}_end")
    st.stamp(); st.stamp(real=True)
    k.e(f"s_load_dwordx2 s[4:5], s[0:1], {KA['ws']}")
    k.e("v_lshrrev_b32 v1, 6, v0"); k.e("v_and_b32 v2, 63, v0")
    k.e("v_readfirstlane_b32 s3, v1")
    k.e("s_lshr_b32 s40, s2, 3"); k.e("s_and_b32 s41, s2, 7")
    k.e("s_lshl_b32 s42, s41, 2"); k.e("s_add_u32 s42, s42, s3")
    k.e("v_lshlrev_b32 v3, 4, v2")
    k.e("s_waitcnt lgkmcnt(0)")
    srd(k, 8, 4, L.KVF, L.SZ_KVF); srd(k, 12, 4, L.QF, L.SZ_QF); srd(k, 16, 4, L.K2, 8192)
    srd(k, 20, 4, L.G, 8192); srd(k, 24, 4, L.OF, L.SZ_XF)
    k.e("s_mul_i32 s44, s3, 3072")
    def dma(chunk_sreg_off, slot_sreg):
        k.e(f"s_add_u32 s45, s{chunk_sreg_off}, s44"); k.e(f"s_add_u32 m0, s{slot_sreg}, s44")
        k.e("s_nop 0")
        k.e("buffer_load_dwordx4 v3, s[8:11], s45 offen lds")
        k.e("buffer_load_dwordx4 v3, s[8:11], s45 offen offset:1024 lds")
        k.e("buffer_load_dwordx4 v3, s[8:11], s45 offen offset:2048 lds")
    for c in range(NB):
        k.e(f"s_mov_b32 s50, {c*CHB}"); k.e(f"s_mov_b32 s51, {c*CHB}")
        dma(50, 51)
    k.e("v_and_b32 v7, 31, v2"); k.e("v_lshlrev_b32 v8, 3, v7")
    for qb in range(2):
        k.e("s_lshl_b32 s46, s42, 6"); k.e("s_lshl_b32 s47, s40, 1"); k.e("s_add_u32 s46, s46, s47"); k.e(f"s_add_u32 s46, s46, {qb}")
        k.e("s_mul_i32 s46, s46, 1280")
        k.e(f"buffer_load_dwordx4 v[{Q1[qb]}:{Q1[qb]+3}], v3, s[12:15], s46 offen")
        k.e(f"buffer_load_dwordx2 v[{Q2[qb]}:{Q2[qb]+1}], v8, s[12:15], s46 offen offset:1024")
    for i in range(8):
        k.e(f"s_mov_b32 s46, {i*1024}")
        k.e(f"buffer_load_dwordx4 v[{64+4*i}:{67+4*i}], v3, s[16:19], s46 offen")
    k.e("s_lshl_b32 s46, s40, 6"); k.e("v_add_u32 v9, s46, v7"); k.e("v_lshlrev_b32 v10, 2, v9")
    k.e("buffer_load_dword v12, v10, s[20:23], 0 offen"); k.e("buffer_load_dword v13, v10, s[20:23], 0 offen offset:128")
    st.stamp()
    k.e("s_waitcnt vmcnt(0)")
    st.stamp()
    for i in range(1, 16):
        k.e(f"v_max3_f32 v64, v64, v{63+2*i}, v{64+2*i}") if i > 0 else None
    k.e("v_max_f32 v64, v64, v95")
    for x in (1, 2, 4, 8, 16, 32):
        k.e(f"v_xor_b32 v11, {x}, v2"); k.e("v_lshlrev_b32 v11, 2, v11")
        k.e("ds_bpermute_b32 v65, v11, v64"); k.e("s_waitcnt lgkmcnt(0)"); k.e("v_max_f32 v64, v64, v65")
    k.e("v_xor_b32 v11, 32, v2"); k.e("v_lshlrev_b32 v11, 2, v11")
    k.e("v_cmp_gt_u32 vcc, 32, v2")
    for qb in range(2):
        k.e(f"v_cndmask_b32 v{Q2[qb]}, 0, v{Q2[qb]}, vcc"); k.e(f"v_cndmask_b32 v{Q2[qb]+1}, 0, v{Q2[qb]+1}, vcc")
        k.e(f"v_dot2_f32_bf16 v66, v{Q1[qb]}, v{Q1[qb]}, 0")
        for j in (1, 2, 3): k.e(f"v_dot2_f32_bf16 v66, v{Q1[qb]+j}, v{Q1[qb]+j}, v66")
        for j in (0, 1): k.e(f"v_dot2_f32_bf16 v66, v{Q2[qb]+j}, v{Q2[qb]+j}, v66")
        k.e("ds_bpermute_b32 v67, v11, v66"); k.e("s_waitcnt lgkmcnt(0)"); k.e("v_add_f32 v66, v66, v67")
        k.e("v_mul_f32 v66, v66, v64"); k.e("v_sqrt_f32 v66, v66"); k.e("s_nop 0")
        k.e(f"v_mul_f32 v66, {f32bits(-1.01)}, v66")
        k.e("v_and_b32 v67, 0xffff0000, v66"); k.e("v_sub_f32 v68, v66, v67")
        k.e("v_cvt_pk_bf16_f32 v68, v67, v68")
        k.e(f"v_cndmask_b32 v{Q2[qb]+2}, 0, v68, vcc"); k.e(f"v_mov_b32 v{Q2[qb]+3}, 0")
    for b in range(2):
        k.e(f"v_mov_b32 v{K2r[b]+2}, 0x3f803f80"); k.e(f"v_mov_b32 v{K2r[b]+3}, 0")
    for qb in range(2):
        for i in range(16): k.e(f"v_mov_b32 v{O[qb]+i}, 0")
    k.e("v_lshrrev_b32 v14, 3, v7"); k.e("v_lshlrev_b32 v15, 9, v14"); k.e("v_add_u32 v15, 1344, v15")
    k.e("v_and_b32 v14, 7, v7"); k.e("v_lshlrev_b32 v14, 3, v14"); k.e("v_add_u32 v15, v15, v14")
    k.e(f"v_mov_b32 v{vKa}, v3"); k.e(f"v_mov_b32 v{vK2a}, v15")
    k.e("s_barrier")
    def reads(tile_in_chunk, b):
        o = tile_in_chunk * 3072
        k.e(f"ds_read_b128 v[{K1[b]}:{K1[b]+3}], v{vKa} offset:{o}")
        k.e(f"ds_read_b64 v[{K2r[b]}:{K2r[b]+1}], v{vK2a} offset:{o}")
        k.e(f"ds_read_b128 v[{V0[b]}:{V0[b]+3}], v{vKa} offset:{o+1024}")
        k.e(f"ds_read_b128 v[{V1[b]}:{V1[b]+3}], v{vKa} offset:{o+2048}")
    def r4(x): return f"v[{x}:{x+3}]"
    def r16(x): return f"v[{x}:{x+15}]"
    MF = "v_mfma_f32_32x32x16_bf16"
    reads(0, 0)
    k.e("s_waitcnt lgkmcnt(0)")
    k.e(f"{MF} {r16(Sx[0])}, {r4(K1[0])}, {r4(Q1[0])}, 0")
    k.e(f"{MF} {r16(Sx[0])}, {r4(K2r[0])}, {r4(Q2[0])}, {r16(Sx[0])}")
    for j in range(4, 8): k.e(f"v_mov_b32 v{P[1]+j}, 0")
    for j in range(4): k.e(f"v_mov_b32 v{V1[1]+j}, 0")
    k.e("s_mov_b32 s52, 0")
    k.e("s_mov_b32 s53, 0")
    k.e(f"s_mov_b32 s54, {NB*CHB}")
    k.e("s_nop 7"); k.e("s_nop 3")
    st.stamp()
    k.e("s_waitcnt lgkmcnt(0)")
    loop = f"{name}_loop"
    k.e(f"{loop}:")
    def E(i, S): k.e(f"v_exp_f32 v{S+i}, v{S+i}")
    def C(j, S, Pq): k.e(f"v_cvt_pk_bf16_f32 v{Pq+j}, v{S+2*j}, v{S+2*j+1}")
    for T in range(CH):
        b = T % 2; nb = 1 - b
        for qb in range(2):
            S = Sx[qb]; N = Sx[1 - qb]; Pq = P[qb]
            pq_prev = P[1 - qb]; o_prev = O[1 - qb]
            v1_prev = V1[b] if qb == 1 else V1[nb]
            kb = b if qb == 0 else nb
            nq = 1 - qb
            E(0, S); E(1, S)
            k.e(f"{MF} {r16(o_prev)}, {r4(v1_prev)}, {r4(pq_prev+4)}, {r16(o_prev)}")
            if qb == 0:
                if T == CH - 1:
                    k.e(f"s_waitcnt vmcnt({3*(NB-2)}) lgkmcnt(0)")
                    k.e("s_barrier")
                    k.e(f"s_cmp_lt_u32 s54, {NCH*CHB}")
                    k.e(f"s_cselect_b32 s55, s54, {OOB}")
                    dma(55, 53)
                    k.e(f"s_add_u32 s54, s54, {CHB}")
                    k.e(f"s_add_u32 s53, s53, {CHB}"); k.e(f"s_cmp_eq_u32 s53, {NB*CHB}"); k.e("s_cselect_b32 s53, 0, s53")
                    k.e(f"v_add_u32 v{vKa}, s53, v3"); k.e(f"v_add_u32 v{vK2a}, s53, v15")
                    reads(0, nb)
                else:
                    k.e("s_waitcnt lgkmcnt(0)")
                    reads(T + 1, nb)
            E(2, S); E(3, S); C(0, S, Pq); C(1, S, Pq)
            if qb == 1: k.e("s_waitcnt lgkmcnt(2)")
            k.e(f"{MF} {r16(N)}, {r4(K1[kb])}, {r4(Q1[nq])}, 0")
            E(4, S); E(5, S); E(6, S); E(7, S); C(2, S, Pq); C(3, S, Pq)
            k.e(f"{MF} {r16(N)}, {r4(K2r[kb])}, {r4(Q2[nq])}, {r16(N)}")
            E(8, S); E(9, S); E(10, S); E(11, S); C(4, S, Pq); C(5, S, Pq)
            k.e(f"{MF} {r16(O[qb])}, {r4(V0[b])}, {r4(Pq)}, {r16(O[qb])}")
            E(12, S); E(13, S); E(14, S); E(15, S); C(6, S, Pq); C(7, S, Pq)
    k.e("s_add_u32 s52, s52, 1"); k.e(f"s_cmp_lt_u32 s52, {NCH}")
    k.e(f"s_cbranch_scc1 {loop}")
    st.stamp()
    k.e("s_nop 1")
    k.e(f"{MF} {r16(O[1])}, {r4(V1[(CH-1)%2])}, {r4(P[1]+4)}, {r16(O[1])}")
    k.e("s_nop 7"); k.e("s_nop 7")
    k.e("s_waitcnt vmcnt(0)")
    k.e("v_lshrrev_b32 v14, 5, v2")
    for qb in range(2):
        o = O[qb]; gv = 12 + qb
        k.e(f"v_rcp_f32 v16, v{o+12}"); k.e("s_nop 0"); k.e(f"v_mul_f32 v16, v16, v{gv}")
        k.e(f"v_add_u32 v17, {32*qb}, v9")
        k.e("v_lshrrev_b32 v18, 4, v17"); k.e(f"v_mul_u32_u24 v18, {20*1024}, v18")
        k.e("v_and_b32 v19, 15, v17")
        for i in range(3):
            for q in range(4): k.e(f"v_mul_f32 v{o+4*i+q}, v16, v{o+4*i+q}")
            k.e(f"v_cvt_pk_bf16_f32 v20, v{o+4*i}, v{o+4*i+1}"); k.e(f"v_cvt_pk_bf16_f32 v21, v{o+4*i+2}, v{o+4*i+3}")
            k.e("s_mul_i32 s46, s42, 5"); k.e(f"s_add_u32 s46, s46, {2*i}")
            k.e("v_add_u32 v22, s46, v14")
            k.e("v_lshrrev_b32 v23, 3, v22"); k.e("v_lshlrev_b32 v23, 10, v23")
            k.e("v_and_b32 v24, 3, v22"); k.e("v_lshlrev_b32 v24, 4, v24"); k.e("v_add_u32 v24, v24, v19"); k.e("v_lshlrev_b32 v24, 4, v24")
            k.e("v_add_u32 v23, v23, v24")
            k.e("v_bfe_u32 v24, v22, 2, 1"); k.e("v_lshlrev_b32 v24, 3, v24"); k.e("v_add_u32 v23, v23, v24")
            k.e("v_add_u32 v23, v23, v18")
            if i == 2:
                k.e("v_cmp_eq_u32 vcc, 0, v14"); k.e(f"v_mov_b32 v24, {OOB}"); k.e("v_cndmask_b32 v23, v24, v23, vcc")
            k.e("buffer_store_dwordx2 v[20:21], v23, s[24:27], 0 offen")
            k.e("s_nop 0")
    k.e("s_waitcnt vmcnt(0)")
    st.stamp(); st.stamp(real=True)
    st.flush(4, L.STAMP, 3, vtmp=170)
    k.e(f"{name}_end:")
    k.e("s_endpgm")
    return k, NV, 256, NB * CHB
```

```python
def nat(ks, half, a): return 32*ks + 16*half + 8*a, 4
def t80(ks, half, a):
    m, t = divmod(ks, 5)
    if t < 4: return 80*(2*m + t//2) + 16*(2*(t%2) + half) + 8*a, 4
    return 80*(2*m + a) + 64 + 8*half, 4
def t14_tile(ks):
    if ks < 42: j, t = divmod(ks, 7); return j, t, 14*j, 7
    j, t = divmod(ks - 42, 6); return 6 + j, t, 84 + 12*j, 6
def t14(ks, half, a):
    j, t, S, cnt = t14_tile(ks)
    if t < 6:
        n, p = divmod(t, 3)
        return 16*(S + n*cnt + 2*p + half) + 8*a, 4
    return 16*(S + 7*a + 6) + 8*half, 4
def oord(ks, half, a):
    if ks < 16: return 20*(2*ks + a) + 8*half, 4
    return 20*(8*(ks-16) + 4*a + half) + 16, 40
def perm(fn, nks):
    out = []
    for ks in range(nks):
        for kq in range(4):
            for j8 in range(8):
                half, i4 = divmod(j8, 4); a, hi = divmod(kq, 2)
                b, d = fn(ks, half, a)
                out.append(b + hi*d + i4)
    return out
if __name__ == "__main__":
    for fn, n in ((nat,20),(t80,20),(t14,54),(oord,20)):
        p = perm(fn, n); assert sorted(p) == list(range(32*n)), fn
    print("ok")
```

```python
import sys
sys.path.insert(0, "work")
from asmfw import *
import layout as L
import korder as KO
import gen1
from gen1 import srd, ldptr, f32bits, KA, OOB, LOG2E, GELU_C1, GELU_C2, xlane_add

PROF = False; STEPST = False; SST = 60; PLAINX = False; NOA = False; NOB = False; NODMA = False; PF = True
PRIO_A, PRIO_B, PRIO_E = 0, 0, 3
FL_X1, FL_H, FL_O = 0, 1024, 2048
CH, NB = 4, 4
CHB = CH * 3072
NCH = 64 // CH
SPIN_MAX = 400000

def r4(x): return f"v[{x}:{x+3}]"
def r2(x): return f"v[{x}:{x+1}]"
def r16(x): return f"v[{x}:{x+15}]"

def allreduce16(k, op, v, t):
    k.e(f"v_mov_b32 v{t}, v{v}"); k.e(f"v_permlane16_swap_b32 v{v}, v{t}"); k.e(f"{op} v{v}, v{v}, v{t}")
    k.e(f"v_mov_b32 v{t}, v{v}"); k.e(f"v_permlane32_swap_b32 v{v}, v{t}"); k.e(f"{op} v{v}, v{v}, v{t}")

def decode_gj(k, base):
    k.e(f"s_sub_u32 s46, s2, {base}")
    k.e("s_and_b32 s47, s46, 7"); k.e("s_lshr_b32 s46, s46, 3")
    k.e("s_lshr_b32 s40, s46, 3"); k.e("s_lshl_b32 s47, s47, 2"); k.e("s_add_u32 s40, s40, s47")
    k.e("s_and_b32 s41, s46, 7")

def emit_publish(k, fl_base):
    lab = k.label("pub")
    k.e("s_waitcnt vmcnt(0)"); k.e("s_barrier")
    k.e("s_cmp_lg_u32 s3, 0"); k.e(f"s_cbranch_scc1 {lab}")
    k.e("s_lshl_b32 s46, s40, 3"); k.e("s_add_u32 s46, s46, s41"); k.e("s_lshl_b32 s46, s46, 2"); k.e(f"s_add_u32 s46, s46, {fl_base}")
    k.e("v_mov_b32 v4, 0"); k.e("v_mov_b32 v5, 1")
    k.e("s_mov_b64 s[34:35], exec"); k.e("s_mov_b64 exec, 1")
    k.e("buffer_store_dword v5, v4, s[28:31], s46 offen sc1")
    k.e("s_mov_b64 exec, s[34:35]")
    k.e(f"{lab}:")

def emit_wait(k, fl_base):
    lab = k.label("poll"); done = k.label("pdone")
    k.e("s_lshl_b32 s46, s40, 5"); k.e(f"s_add_u32 s46, s46, {fl_base}")
    k.e("v_and_b32 v4, 7, v2"); k.e("v_lshlrev_b32 v4, 2, v4")
    k.e(f"s_mov_b32 s47, {SPIN_MAX}")
    k.e(f"{lab}:")
    k.e("buffer_load_dword v5, v4, s[28:31], s46 offen sc1")
    k.e("s_waitcnt vmcnt(0)")
    k.e("v_cmp_ne_u32 vcc, 1, v5")
    k.e("s_cmp_eq_u64 vcc, 0")
    k.e(f"s_cbranch_scc1 {done}")
    k.e("s_sleep 1")
    k.e("s_sub_u32 s47, s47, 1"); k.e("s_cmp_lg_u32 s47, 0"); k.e(f"s_cbranch_scc1 {lab}")
    k.e(f"{done}:")

def store_t80(k, PK, vaddr, vaddr_lo, srdr, s_tile, T, sc=""):
    k.e(f"s_lshr_b32 s46, s{s_tile}, 1"); k.e("s_mul_i32 s46, s46, 5")
    k.e(f"s_and_b32 s47, s{s_tile}, 1")
    k.e("s_lshl_b32 s36, s47, 1"); k.e("s_add_u32 s36, s36, s46"); k.e("s_lshl_b32 s36, s36, 10")
    k.e("s_add_u32 s37, s46, 4"); k.e("s_lshl_b32 s37, s37, 10"); k.e("s_lshl_b32 s47, s47, 9"); k.e("s_add_u32 s37, s37, s47")
    k.e(f"buffer_store_dwordx4 {r4(PK)}, v{vaddr}, s[{srdr}:{srdr+3}], s36 offen{sc}")
    k.e(f"buffer_store_dwordx4 {r4(PK+4)}, v{vaddr}, s[{srdr}:{srdr+3}], s36 offen offset:1024{sc}")
    k.e(f"v_mov_b32 v{T}, v{PK+8}"); k.e(f"v_mov_b32 v{T+1}, v{PK+9}"); k.e(f"v_mov_b32 v{T+2}, v{PK+8}"); k.e(f"v_mov_b32 v{T+3}, v{PK+9}")
    k.e(f"v_permlane32_swap_b32 v{T}, v{T+2}"); k.e(f"v_permlane32_swap_b32 v{T+1}, v{T+3}")
    k.e(f"buffer_store_dwordx4 {r4(T)}, v{vaddr_lo}, s[{srdr}:{srdr+3}], s37 offen{sc}")

TABLES = [("nat20", KO.nat, 20), ("t80", KO.t80, 20), ("t14", KO.t14, 54), ("oord", KO.oord, 20)]
def table_text():
    s = ".p2align 6\n.type korder_table,@object\nkorder_table:\n"
    offs = {}; o = 0
    for nm, fn, n in TABLES:
        offs[nm] = o
        for ks in range(n):
            b = [fn(ks, i // 2, i % 2)[0] for i in range(4)]; d = [fn(ks, i // 2, i % 2)[1] for i in range(4)]
            s += ".long " + ", ".join(str(x) for x in b + d) + "\n"; o += 32
    s += f".size korder_table, {o}\n"
    return s, offs
TBL_TEXT, TBL_OFF = table_text()

def gen_prep():
    k = Kern("prep_kernel")
    NA = [("wq", L.WQP, 1280, 10, 20, 50, "nat20"), ("w1", L.W1P, 1280, 10, 20, 50, "nat20"), ("w2", L.W2P, 1280, 10, 20, 50, "t80"),
          ("wo", L.WOP, 1280, 10, 20, 50, "oord"), ("w3", L.W3P, 3456, 27, 20, 135, "t80"), ("w4", L.W4P, 1280, 10, 54, 135, "t14")]
    old = gen1.gen_prep()[0]
    lines = old.lines
    i0 = lines.index("prep_kernel_A_wq:"); i1 = lines.index("prep_kernel_KV:")
    k.lines = lines[:i0]
    start = 0
    for (nm, dst, ld, ncg, nks, nwg, order) in NA:
        k.e(f"prep_kernel_A_{nm}:")
        ldptr(k, 6, nm)
        k.e("s_waitcnt lgkmcnt(0)")
        srd(k, 8, 6, 0, 32 * nks * ld)
        srd(k, 12, 4, dst, (ncg * 4) * nks * 1024)
        k.e(f"s_mov_b32 s16, {ld}"); k.e(f"s_mov_b32 s17, {ncg}"); k.e(f"s_mov_b32 s18, {nks}")
        k.e(f"s_mov_b32 s19, {(1<<32)//ncg + 1}")
        k.e(f"s_sub_u32 s20, s2, {start}")
        k.e(f"s_mov_b32 s29, {TBL_OFF[order]}")
        k.e(f"s_branch prep_kernel_Acommon")
        start += nwg
    k.e("prep_kernel_Acommon:")
    k.e("s_lshl_b32 s20, s20, 2"); k.e("s_add_u32 s20, s20, s3")
    k.e("s_mul_hi_u32 s21, s20, s19")
    k.e("s_mul_i32 s22, s21, s17"); k.e("s_sub_u32 s22, s20, s22")
    k.e("s_getpc_b64 s[30:31]")
    k.e("prep_pc:")
    k.e("s_add_u32 s30, s30, korder_table-prep_pc"); k.e("s_addc_u32 s31, s31, 0")
    k.e("s_lshl_b32 s23, s21, 5"); k.e("s_add_u32 s23, s23, s29")
    k.e("s_add_u32 s30, s30, s23"); k.e("s_addc_u32 s31, s31, 0")
    k.e("s_load_dwordx8 s[40:47], s[30:31], 0")
    k.e("v_lshrrev_b32 v3, 5, v2")
    k.e("v_bfe_u32 v4, v2, 3, 2")
    k.e("v_and_b32 v5, 7, v2"); k.e("v_lshlrev_b32 v5, 4, v5")
    k.e("s_lshl_b32 s24, s22, 7")
    k.e("s_lshl_b32 s26, s3, 12")
    k.e("s_waitcnt lgkmcnt(0)")
    for i in range(4):
        k.e(f"v_mul_lo_u32 v6, v3, s{44+i}"); k.e("v_add_u32 v6, v6, v4"); k.e(f"v_add_u32 v6, s{40+i}, v6")
        k.e("v_mul_lo_u32 v6, v6, s16"); k.e("v_add_u32 v6, v6, v5")
        k.e(f"s_add_u32 m0, s26, {i*1024}")
        k.e("s_nop 0")
        k.e("buffer_load_dwordx4 v6, s[8:11], s24 offen lds")
    k.e("v_lshrrev_b32 v5, 4, v2"); k.e("v_lshlrev_b32 v5, 2, v5")
    k.e("v_and_b32 v6, 15, v2"); k.e("v_lshrrev_b32 v7, 2, v6"); k.e("v_add_u32 v5, v5, v7")
    k.e("v_lshlrev_b32 v5, 7, v5"); k.e("v_and_b32 v6, 3, v2"); k.e("v_lshlrev_b32 v6, 3, v6")
    k.e("v_add_u32 v5, v5, v6"); k.e("v_add_u32 v5, s26, v5")
    k.e("v_lshlrev_b32 v8, 4, v2")
    k.e("s_waitcnt vmcnt(0)")
    for c in range(4):
        k.e(f"ds_read_b64_tr_b16 v[{16+4*c}:{17+4*c}], v5 offset:{c*32}")
        k.e(f"ds_read_b64_tr_b16 v[{18+4*c}:{19+4*c}], v5 offset:{c*32+2048}")
    k.e("s_waitcnt lgkmcnt(0)")
    k.e("s_lshl_b32 s27, s22, 2"); k.e("s_mul_i32 s27, s27, s18"); k.e("s_add_u32 s27, s27, s21"); k.e("s_lshl_b32 s27, s27, 10")
    k.e("s_lshl_b32 s28, s18, 10")
    for c in range(4):
        k.e(f"buffer_store_dwordx4 v[{16+4*c}:{19+4*c}], v8, s[12:15], s27 offen")
        if c < 3: k.e("s_add_u32 s27, s27, s28")
    k.e("s_endpgm")
    k.lines += lines[i1:]
    return k, 200, 532, 16384

def epi_h3(g):
    k = g.k; T = g.tmp0
    srd(k, 72, 4, L.HS, L.SZ_XF); srd(k, 76, 4, L.MEAN, 2 * 8192); srd(k, 80, 4, L.CS1, 640 * 4)
    gen1.row_setup(g, 0, 5)
    k.e("v_lshlrev_b32 v6, 2, v5")
    k.e("buffer_load_dword v7, v6, s[76:79], 0 offen"); k.e("s_mov_b32 s70, 8192")
    k.e("buffer_load_dword v8, v6, s[76:79], s70 offen")
    k.e("v_lshrrev_b32 v9, 4, v2"); k.e("v_lshlrev_b32 v10, 4, v9")
    k.e("s_lshl_b32 s71, s45, 6")
    for c in range(g.NCB):
        k.e(f"buffer_load_dwordx4 v[{T+16+4*c}:{T+19+4*c}], v10, s[80:83], s71 offen offset:{c*64}")
    k.e("s_mul_i32 s84, s45, 205"); k.e("s_lshr_b32 s84, s84, 11")
    k.e("s_lshr_b32 s85, s84, 1"); k.e("s_add_u32 s85, s85, 1")
    k.e("s_and_b32 s86, s84, 1"); k.e("s_sub_u32 s87, 0, s85"); k.e("s_cmp_eq_u32 s86, 0"); k.e("s_cselect_b32 s85, s85, s87")
    k.e("v_add_u32 v11, s85, v5")
    k.e("v_lshrrev_b32 v12, 4, v11"); k.e(f"v_mul_u32_u24 v12, {20*1024}, v12")
    k.e("v_and_b32 v13, 15, v11"); k.e("v_lshlrev_b32 v14, 4, v9"); k.e("v_add_u32 v13, v13, v14"); k.e("v_lshlrev_b32 v13, 4, v13")
    k.e("v_add_u32 v12, v12, v13")
    k.e("v_cmp_gt_u32 vcc, 2048, v11"); k.e(f"v_mov_b32 v13, {OOB}"); k.e("v_cndmask_b32 v12, v13, v12, vcc")
    k.e("v_cmp_gt_u32 vcc, 32, v2"); k.e("v_cndmask_b32 v14, v13, v12, vcc")
    k.e("s_waitcnt vmcnt(0)")
    for c in range(g.NCB):
        a = g.A(0, c)
        gen1.ln_gelu_block(g, a, 7, 8, T + 16 + 4 * c, T + 12)
        gen1.pack4(k, a, T + 2 * c)
    k.e("s_and_b32 s88, s2, 7")
    store_t80(k, T, 12, 14, 72, 88, T + 12)

def emit_attn(k, st):
    name = k.name
    Q1 = [16, 24]; Q2 = [20, 28]; O = [32, 48]; Sx = [64, 80]; P = [96, 104]
    K1 = [112, 120]; K2r = [116, 124]; V0 = [128, 136]; V1 = [132, 140]
    vKa, vK2a = 5, 6
    MF = "v_mfma_f32_32x32x16_bf16"
    decode_gj(k, 0)
    if PRIO_A: k.e(f"s_setprio {PRIO_A}")
    k.e("s_and_b32 s42, s3, 1"); k.e("s_lshr_b32 s43, s3, 1")
    k.e("v_and_b32 v7, 31, v2"); k.e("v_lshlrev_b32 v8, 3, v7")
    k.e("s_lshl_b32 s46, s40, 6"); k.e("s_lshl_b32 s47, s43, 5"); k.e("s_add_u32 s46, s46, s47")
    k.e("v_add_u32 v9, s46, v7"); k.e("v_lshlrev_b32 v10, 2, v9")
    k.e("v_lshlrev_b32 v11, 3, v2")
    k.e("s_mul_i32 s44, s3, 3072")
    k.e("s_waitcnt lgkmcnt(0)")
    srd(k, 12, 4, L.QF, L.SZ_QF); srd(k, 8, 4, L.KVF, L.SZ_KVF); srd(k, 16, 4, L.KMAX, 512)
    srd(k, 20, 4, L.G, 8192); srd(k, 24, 4, L.OF, L.SZ_XF); srd(k, 28, 4, L.FLAGS, 4096)
    k.e("s_lshl_b32 s46, s41, 2"); k.e("s_lshl_b32 s47, s42, 1"); k.e("s_add_u32 s46, s46, s47"); k.e("s_lshl_b32 s46, s46, 6")
    k.e("s_lshl_b32 s47, s40, 1"); k.e("s_add_u32 s46, s46, s47"); k.e("s_add_u32 s46, s46, s43"); k.e("s_mul_i32 s46, s46, 1280")
    for qb in range(2):
        k.e(f"buffer_load_dwordx4 {r4(Q1[qb])}, v3, s[12:15], s46 offen")
        k.e(f"buffer_load_dwordx2 {r2(Q2[qb])}, v8, s[12:15], s46 offen offset:1024")
        if qb == 0: k.e(f"s_add_u32 s46, s46, {64*1280}")
    k.e("buffer_load_dwordx2 v[64:65], v11, s[16:19], 0 offen")
    k.e("buffer_load_dword v12, v10, s[20:23], 0 offen")
    def dma_all(chunk):
        k.e(f"s_add_u32 s45, s44, {chunk*CHB}"); k.e(f"s_add_u32 m0, s44, {chunk*CHB}"); k.e("s_nop 0")
        for i in range(3): k.e(f"buffer_load_dwordx4 v3, s[8:11], s45 offen offset:{i*1024} lds")
    for c in range(NB - 1): dma_all(c)
    st.stamp()
    for b in range(2):
        k.e(f"v_mov_b32 v{K2r[b]+2}, 0x3f803f80"); k.e(f"v_mov_b32 v{K2r[b]+3}, 0")
    for qb in range(2):
        for i in range(16): k.e(f"v_mov_b32 v{O[qb]+i}, 0")
    k.e("v_lshrrev_b32 v14, 3, v7"); k.e("v_lshlrev_b32 v15, 9, v14"); k.e("v_add_u32 v15, 1344, v15")
    k.e("v_and_b32 v14, 7, v7"); k.e("v_lshlrev_b32 v14, 3, v14"); k.e("v_add_u32 v15, v15, v14")
    k.e(f"v_mov_b32 v{vKa}, v3"); k.e(f"v_mov_b32 v{vK2a}, v15")
    for j in range(4, 8): k.e(f"v_mov_b32 v{P[1]+j}, 0")
    for j in range(12, 16): k.e(f"v_mov_b32 v{Sx[1]+j}, 0")
    for j in range(4): k.e(f"v_mov_b32 v{V1[1]+j}, 0")
    k.e(f"s_waitcnt vmcnt({3*(NB-1)})")
    st.stamp()
    k.e("v_max_f32 v64, v64, v65")
    for ror in (8, 4, 2, 1):
        k.e(f"v_max_f32_dpp v64, v64, v64 row_ror:{ror} row_mask:0xf bank_mask:0xf")
    allreduce16(k, "v_max_f32", 64, 65)
    k.e("v_cmp_gt_u32 vcc, 32, v2")
    for qb in range(2):
        k.e(f"v_cndmask_b32 v{Q2[qb]}, 0, v{Q2[qb]}, vcc"); k.e(f"v_cndmask_b32 v{Q2[qb]+1}, 0, v{Q2[qb]+1}, vcc")
        t = 66 + 4 * qb
        k.e(f"v_dot2_f32_bf16 v{t}, v{Q1[qb]}, v{Q1[qb]}, 0")
        for j in (1, 2, 3): k.e(f"v_dot2_f32_bf16 v{t}, v{Q1[qb]+j}, v{Q1[qb]+j}, v{t}")
        for j in (0, 1): k.e(f"v_dot2_f32_bf16 v{t}, v{Q2[qb]+j}, v{Q2[qb]+j}, v{t}")
    for qb in range(2):
        t = 66 + 4 * qb
        k.e(f"v_mov_b32 v{t+1}, v{t}"); k.e(f"v_permlane32_swap_b32 v{t}, v{t+1}"); k.e(f"v_add_f32 v{t}, v{t}, v{t+1}")
        k.e(f"v_mul_f32 v{t}, v{t}, v64"); k.e(f"v_sqrt_f32 v{t}, v{t}")
    for qb in range(2):
        t = 66 + 4 * qb
        k.e(f"v_mul_f32 v{t}, {f32bits(-1.01)}, v{t}")
        k.e(f"v_and_b32 v{t+1}, 0xffff0000, v{t}"); k.e(f"v_sub_f32 v{t+2}, v{t}, v{t+1}")
        k.e(f"v_cvt_pk_bf16_f32 v{t+2}, v{t+1}, v{t+2}")
        k.e(f"v_cndmask_b32 v{Q2[qb]+2}, 0, v{t+2}, vcc"); k.e(f"v_mov_b32 v{Q2[qb]+3}, 0")
    k.e(f"s_waitcnt vmcnt({3*(NB-2)})"); k.e("s_barrier")
    def rd(kind, tile, b):
        o = tile * 3072
        if kind == 0: return f"ds_read_b128 {r4(K1[b])}, v{vKa} offset:{o}"
        if kind == 1: return f"ds_read_b64 {r2(K2r[b])}, v{vK2a} offset:{o}"
        if kind == 2: return f"ds_read_b128 {r4(V0[b])}, v{vKa} offset:{o+1024}"
        return f"ds_read_b128 {r4(V1[b])}, v{vKa} offset:{o+2048}"
    for kind in range(4): k.e(rd(kind, 0, 0))
    k.e("s_waitcnt lgkmcnt(2)")
    k.e(f"{MF} {r16(Sx[0])}, {r4(K1[0])}, {r4(Q1[0])}, 0")
    k.e(f"{MF} {r16(Sx[0])}, {r4(K2r[0])}, {r4(Q2[0])}, {r16(Sx[0])}")
    k.e("s_mov_b32 s52, 0"); k.e("s_mov_b32 s53, 0")
    k.e(f"s_add_u32 s54, s44, {(NB-1)*CHB}"); k.e(f"s_add_u32 s56, s44, {(NB-1)*CHB}")
    k.e("s_nop 7"); k.e("s_nop 3")
    st.stamp()
    loop = f"{name}_aloop"
    k.e(f"{loop}:")
    def E(i, S): return f"v_exp_f32 v{S+i}, v{S+i}"
    def C(j, S, Pq): return f"v_cvt_pk_bf16_f32 v{Pq+j}, v{S+2*j}, v{S+2*j+1}"
    for T in range(CH):
        b = T % 2; nb = 1 - b
        for qb in range(2):
            S = Sx[qb]; N = Sx[1 - qb]; Pq = P[qb]
            pq_prev = P[1 - qb]; o_prev = O[1 - qb]
            v1_prev = V1[b] if qb == 1 else V1[nb]
            kb = b if qb == 0 else nb
            nq = 1 - qb
            Cp = lambda j: C(j, N, pq_prev)
            seq = [E(0, S), E(1, S), Cp(6), E(2, S), E(3, S), Cp(7),
                   f"{MF} {r16(N)}, {r4(K1[kb])}, {r4(Q1[nq])}, 0",
                   E(4, S), E(5, S), C(0, S, Pq), E(6, S), E(7, S), C(1, S, Pq),
                   f"{MF} {r16(N)}, {r4(K2r[kb])}, {r4(Q2[nq])}, {r16(N)}",
                   E(8, S), E(9, S), C(2, S, Pq), E(10, S), E(11, S), C(3, S, Pq),
                   f"{MF} {r16(o_prev)}, {r4(v1_prev)}, {r4(pq_prev+4)}, {r16(o_prev)}",
                   E(12, S), E(13, S), C(4, S, Pq), E(14, S), E(15, S), C(5, S, Pq),
                   f"{MF} {r16(O[qb])}, {r4(V0[b])}, {r4(Pq)}, {r16(O[qb])}"]
            side = {}
            def add(i, s): side.setdefault(i, []).append(s)
            if qb == 0:
                nt = T + 1
                if T == CH - 1:
                    add(4, f"s_add_u32 s53, s53, {CHB}"); add(4, f"s_cmp_eq_u32 s53, {NB*CHB}"); add(4, "s_cselect_b32 s53, 0, s53")
                    add(5, f"v_add_u32 v{vKa}, s53, v3"); add(5, f"v_add_u32 v{vK2a}, s53, v15")
                    add(5, f"s_waitcnt vmcnt({3*(NB-2)}) lgkmcnt(0)"); add(5, "s_barrier")
                    nt = 0
                else:
                    add(5, "s_waitcnt lgkmcnt(0)")
                add(6, rd(0, nt, nb)); add(13, rd(1, nt, nb)); add(20, rd(3, nt, nb)); add(27, rd(2, nt, nb))
            else:
                add(5, "s_waitcnt lgkmcnt(2)")
                if T < 3:
                    if T == 0:
                        add(6, f"s_cmp_lt_u32 s54, {NCH*CHB}"); add(6, f"s_cselect_b32 s55, s54, {OOB}"); add(6, "s_mov_b32 m0, s56")
                    if not NODMA: add(13, f"buffer_load_dwordx4 v3, s[8:11], s55 offen offset:{T*1024} lds")
                    if T == 2:
                        add(20, f"s_add_u32 s54, s54, {CHB}"); add(20, f"s_add_u32 s56, s56, {CHB}")
                        add(27, f"s_sub_u32 s57, s56, s44"); add(27, f"s_cmp_eq_u32 s57, {NB*CHB}"); add(27, "s_cselect_b32 s56, s44, s56")
            for i, ins in enumerate(seq):
                k.e(ins)
                for s in side.get(i, []): k.e(s)
    k.e("s_add_u32 s52, s52, 1"); k.e(f"s_cmp_lt_u32 s52, {NCH}")
    k.e(f"s_cbranch_scc1 {loop}")
    st.stamp()
    k.e(C(6, Sx[1], P[1])); k.e(C(7, Sx[1], P[1]))
    k.e("s_nop 1")
    k.e(f"{MF} {r16(O[1])}, {r4(V1[(CH-1)%2])}, {r4(P[1]+4)}, {r16(O[1])}")
    k.e("v_lshrrev_b32 v18, 4, v9"); k.e(f"v_mul_u32_u24 v18, {20*1024}, v18")
    k.e("v_and_b32 v19, 15, v9"); k.e("v_lshlrev_b32 v19, 4, v19"); k.e("v_add_u32 v18, v18, v19")
    k.e("v_lshrrev_b32 v14, 5, v2"); k.e("v_lshlrev_b32 v19, 8, v14"); k.e("v_add_u32 v19, v18, v19")
    k.e("s_lshl_b32 s46, s41, 1"); k.e("s_add_u32 s46, s46, s42"); k.e("s_lshl_b32 s46, s46, 10")
    k.e("s_lshr_b32 s47, s41, 1"); k.e("s_add_u32 s47, s47, 16"); k.e("s_lshl_b32 s47, s47, 10")
    k.e("s_and_b32 s48, s41, 1"); k.e("s_lshl_b32 s48, s48, 1"); k.e("s_add_u32 s48, s48, s42"); k.e("s_lshl_b32 s48, s48, 8"); k.e("s_add_u32 s47, s47, s48")
    k.e("v_cmp_eq_u32 vcc, 0, v14"); k.e(f"v_mov_b32 v20, {OOB}"); k.e("v_cndmask_b32 v18, v20, v18, vcc")
    k.e("s_nop 4")
    for qb in range(2):
        o = O[qb]
        k.e(f"v_rcp_f32 v{16+qb}, v{o+12}")
    for qb in range(2):
        k.e(f"v_mul_f32 v{16+qb}, v{16+qb}, v12")
    for qb in range(2):
        o = O[qb]
        for q in range(12): k.e(f"v_mul_f32 v{o+q}, v{16+qb}, v{o+q}")
        for q in range(4): k.e(f"v_cvt_pk_bf16_f32 v{64+4*qb+q}, v{o+2*q}, v{o+2*q+1}")
        for q in range(2): k.e(f"v_cvt_pk_bf16_f32 v{72+2*qb+q}, v{o+8+2*q}, v{o+9+2*q}")
        k.e(f"buffer_store_dwordx4 {r4(64+4*qb)}, v19, s[24:27], s46 offen offset:{qb*512} sc1")
    k.e(f"buffer_store_dwordx4 {r4(72)}, v18, s[24:27], s47 offen sc1")
    emit_publish(k, FL_O)
    st.stamp(); st.stamp(real=True)

class Ph: pass
VOFF = 232
def gemm_phase(k, KS, NCB, NSET, sg, acc0, set0, first_zero=True, st=None):
    keep = 4 // KS
    nl = 4 + NCB
    A = lambda r, c: acc0 + (r * NCB + c) * 4
    XS = lambda s, r: set0 + s * nl * 4 + r * 4
    WS = lambda s, c: set0 + s * nl * 4 + (4 + c) * 4
    VX = lambda r: VOFF + r
    VW = lambda c: VOFF + 4 + c
    b = 48
    srd(k, b + 4, 4, sg["woff"], sg["wsize"])
    k.e(f"s_mul_i32 s46, s45, {sg['nksw']*1024}")
    k.e(f"v_add_u32 v{VW(0)}, s46, v3")
    for c in range(1, NCB): k.e(f"v_add_u32 v{VW(c)}, {c*sg['nksw']*1024}, v{VW(0)}")
    n = (sg["nks"] + KS - 1) // KS
    T = n
    def soff(i, sreg):
        if KS * i + KS - 1 >= sg["nks"]:
            k.e(f"s_add_u32 s{sreg}, s43, {KS*i}")
            k.e(f"s_lshl_b32 s47, s{sreg}, 10"); k.e(f"s_cmp_lt_u32 s{sreg}, {sg['nks']}"); k.e(f"s_cselect_b32 s{sreg}, s47, {OOB}")
        else:
            k.e(f"s_add_u32 s{sreg}, s58, {KS*i*1024}")
    k.e("s_lshl_b32 s58, s43, 10")
    def issueW(i):
        s = i % NSET; soff(i, 46)
        for c in range(NCB): k.e(f"buffer_load_dwordx4 {r4(WS(s,c))}, v{VW(c)}, s[{b+4}:{b+7}], s46 offen")
    def issueX(i):
        s = i % NSET; sc = " sc1" if (sg.get("sc1") and not PLAINX) else ""
        soff(i, 46)
        for r in range(4): k.e(f"buffer_load_dwordx4 {r4(XS(s,r))}, v{VX(r)}, s[{b}:{b+3}], s46 offen{sc}")
    npre = min(NSET, T)
    for i in range(npre): issueW(i)
    srd(k, b, 4, sg["xoff"], sg["xsize"])
    for r in range(4):
        k.e(f"s_mul_i32 s46, s43, {keep}"); k.e(f"s_add_u32 s46, s46, {r}"); k.e("s_and_b32 s46, s46, 3")
        k.e("s_lshl_b32 s47, s40, 2"); k.e("s_add_u32 s46, s46, s47")
        k.e(f"s_mul_i32 s46, s46, {sg['nksx']*1024}")
        k.e(f"v_add_u32 v{VX(r)}, s46, v3")
    order = []
    if sg.get("wait"):
        sg["wait"](k)
    else:
        order += [("W", i, NCB) for i in range(npre)]
    if PRIO_B != PRIO_E: k.e(f"s_setprio {PRIO_B}")
    for i in range(npre):
        issueX(i); order.append(("X", i, 4))
    if sg.get("pf"):
        poff, psize = sg["pf"]
        lines = psize // 128; per_wg = (lines + 31) // 32; per_wave = (per_wg + 3) // 4; n_i = (per_wave + 63) // 64
        srd(k, 64, 4, poff, psize)
        k.e("s_sub_u32 s46, s2, 256"); k.e("s_lshr_b32 s46, s46, 3"); k.e("s_lshl_b32 s46, s46, 2"); k.e("s_add_u32 s46, s46, s3")
        k.e(f"s_mul_i32 s46, s46, {per_wave*128}")
        k.e("v_lshlrev_b32 v6, 7, v2")
        for i in range(n_i):
            if (i + 1) * 64 > per_wave:
                k.e(f"v_cmp_gt_u32 vcc, {per_wave - i*64}, v2"); k.e(f"v_mov_b32 v7, {OOB}"); k.e("v_cndmask_b32 v6, v7, v6, vcc")
            k.e(f"buffer_load_dword v7, v6, s[64:67], s46 offen")
            if i + 1 < n_i: k.e(f"s_add_u32 s46, s46, {64*128}")
        order.append(("P", -1, n_i))
    for i in range(T):
        idx = max(j for j, o in enumerate(order) if o[1] == i)
        after = sum(o[2] for o in order[idx + 1:])
        k.e(f"s_waitcnt vmcnt({min(after, 63)})")
        if st is not None and sg.get("stepstamp"): st.sstamp()
        s = i % NSET
        for c in range(NCB):
            for r in range(4):
                cc = "0" if (i == 0 and first_zero) else r4(A(r, c))
                k.e(f"v_mfma_f32_16x16x32_bf16 {r4(A(r,c))}, {r4(WS(s,c))}, {r4(XS(s,r))}, {cc}")
        nn = i + NSET
        if nn < T:
            issueW(nn); order.append(("W", nn, NCB)); issueX(nn); order.append(("X", nn, 4))
    if PRIO_B != PRIO_E: k.e(f"s_setprio {PRIO_E}")
    p = Ph(); p.A = A; p.keep = keep; p.NCB = NCB; p.KS = KS; p.set0 = set0; p.ntmp = NSET * nl * 4
    return p

def reduce_phase(k, p, pre=None):
    KS, keep, NCB, A = p.KS, p.keep, p.NCB, p.A
    blk = keep * NCB * 1024
    for j in range(1, KS):
        k.e(f"s_add_u32 s46, s43, {j}"); k.e(f"s_and_b32 s46, s46, {KS-1}")
        k.e(f"s_mul_i32 s47, s44, {KS}"); k.e("s_add_u32 s46, s46, s47")
        k.e(f"s_mul_i32 s46, s46, {(KS-1)*blk}"); k.e(f"s_add_u32 s46, s46, {(j-1)*blk}")
        k.e(f"v_add_u32 v4, s46, v3")
        for ro in range(keep):
            r = j * keep + ro
            for c in range(NCB):
                k.e(f"ds_write_b128 v4, {r4(A(r,c))} offset:{(ro*NCB+c)*1024}")
    if pre: pre()
    k.e("s_waitcnt lgkmcnt(0)"); k.e("s_barrier")
    k.e(f"s_mul_i32 s46, s3, {(KS-1)*blk}"); k.e("v_add_u32 v4, s46, v3")
    for j in range(1, KS):
        for ro in range(keep):
            for c in range(NCB):
                k.e(f"ds_read_b128 {r4(A(j*keep+ro,c))}, v4 offset:{((j-1)*keep*NCB + ro*NCB + c)*1024}")
    for j in range(1, KS):
        k.e(f"s_waitcnt lgkmcnt({min(15,(KS-1-j)*keep*NCB)})")
        for ro in range(keep):
            for c in range(NCB):
                a, t = A(ro, c), A(j * keep + ro, c)
                k.e(f"v_pk_add_f32 v[{a}:{a+1}], v[{a}:{a+1}], v[{t}:{t+1}]"); k.e(f"v_pk_add_f32 v[{a+2}:{a+3}], v[{a+2}:{a+3}], v[{t+2}:{t+3}]")

def gelu_multi(k, regs, temps, vC1, vC2, vone, omg=None):
    p = lambda x: f"v[{x}:{x+1}]"
    for a, T in zip(regs, temps):
        for h in (0, 2): k.e(f"v_pk_mul_f32 {p(T+h)}, {p(a+h)}, {p(a+h)}")
    for a, T in zip(regs, temps):
        for h in (0, 2): k.e(f"v_pk_fma_f32 {p(T+h)}, {p(T+h)}, {p(vC1)}, {p(vC2)}")
    for a, T in zip(regs, temps):
        for h in (0, 2): k.e(f"v_pk_mul_f32 {p(T+h)}, {p(T+h)}, {p(a+h)}")
    for a, T in zip(regs, temps):
        for q in range(4): k.e(f"v_exp_f32 v{T+q}, v{T+q}")
    if omg is not None:
        for a, T in zip(regs, temps):
            for h in (0, 2): k.e(f"v_pk_mul_f32 {p(a+h)}, {p(a+h)}, {p(omg)}")
    for a, T in zip(regs, temps):
        for h in (0, 2): k.e(f"v_pk_add_f32 {p(T+h)}, {p(T+h)}, {p(vone)}")
    for a, T in zip(regs, temps):
        for q in range(4): k.e(f"v_rcp_f32 v{T+q}, v{T+q}")
    for a, T in zip(regs, temps):
        for h in (0, 2): k.e(f"v_pk_mul_f32 {p(a+h)}, {p(a+h)}, {p(T+h)}")

def emit_bchain(k, st):
    decode_gj(k, 256)
    k.e("s_waitcnt lgkmcnt(0)")
    srd(k, 28, 4, L.FLAGS, 4096)
    k.e(f"s_setprio {PRIO_E}")
    XK = 216
    k.e("v_cmp_gt_u32 s[38:39], 32, v2")
    k.e("s_mov_b32 s43, s3"); k.e("s_mov_b32 s44, 0"); k.e("s_mul_i32 s45, s41, 5")
    segD = lambda xoff, woff, wsize=L.SZ_WDD, **kw: dict(xoff=xoff, xsize=L.SZ_XF, nksx=20, woff=woff, wsize=wsize, nksw=20, nks=20, **kw)
    p = gemm_phase(k, 4, 5, 3, segD(L.HS, L.W2P, pf=(L.W3P, L.SZ_W3) if PF else None), 16, 96)
    st.stamp()
    T = p.set0
    def pre2():
        srd(k, 72, 4, L.X1F, L.SZ_XF); srd(k, 76, 4, L.XF, L.SZ_XF); srd(k, 80, 4, L.X1ST, 2048 * 64); srd(k, 84, 4, L.G, 8192)
        k.e("s_lshl_b32 s70, s40, 2"); k.e("s_add_u32 s70, s70, s3")
        k.e("s_lshl_b32 s47, s70, 4"); k.e("v_and_b32 v5, 15, v2"); k.e("v_add_u32 v5, s47, v5")
        for c in range(5):
            k.e(f"s_add_u32 s88, s45, {c}"); gen1.f16_soff(k, 89, 70, 88, 20)
            k.e(f"buffer_load_dwordx2 v[{T+8+2*c}:{T+9+2*c}], v3, s[76:79], s89 offen")
        k.e("v_lshlrev_b32 v6, 2, v5"); k.e(f"buffer_load_dword v{XK+10}, v6, s[84:87], 0 offen")
        k.e(f"s_mul_i32 s71, s70, {20*1024}"); k.e(f"v_add_u32 v12, s71, v3")
        k.e(f"v_mov_b32 v13, {OOB}"); k.e("v_cndmask_b32 v13, v13, v12, s[38:39]")
    reduce_phase(k, p, pre2)
    k.e("s_mov_b32 s71, 0x3f803f80")
    k.e("s_waitcnt vmcnt(0)")
    k.e(f"v_sub_f32 v{XK+10}, 1.0, v{XK+10}")
    for c in range(5):
        xr = T + 8 + 2 * c; u = T + 24 + 4 * c
        k.e(f"v_lshlrev_b32 v{u}, 16, v{xr}"); k.e(f"v_and_b32 v{u+1}, 0xffff0000, v{xr}")
        k.e(f"v_lshlrev_b32 v{u+2}, 16, v{xr+1}"); k.e(f"v_and_b32 v{u+3}, 0xffff0000, v{xr+1}")
    for c in range(5):
        a = p.A(0, c); u = T + 24 + 4 * c
        k.e(f"v_pk_add_f32 v[{a}:{a+1}], v[{a}:{a+1}], v[{u}:{u+1}]"); k.e(f"v_pk_add_f32 v[{a+2}:{a+3}], v[{a+2}:{a+3}], v[{u+2}:{u+3}]")
    for c in range(5):
        a = p.A(0, c)
        k.e(f"v_cvt_pk_bf16_f32 v{XK+2*c}, v{a}, v{a+1}"); k.e(f"v_cvt_pk_bf16_f32 v{XK+2*c+1}, v{a+2}, v{a+3}")
    store_t80(k, XK, 12, 13, 72, 41, T, " sc1")
    k.e(f"v_dot2_f32_bf16 v6, v{XK}, s71, 0"); k.e(f"v_dot2_f32_bf16 v7, v{XK}, v{XK}, 0")
    for q in range(1, 10):
        k.e(f"v_dot2_f32_bf16 v6, v{XK+q}, s71, v6"); k.e(f"v_dot2_f32_bf16 v7, v{XK+q}, v{XK+q}, v7")
    k.e("v_lshlrev_b32 v10, 6, v5"); k.e("s_lshl_b32 s89, s41, 3")
    k.e("v_cmp_gt_u32 vcc, 16, v2"); k.e(f"v_mov_b32 v9, {OOB}"); k.e("v_cndmask_b32 v10, v9, v10, vcc")
    allreduce16(k, "v_add_f32", 6, 8); allreduce16(k, "v_add_f32", 7, 9)
    k.e("buffer_store_dwordx2 v[6:7], v10, s[80:83], s89 offen sc1")
    emit_publish(k, FL_X1)
    st.stamp()
    k.e("s_and_b32 s43, s3, 1"); k.e("s_lshr_b32 s44, s3, 1")
    k.e("s_sub_u32 s46, s41, 6"); k.e("s_max_i32 s95, s46, 0")
    k.e("s_mul_i32 s92, s41, 14"); k.e("s_lshl_b32 s46, s95, 1"); k.e("s_sub_u32 s92, s92, s46")
    k.e("s_cmp_ge_u32 s41, 6"); k.e("s_cselect_b32 s93, 6, 7")
    k.e("s_mul_i32 s45, s44, s93"); k.e("s_add_u32 s45, s45, s92")
    p = gemm_phase(k, 2, 7, 2, segD(L.X1F, L.W3P, L.SZ_W3, sc1=True, wait=lambda kk: emit_wait(kk, FL_X1), pf=(L.W4P, L.SZ_W4) if PF else None), 16, 128)
    st.stamp()
    T = p.set0; CS = T; ST = T + 28; GV = T + 36
    def pre3():
        srd(k, 72, 4, L.HF, L.SZ_HF); srd(k, 76, 4, L.X1ST, 2048 * 64); srd(k, 80, 4, L.CS3, 1728 * 4); srd(k, 84, 4, L.G, 8192)
        k.e("v_lshrrev_b32 v9, 4, v2"); k.e("v_lshlrev_b32 v10, 4, v9")
        k.e("s_lshl_b32 s71, s45, 6")
        for c in range(7): k.e(f"buffer_load_dwordx4 {r4(CS+4*c)}, v10, s[80:83], s71 offen offset:{c*64}")
        for r in range(2):
            k.e(f"s_lshl_b32 s46, s43, 1"); k.e(f"s_add_u32 s46, s46, {r}"); k.e("s_lshl_b32 s47, s40, 2"); k.e("s_add_u32 s46, s46, s47")
            k.e("s_lshl_b32 s47, s46, 4"); k.e("v_and_b32 v5, 15, v2"); k.e("v_add_u32 v5, s47, v5")
            k.e("v_lshlrev_b32 v6, 6, v5"); k.e("v_add_u32 v6, v6, v10")
            k.e(f"buffer_load_dwordx4 {r4(ST+4*r)}, v6, s[76:79], 0 offen sc1")
            k.e("v_lshlrev_b32 v6, 2, v5"); k.e(f"buffer_load_dword v{GV+r}, v6, s[84:87], 0 offen")
    reduce_phase(k, p, pre3)
    C1, C2, ONE = T + 38, T + 40, T + 42
    MN, RS, OM = T + 44, T + 46, T + 48
    TT = T + 52
    PKH = A_free = p.A(2, 0)
    k.e(f"v_mov_b32 v{C1}, {f32bits(GELU_C1)}"); k.e(f"v_mov_b32 v{C1+1}, v{C1}")
    k.e(f"v_mov_b32 v{C2}, {f32bits(GELU_C2)}"); k.e(f"v_mov_b32 v{C2+1}, v{C2}")
    k.e(f"v_mov_b32 v{ONE}, 1.0"); k.e(f"v_mov_b32 v{ONE+1}, 1.0")
    k.e("s_mul_i32 s88, s41, 7"); k.e("s_sub_u32 s88, s88, s95")
    k.e("s_mul_i32 s46, s44, 3"); k.e("s_add_u32 s89, s88, s46"); k.e("s_lshl_b32 s89, s89, 10")
    k.e("s_add_u32 s90, s88, 6"); k.e("s_lshl_b32 s90, s90, 10"); k.e("s_lshl_b32 s46, s44, 9"); k.e("s_add_u32 s90, s90, s46")
    k.e("s_cmp_eq_u32 s93, 7"); k.e(f"s_cselect_b32 s90, s90, {OOB}")
    k.e("s_waitcnt vmcnt(0)")
    for r in range(2):
        s_ = ST + 4 * r
        k.e(f"v_add_f32 v{s_}, v{s_}, v{s_+2}"); k.e(f"v_add_f32 v{s_+1}, v{s_+1}, v{s_+3}")
        allreduce16(k, "v_add_f32", s_, 8); allreduce16(k, "v_add_f32", s_ + 1, 9)
        k.e(f"v_mul_f32 v{MN}, {f32bits(-1/640)}, v{s_}"); k.e(f"v_mul_f32 v{RS}, {f32bits(1/640)}, v{s_+1}")
        k.e(f"v_fma_f32 v{RS}, -v{MN}, v{MN}, v{RS}"); k.e(f"v_add_f32 v{RS}, {f32bits(1e-5)}, v{RS}"); k.e(f"v_rsq_f32 v{RS}, v{RS}")
        k.e(f"v_sub_f32 v{OM}, 1.0, v{GV+r}")
        k.e(f"v_mov_b32 v{MN+1}, v{MN}"); k.e(f"v_mov_b32 v{OM+1}, v{OM}"); k.e(f"v_mov_b32 v{RS+1}, v{RS}")
        k.e(f"s_lshl_b32 s70, s43, 1"); k.e(f"s_add_u32 s70, s70, {r}"); k.e("s_lshl_b32 s47, s40, 2"); k.e("s_add_u32 s70, s70, s47")
        k.e(f"s_mul_i32 s70, s70, {54*1024}"); k.e("v_add_u32 v12, s70, v3")
        k.e(f"v_mov_b32 v13, {OOB}"); k.e("v_cndmask_b32 v13, v13, v12, s[38:39]")
        regs = [p.A(r, c) for c in range(7)]
        for c, a in enumerate(regs):
            cs = CS + 4 * c
            for h in (0, 2): k.e(f"v_pk_fma_f32 v[{a+h}:{a+h+1}], v[{MN}:{MN+1}], v[{cs+h}:{cs+h+1}], v[{a+h}:{a+h+1}]")
        for a in regs:
            for h in (0, 2): k.e(f"v_pk_mul_f32 v[{a+h}:{a+h+1}], v[{a+h}:{a+h+1}], v[{RS}:{RS+1}]")
        gelu_multi(k, regs, [TT + 4 * c for c in range(7)], C1, C2, ONE, OM)
        PK = PKH + 16 * r
        for c, a in enumerate(regs):
            k.e(f"v_cvt_pk_bf16_f32 v{PK+2*c}, v{a}, v{a+1}"); k.e(f"v_cvt_pk_bf16_f32 v{PK+2*c+1}, v{a+2}, v{a+3}")
        for pp in range(3):
            k.e(f"buffer_store_dwordx4 {r4(PK+4*pp)}, v12, s[72:75], s89 offen offset:{pp*1024} sc1")
        U = TT
        k.e(f"v_mov_b32 v{U}, v{PK+12}"); k.e(f"v_mov_b32 v{U+1}, v{PK+13}"); k.e(f"v_mov_b32 v{U+2}, v{PK+12}"); k.e(f"v_mov_b32 v{U+3}, v{PK+13}")
        k.e(f"v_permlane32_swap_b32 v{U}, v{U+2}"); k.e(f"v_permlane32_swap_b32 v{U+1}, v{U+3}")
        k.e(f"buffer_store_dwordx4 {r4(U)}, v13, s[72:75], s90 offen sc1")
        k.e("s_nop 1")
    emit_publish(k, FL_H)
    st.stamp()
    k.e("s_mov_b32 s43, s3"); k.e("s_mov_b32 s44, 0"); k.e("s_mul_i32 s45, s41, 5")
    segH = dict(xoff=L.HF, xsize=L.SZ_HF, nksx=54, woff=L.W4P, wsize=L.SZ_W4, nksw=54, nks=54, sc1=True, wait=lambda kk: emit_wait(kk, FL_H), pf=(L.WOP, L.SZ_WDD) if PF else None)
    segH["stepstamp"] = STEPST
    p = gemm_phase(k, 4, 5, 3, segH, 16, 96, st=st)
    if STEPST: st.sflush()
    st.stamp()
    def waitO(kk):
        emit_wait(kk, FL_O)
        st.stamp()
    p = gemm_phase(k, 4, 5, 3, segD(L.OF, L.WOP, sc1=True, wait=waitO), 16, 96, first_zero=False)
    T = p.set0
    def pre4():
        srd(k, 72, 6, 0, 2048 * 1280)
        k.e("s_lshl_b32 s70, s40, 2"); k.e("s_add_u32 s70, s70, s3")
        k.e("s_lshl_b32 s47, s70, 4"); k.e("v_and_b32 v5, 15, v2"); k.e("v_add_u32 v5, s47, v5")
        k.e("v_mul_u32_u24 v12, 1280, v5"); k.e("v_lshrrev_b32 v13, 4, v2"); k.e("v_lshlrev_b32 v13, 3, v13"); k.e("v_add_u32 v12, v12, v13")
        k.e("s_lshl_b32 s71, s45, 5")
        for c in range(5):
            xr = XK + 2 * c; u = T + 24 + 4 * c
            k.e(f"v_lshlrev_b32 v{u}, 16, v{xr}"); k.e(f"v_and_b32 v{u+1}, 0xffff0000, v{xr}")
            k.e(f"v_lshlrev_b32 v{u+2}, 16, v{xr+1}"); k.e(f"v_and_b32 v{u+3}, 0xffff0000, v{xr+1}")
    reduce_phase(k, p, pre4)
    for c in range(5):
        a = p.A(0, c); u = T + 24 + 4 * c
        for q in range(4): k.e(f"v_fma_f32 v{a+q}, v{XK+10}, v{u+q}, v{a+q}")
    for c in range(5):
        a = p.A(0, c)
        k.e(f"v_cvt_pk_bf16_f32 v{T+2*c}, v{a}, v{a+1}"); k.e(f"v_cvt_pk_bf16_f32 v{T+2*c+1}, v{a+2}, v{a+3}")
        k.e(f"buffer_store_dwordx2 v[{T+2*c}:{T+2*c+1}], v12, s[72:75], s71 offen offset:{c*32}")
    if st.on: k.e("s_waitcnt vmcnt(0)")
    st.stamp(); st.stamp(real=True)

class VStamps:
    def __init__(self, k, on, kidx):
        self.k = k; self.on = on; self.n = 0; self.kidx = kidx; self.init = False
    def stamp(self, real=False):
        if not self.on: return
        if STEPST and self.n >= 2: return
        k = self.k
        if not self.init:
            self.init = True
            k.e("s_waitcnt lgkmcnt(0)")
            k.e(f"s_add_u32 s96, s4, {L.STAMP + self.kidx*512*4*64}"); k.e("s_addc_u32 s97, s5, 0")
            k.e("s_lshl_b32 s98, s2, 2"); k.e("s_add_u32 s98, s98, s3"); k.e("s_lshl_b32 s98, s98, 6")
            k.e("v_mov_b32 v254, s98")
        k.e("s_memtime s[98:99]" if not real else "s_memrealtime s[98:99]")
        k.e("s_waitcnt lgkmcnt(0)")
        k.e("v_mov_b32 v255, s98")
        k.e(f"global_store_dword v254, v255, s[96:97] offset:{4*self.n}")
        self.n += 1
    def sstamp(self):
        if not self.on: return
        self.sn = getattr(self, "sn", 0)
        self.k.e(f"s_memtime s[{SST+2*self.sn}:{SST+2*self.sn+1}]"); self.sn += 1
    def sflush(self):
        k = self.k
        k.e("s_waitcnt lgkmcnt(0)")
        for i in range(self.sn):
            k.e(f"v_mov_b32 v255, s{SST+2*i}")
            k.e(f"global_store_dword v254, v255, s[96:97] offset:{4*self.n}") if self.n < 16 else None
            self.n += 1 if self.n < 16 else 0
    def flush(self):
        if self.on: self.k.e("s_waitcnt vmcnt(0)")

def gen_main():
    k = Kern("main_kernel")
    name = k.name
    k.e("s_cmp_ge_u32 s2, 512"); k.e(f"s_cbranch_scc1 {name}_end")
    ldptr(k, 4, "ws"); ldptr(k, 6, "out")
    k.e("v_lshrrev_b32 v1, 6, v0"); k.e("v_and_b32 v2, 63, v0")
    k.e("v_readfirstlane_b32 s3, v1")
    k.e("v_lshlrev_b32 v3, 4, v2")
    k.e("s_cmp_ge_u32 s2, 256"); k.e(f"s_cbranch_scc1 {name}_B")
    stA = VStamps(k, PROF, 8); stA.stamp(); stA.stamp(real=True)
    if NOA:
        decode_gj(k, 0); k.e("s_waitcnt lgkmcnt(0)"); srd(k, 28, 4, L.FLAGS, 4096); emit_publish(k, FL_O)
        for _ in range(5): stA.stamp()
        stA.stamp(real=True)
    else:
        emit_attn(k, stA)
    stA.flush()
    k.e("s_endpgm")
    k.e(f"{name}_B:")
    stB = VStamps(k, PROF, 8); stB.stamp(); stB.stamp(real=True)
    if NOB: k.e("s_endpgm")
    emit_bchain(k, stB)
    stB.flush()
    k.e(f"{name}_end:")
    k.e("s_endpgm")
    return k, 256, 512, 61440

def assemble_text(ks):
    s = ""
    for (k, vg, nwg, lds) in ks:
        s += f"; @launch kernel={k.name} grid=({nwg},1,1) block=(256,1,1) lds={lds}\n"
    s += '.amdgcn_target "amdgcn-amd-amdhsa--gfx950"\n.text\n'
    for (k, vg, nwg, lds) in ks:
        s += kernel_text(k, vg)
    s += TBL_TEXT
    s += '.section .rodata,"a"\n'
    for (k, vg, nwg, lds) in ks:
        s += descriptor(k.name, (vg + 7) // 8 * 8, 100)
    return s

def build_all():
    gen1.PROF = False
    ks = []
    ks.append(gen_prep())
    segD = lambda xoff, woff, wsize=L.SZ_WDD: dict(xoff=xoff, xsize=L.SZ_XF, nksx=20, woff=woff, wsize=wsize, nksw=20, nks=20)
    ks.append(gen1.gen_gemm("p1q_kernel", 256, 4, 5, 3, [segD(L.XF, L.WQP)], gen1.dec_p1q, gen1.epi_q, kidx=1))
    ks.append(gen1.gen_gemm("p1h_kernel", 256, 4, 5, 3, [segD(L.XF, L.W1P)], gen1.dec_p1h, epi_h3, kidx=2))
    ks.append(gen1.gen_gemm("p1kv_kernel", 32, 4, 4, 3, [segD(L.XF, L.WKVP, 4*20*1024)], gen1.dec_kv, gen1.epi_kv, swap=[False, False, True, True], kidx=3))
    ks.append(gen_main())
    return ks

if __name__ == "__main__":
    PROF = "--prof" in sys.argv
    NOB = "--nob" in sys.argv
    NODMA = "--nodma" in sys.argv
    NOA = "--noa" in sys.argv
    STEPST = "--stepst" in sys.argv
    PLAINX = "--plainx" in sys.argv
    PF = "--nopf" not in sys.argv
    for a in sys.argv:
        if a.startswith("--pa="): PRIO_A = int(a[5:])
        if a.startswith("--pb="): PRIO_B = int(a[5:])
        if a.startswith("--pe="): PRIO_E = int(a[5:])
    ks = build_all()
    out = sys.argv[1]
    open(out, "w").write(assemble_text(ks))
    for (k, vg, nwg, lds) in ks: print(k.name, "vgpr", vg, "wg", nwg, "lds", lds, "lines", len(k.lines))
```

```python
import sys
sys.path.insert(0, "work")
from asmfw import *
import layout as L
import korder as KO
import gen1, gen3
from gen1 import srd, ldptr, f32bits, KA, OOB, LOG2E, GELU_C1, GELU_C2
from gen3 import r4, r2, r16, allreduce16, decode_gj, store_t80, VStamps

RAWX = False; PROF = False; NOA = False; NOB = False; FINE = False; PFS = 0; PFALL = False
PRIO_A, PRIO_B, PRIO_E = 0, 0, 0
FL_X1, FL_H, FL_O = 0, 1024, 2048
CH, NB = 4, 4
CHB = CH * 3072
NCH = 64 // CH
SPIN_MAX = 400000

class VM:
    def __init__(self, k): self.k = k; self.q = []
    def issue(self, instr, tag): self.k.e(instr); self.q.append(tag)
    def wait(self, tag):
        idx = [i for i, t in enumerate(self.q) if t == tag]
        if not idx: return
        n = len(self.q) - 1 - idx[-1]
        self.k.e(f"s_waitcnt vmcnt({min(n, 63)})"); self.q = self.q[idx[-1] + 1:]
    def drained(self): self.q = []

def emit_publish(k, fl_base):
    lab = k.label("pub")
    k.e("s_waitcnt vmcnt(0)"); k.e("s_barrier")
    k.e("s_cmp_lg_u32 s3, 0"); k.e(f"s_cbranch_scc1 {lab}")
    k.e("s_lshl_b32 s46, s40, 3"); k.e("s_add_u32 s46, s46, s41"); k.e("s_lshl_b32 s46, s46, 2"); k.e(f"s_add_u32 s46, s46, {fl_base}")
    k.e("v_mov_b32 v4, 0"); k.e("v_mov_b32 v5, 1")
    k.e("s_mov_b64 s[34:35], exec"); k.e("s_mov_b64 exec, 1")
    k.e("buffer_store_dword v5, v4, s[28:31], s46 offen sc1")
    k.e("s_mov_b64 exec, s[34:35]")
    k.e(f"{lab}:")

def emit_wait(k, fl_base):
    lab = k.label("poll"); done = k.label("pdone")
    k.e("s_lshl_b32 s46, s40, 5"); k.e(f"s_add_u32 s46, s46, {fl_base}")
    k.e("v_and_b32 v4, 7, v2"); k.e("v_lshlrev_b32 v4, 2, v4")
    k.e(f"s_mov_b32 s47, {SPIN_MAX}")
    k.e(f"{lab}:")
    k.e("buffer_load_dword v5, v4, s[28:31], s46 offen sc1")
    k.e("s_waitcnt vmcnt(0)")
    k.e("v_cmp_ne_u32 vcc, 1, v5")
    k.e("s_cmp_eq_u64 vcc, 0")
    k.e(f"s_cbranch_scc1 {done}")
    k.e("s_sleep 1")
    k.e("s_sub_u32 s47, s47, 1"); k.e("s_cmp_lg_u32 s47, 0"); k.e(f"s_cbranch_scc1 {lab}")
    k.e(f"{done}:")

def emit_attn(k, st):
    name = k.name
    Q1 = [16, 24]; Q2 = [20, 28]; O = [32, 48]; Sx = [64, 80]; P = [96, 104]
    K1 = [112, 120]; K2r = [116, 124]; V0 = [128, 136]; V1 = [132, 140]
    vKa, vK2a = 5, 6
    MF = "v_mfma_f32_32x32x16_bf16"; MF8 = "v_mfma_f32_32x32x8_bf16"
    decode_gj(k, 0)
    if PRIO_A: k.e(f"s_setprio {PRIO_A}")
    k.e("s_and_b32 s42, s3, 1"); k.e("s_lshr_b32 s43, s3, 1")
    k.e("v_and_b32 v7, 31, v2"); k.e("v_lshlrev_b32 v8, 3, v7")
    k.e("s_lshl_b32 s46, s40, 6"); k.e("s_lshl_b32 s47, s43, 5"); k.e("s_add_u32 s46, s46, s47")
    k.e("v_add_u32 v9, s46, v7"); k.e("v_lshlrev_b32 v10, 2, v9")
    k.e("v_lshlrev_b32 v11, 3, v2")
    k.e("s_mul_i32 s44, s3, 3072")
    k.e("s_waitcnt lgkmcnt(0)")
    srd(k, 12, 4, L.QF, L.SZ_QF); srd(k, 8, 4, L.KVF, L.SZ_KVF); srd(k, 16, 4, L.KMAX, 512)
    srd(k, 20, 4, L.G, 8192); srd(k, 24, 4, L.OF, L.SZ_XF); srd(k, 28, 4, L.FLAGS, 4096)
    k.e("s_lshl_b32 s46, s41, 2"); k.e("s_lshl_b32 s47, s42, 1"); k.e("s_add_u32 s46, s46, s47"); k.e("s_lshl_b32 s46, s46, 6")
    k.e("s_lshl_b32 s47, s40, 1"); k.e("s_add_u32 s46, s46, s47"); k.e("s_add_u32 s46, s46, s43"); k.e("s_mul_i32 s46, s46, 1280")
    for qb in range(2):
        k.e(f"buffer_load_dwordx4 {r4(Q1[qb])}, v3, s[12:15], s46 offen")
        k.e(f"buffer_load_dwordx2 {r2(Q2[qb])}, v8, s[12:15], s46 offen offset:1024")
        if qb == 0: k.e(f"s_add_u32 s46, s46, {64*1280}")
    k.e("buffer_load_dwordx2 v[64:65], v11, s[16:19], 0 offen")
    k.e("buffer_load_dword v12, v10, s[20:23], 0 offen")
    def dma_all(chunk):
        k.e(f"s_add_u32 s45, s44, {chunk*CHB}"); k.e(f"s_add_u32 m0, s44, {chunk*CHB}"); k.e("s_nop 0")
        for i in range(3): k.e(f"buffer_load_dwordx4 v3, s[8:11], s45 offen offset:{i*1024} lds")
    for c in range(NB - 1): dma_all(c)
    st.stamp()
    for qb in range(2):
        for i in range(16): k.e(f"v_mov_b32 v{O[qb]+i}, 0")
    k.e("v_lshrrev_b32 v14, 3, v7"); k.e("v_lshlrev_b32 v15, 9, v14"); k.e("v_add_u32 v15, 1344, v15")
    k.e("v_and_b32 v14, 7, v7"); k.e("v_lshlrev_b32 v14, 3, v14"); k.e("v_add_u32 v15, v15, v14")
    k.e("v_cmp_gt_u32 vcc, 32, v2"); k.e("v_mov_b32 v14, 1424"); k.e("v_cndmask_b32 v15, v14, v15, vcc")
    k.e(f"v_mov_b32 v{vKa}, v3"); k.e(f"v_mov_b32 v{vK2a}, v15")
    for j in range(4, 8): k.e(f"v_mov_b32 v{P[1]+j}, 0")
    for j in range(12, 16): k.e(f"v_mov_b32 v{Sx[1]+j}, 0")
    for j in range(4): k.e(f"v_mov_b32 v{V1[1]+j}, 0")
    k.e(f"s_waitcnt vmcnt({3*(NB-1)})")
    st.stamp()
    k.e("v_max_f32 v64, v64, v65")
    for ror in (8, 4, 2, 1):
        k.e(f"v_max_f32_dpp v64, v64, v64 row_ror:{ror} row_mask:0xf bank_mask:0xf")
    allreduce16(k, "v_max_f32", 64, 65)
    for qb in range(2):
        t = 66 + 4 * qb
        k.e(f"v_cndmask_b32 v{t+2}, 0, v{Q2[qb]}, vcc"); k.e(f"v_cndmask_b32 v{t+3}, 0, v{Q2[qb]+1}, vcc")
        k.e(f"v_dot2_f32_bf16 v{t}, v{Q1[qb]}, v{Q1[qb]}, 0")
        for j in (1, 2, 3): k.e(f"v_dot2_f32_bf16 v{t}, v{Q1[qb]+j}, v{Q1[qb]+j}, v{t}")
        for j in (2, 3): k.e(f"v_dot2_f32_bf16 v{t}, v{t+j}, v{t+j}, v{t}")
    for qb in range(2):
        t = 66 + 4 * qb
        k.e(f"v_mov_b32 v{t+1}, v{t}"); k.e(f"v_permlane32_swap_b32 v{t}, v{t+1}"); k.e(f"v_add_f32 v{t}, v{t}, v{t+1}")
        k.e(f"v_mul_f32 v{t}, v{t}, v64"); k.e(f"v_sqrt_f32 v{t}, v{t}")
    for qb in range(2):
        t = 66 + 4 * qb
        k.e(f"v_mul_f32 v{t}, {f32bits(-1.01)}, v{t}")
        k.e(f"v_and_b32 v{t+1}, 0xffff0000, v{t}"); k.e(f"v_sub_f32 v{t+2}, v{t}, v{t+1}")
        k.e(f"v_cvt_pk_bf16_f32 v{t+2}, v{t+1}, v{t+2}")
        k.e(f"v_cndmask_b32 v{Q2[qb]}, v{t+2}, v{Q2[qb]}, vcc"); k.e(f"v_cndmask_b32 v{Q2[qb]+1}, 0, v{Q2[qb]+1}, vcc")
    k.e(f"s_waitcnt vmcnt({3*(NB-2)})"); k.e("s_barrier")
    def rd(kind, tile, b):
        o = tile * 3072
        if kind == 0: return f"ds_read_b128 {r4(K1[b])}, v{vKa} offset:{o}"
        if kind == 1: return f"ds_read_b64 {r2(K2r[b])}, v{vK2a} offset:{o}"
        if kind == 2: return f"ds_read_b128 {r4(V0[b])}, v{vKa} offset:{o+1024}"
        return f"ds_read_b128 {r4(V1[b])}, v{vKa} offset:{o+2048}"
    for kind in range(4): k.e(rd(kind, 0, 0))
    k.e("s_waitcnt lgkmcnt(2)")
    k.e(f"{MF} {r16(Sx[0])}, {r4(K1[0])}, {r4(Q1[0])}, 0")
    k.e(f"{MF8} {r16(Sx[0])}, {r2(K2r[0])}, {r2(Q2[0])}, {r16(Sx[0])}")
    k.e("s_mov_b32 s52, 0"); k.e("s_mov_b32 s53, 0")
    k.e(f"s_add_u32 s54, s44, {(NB-1)*CHB}"); k.e(f"s_add_u32 s56, s44, {(NB-1)*CHB}")
    k.e("s_nop 7"); k.e("s_nop 3")
    st.stamp()
    loop = f"{name}_aloop"
    k.e(f"{loop}:")
    def E(i, S): return f"v_exp_f32 v{S+i}, v{S+i}"
    def C(j, S, Pq): return f"v_cvt_pk_bf16_f32 v{Pq+j}, v{S+2*j}, v{S+2*j+1}"
    for T in range(CH):
        b = T % 2; nb = 1 - b
        for qb in range(2):
            S = Sx[qb]; N = Sx[1 - qb]; Pq = P[qb]
            pq_prev = P[1 - qb]; o_prev = O[1 - qb]
            v1_prev = V1[b] if qb == 1 else V1[nb]
            kb = b if qb == 0 else nb
            nq = 1 - qb
            Cp = lambda j: C(j, N, pq_prev)
            seq = [E(0, S), E(1, S), Cp(6), E(2, S), E(3, S), Cp(7),
                   f"{MF} {r16(N)}, {r4(K1[kb])}, {r4(Q1[nq])}, 0",
                   E(4, S), E(5, S), C(0, S, Pq), E(6, S), E(7, S), C(1, S, Pq),
                   f"{MF8} {r16(N)}, {r2(K2r[kb])}, {r2(Q2[nq])}, {r16(N)}",
                   E(8, S), E(9, S), C(2, S, Pq), E(10, S), E(11, S), C(3, S, Pq),
                   f"{MF} {r16(o_prev)}, {r4(v1_prev)}, {r4(pq_prev+4)}, {r16(o_prev)}",
                   E(12, S), E(13, S), C(4, S, Pq), E(14, S), E(15, S), C(5, S, Pq),
                   f"{MF} {r16(O[qb])}, {r4(V0[b])}, {r4(Pq)}, {r16(O[qb])}"]
            side = {}
            def add(i, s): side.setdefault(i, []).append(s)
            if qb == 0:
                nt = T + 1
                if T == CH - 1:
                    add(4, f"s_add_u32 s53, s53, {CHB}"); add(4, f"s_cmp_eq_u32 s53, {NB*CHB}"); add(4, "s_cselect_b32 s53, 0, s53")
                    add(5, f"v_add_u32 v{vKa}, s53, v3"); add(5, f"v_add_u32 v{vK2a}, s53, v15")
                    add(5, f"s_waitcnt vmcnt({3*(NB-2)}) lgkmcnt(0)"); add(5, "s_barrier")
                    nt = 0
                else:
                    add(5, "s_waitcnt lgkmcnt(0)")
                add(6, rd(0, nt, nb)); add(13, rd(1, nt, nb)); add(20, rd(3, nt, nb)); add(27, rd(2, nt, nb))
            else:
                add(5, "s_waitcnt lgkmcnt(2)")
                if T < 3:
                    if T == 0:
                        add(6, f"s_cmp_lt_u32 s54, {NCH*CHB}"); add(6, f"s_cselect_b32 s55, s54, {OOB}"); add(6, "s_mov_b32 m0, s56")
                    add(13, f"buffer_load_dwordx4 v3, s[8:11], s55 offen offset:{T*1024} lds")
                    if T == 2:
                        add(20, f"s_add_u32 s54, s54, {CHB}"); add(20, f"s_add_u32 s56, s56, {CHB}")
                        add(27, f"s_sub_u32 s57, s56, s44"); add(27, f"s_cmp_eq_u32 s57, {NB*CHB}"); add(27, "s_cselect_b32 s56, s44, s56")
            for i, ins in enumerate(seq):
                k.e(ins)
                for s in side.get(i, []): k.e(s)
    k.e("s_add_u32 s52, s52, 1"); k.e(f"s_cmp_lt_u32 s52, {NCH}")
    k.e(f"s_cbranch_scc1 {loop}")
    st.stamp()
    k.e(C(6, Sx[1], P[1])); k.e(C(7, Sx[1], P[1]))
    k.e("s_nop 1")
    k.e(f"{MF} {r16(O[1])}, {r4(V1[(CH-1)%2])}, {r4(P[1]+4)}, {r16(O[1])}")
    k.e("v_lshrrev_b32 v18, 4, v9"); k.e(f"v_mul_u32_u24 v18, {20*1024}, v18")
    k.e("v_and_b32 v19, 15, v9"); k.e("v_lshlrev_b32 v19, 4, v19"); k.e("v_add_u32 v18, v18, v19")
    k.e("v_lshrrev_b32 v14, 5, v2"); k.e("v_lshlrev_b32 v19, 8, v14"); k.e("v_add_u32 v19, v18, v19")
    k.e("s_lshl_b32 s46, s41, 1"); k.e("s_add_u32 s46, s46, s42"); k.e("s_lshl_b32 s46, s46, 10")
    k.e("s_lshr_b32 s47, s41, 1"); k.e("s_add_u32 s47, s47, 16"); k.e("s_lshl_b32 s47, s47, 10")
    k.e("s_and_b32 s48, s41, 1"); k.e("s_lshl_b32 s48, s48, 1"); k.e("s_add_u32 s48, s48, s42"); k.e("s_lshl_b32 s48, s48, 8"); k.e("s_add_u32 s47, s47, s48")
    k.e("v_cmp_eq_u32 vcc, 0, v14"); k.e(f"v_mov_b32 v20, {OOB}"); k.e("v_cndmask_b32 v18, v20, v18, vcc")
    k.e("s_nop 4")
    for qb in range(2): k.e(f"v_rcp_f32 v{16+qb}, v{O[qb]+12}")
    for qb in range(2): k.e(f"v_mul_f32 v{16+qb}, v{16+qb}, v12")
    for qb in range(2):
        o = O[qb]
        for q in range(12): k.e(f"v_mul_f32 v{o+q}, v{16+qb}, v{o+q}")
        for q in range(4): k.e(f"v_cvt_pk_bf16_f32 v{64+4*qb+q}, v{o+2*q}, v{o+2*q+1}")
        for q in range(2): k.e(f"v_cvt_pk_bf16_f32 v{72+2*qb+q}, v{o+8+2*q}, v{o+9+2*q}")
        k.e(f"buffer_store_dwordx4 {r4(64+4*qb)}, v19, s[24:27], s46 offen offset:{qb*512} sc1")
    k.e(f"buffer_store_dwordx4 {r4(72)}, v18, s[24:27], s47 offen sc1")
    emit_publish(k, FL_O)
    st.stamp(); st.stamp(real=True)

ACC, SET0, XK, OMG = 16, 96, 240, 250
A5 = lambda r, c: ACC + (r * 5 + c) * 4

def ksplit_phase(k, vm, xoff, xsize, nksx, woff, wsize, nks, sc1, wait, first_zero, extra_after_issue=None, NSET=4):
    nl = 9
    XS = lambda s, r: SET0 + s * 36 + r * 4
    WS = lambda s, c: SET0 + s * 36 + 16 + c * 4
    T = (nks + 3) // 4
    srd(k, 52, 4, woff, wsize)
    k.e(f"s_mul_i32 s46, s45, {nks*1024}"); k.e("v_add_u32 v10, s46, v3")
    for c in range(1, 5): k.e(f"v_add_u32 v{10+c}, {c*nks*1024}, v10")
    k.e("s_lshl_b32 s58, s3, 10")
    def soff(i, sreg):
        if 4 * i + 3 >= nks:
            k.e(f"s_add_u32 s{sreg}, s3, {4*i}")
            k.e(f"s_lshl_b32 s47, s{sreg}, 10"); k.e(f"s_cmp_lt_u32 s{sreg}, {nks}"); k.e(f"s_cselect_b32 s{sreg}, s47, {OOB}")
        else:
            k.e(f"s_add_u32 s{sreg}, s58, {4*i*1024}")
    ldW = lambda i, c: vm.issue(f"buffer_load_dwordx4 {r4(WS(i%NSET,c))}, v{10+c}, s[52:55], s59 offen", ("W", i))
    sc = " sc1" if sc1 else ""
    ldX = lambda i, r: vm.issue(f"buffer_load_dwordx4 {r4(XS(i%NSET,r))}, v{6+r}, s[48:51], s59 offen{sc}", ("X", i))
    npre = min(NSET, T)
    srd(k, 48, 4, xoff, xsize)
    for r in range(4):
        k.e(f"s_add_u32 s46, s3, {r}"); k.e("s_and_b32 s46, s46, 3"); k.e("s_lshl_b32 s47, s40, 2"); k.e("s_add_u32 s46, s46, s47")
        k.e(f"s_mul_i32 s46, s46, {nksx*1024}"); k.e(f"v_add_u32 v{6+r}, s46, v3")
    if wait:
        for i in range(npre):
            soff(i, 59)
            for c in range(5): ldW(i, c)
        wait(k); vm.drained()
        if PRIO_B != PRIO_E: k.e(f"s_setprio {PRIO_B}")
        for i in range(npre):
            soff(i, 59)
            for r in range(4): ldX(i, r)
    else:
        if PRIO_B != PRIO_E: k.e(f"s_setprio {PRIO_B}")
        for i in range(npre):
            soff(i, 59)
            for c in range(5): ldW(i, c)
            for r in range(4): ldX(i, r)
    if extra_after_issue: extra_after_issue()
    for i in range(T):
        vm.wait(("X", i))
        s = i % NSET; n = i + NSET
        if n < T: soff(n, 59)
        for c in range(5):
            for r in range(4):
                cc = "0" if (i == 0 and first_zero) else r4(A5(r, c))
                k.e(f"v_mfma_f32_16x16x32_bf16 {r4(A5(r,c))}, {r4(WS(s,c))}, {r4(XS(s,r))}, {cc}")
            if n < T: ldW(n, c)
        if n < T:
            for r in range(4): ldX(n, r)
    if PRIO_B != PRIO_E: k.e(f"s_setprio {PRIO_E}")

def l2_prefetch(k, vm, poff, psize, stride):
    n = psize // stride; per_wg = (n + 31) // 32; per_wave = (per_wg + 3) // 4; n_i = (per_wave + 63) // 64
    srd(k, 88, 4, poff, psize)
    k.e("s_sub_u32 s46, s2, 256"); k.e("s_lshr_b32 s46, s46, 3"); k.e("s_lshl_b32 s46, s46, 2"); k.e("s_add_u32 s46, s46, s3")
    k.e(f"s_mul_i32 s46, s46, {per_wave*stride}")
    k.e(f"v_mul_u32_u24 v4, {stride}, v2")
    for i in range(n_i):
        if (i + 1) * 64 > per_wave:
            k.e(f"v_cmp_gt_u32 vcc, {per_wave - i*64}, v2"); k.e(f"v_mov_b32 v5, {OOB}"); k.e("v_cndmask_b32 v4, v5, v4, vcc")
        vm.issue(f"buffer_load_dword v251, v4, s[88:91], s46 offen", "pf")
        if i + 1 < n_i: k.e(f"s_add_u32 s46, s46, {64*stride}")

def reduce4(k, pre=None):
    blk = 5 * 1024
    for j in range(1, 4):
        k.e(f"s_add_u32 s46, s3, {j}"); k.e("s_and_b32 s46, s46, 3")
        k.e(f"s_mul_i32 s46, s46, {3*blk}"); k.e(f"s_add_u32 s46, s46, {(j-1)*blk}")
        k.e("v_add_u32 v4, s46, v3")
        for c in range(5): k.e(f"ds_write_b128 v4, {r4(A5(j,c))} offset:{c*1024}")
    if pre: pre()
    k.e(f"s_mul_i32 s46, s3, {3*blk}"); k.e("v_add_u32 v5, s46, v3")
    k.e("s_waitcnt lgkmcnt(0)"); k.e("s_barrier")
    for j in range(1, 4):
        for c in range(5): k.e(f"ds_read_b128 {r4(A5(j,c))}, v5 offset:{((j-1)*5 + c)*1024}")
    for j in range(1, 4):
        k.e(f"s_waitcnt lgkmcnt({(3-j)*5})")
        for c in range(5):
            a, t = A5(0, c), A5(j, c)
            k.e(f"v_pk_add_f32 v[{a}:{a+1}], v[{a}:{a+1}], v[{t}:{t+1}]"); k.e(f"v_pk_add_f32 v[{a+2}:{a+3}], v[{a+2}:{a+3}], v[{t+2}:{t+3}]")

def p3_params(k):
    k.e("s_sub_u32 s46, s41, 6"); k.e("s_max_i32 s95, s46, 0")
    k.e("s_mul_i32 s92, s41, 14"); k.e("s_lshl_b32 s46, s95, 1"); k.e("s_sub_u32 s92, s92, s46")
    k.e("s_lshl_b32 s46, s3, 2"); k.e("s_cmp_eq_u32 s3, 3"); k.e("s_cselect_b32 s46, 11, s46")
    k.e("s_mul_i32 s47, s3, 3"); k.e("s_cmp_ge_u32 s41, 6"); k.e("s_cselect_b32 s46, s47, s46")
    k.e("s_add_u32 s45, s92, s46")
    k.e("s_cmp_lt_u32 s3, 2"); k.e("s_cselect_b32 s93, 4, 3"); k.e("s_cmp_ge_u32 s41, 6"); k.e("s_cselect_b32 s93, 3, s93")

def emit_bchain(k, st):
    decode_gj(k, 256)
    k.e("s_waitcnt lgkmcnt(0)")
    srd(k, 28, 4, L.FLAGS, 4096)
    if PRIO_E: k.e(f"s_setprio {PRIO_E}")
    k.e("v_cmp_gt_u32 s[38:39], 32, v2")
    vm = VM(k)
    k.e("s_mul_i32 s45, s41, 5")
    k.e("s_lshl_b32 s70, s40, 2"); k.e("s_add_u32 s70, s70, s3")
    def extra2():
        srd(k, 84, 4, L.G, 8192)
        k.e("s_lshl_b32 s47, s70, 4"); k.e("v_and_b32 v5, 15, v2"); k.e("v_add_u32 v5, s47, v5"); k.e("v_lshlrev_b32 v4, 2, v5")
        if RAWX:
            srd(k, 76, 32, 0, 2048 * 1280)
            k.e("v_mul_u32_u24 v5, 1280, v5"); k.e("v_lshrrev_b32 v15, 4, v2"); k.e("v_lshlrev_b32 v15, 3, v15"); k.e("v_add_u32 v5, v5, v15")
            k.e("s_mul_i32 s89, s41, 160")
            for c in range(5): vm.issue(f"buffer_load_dwordx2 v[{XK+2*c}:{XK+2*c+1}], v5, s[76:79], s89 offen offset:{c*32}", "xr")
        else:
            srd(k, 76, 4, L.XF, L.SZ_XF)
            for c in range(5):
                k.e(f"s_add_u32 s88, s45, {c}"); gen1.f16_soff(k, 89, 70, 88, 20)
                vm.issue(f"buffer_load_dwordx2 v[{XK+2*c}:{XK+2*c+1}], v3, s[76:79], s89 offen", "xr")
        vm.issue(f"buffer_load_dword v{OMG}, v4, s[84:87], 0 offen", "xr")
        if RAWX:
            p3_params(k)
            srd(k, 80, 4, L.CS3P, 20 * 1728 * 4)
            k.e("v_lshlrev_b32 v4, 2, v2"); k.e("s_lshl_b32 s89, s45, 6")
            for ks in range(20):
                vm.issue(f"buffer_load_dword v{220+ks}, v4, s[80:83], s89 offen", "cp")
                k.e(f"s_add_u32 s89, s89, {1728*4}")
            k.e("s_mul_i32 s45, s41, 5")
        if PFS:
            l2_prefetch(k, vm, L.W3P, L.SZ_W3, PFS)
            if PFALL: l2_prefetch(k, vm, L.W4P, L.SZ_W4, PFS)
    ksplit_phase(k, vm, L.HS, L.SZ_XF, 20, L.W2P, L.SZ_WDD, 20, False, None, True, extra2, NSET=3 if RAWX else 4)
    st.stamp()
    T = SET0
    def pre2():
        srd(k, 72, 4, L.X1F, L.SZ_XF); srd(k, 80, 4, L.X1ST, 2048 * 64)
        k.e(f"s_mul_i32 s71, s70, {20*1024}"); k.e(f"v_add_u32 v12, s71, v3")
        k.e(f"v_mov_b32 v13, {OOB}"); k.e("v_cndmask_b32 v13, v13, v12, s[38:39]")
        vm.wait("xr")
        if RAWX:
            vm.wait("cp")
            for q in range(1, 10): k.e(f"v_add_f32 v220, v220, v{220+q}"); k.e(f"v_add_f32 v230, v230, v{230+q}")
            k.e("v_add_f32 v251, v220, v230")
        k.e(f"v_sub_f32 v{OMG}, 1.0, v{OMG}")
        for c in range(5):
            xr = XK + 2 * c; u = T + 24 + 4 * c
            k.e(f"v_lshlrev_b32 v{u}, 16, v{xr}"); k.e(f"v_and_b32 v{u+1}, 0xffff0000, v{xr}")
            k.e(f"v_lshlrev_b32 v{u+2}, 16, v{xr+1}"); k.e(f"v_and_b32 v{u+3}, 0xffff0000, v{xr+1}")
        k.e("s_lshl_b32 s47, s70, 4"); k.e("v_and_b32 v14, 15, v2"); k.e("v_add_u32 v14, s47, v14")
        k.e("v_lshlrev_b32 v14, 6, v14"); k.e("s_lshl_b32 s89, s41, 3")
        k.e("v_cmp_gt_u32 vcc, 16, v2"); k.e(f"v_mov_b32 v9, {OOB}"); k.e("v_cndmask_b32 v14, v9, v14, vcc")
    reduce4(k, pre2)
    if FINE: st.stamp()
    for c in range(5):
        a = A5(0, c); u = T + 24 + 4 * c
        k.e(f"v_pk_add_f32 v[{a}:{a+1}], v[{a}:{a+1}], v[{u}:{u+1}]"); k.e(f"v_pk_add_f32 v[{a+2}:{a+3}], v[{a+2}:{a+3}], v[{u+2}:{u+3}]")
    for c in range(5):
        a = A5(0, c)
        k.e(f"v_cvt_pk_bf16_f32 v{XK+2*c}, v{a}, v{a+1}"); k.e(f"v_cvt_pk_bf16_f32 v{XK+2*c+1}, v{a+2}, v{a+3}")
    store_t80(k, XK, 12, 13, 72, 41, T, " sc1")
    k.e("s_mov_b32 s71, 0x3f803f80")
    k.e(f"v_dot2_f32_bf16 v6, v{XK}, s71, 0"); k.e(f"v_dot2_f32_bf16 v7, v{XK}, v{XK}, 0")
    for q in range(1, 10):
        k.e(f"v_dot2_f32_bf16 v6, v{XK+q}, s71, v6"); k.e(f"v_dot2_f32_bf16 v7, v{XK+q}, v{XK+q}, v7")
    allreduce16(k, "v_add_f32", 6, 8); allreduce16(k, "v_add_f32", 7, 9)
    k.e("buffer_store_dwordx2 v[6:7], v14, s[80:83], s89 offen sc1")
    p3_params(k)
    WS3 = lambda s, c: 96 + s * 16 + c * 4
    XB = lambda s, r: 192 + s * 16 + r * 4
    CN = lambda r: 224 + 4 * r
    A3 = lambda r, c: ACC + (r * 4 + c) * 4
    NS3 = 6
    srd(k, 52, 4, L.W3P, L.SZ_W3)
    k.e(f"s_mul_i32 s46, s45, {20*1024}"); k.e("v_add_u32 v10, s46, v3")
    for c in range(1, 4): k.e(f"v_add_u32 v{10+c}, {c*20*1024}, v10")
    k.e("s_cmp_eq_u32 s93, 4"); k.e("s_cselect_b64 vcc, -1, 0")
    k.e(f"v_mov_b32 v9, {OOB}"); k.e("v_cndmask_b32 v13, v9, v13, vcc")
    if FINE: st.stamp()
    emit_publish(k, FL_X1)
    if FINE: st.stamp()
    vm.drained()
    ldW3 = lambda i, c: vm.issue(f"buffer_load_dwordx4 {r4(WS3(i%NS3,c))}, v{10+c}, s[52:55], s59 offen", ("W", i))
    for i in range(NS3):
        k.e(f"s_mov_b32 s59, {i*1024}")
        for c in range(4): ldW3(i, c)
    if not FINE: st.stamp()
    emit_wait(k, FL_X1); vm.drained()
    st.stamp()
    if PRIO_B != PRIO_E: k.e(f"s_setprio {PRIO_B}")
    srd(k, 48, 4, L.X1F, L.SZ_XF); srd(k, 76, 4, L.X1ST, 2048 * 64); srd(k, 84, 4, L.G, 8192)
    k.e(f"s_mul_i32 s59, s70, {20*1024}")
    for ks in range(20):
        if ks % 4 == 0 and ks: k.e(f"s_add_u32 s59, s59, 4096")
        vm.issue(f"buffer_load_dwordx4 {r4(ACC+4*ks)}, v3, s[48:51], s59 offen offset:{(ks%4)*1024} sc1", "xs")
    k.e("v_lshrrev_b32 v9, 4, v2"); k.e("v_lshlrev_b32 v8, 4, v9")
    for r in range(4):
        k.e("s_lshl_b32 s46, s40, 6"); k.e(f"s_add_u32 s46, s46, {16*r}"); k.e("v_and_b32 v5, 15, v2"); k.e("v_add_u32 v5, s46, v5")
        k.e("v_lshlrev_b32 v6, 6, v5"); k.e("v_add_u32 v6, v6, v8")
        vm.issue(f"buffer_load_dwordx4 {r4(192+4*r)}, v6, s[76:79], 0 offen sc1", "st")
        k.e("v_lshlrev_b32 v6, 2, v5")
        vm.issue(f"buffer_load_dword v{208+r}, v6, s[84:87], 0 offen", "st")
    k.e(f"s_mul_i32 s46, s3, {20*1024}"); k.e("v_add_u32 v4, s46, v3")
    vm.wait("xs")
    for ks in range(20): k.e(f"ds_write_b128 v4, {r4(ACC+4*ks)} offset:{ks*1024}")
    vm.wait("st")
    for r in range(4):
        s_ = 192 + 4 * r; c_ = CN(r)
        k.e(f"v_add_f32 v{s_}, v{s_}, v{s_+2}"); k.e(f"v_add_f32 v{s_+1}, v{s_+1}, v{s_+3}")
        allreduce16(k, "v_add_f32", s_, s_ + 2); allreduce16(k, "v_add_f32", s_ + 1, s_ + 3)
        k.e(f"v_mul_f32 v{c_}, {f32bits(-1/640)}, v{s_}"); k.e(f"v_mul_f32 v{s_+1}, {f32bits(1/640)}, v{s_+1}")
        k.e(f"v_fma_f32 v{s_+1}, -v{c_}, v{c_}, v{s_+1}"); k.e(f"v_add_f32 v{s_+1}, {f32bits(1e-5)}, v{s_+1}"); k.e(f"v_rsq_f32 v{s_+1}, v{s_+1}")
        k.e(f"v_sub_f32 v{s_+2}, 1.0, v{208+r}")
        k.e(f"v_mul_f32 v{s_+3}, v{s_+1}, v{s_+1}")
        k.e(f"v_mul_f32 v{c_+2}, {f32bits(GELU_C2)}, v{s_+1}")
        k.e(f"v_mul_f32 v{c_+3}, v{s_+1}, v{s_+2}")
        k.e(f"v_mul_f32 v{s_+3}, v{s_+3}, v{s_+1}")
        k.e(f"v_mul_f32 v{c_+1}, {f32bits(GELU_C1)}, v{s_+3}")
    k.e("v_mov_b32 v14, v3"); k.e(f"v_add_u32 v15, {60*1024}, v3")
    k.e("s_waitcnt lgkmcnt(0)"); k.e("s_barrier")
    def rdX(i, r):
        o = (r * 20 + i) * 1024
        return f"ds_read_b128 {r4(XB(i%2,r))}, v14 offset:{o}" if r < 3 else f"ds_read_b128 {r4(XB(i%2,r))}, v15 offset:{o-60*1024}"
    if FINE: st.stamp()
    for r in range(4): k.e(rdX(0, r))
    k.e("s_cmp_eq_u32 s93, 4"); k.e("s_cselect_b64 vcc, -1, 0")
    CSR = None
    for i in range(20):
        vm.wait(("W", i))
        k.e("s_waitcnt lgkmcnt(0)")
        n = i + NS3
        if n < 20: k.e(f"s_mov_b32 s59, {n*1024}")
        for c in range(4):
            if c == 3:
                lab = k.label("sk"); k.e(f"s_cbranch_vccz {lab}")
            for r in range(4):
                cc = "0" if i == 0 else r4(A3(r, c))
                k.e(f"v_mfma_f32_16x16x32_bf16 {r4(A3(r,c))}, {r4(WS3(i%NS3,c))}, {r4(XB(i%2,r))}, {cc}")
                if c == 0 and i + 1 < 20: k.e(rdX(i + 1, r))
            if c == 3: k.e(f"{lab}:")
            if n < 20: ldW3(n, c)
        if RAWX and i in (14, 15):
            CSR = WS3(14 % NS3, 0)
            for c in (0, 1) if i == 14 else (2, 3):
                for q in range(4): k.e(f"ds_bpermute_b32 v{CSR+4*c+q}, v8, v251 offset:{(16*c+q)*4}")
        if i == 14:
            CSR = WS3(14 % NS3, 0)
            if RAWX:
                pass
            else:
                srd(k, 80, 4, L.CS3, 1728 * 4)
                k.e("s_lshl_b32 s71, s45, 6")
                for c in range(4): vm.issue(f"buffer_load_dwordx4 {r4(CSR+4*c)}, v8, s[80:83], s71 offen offset:{c*64}", "cs")
    if PRIO_B != PRIO_E: k.e(f"s_setprio {PRIO_E}")
    st.stamp()
    srd(k, 72, 4, L.HF, L.SZ_HF)
    k.e("s_mul_i32 s88, s41, 7"); k.e("s_sub_u32 s88, s88, s95")
    k.e("s_lshl_b32 s46, s3, 1"); k.e("s_cmp_eq_u32 s3, 3"); k.e("s_cselect_b32 s46, 5, s46")
    k.e("s_cmp_ge_u32 s41, 6"); k.e("s_cselect_b32 s46, s3, s46")
    k.e("s_add_u32 s89, s88, s46"); k.e("s_lshl_b32 s89, s89, 10")
    k.e("s_lshr_b32 s46, s3, 1"); k.e("s_add_u32 s46, s46, 4"); k.e("s_cmp_ge_u32 s41, 6"); k.e("s_cselect_b32 s46, s46, 6")
    k.e("s_add_u32 s90, s88, s46"); k.e("s_lshl_b32 s90, s90, 10"); k.e("s_and_b32 s46, s3, 1"); k.e("s_lshl_b32 s46, s46, 9"); k.e("s_add_u32 s90, s90, s46")
    TT = 192; ONE = 208; PK = 212
    k.e(f"v_mov_b32 v{ONE}, 1.0"); k.e(f"v_mov_b32 v{ONE+1}, 1.0")
    vm.wait("cs")
    k.e("s_waitcnt lgkmcnt(0)")
    p2 = lambda x: f"v[{x}:{x+1}]"
    for r in range(4):
        c_ = CN(r)
        regs = [A3(r, c) for c in range(4)]
        bc = lambda x: p2(x & ~1)
        sel = lambda x: (x & 1)
        def bsel(x, pos, n=3):
            lo = [0] * n; hi = [1] * n
            lo[pos] = x & 1; hi[pos] = x & 1
            return f"op_sel:[{','.join(map(str,lo))}] op_sel_hi:[{','.join(map(str,hi))}]"
        for c, a in enumerate(regs):
            for h in (0, 2): k.e(f"v_pk_fma_f32 {p2(a+h)}, {bc(c_)}, {p2(CSR+4*c+h)}, {p2(a+h)} {bsel(c_,0)}")
        for c, a in enumerate(regs):
            for h in (0, 2): k.e(f"v_pk_mul_f32 {p2(TT+4*c+h)}, {p2(a+h)}, {p2(a+h)}")
        for c, a in enumerate(regs):
            for h in (0, 2):
                k.e(f"v_pk_fma_f32 {p2(TT+4*c+h)}, {p2(TT+4*c+h)}, {bc(c_+1)}, {bc(c_+2)} op_sel:[0,{(c_+1)&1},{(c_+2)&1}] op_sel_hi:[1,{(c_+1)&1},{(c_+2)&1}]")
        for c, a in enumerate(regs):
            for h in (0, 2): k.e(f"v_pk_mul_f32 {p2(TT+4*c+h)}, {p2(TT+4*c+h)}, {p2(a+h)}")
        for c in range(4):
            for q in range(4): k.e(f"v_exp_f32 v{TT+4*c+q}, v{TT+4*c+q}")
        for c, a in enumerate(regs):
            for h in (0, 2): k.e(f"v_pk_mul_f32 {p2(a+h)}, {p2(a+h)}, {bc(c_+3)} {bsel(c_+3,1,2)}")
        for c in range(4):
            for h in (0, 2): k.e(f"v_pk_add_f32 {p2(TT+4*c+h)}, {p2(TT+4*c+h)}, {p2(ONE)}")
        for c in range(4):
            for q in range(4): k.e(f"v_rcp_f32 v{TT+4*c+q}, v{TT+4*c+q}")
        for c, a in enumerate(regs):
            for h in (0, 2): k.e(f"v_pk_mul_f32 {p2(a+h)}, {p2(a+h)}, {p2(TT+4*c+h)}")
        pk = PK + 8 * (r % 2)
        for c, a in enumerate(regs):
            k.e(f"v_cvt_pk_bf16_f32 v{pk+2*c}, v{a}, v{a+1}"); k.e(f"v_cvt_pk_bf16_f32 v{pk+2*c+1}, v{a+2}, v{a+3}")
        k.e("s_lshl_b32 s46, s40, 2"); k.e(f"s_add_u32 s46, s46, {r}"); k.e(f"s_mul_i32 s46, s46, {54*1024}"); k.e("v_add_u32 v12, s46, v3")
        k.e(f"buffer_store_dwordx4 {r4(pk)}, v12, s[72:75], s89 offen sc1")
        l3 = k.label("c3"); le = k.label("ce")
        k.e(f"s_cbranch_vccz {l3}")
        k.e(f"buffer_store_dwordx4 {r4(pk+4)}, v12, s[72:75], s89 offen offset:1024 sc1")
        k.e(f"s_branch {le}")
        k.e(f"{l3}:")
        k.e(f"v_mov_b32 v{pk+6}, v{pk+4}"); k.e(f"v_mov_b32 v{pk+7}, v{pk+5}")
        k.e(f"v_mov_b32 v13, {OOB}"); k.e("v_cndmask_b32 v13, v13, v12, s[38:39]")
        k.e(f"v_permlane32_swap_b32 v{pk+4}, v{pk+6}"); k.e(f"v_permlane32_swap_b32 v{pk+5}, v{pk+7}")
        k.e(f"buffer_store_dwordx4 {r4(pk+4)}, v13, s[72:75], s90 offen sc1")
        k.e(f"{le}:")
        k.e("s_nop 1")
    k.e("s_mul_i32 s45, s41, 5")
    if FINE: st.stamp()
    emit_publish(k, FL_H); vm.drained()
    st.stamp()
    ksplit_phase(k, vm, L.HF, L.SZ_HF, 54, L.W4P, L.SZ_W4, 54, True, lambda kk: emit_wait(kk, FL_H), True)
    st.stamp()
    def waitO(kk):
        emit_wait(kk, FL_O); st.stamp()
    ksplit_phase(k, vm, L.OF, L.SZ_XF, 20, L.WOP, L.SZ_WDD, 20, True, waitO, False)
    T = SET0
    def pre4():
        srd(k, 72, 6, 0, 2048 * 1280)
        k.e("s_lshl_b32 s47, s70, 4"); k.e("v_and_b32 v14, 15, v2"); k.e("v_add_u32 v14, s47, v14")
        k.e("v_mul_u32_u24 v12, 1280, v14"); k.e("v_lshrrev_b32 v13, 4, v2"); k.e("v_lshlrev_b32 v13, 3, v13"); k.e("v_add_u32 v12, v12, v13")
        k.e("s_lshl_b32 s71, s45, 5")
        for c in range(5):
            xr = XK + 2 * c; u = T + 24 + 4 * c
            k.e(f"v_lshlrev_b32 v{u}, 16, v{xr}"); k.e(f"v_and_b32 v{u+1}, 0xffff0000, v{xr}")
            k.e(f"v_lshlrev_b32 v{u+2}, 16, v{xr+1}"); k.e(f"v_and_b32 v{u+3}, 0xffff0000, v{xr+1}")
    reduce4(k, pre4)
    for c in range(5):
        a = A5(0, c); u = T + 24 + 4 * c
        for h in (0, 2):
            k.e(f"v_pk_fma_f32 v[{a+h}:{a+h+1}], v[{OMG}:{OMG+1}], v[{u+h}:{u+h+1}], v[{a+h}:{a+h+1}] op_sel:[0,0,0] op_sel_hi:[0,1,1]")
    for c in range(5):
        a = A5(0, c)
        k.e(f"v_cvt_pk_bf16_f32 v{T+2*c}, v{a}, v{a+1}"); k.e(f"v_cvt_pk_bf16_f32 v{T+2*c+1}, v{a+2}, v{a+3}")
        k.e(f"buffer_store_dwordx2 v[{T+2*c}:{T+2*c+1}], v12, s[72:75], s71 offen offset:{c*32}")
    st.stamp()
    if st.on: k.e("s_waitcnt vmcnt(0)")
    st.stamp(); st.stamp(real=True)

class SStamps:
    def __init__(self, k, on, kidx, pairs, vt=254):
        self.k = k; self.on = on; self.n = 0; self.kidx = kidx; self.pairs = pairs; self.real = []; self.vt = vt
    def stamp(self, real=False):
        if not self.on: return
        r = self.pairs[self.n]; self.n += 1
        self.k.e(f"s_memtime s[{r}:{r+1}]" if not real else f"s_memrealtime s[{r}:{r+1}]")
    def flush(self):
        if not self.on: return
        k = self.k
        k.e("s_waitcnt vmcnt(0) lgkmcnt(0)")
        k.e(f"s_add_u32 s96, s4, {L.STAMP + self.kidx*512*4*64}"); k.e("s_addc_u32 s97, s5, 0")
        k.e("s_lshl_b32 s98, s2, 2"); k.e("s_add_u32 s98, s98, s3"); k.e("s_lshl_b32 s98, s98, 6")
        k.e(f"v_mov_b32 v{self.vt}, s98")
        for i in range(self.n):
            k.e(f"v_mov_b32 v{self.vt+1}, s{self.pairs[i]}")
            k.e(f"global_store_dword v{self.vt}, v{self.vt+1}, s[96:97] offset:{4*i}")
            k.e("s_nop 1")
        k.e("s_waitcnt vmcnt(0)")

def gen_main():
    k = Kern("main_kernel")
    name = k.name
    k.e("s_cmp_ge_u32 s2, 512"); k.e(f"s_cbranch_scc1 {name}_end")
    ldptr(k, 4, "ws"); ldptr(k, 6, "out"); ldptr(k, 32, "x")
    k.e("v_lshrrev_b32 v1, 6, v0"); k.e("v_and_b32 v2, 63, v0")
    k.e("v_readfirstlane_b32 s3, v1")
    k.e("v_lshlrev_b32 v3, 4, v2")
    k.e("s_cmp_ge_u32 s2, 256"); k.e(f"s_cbranch_scc1 {name}_B")
    stA = VStamps(k, PROF, 8); stA.stamp(); stA.stamp(real=True)
    if NOA:
        decode_gj(k, 0); k.e("s_waitcnt lgkmcnt(0)"); srd(k, 28, 4, L.FLAGS, 4096); emit_publish(k, FL_O)
        for _ in range(5): stA.stamp()
        stA.stamp(real=True)
    else:
        emit_attn(k, stA)
    stA.flush()
    k.e("s_endpgm")
    k.e(f"{name}_B:")
    stB = SStamps(k, PROF, 8, list(range(8, 28, 2)) + [60, 62, 64, 66, 68, 98]); stB.stamp(); stB.stamp(real=True)
    if NOB: k.e("s_endpgm")
    emit_bchain(k, stB)
    stB.flush()
    k.e(f"{name}_end:")
    k.e("s_endpgm")
    return k, 256, 512, 81920

def epi_kv4(g):
    k = g.k
    n0 = len(k.lines)
    gen1.epi_kv(g)
    lines = k.lines
    i = lines.index("v_and_b32 v10, 11, v7", n0)
    T = g.tmp0
    new = ["v_cmp_eq_u32 s[88:89], 9, v7", f"v_cndmask_b32 v{T+7}, v{T+7}, 0, s[88:89]" if False else f"v_mov_b32 v14, 0", f"v_cndmask_b32 v{T+7}, v{T+7}, v14, s[88:89]", "s_or_b64 vcc, vcc, s[88:89]"]
    k.lines = lines[:i] + new + lines[i:]

def build_all():
    gen1.PROF = False
    gen3.TABLES[2] = ("t14", KO.t14b, 54)
    gen3.TBL_TEXT, gen3.TBL_OFF = gen3.table_text()
    ks = []
    ks.append(gen3.gen_prep())
    segD = lambda xoff, woff, wsize=L.SZ_WDD: dict(xoff=xoff, xsize=L.SZ_XF, nksx=20, woff=woff, wsize=wsize, nksw=20, nks=20)
    ks.append(gen1.gen_gemm("p1q_kernel", 256, 4, 5, 3, [segD(L.XF, L.WQP)], gen1.dec_p1q, gen1.epi_q, kidx=1))
    ks.append(gen1.gen_gemm("p1h_kernel", 256, 4, 5, 3, [segD(L.XF, L.W1P)], gen1.dec_p1h, gen3.epi_h3, kidx=2))
    ks.append(gen1.gen_gemm("p1kv_kernel", 32, 4, 4, 3, [segD(L.XF, L.WKVP, 4*20*1024)], gen1.dec_kv, epi_kv4, swap=[False, False, True, True], kidx=3))
    ks.append(gen_main())
    return ks

if __name__ == "__main__":
    PROF = "--prof" in sys.argv; gen3.PROF = PROF
    FINE = "--fine" in sys.argv
    PFALL = "--pfall" in sys.argv
    for a in sys.argv:
        if a.startswith("--pfs="): PFS = int(a[6:])
    NOB = "--nob" in sys.argv; NOA = "--noa" in sys.argv
    for a in sys.argv:
        if a.startswith("--pa="): PRIO_A = int(a[5:])
        if a.startswith("--pb="): PRIO_B = int(a[5:])
        if a.startswith("--pe="): PRIO_E = int(a[5:])
    ks = build_all()
    out = sys.argv[1]
    open(out, "w").write(gen3.assemble_text(ks))
    for (k, vg, nwg, lds) in ks: print(k.name, "vgpr", vg, "wg", nwg, "lds", lds, "lines", len(k.lines))
```

```python
import sys
sys.path.insert(0, "work")
from asmfw import *
import layout as L
import korder as KO
import gen1, gen3, gen4
from gen1 import srd, ldptr, f32bits, KA, OOB, LOG2E, GELU_C1, GELU_C2
from gen3 import r4, r2, r16, allreduce16, decode_gj, store_t80
from gen4 import VM, SStamps

PROF = False
DIAG = False
ABL = ''
WROW = 352
XB_, WB_, KVB_, DUM_ = 0, 8192, 8192 + 22528, 8192 + 22528 + 3072
SLOT = 34816
NSL = 4
PPB = NSL * SLOT
K1_LDS = PPB + 6 * 4096
assert K1_LDS <= 163840
TBL = [("t80", KO.t80, 20), ("t14", KO.t14b, 54), ("oord", KO.oord, 20)]
def table_text():
    s = ".p2align 6\n.type korder_table,@object\nkorder_table:\n"
    offs = {}; o = 0
    for nm, fn, n in TBL:
        offs[nm] = o
        for ks in range(n):
            b = [fn(ks, i // 2, i % 2)[0] for i in range(4)]; d = [fn(ks, i // 2, i % 2)[1] for i in range(4)]
            s += ".long " + ", ".join(str(x) for x in b + d) + "\n"; o += 32
    s += f".size korder_table, {o}\n"
    return s, offs
TBL_TEXT, TBL_OFF = table_text()
QSCALE = LOG2E / (20 ** 0.5)

def gen_k1():
    k = Kern("front_kernel")
    name = k.name
    st = SStamps(k, PROF, 1, [60, 62, 64, 66, 16, 68, 100], vt=210)
    k.e("s_cmp_ge_u32 s2, 256"); k.e(f"s_cbranch_scc1 {name}_end")
    st.stamp(); st.stamp(real=True)
    for r, nm in ((4, "ws"), (6, "x"), (8, "wq"), (10, "w1"), (12, "wk"), (14, "wv"), (16, "gw"), (18, "w2"), (20, "wo"), (22, "w3"), (24, "w4")):
        ldptr(k, r, nm)
    k.e("v_lshrrev_b32 v1, 6, v0"); k.e("v_and_b32 v2, 63, v0")
    k.e("v_lshlrev_b32 v3, 4, v2")
    k.e("v_readfirstlane_b32 s3, v1")
    k.e("s_and_b32 s46, s2, 7"); k.e("s_lshr_b32 s47, s2, 3")
    k.e("s_lshr_b32 s40, s46, 1"); k.e("s_lshl_b32 s40, s40, 3"); k.e("s_lshr_b32 s49, s47, 2"); k.e("s_add_u32 s40, s40, s49")
    k.e("s_and_b32 s41, s46, 1"); k.e("s_lshl_b32 s41, s41, 2"); k.e("s_and_b32 s49, s47, 3"); k.e("s_add_u32 s41, s41, s49")
    k.e("s_lshr_b32 s42, s41, 2"); k.e("s_and_b32 s43, s41, 3")
    k.e("s_lshr_b32 s44, s3, 1"); k.e("s_and_b32 s45, s3, 1")
    k.e("s_mul_i32 s46, s40, 3"); k.e("s_mul_i32 s47, s46, 6554"); k.e("s_lshr_b32 s47, s47, 16"); k.e("s_mul_i32 s47, s47, 10"); k.e("s_sub_u32 s48, s46, s47")
    k.e("v_lshrrev_b32 v4, 3, v2"); k.e("v_and_b32 v5, 7, v2")
    for i in range(2):
        k.e(f"s_lshl_b32 s46, s3, 3"); k.e(f"s_add_u32 s46, s46, {32*i}")
        k.e("v_add_u32 v6, s46, v4")
        k.e("v_bfe_u32 v7, v6, 1, 3"); k.e("v_xor_b32 v7, v7, v5"); k.e("v_lshlrev_b32 v7, 4, v7")
        k.e("s_lshl_b32 s47, s40, 6"); k.e("v_add_u32 v6, s47, v6"); k.e("v_mul_u32_u24 v6, 1280, v6")
        k.e(f"v_add_u32 v{200+i}, v6, v7")
    k.e(f"s_mov_b32 s50, {(1<<32)//WROW + 1}"); k.e("s_mul_i32 s51, s43, 320")
    def w_off(dst, add):
        k.e(f"s_add_u32 s46, s3, {add}"); k.e("s_lshl_b32 s46, s46, 10"); k.e("v_add_u32 v6, s46, v3")
        k.e("v_mul_hi_u32 v7, v6, s50")
        k.e(f"v_mul_u32_u24 v8, {WROW}, v7"); k.e("v_sub_u32 v8, v6, v8")
        k.e("v_and_b32 v9, 0x33, v7")
        k.e("v_bfe_u32 v10, v7, 2, 1"); k.e("v_lshlrev_b32 v10, 3, v10"); k.e("v_or_b32 v9, v9, v10")
        k.e("v_bfe_u32 v10, v7, 3, 1"); k.e("v_lshlrev_b32 v10, 2, v10"); k.e("v_or_b32 v9, v9, v10")
        k.e("v_mul_u32_u24 v9, 1280, v9"); k.e("v_add_u32 v9, v9, v8"); k.e("v_add_u32 v9, s51, v9")
        k.e("v_cmp_gt_u32 vcc, 320, v8"); k.e(f"v_mov_b32 v10, {OOB}"); k.e(f"v_cndmask_b32 v{dst}, v10, v9, vcc")
    for i in range(5): w_off(202 + i, 4 * i)
    w_off(207, 20)
    k.e("s_sub_u32 s46, s3, 2"); k.e("s_lshl_b32 s46, s46, 10"); k.e("v_add_u32 v6, s46, v3")
    k.e("s_cmp_lt_u32 s3, 2"); k.e("s_cselect_b64 vcc, -1, 0"); k.e("v_cndmask_b32 v207, v6, v207, vcc")
    w_off(208, 18)
    k.e(f"v_mov_b32 v7, {OOB}")
    k.e("v_add_u32 v6, 2048, v3"); k.e("v_cmp_gt_u32 vcc, 2560, v6"); k.e("v_cndmask_b32 v6, v7, v6, vcc")
    k.e("v_cmp_gt_u32 vcc, 128, v3"); k.e("v_cndmask_b32 v8, v7, v3, vcc")
    k.e("s_cmp_eq_u32 s3, 0"); k.e("s_cselect_b64 vcc, -1, 0"); k.e("v_cndmask_b32 v208, v208, v6, vcc")
    k.e("s_cmp_eq_u32 s3, 1"); k.e("s_cselect_b64 vcc, -1, 0"); k.e("v_cndmask_b32 v208, v208, v8, vcc")
    k.e("s_waitcnt lgkmcnt(0)")
    srd(k, 28, 6, 0, 2048 * 1280)
    k.e("s_cmp_eq_u32 s42, 0")
    k.e("s_cselect_b32 s32, s8, s10"); k.e("s_cselect_b32 s33, s9, s11"); k.e(f"s_mov_b32 s34, {640*1280}"); k.e("s_mov_b32 s35, 0x20000")
    k.e("s_cselect_b32 s36, s12, s14"); k.e("s_cselect_b32 s37, s13, s15"); k.e(f"s_mov_b32 s38, {640*40}"); k.e("s_mov_b32 s39, 0x20000")
    k.e("s_cmp_lt_u32 s3, 2")
    k.e("s_cselect_b32 s52, s32, s36"); k.e("s_cselect_b32 s53, s33, s37"); k.e("s_cselect_b32 s54, s34, s38"); k.e("s_mov_b32 s55, 0x20000")
    k.e("s_mov_b32 s46, 2560"); k.e(f"s_cselect_b32 s70, {64*1280}, s46")
    k.e("s_sub_u32 s46, s3, 2"); k.e("s_lshl_b32 s46, s46, 10"); k.e(f"s_add_u32 s46, s46, {KVB_}")
    k.e("s_lshl_b32 s47, s3, 10"); k.e(f"s_add_u32 s47, s47, {WB_ + 20*1024}")
    k.e("s_cmp_lt_u32 s3, 2"); k.e("s_cselect_b32 s71, s47, s46")
    k.e("s_cmp_eq_u32 s3, 1")
    k.e("s_cselect_b32 s56, s16, s36"); k.e("s_cselect_b32 s57, s17, s37"); k.e("s_mov_b32 s46, 1280"); k.e("s_cselect_b32 s58, s46, s38"); k.e("s_mov_b32 s59, 0x20000")
    k.e("s_mov_b32 s46, 2560"); k.e("s_cselect_b32 s72, 128, s46")
    k.e(f"s_mov_b32 s46, {KVB_ + 2048}"); k.e(f"s_cselect_b32 s73, {DUM_}, s46")
    k.e("s_cmp_ge_u32 s3, 2")
    k.e("s_cselect_b32 s56, s32, s56"); k.e("s_cselect_b32 s57, s33, s57"); k.e("s_cselect_b32 s58, s34, s58")
    k.e(f"s_cselect_b32 s72, {64*1280}, s72")
    k.e("s_lshl_b32 s46, s3, 10"); k.e(f"s_add_u32 s46, s46, {WB_ + 18*1024}"); k.e("s_cmp_ge_u32 s3, 2"); k.e("s_cselect_b32 s73, s46, s73")
    vm = VM(k)
    def stage_groups(slot_sreg, valid_sreg=None):
        pre = ["s_lshl_b32 s74, s48, 7", f"s_mul_i32 s75, s48, {64*1280}", "s_mul_i32 s76, s48, s70", "s_mul_i32 s77, s48, s72"]
        if valid_sreg is not None:
            pre.append(f"s_cmp_lg_u32 s{valid_sreg}, 0")
            pre += [f"s_cselect_b32 s{r}, s{r}, {OOB}" for r in (74, 75, 76, 77)]
        pre += ["s_lshl_b32 s90, s3, 10", f"s_add_u32 s90, s90, s{slot_sreg}"]
        g = []
        for i in range(2): g.append([f"s_add_u32 m0, s90, {XB_ + i*4096}", "s_nop 0", f"buffer_load_dwordx4 v{200+i}, s[28:31], s74 offen lds"])
        for i in range(5): g.append([f"s_add_u32 m0, s90, {WB_ + i*4096}", "s_nop 0", f"buffer_load_dwordx4 v{202+i}, s[32:35], s75 offen lds"])
        g.append([f"s_add_u32 m0, s{slot_sreg}, s71", "s_nop 0", "buffer_load_dwordx4 v207, s[52:55], s76 offen lds"])
        g.append([f"s_add_u32 m0, s{slot_sreg}, s73", "s_nop 0", "buffer_load_dwordx4 v208, s[56:59], s77 offen lds"])
        tail = ["s_add_u32 s48, s48, 1", "s_cmp_eq_u32 s48, 10", "s_cselect_b32 s48, 0, s48"]
        return pre, g, tail
    def issue_stage(slot_sreg, tag, valid_sreg=None):
        pre, g, tail = stage_groups(slot_sreg, valid_sreg)
        for x in pre: k.e(x)
        for grp in g:
            for x in grp: k.e(x)
            vm.q.append(tag)
        for x in tail: k.e(x)
    for t in range(3):
        k.e(f"s_mov_b32 s78, {t*SLOT}"); issue_stage(78, ("S", t))
    st.stamp()
    k.e("s_getpc_b64 s[80:81]")
    k.e(f"{name}_pc:")
    k.e(f"s_add_u32 s80, s80, korder_table-{name}_pc"); k.e("s_addc_u32 s81, s81, 0")
    k.e("v_lshrrev_b32 v10, 5, v2"); k.e("v_bfe_u32 v11, v2, 3, 2"); k.e("v_and_b32 v12, 7, v2"); k.e("v_lshlrev_b32 v12, 4, v12")
    for pas in range(2):
        P = f"{name}_pp{pas}"
        k.e("s_mul_i32 s46, s2, 6"); k.e("s_add_u32 s46, s46, s3"); k.e("s_mov_b32 s49, 0")
        if pas:
            k.e("s_add_u32 s46, s46, 4"); k.e("s_cmp_lt_u32 s3, 2"); k.e("s_cselect_b32 s46, s46, 9999")
        k.e("s_cmp_lt_u32 s46, 400"); k.e(f"s_cbranch_scc1 {P}_lo")
        k.e("s_cmp_lt_u32 s46, 940"); k.e(f"s_cbranch_scc1 {P}_w3")
        k.e("s_cmp_lt_u32 s46, 1480"); k.e(f"s_cbranch_scc1 {P}_w4")
        k.e("s_mov_b32 s46, 0"); k.e("s_mov_b32 s49, 1"); k.e(f"s_branch {P}_w2")
        k.e(f"{P}_lo:")
        k.e("s_cmp_ge_u32 s46, 200"); k.e(f"s_cbranch_scc1 {P}_wo")
        for nm, ptr, start, dst, ld, ncg, nks, order in (("w2", 18, 0, L.W2P, 1280, 10, 20, "t80"), ("wo", 20, 200, L.WOP, 1280, 10, 20, "oord"),
                                                           ("w3", 22, 400, L.W3P, 3456, 27, 20, "t80"), ("w4", 24, 940, L.W4P, 1280, 10, 54, "t14")):
            k.e(f"{P}_{nm}:")
            if start: k.e(f"s_sub_u32 s46, s46, {start}")
            k.e(f"s_mul_hi_u32 s47, s46, {(1<<32)//ncg + 1}")
            k.e(f"s_mul_i32 s50, s47, {ncg}"); k.e("s_sub_u32 s50, s46, s50")
            k.e(f"s_mov_b32 s84, s{ptr}"); k.e(f"s_mov_b32 s85, s{ptr+1}"); k.e(f"s_mov_b32 s86, {32*nks*ld}")
            k.e(f"s_mov_b32 s51, {ld}")
            k.e(f"s_lshl_b32 s79, s47, 5"); k.e(f"s_add_u32 s79, s79, {TBL_OFF[order]}")
            k.e(f"s_lshl_b32 s82, s50, 2"); k.e(f"s_mul_i32 s82, s82, {nks}"); k.e("s_add_u32 s82, s82, s47"); k.e("s_lshl_b32 s82, s82, 10"); k.e(f"s_add_u32 s82, s82, {dst}")
            k.e(f"s_mov_b32 s83, {nks*1024}")
            k.e(f"s_mov_b32 s{26+pas}, {1 if nm == 'w3' else 0}")
            k.e(f"s_branch {P}_go")
        k.e(f"{P}_go:")
        k.e("s_mov_b32 s87, 0x20000")
        k.e("s_cmp_eq_u32 s49, 0"); k.e(f"s_cselect_b32 s82, s82, {OOB}"); k.e(f"s_cselect_b32 s50, s50, 0x00ffff00")
        k.e(f"s_mov_b32 s{8+4*pas}, s82"); k.e(f"s_mov_b32 s{9+4*pas}, s83"); k.e(f"s_mov_b32 s{10+4*pas}, s47"); k.e(f"s_mov_b32 s{11+4*pas}, s50")
        k.e("s_add_u32 s90, s80, s79"); k.e("s_addc_u32 s91, s81, 0")
        k.e("s_load_dwordx8 s[92:99], s[90:91], 0")
        k.e("s_lshl_b32 s50, s50, 7")
        k.e("s_waitcnt lgkmcnt(0)")
        for i in range(4):
            k.e(f"v_mul_lo_u32 v6, v10, s{96+i}"); k.e("v_add_u32 v6, v6, v11"); k.e(f"v_add_u32 v6, s{92+i}, v6")
            k.e("v_mul_lo_u32 v6, v6, s51"); k.e("v_add_u32 v6, v6, v12")
            k.e("s_lshl_b32 s46, s3, 12"); k.e(f"s_add_u32 m0, s46, {PPB + pas*4*4096 + i*1024}"); k.e("s_nop 0")
            vm.issue("buffer_load_dwordx4 v6, s[84:87], s50 offen lds", ("P", pas))
    k.e("v_and_b32 v13, 15, v2"); k.e("v_lshrrev_b32 v14, 4, v2")
    for r in range(2):
        k.e("s_and_b32 s46, s43, 1"); k.e(f"s_xor_b32 s46, s46, {r}"); k.e("s_lshl_b32 s47, s44, 1"); k.e("s_add_u32 s46, s46, s47"); k.e("s_lshl_b32 s46, s46, 4")
        k.e("v_add_u32 v6, s46, v13")
        k.e("v_bfe_u32 v7, v6, 1, 3"); k.e("v_xor_b32 v7, v7, v14"); k.e("v_lshlrev_b32 v7, 4, v7"); k.e("v_lshlrev_b32 v6, 7, v6")
        k.e(f"v_add_u32 v{184+2*r}, v6, v7"); k.e(f"v_xor_b32 v{185+2*r}, 64, v{184+2*r}")
    k.e("v_lshrrev_b32 v6, 1, v14"); k.e("v_lshlrev_b32 v6, 4, v6")
    k.e("v_and_b32 v7, 1, v14"); k.e("v_lshlrev_b32 v7, 2, v7"); k.e("v_add_u32 v6, v6, v7")
    k.e("v_lshrrev_b32 v7, 2, v13"); k.e("v_add_u32 v6, v6, v7"); k.e(f"v_mul_u32_u24 v6, {WROW}, v6")
    k.e("v_and_b32 v7, 3, v2"); k.e("v_lshlrev_b32 v7, 3, v7"); k.e("v_add_u32 v6, v6, v7")
    k.e("s_mul_i32 s46, s45, 160"); k.e(f"s_add_u32 s46, s46, {WB_}"); k.e("v_add_u32 v188, s46, v6")
    k.e("v_lshlrev_b32 v6, 3, v14"); k.e("v_lshrrev_b32 v8, 2, v13"); k.e("v_add_u32 v6, v6, v8"); k.e("v_mul_u32_u24 v6, 40, v6"); k.e("v_add_u32 v6, v6, v7")
    k.e(f"v_add_u32 v189, {KVB_}, v6")
    k.e("v_lshlrev_b32 v6, 4, v14"); k.e(f"v_add_u32 v190, {DUM_}, v6")
    ONES = 96
    for q in range(4): k.e(f"v_mov_b32 v{ONES+q}, 0x3f803f80")
    for q in range(92, 96): k.e(f"v_mov_b32 v{q}, 0")
    for q in range(16, 92): k.e(f"v_mov_b32 v{q}, 0")
    k.e("s_lshr_b32 s46, s43, 1"); k.e("s_cmp_eq_u32 s46, s44"); k.e("s_cselect_b32 s79, 1, 0"); k.e("s_cmp_eq_u32 s45, 0"); k.e("s_cselect_b32 s79, s79, 0")
    srd(k, 96, 4, 0, L.WS_END)
    k.e("s_waitcnt vmcnt(0)"); vm.drained()
    st.stamp()
    k.e("v_lshrrev_b32 v5, 4, v2"); k.e("v_lshlrev_b32 v5, 2, v5"); k.e("v_and_b32 v6, 15, v2"); k.e("v_lshrrev_b32 v7, 2, v6"); k.e("v_add_u32 v5, v5, v7")
    k.e("v_lshlrev_b32 v5, 7, v5"); k.e("v_and_b32 v6, 3, v2"); k.e("v_lshlrev_b32 v6, 3, v6"); k.e("v_add_u32 v5, v5, v6")
    k.e("s_lshl_b32 s46, s3, 12"); k.e(f"s_add_u32 s46, s46, {PPB}"); k.e("v_add_u32 v5, s46, v5")
    for pas in range(2):
        if pas:
            k.e(f"s_cmp_ge_u32 s3, 2"); k.e(f"s_cbranch_scc1 {name}_ppdone")
            k.e("v_add_u32 v5, 16384, v5")
        for c in range(4):
            k.e(f"ds_read_b64_tr_b16 v[{100+4*c}:{101+4*c}], v5 offset:{c*32}")
            k.e(f"ds_read_b64_tr_b16 v[{102+4*c}:{103+4*c}], v5 offset:{c*32+2048}")
        k.e("s_waitcnt lgkmcnt(0)")
        k.e(f"s_mov_b32 s46, s{8+4*pas}")
        for c in range(4):
            k.e(f"buffer_store_dwordx4 {r4(100+4*c)}, v3, s[96:99], s46 offen")
            if c < 3: k.e(f"s_add_u32 s46, s46, s{9+4*pas}")
        sk = k.label("nocs")
        k.e(f"s_cmp_eq_u32 s{26+pas}, 0"); k.e(f"s_cbranch_scc1 {sk}")
        for c in range(4):
            k.e(f"v_dot2_f32_bf16 v{120+c}, v{100+4*c}, v{ONES}, 0")
            for q in range(1, 4): k.e(f"v_dot2_f32_bf16 v{120+c}, v{100+4*c+q}, v{ONES}, v{120+c}")
        for c in range(4): allreduce16(k, "v_add_f32", 120 + c, 124)
        k.e("v_cmp_eq_u32 vcc, 1, v14"); k.e("v_cndmask_b32 v120, v120, v121, vcc")
        k.e("v_cmp_eq_u32 vcc, 2, v14"); k.e("v_cndmask_b32 v120, v120, v122, vcc")
        k.e("v_cmp_eq_u32 vcc, 3, v14"); k.e("v_cndmask_b32 v120, v120, v123, vcc")
        k.e(f"s_mul_i32 s46, s{10+4*pas}, {1728*4}"); k.e(f"s_lshl_b32 s47, s{11+4*pas}, 8"); k.e("s_add_u32 s46, s46, s47"); k.e(f"s_add_u32 s46, s46, {L.CS3P}")
        k.e("v_lshlrev_b32 v6, 2, v2")
        k.e("buffer_store_dword v120, v6, s[96:99], s46 offen")
        k.e(f"{sk}:")
    k.e(f"{name}_ppdone:")
    z = k.label("nz")
    k.e("s_cmp_lg_u32 s2, 0"); k.e(f"s_cbranch_scc1 {z}")
    for q in range(4): k.e(f"v_mov_b32 v{100+q}, 0")
    k.e("s_lshl_b32 s46, s3, 10"); k.e(f"s_add_u32 s46, s46, {L.FLAGS}")
    k.e("buffer_store_dwordx4 v[100:103], v3, s[96:99], s46 offen")
    k.e("s_cmp_ge_u32 s3, 2"); k.e(f"s_cbranch_scc1 {z}")
    k.e("s_lshl_b32 s46, s3, 6"); k.e("v_add_u32 v6, s46, v2")
    k.e("v_mul_u32_u24 v7, 205, v6"); k.e("v_lshrrev_b32 v7, 12, v7")
    k.e("v_mul_u32_u24 v8, 20, v7"); k.e("v_sub_u32 v8, v6, v8")
    k.e("v_add_u32 v9, 1, v7"); k.e("v_lshrrev_b32 v9, 1, v9"); k.e("v_add_u32 v9, 1, v9")
    k.e("v_mov_b32 v9, v7"); k.e("v_cmp_lt_u32 vcc, 2, v7"); k.e("v_subrev_u32 v10, 1, v7"); k.e("v_cndmask_b32 v9, v9, v10, vcc")
    k.e("v_cmp_eq_u32 vcc, 5, v7"); k.e("v_mov_b32 v10, 3"); k.e("v_cndmask_b32 v9, v9, v10, vcc")
    k.e("v_mov_b32 v10, 0")
    for c, row in ((1, 2047), (3, 1), (4, 2046), (5, 2047)):
        k.e(f"v_cmp_eq_u32 vcc, {c}, v7"); k.e(f"v_mov_b32 v11, {row}"); k.e("v_cndmask_b32 v10, v10, v11, vcc")
    k.e("v_lshrrev_b32 v11, 4, v10"); k.e(f"v_mul_u32_u24 v11, {20*1024}, v11")
    k.e("v_mul_u32_u24 v9, 5, v9"); k.e("v_lshrrev_b32 v12, 2, v8"); k.e("v_add_u32 v9, v9, v12"); k.e("v_lshlrev_b32 v9, 10, v9"); k.e("v_add_u32 v11, v11, v9")
    k.e("v_and_b32 v12, 3, v8"); k.e("v_lshlrev_b32 v12, 4, v12"); k.e("v_and_b32 v9, 15, v10"); k.e("v_add_u32 v12, v12, v9"); k.e("v_lshlrev_b32 v12, 4, v12"); k.e("v_add_u32 v11, v11, v12")
    k.e("v_cmp_gt_u32 vcc, 120, v6"); k.e(f"v_mov_b32 v12, {OOB}"); k.e("v_cndmask_b32 v11, v12, v11, vcc")
    k.e(f"s_mov_b32 s46, {L.HS}")
    k.e("buffer_store_dwordx4 v[100:103], v11, s[96:99], s46 offen")
    k.e(f"{z}:")
    A = lambda r, c: 16 + (r * 5 + c) * 4
    CSa = lambda c: 56 + 4 * c
    SXa = lambda r: 76 + 4 * r
    KVa = lambda c: 84 + 4 * c
    F = lambda b: 100 + 40 * b
    MF = "v_mfma_f32_16x16x32_bf16"
    def reads(step, b, isH):
        f = F(b)
        out = []
        if ABL == "noread": return out
        for r in range(2): out.append(f"ds_read_b128 {r4(f+4*r)}, v{192+2*r+step}")
        for c in range(5):
            o = step * 32 * WROW + c * 32
            out.append(f"ds_read_b64_tr_b16 {r2(f+8+4*c)}, v196 offset:{o}")
            out.append(f"ds_read_b64_tr_b16 {r2(f+10+4*c)}, v196 offset:{o + 8*WROW}")
        return out
    def kvreads(step, b):
        f = F(b); out = []
        for c in range(2):
            o = step * 32 * 40 + c * 32
            out.append(f"ds_read_b64_tr_b16 {r2(f+28+4*c)}, v197 offset:{o}")
            out.append(f"ds_read_b64_tr_b16 {r2(f+30+4*c)}, v197 offset:{o + 160}")
        return out
    def compute(b, isH, side):
        f = F(b)
        side = list(side)
        def pop():
            if side:
                for x in side.pop(0): k.e(x)
        for c in range(5):
            for r in range(2):
                if ABL != "nomfma": k.e(f"{MF} {r4(A(r,c))}, {r4(f+8+4*c)}, {r4(f+4*r)}, {r4(A(r,c))}")
            if isH and ABL != "nomfma": k.e(f"{MF} {r4(CSa(c))}, {r4(f+8+4*c)}, {r4(ONES)}, {r4(CSa(c))}")
            pop()
        if isH:
            for r in range(2):
                k.e(f"{MF} {r4(SXa(r))}, {r4(ONES)}, {r4(f+4*r)}, {r4(SXa(r))}")
                for q in range(4):
                    if ABL != "nodot": k.e(f"v_dot2_f32_bf16 v{92+r}, v{f+4*r+q}, v{f+4*r+q}, v{92+r}")
        else:
            for r in range(2):
                for q in range(4):
                    if ABL != "nodot": k.e(f"v_dot2_f32_bf16 v{94+r}, v{f+4*r+q}, v{f+36+q}, v{94+r}")
        while side: pop()
        sk = k.label("kv")
        k.e("s_cmp_eq_u32 s79, 0"); k.e(f"s_cbranch_scc1 {sk}")
        for c in range(2):
            if isH: k.e(f"{MF} {r4(KVa(c))}, {r4(f)}, {r4(f+28+4*c)}, {r4(KVa(c))}")
            else: k.e(f"{MF} {r4(KVa(c))}, {r4(f+28+4*c)}, {r4(f)}, {r4(KVa(c))}")
        k.e(f"{sk}:")
    if PROF and DIAG:
        k.e("s_waitcnt lgkmcnt(0)"); k.e("s_add_u32 s64, s60, 0"); k.e("s_add_u32 s66, s60, 0")
    st.stamp()
    k.e("s_mov_b32 s78, 0")
    k.e(f"s_mov_b32 s82, {3*SLOT}")
    k.e("s_mov_b32 s83, 0")
    k.e("s_cmp_lg_u32 s42, 0"); k.e(f"s_cbranch_scc1 {name}_H")
    for isH in (0, 1):
        lp = f"{name}_loop{isH}"
        if isH: k.e(f"{name}_H:")
        k.e(f"{lp}:")
        if PROF and DIAG:
            k.e("s_memtime s[84:85]")
        if ABL == "empty":
            k.e("s_barrier"); k.e("s_add_u32 s83, s83, 1"); k.e("s_cmp_lt_u32 s83, 10"); k.e(f"s_cbranch_scc1 {lp}")
        k.e("s_waitcnt vmcnt(18)")
        if PROF and DIAG:
            k.e("s_memtime s[86:87]")
        k.e("s_barrier")
        if PROF and DIAG:
            k.e("s_memtime s[88:89]"); k.e("s_waitcnt lgkmcnt(0)")
            k.e("s_sub_u32 s86, s86, s84"); k.e("s_add_u32 s64, s64, s86"); k.e("s_sub_u32 s88, s88, s84"); k.e("s_add_u32 s66, s66, s88")
        k.e("s_cmp_lt_u32 s83, 7"); k.e("s_cselect_b32 s49, 1, 0")
        for r in range(2):
            for sp in range(2): k.e(f"v_add_u32 v{192+2*r+sp}, s78, v{184+2*r+sp}")
        k.e("v_add_u32 v196, s78, v188"); k.e("v_add_u32 v197, s78, v189"); k.e("v_add_u32 v198, s78, v190")
        for x in reads(0, 0, isH): k.e(x)
        lab = k.label("kr"); k.e("s_cmp_eq_u32 s79, 0"); k.e(f"s_cbranch_scc1 {lab}")
        for x in kvreads(0, 0): k.e(x)
        k.e(f"{lab}:")
        if not isH: k.e(f"ds_read_b128 {r4(F(0)+36)}, v198")
        pre, grp, tail = stage_groups(82, 49)
        if ABL == "nodma": grp = [[] for _ in grp]
        for x in pre: k.e(x)
        k.e("s_waitcnt lgkmcnt(0)")
        for x in reads(1, 1, isH): k.e(x)
        lab = k.label("kr"); k.e("s_cmp_eq_u32 s79, 0"); k.e(f"s_cbranch_scc1 {lab}")
        for x in kvreads(1, 1): k.e(x)
        k.e(f"{lab}:")
        if not isH: k.e(f"ds_read_b128 {r4(F(1)+36)}, v198 offset:64")
        compute(0, isH, grp[:5])
        k.e("s_waitcnt lgkmcnt(0)")
        compute(1, isH, grp[5:])
        for x in tail: k.e(x)
        k.e(f"s_add_u32 s78, s78, {SLOT}"); k.e(f"s_cmp_eq_u32 s78, {NSL*SLOT}"); k.e("s_cselect_b32 s78, 0, s78")
        k.e(f"s_add_u32 s82, s82, {SLOT}"); k.e(f"s_cmp_eq_u32 s82, {NSL*SLOT}"); k.e("s_cselect_b32 s82, 0, s82")
        k.e("s_add_u32 s83, s83, 1"); k.e("s_cmp_lt_u32 s83, 10"); k.e(f"s_cbranch_scc1 {lp}")
        st.stamp() if isH == 0 else None
        if isH and st.on:
            r = st.pairs[st.n - 1]; k.e(f"s_memtime s[{r}:{r+1}]")
        k.e("s_nop 7")
        for r in range(2):
            k.e("s_and_b32 s46, s43, 1"); k.e(f"s_xor_b32 s46, s46, {r}"); k.e("s_lshl_b32 s47, s44, 1"); k.e("s_add_u32 s46, s46, s47")
            k.e("s_lshl_b32 s47, s40, 2"); k.e(f"s_add_u32 s{84+r}, s46, s47")
            k.e(f"s_lshl_b32 s47, s{84+r}, 4"); k.e(f"v_add_u32 v{5+r}, s47, v13")
        if not isH: epi_q5(k, A, KVa)
        else: epi_h5(k, A, CSa, SXa, KVa)
        if not isH: k.e(f"s_branch {name}_fin")
    k.e(f"{name}_fin:")
    if st.on: k.e("s_waitcnt vmcnt(0)")
    st.stamp(real=True)
    st.flush()
    k.e(f"{name}_end:")
    k.e("s_endpgm")
    return k, 216, 256, K1_LDS

def epi_q5(k, A, KVa):
    T = 100
    k.e(f"s_mov_b32 s70, {f32bits(QSCALE)}")
    k.e("s_mul_i32 s71, s43, 10"); k.e("s_mul_i32 s46, s45, 5"); k.e("s_add_u32 s71, s71, s46")
    for r in range(2):
        k.e(f"v_lshrrev_b32 v7, 5, v{5+r}"); k.e(f"v_and_b32 v8, 31, v{5+r}")
        for c in range(5):
            a = A(r, c)
            for q in range(4): k.e(f"v_mul_f32 v{a+q}, s70, v{a+q}")
            t = T + 2 * (c + 5 * r)
            k.e(f"v_cvt_pk_bf16_f32 v{t}, v{a}, v{a+1}"); k.e(f"v_cvt_pk_bf16_f32 v{t+1}, v{a+2}, v{a+3}")
            k.e(f"s_add_u32 s46, s71, {c}"); k.e("s_lshl_b32 s46, s46, 2")
            k.e("v_add_u32 v9, s46, v14")
            k.e("v_mul_u32_u24 v10, 205, v9"); k.e("v_lshrrev_b32 v10, 10, v10")
            k.e("v_mul_u32_u24 v11, 5, v10"); k.e("v_sub_u32 v11, v9, v11")
            k.e("v_lshlrev_b32 v12, 6, v10"); k.e("v_add_u32 v12, v12, v7"); k.e("v_mul_u32_u24 v12, 1280, v12")
            k.e("v_lshrrev_b32 v9, 1, v11"); k.e("v_lshlrev_b32 v9, 5, v9"); k.e("v_add_u32 v9, v9, v8"); k.e("v_lshlrev_b32 v9, 4, v9")
            k.e("v_and_b32 v10, 1, v11"); k.e("v_lshlrev_b32 v10, 3, v10"); k.e("v_add_u32 v9, v9, v10")
            k.e("v_lshlrev_b32 v10, 3, v8"); k.e("v_add_u32 v10, 1024, v10")
            k.e("v_cmp_eq_u32 vcc, 4, v11"); k.e("v_cndmask_b32 v9, v9, v10, vcc")
            k.e("v_add_u32 v12, v12, v9")
            k.e(f"s_mov_b32 s46, {L.QF}")
            k.e(f"buffer_store_dwordx2 v[{t}:{t+1}], v12, s[96:99], s46 offen")
    g = k.label("ng")
    k.e("s_or_b32 s46, s43, s45"); k.e("s_cmp_lg_u32 s46, 0"); k.e(f"s_cbranch_scc1 {g}")
    for r in range(2):
        allreduce16(k, "v_add_f32", 94 + r, 7)
        k.e(f"v_mul_f32 v{94+r}, {f32bits(-LOG2E)}, v{94+r}"); k.e(f"v_exp_f32 v{94+r}, v{94+r}"); k.e("s_nop 0")
        k.e(f"v_add_f32 v{94+r}, 1.0, v{94+r}"); k.e(f"v_rcp_f32 v{94+r}, v{94+r}")
        k.e(f"v_lshlrev_b32 v7, 2, v{5+r}"); k.e(f"s_mov_b32 s46, {L.G}")
        k.e(f"buffer_store_dword v{94+r}, v7, s[96:99], s46 offen")
    k.e(f"{g}:")
    e = k.label("nk")
    k.e("s_cmp_eq_u32 s79, 0"); k.e(f"s_cbranch_scc1 {e}")
    T = 130
    k.e("s_lshr_b32 s71, s84, 1"); k.e("s_mul_i32 s71, s71, 3072"); k.e(f"s_add_u32 s71, s71, {L.KVF}")
    k.e("v_and_b32 v8, 31, v5")
    a = KVa(0); k.e(f"v_cvt_pk_bf16_f32 v{T}, v{a}, v{a+1}"); k.e(f"v_cvt_pk_bf16_f32 v{T+1}, v{a+2}, v{a+3}")
    a = KVa(1); k.e(f"v_cvt_pk_bf16_f32 v{T+2}, v{a}, v{a+1}"); k.e(f"v_cvt_pk_bf16_f32 v{T+3}, v{a+2}, v{a+3}")
    k.e("v_lshrrev_b32 v9, 1, v14"); k.e("v_lshlrev_b32 v9, 5, v9"); k.e("v_add_u32 v9, v9, v8"); k.e("v_lshlrev_b32 v9, 4, v9")
    k.e("v_and_b32 v10, 1, v14"); k.e("v_lshlrev_b32 v10, 3, v10"); k.e("v_add_u32 v9, v9, v10")
    k.e(f"buffer_store_dwordx2 v[{T}:{T+1}], v9, s[96:99], s71 offen")
    gen1.k2_addr(k, 8, 12, 9)
    k.e("v_cmp_eq_u32 vcc, 0, v14"); k.e(f"v_mov_b32 v9, {OOB}"); k.e("v_cndmask_b32 v12, v9, v12, vcc")
    k.e(f"buffer_store_dwordx2 v[{T+2}:{T+3}], v12, s[96:99], s71 offen")
    k.e(f"v_dot2_f32_bf16 v11, v{T}, v{T}, 0"); k.e(f"v_dot2_f32_bf16 v11, v{T+1}, v{T+1}, v11")
    k.e(f"v_dot2_f32_bf16 v10, v{T+2}, v{T+2}, 0"); k.e(f"v_dot2_f32_bf16 v10, v{T+3}, v{T+3}, v10")
    k.e("v_cndmask_b32 v10, 0, v10, vcc"); k.e("v_add_f32 v11, v11, v10")
    allreduce16(k, "v_add_f32", 11, 10)
    for ror in (8, 4, 2, 1): k.e(f"v_max_f32_dpp v11, v11, v11 row_ror:{ror} row_mask:0xf bank_mask:0xf")
    k.e("s_lshl_b32 s46, s84, 2"); k.e(f"s_add_u32 s46, s46, {L.KMAX}"); k.e("v_mov_b32 v10, 0")
    k.e("buffer_store_dword v11, v10, s[96:99], s46 offen")
    k.e(f"{e}:")

def epi_h5(k, A, CSa, SXa, KVa):
    T = 100
    p2 = lambda x: f"v[{x}:{x+1}]"
    C1, C2, ONE = 140, 142, 144
    k.e(f"v_mov_b32 v{C1}, {f32bits(GELU_C1)}"); k.e(f"v_mov_b32 v{C1+1}, v{C1}")
    k.e(f"v_mov_b32 v{C2}, {f32bits(GELU_C2)}"); k.e(f"v_mov_b32 v{C2+1}, v{C2}")
    k.e(f"v_mov_b32 v{ONE}, 1.0"); k.e(f"v_mov_b32 v{ONE+1}, 1.0")
    k.e("s_lshr_b32 s85, s43, 1") if False else None
    k.e("s_lshr_b32 s70, s43, 1"); k.e("s_add_u32 s70, s70, 1"); k.e("s_and_b32 s46, s43, 1"); k.e("s_sub_u32 s47, 0, s70"); k.e("s_cmp_eq_u32 s46, 0"); k.e("s_cselect_b32 s70, s70, s47")
    k.e("s_lshl_b32 s88, s43, 1"); k.e("s_add_u32 s88, s88, s45")
    srd(k, 72, 4, L.HS, L.SZ_XF)
    for r in range(2):
        MN, RS = 146, 148
        allreduce16(k, "v_add_f32", 92 + r, 7)
        k.e(f"v_mul_f32 v{MN}, {f32bits(-1/640)}, v{SXa(r)}"); k.e(f"v_mul_f32 v{RS}, {f32bits(1/640)}, v{92+r}")
        k.e(f"v_fma_f32 v{RS}, -v{MN}, v{MN}, v{RS}"); k.e(f"v_add_f32 v{RS}, {f32bits(1e-5)}, v{RS}"); k.e(f"v_rsq_f32 v{RS}, v{RS}")
        k.e(f"v_mov_b32 v{MN+1}, v{MN}")
        k.e(f"v_add_u32 v11, s70, v{5+r}")
        k.e("v_lshrrev_b32 v12, 4, v11"); k.e(f"v_mul_u32_u24 v12, {20*1024}, v12")
        k.e("v_and_b32 v9, 15, v11"); k.e("v_lshlrev_b32 v10, 4, v14"); k.e("v_add_u32 v9, v9, v10"); k.e("v_lshlrev_b32 v9, 4, v9")
        k.e("v_add_u32 v12, v12, v9")
        k.e(f"v_mov_b32 v{RS+1}, v{RS}")
        k.e("v_cmp_gt_u32 vcc, 2048, v11"); k.e(f"v_mov_b32 v9, {OOB}"); k.e("v_cndmask_b32 v12, v9, v12, vcc")
        k.e("v_cmp_gt_u32 vcc, 32, v2"); k.e("v_cndmask_b32 v15, v9, v12, vcc")
        regs = [A(r, c) for c in range(5)]
        for c, a in enumerate(regs):
            for h in (0, 2): k.e(f"v_pk_fma_f32 {p2(a+h)}, {p2(MN)}, {p2(CSa(c)+h)}, {p2(a+h)}")
        for a in regs:
            for h in (0, 2): k.e(f"v_pk_mul_f32 {p2(a+h)}, {p2(a+h)}, {p2(RS)}")
        gen3.gelu_multi(k, regs, [152 + 4 * c for c in range(5)], C1, C2, ONE)
        PK = T + 12 * r
        for c, a in enumerate(regs):
            k.e(f"v_cvt_pk_bf16_f32 v{PK+2*c}, v{a}, v{a+1}"); k.e(f"v_cvt_pk_bf16_f32 v{PK+2*c+1}, v{a+2}, v{a+3}")
        store_t80(k, PK, 12, 15, 72, 88, 172 + 4 * r)
    e = k.label("nv")
    k.e("s_cmp_eq_u32 s79, 0"); k.e(f"s_cbranch_scc1 {e}")
    T = 130
    k.e("s_lshr_b32 s71, s84, 1"); k.e("s_mul_i32 s71, s71, 3072"); k.e("s_and_b32 s46, s84, 1"); k.e("s_lshl_b32 s46, s46, 10"); k.e("s_add_u32 s71, s71, s46")
    k.e(f"s_add_u32 s71, s71, {L.KVF + 1024}")
    k.e("v_and_b32 v9, 1, v14"); k.e("v_lshlrev_b32 v9, 5, v9"); k.e("v_add_u32 v9, v9, v13"); k.e("v_lshlrev_b32 v9, 4, v9")
    k.e("v_lshrrev_b32 v10, 1, v14"); k.e("v_lshlrev_b32 v10, 3, v10"); k.e("v_add_u32 v9, v9, v10")
    a = KVa(0); k.e(f"v_cvt_pk_bf16_f32 v{T}, v{a}, v{a+1}"); k.e(f"v_cvt_pk_bf16_f32 v{T+1}, v{a+2}, v{a+3}")
    k.e(f"buffer_store_dwordx2 v[{T}:{T+1}], v9, s[96:99], s71 offen")
    a = KVa(1); k.e(f"v_cvt_pk_bf16_f32 v{T+2}, v{a}, v{a+1}"); k.e(f"v_cvt_pk_bf16_f32 v{T+3}, v{a+2}, v{a+3}")
    k.e("v_mov_b32 v10, 0x3f803f80")
    k.e("v_cmp_gt_u32 vcc, 4, v13")
    k.e(f"v_cndmask_b32 v{T+2}, v10, v{T+2}, vcc"); k.e(f"v_cndmask_b32 v{T+3}, v10, v{T+3}, vcc")
    k.e("v_cmp_eq_u32 s[90:91], 9, v13"); k.e("v_mov_b32 v10, 0"); k.e(f"v_cndmask_b32 v{T+3}, v{T+3}, v10, s[90:91]")
    k.e("s_or_b64 vcc, vcc, s[90:91]")
    k.e("v_and_b32 v10, 11, v13"); k.e("v_cmp_eq_u32 s[90:91], 8, v10"); k.e("s_or_b64 vcc, vcc, s[90:91]")
    k.e("v_add_u32 v9, 256, v9"); k.e(f"v_mov_b32 v10, {OOB}"); k.e("v_cndmask_b32 v9, v10, v9, vcc")
    k.e(f"buffer_store_dwordx2 v[{T+2}:{T+3}], v9, s[96:99], s71 offen")
    k.e(f"{e}:")


def build_all():
    gen4.RAWX = True
    ks = [gen_k1(), gen4.gen_main()]
    return ks

def assemble_text(ks):
    s = ""
    for (k, vg, nwg, lds) in ks:
        s += f"; @launch kernel={k.name} grid=({nwg},1,1) block=(256,1,1) lds={lds}\n"
    s += '.amdgcn_target "amdgcn-amd-amdhsa--gfx950"\n.text\n'
    for (k, vg, nwg, lds) in ks:
        s += kernel_text(k, vg)
    s += TBL_TEXT
    s += '.section .rodata,"a"\n'
    for (k, vg, nwg, lds) in ks:
        s += descriptor(k.name, (vg + 7) // 8 * 8, 102)
    return s

if __name__ == "__main__":
    PROF = "--prof" in sys.argv; gen3.PROF = PROF; gen4.PROF = PROF
    DIAG = "--diag" in sys.argv
    for a in sys.argv:
        if a.startswith("--abl="): ABL = a[6:]
    gen4.FINE = "--fine" in sys.argv
    gen4.NOB = "--nob" in sys.argv; gen4.NOA = "--noa" in sys.argv
    for a in sys.argv:
        if a.startswith("--pa="): gen4.PRIO_A = int(a[5:])
        if a.startswith("--pb="): gen4.PRIO_B = int(a[5:])
        if a.startswith("--pe="): gen4.PRIO_E = int(a[5:])
    ks = build_all()
    open(sys.argv[1], "w").write(assemble_text(ks))
    for (k, vg, nwg, lds) in ks: print(k.name, "vgpr", vg, "wg", nwg, "lds", lds, "lines", len(k.lines))
```

```python
def nat(ks, half, a): return 32*ks + 16*half + 8*a, 4
def t80(ks, half, a):
    m, t = divmod(ks, 5)
    if t < 4: return 80*(2*m + t//2) + 16*(2*(t%2) + half) + 8*a, 4
    return 80*(2*m + a) + 64 + 8*half, 4
def t14_tile(ks):
    if ks < 42: j, t = divmod(ks, 7); return j, t, 14*j, 7
    j, t = divmod(ks - 42, 6); return 6 + j, t, 84 + 12*j, 6
def t14(ks, half, a):
    j, t, S, cnt = t14_tile(ks)
    if t < 6:
        n, p = divmod(t, 3)
        return 16*(S + n*cnt + 2*p + half) + 8*a, 4
    return 16*(S + 7*a + 6) + 8*half, 4
def t14b_tile(ks):
    if ks < 42: j, t = divmod(ks, 7); return j, t, 14*j, 14
    j, t = divmod(ks - 42, 6); return 6 + j, t, 84 + 12*j, 12
def t14b(ks, half, a):
    j, t, S, n = t14b_tile(ks)
    if n == 14:
        if t < 4: return 16*(S + 2*t + half) + 8*a, 4
        if t == 4: return 16*(S + 8 + half) + 8*a, 4
        if t == 5: return 16*(S + 11 + half) + 8*a, 4
        return 16*(S + (10 if a == 0 else 13)) + 8*half, 4
    if t < 4: return 16*(S + 3*t + half) + 8*a, 4
    return 16*(S + 6*(t-4) + 3*a + 2) + 8*half, 4
def oord(ks, half, a):
    if ks < 16: return 20*(2*ks + a) + 8*half, 4
    return 20*(8*(ks-16) + 4*a + half) + 16, 40
def perm(fn, nks):
    out = []
    for ks in range(nks):
        for kq in range(4):
            for j8 in range(8):
                half, i4 = divmod(j8, 4); a, hi = divmod(kq, 2)
                b, d = fn(ks, half, a)
                out.append(b + hi*d + i4)
    return out
if __name__ == "__main__":
    for fn, n in ((nat,20),(t80,20),(t14,54),(t14b,54),(oord,20)):
        p = perm(fn, n); assert sorted(p) == list(range(32*n)), fn
    print("ok")
```

```python
import sys
sys.path.insert(0, "work")
from asmfw import *
import layout as L
import korder as KO
import gen1, gen3, gen4, gen5
from gen1 import srd, ldptr, f32bits, KA, OOB, LOG2E, GELU_C1, GELU_C2
from gen3 import r4, r2, r16, allreduce16, store_t80
from gen4 import VM, SStamps
from gen5 import TBL_OFF, TBL_TEXT, QSCALE, epi_h5

PROF = False
ABL = ''
INNER = False
PFK1 = 1
WROW = 320
XB_, WB_, KVB_, GWB_ = 0, 8192, 8192 + 20480, 8192 + 20480 + 3072
SLOT = 32768
NSL = 4
PPB = NSL * SLOT
K1_LDS = PPB + 6 * 4096

def gen_k1():
    k = Kern("front_kernel")
    name = k.name
    st = SStamps(k, PROF, 1, [60, 62, 64, 66, 16, 68, 100], vt=210)
    def istamp(i):
        if not (PROF and INNER): return
        lab = k.label("is"); r = [64, 66, 16, 68, 92, 94][i]
        k.e("s_cmp_lg_u32 s83, 5"); k.e(f"s_cbranch_scc1 {lab}"); k.e(f"s_memtime s[{r}:{r+1}]"); k.e(f"{lab}:")
    k.e("s_cmp_ge_u32 s2, 256"); k.e(f"s_cbranch_scc1 {name}_end")
    st.stamp(); st.stamp(real=True)
    for r, nm in ((6, "x"), (8, "wq"), (10, "w1"), (12, "wk"), (14, "wv"), (18, "gw")): ldptr(k, r, nm)
    ldptr(k, 4, "ws")
    for r, nm in ((20, "w2"), (22, "wo"), (24, "w3"), (26, "w4")): ldptr(k, r, nm)
    k.e("v_lshrrev_b32 v1, 6, v0"); k.e("v_and_b32 v2, 63, v0")
    k.e("v_lshlrev_b32 v3, 4, v2")
    k.e("v_readfirstlane_b32 s3, v1")
    k.e("s_and_b32 s46, s2, 7"); k.e("s_lshr_b32 s47, s2, 3")
    k.e("s_lshr_b32 s40, s46, 1"); k.e("s_lshl_b32 s40, s40, 3"); k.e("s_lshr_b32 s49, s47, 2"); k.e("s_add_u32 s40, s40, s49")
    k.e("s_and_b32 s41, s46, 1"); k.e("s_lshl_b32 s41, s41, 2"); k.e("s_and_b32 s49, s47, 3"); k.e("s_add_u32 s41, s41, s49")
    k.e("s_lshr_b32 s42, s41, 2"); k.e("s_and_b32 s43, s41, 3")
    k.e("s_cmp_ge_u32 s3, 4"); k.e(f"s_cbranch_scc0 {name}_compute")
    k.e("s_sub_u32 s3, s3, 4")
    k.e("s_mul_i32 s46, s40, 3"); k.e("s_mul_i32 s47, s46, 6554"); k.e("s_lshr_b32 s47, s47, 16"); k.e("s_mul_i32 s47, s47, 10"); k.e("s_sub_u32 s48, s46, s47")
    k.e("v_lshrrev_b32 v4, 3, v2"); k.e("v_and_b32 v5, 7, v2")
    k.e("s_lshl_b32 s46, s3, 3"); k.e("v_add_u32 v6, s46, v4")
    k.e("v_bfe_u32 v7, v6, 1, 3"); k.e("v_xor_b32 v7, v7, v5"); k.e("v_lshlrev_b32 v7, 4, v7")
    k.e("s_lshl_b32 s47, s40, 6"); k.e("v_add_u32 v6, s47, v6"); k.e("v_mul_u32_u24 v6, 1280, v6")
    k.e("v_add_u32 v200, v6, v7"); k.e(f"v_add_u32 v201, {32*1280}, v200")
    k.e(f"s_mov_b32 s50, {(1<<32)//WROW + 1}"); k.e("s_mul_i32 s51, s43, 320")
    for i in range(5):
        k.e(f"s_add_u32 s46, s3, {4*i}"); k.e("s_lshl_b32 s46, s46, 10"); k.e("v_add_u32 v6, s46, v3")
        k.e("v_mul_hi_u32 v7, v6, s50")
        k.e(f"v_mul_u32_u24 v8, {WROW}, v7"); k.e("v_sub_u32 v8, v6, v8")
        k.e("v_bfe_u32 v10, v7, 2, 1")
        k.e("v_and_b32 v9, 0x33, v7"); k.e("v_lshl_or_b32 v9, v10, 3, v9")
        k.e("v_bfe_u32 v11, v7, 3, 1"); k.e("v_lshl_or_b32 v9, v11, 2, v9")
        k.e("v_lshlrev_b32 v10, 5, v10"); k.e("v_xor_b32 v8, v8, v10")
        k.e("v_mul_u32_u24 v9, 1280, v9"); k.e("v_add_u32 v9, v9, v8"); k.e(f"v_add_u32 v{202+i}, s51, v9")
    k.e("s_lshl_b32 s46, s3, 10"); k.e("v_add_u32 v6, s46, v3"); k.e(f"v_mov_b32 v7, {OOB}")
    k.e("v_cmp_gt_u32 vcc, 2560, v6"); k.e("v_cndmask_b32 v6, v7, v6, vcc")
    k.e("v_cmp_gt_u32 vcc, 128, v3"); k.e("v_cndmask_b32 v8, v7, v3, vcc")
    k.e("s_cmp_eq_u32 s3, 3"); k.e("s_cselect_b64 vcc, -1, 0"); k.e("v_cndmask_b32 v207, v6, v8, vcc")
    k.e("s_waitcnt lgkmcnt(0)")
    srd(k, 28, 6, 0, 2048 * 1280)
    k.e("s_cmp_eq_u32 s42, 0")
    k.e("s_cselect_b32 s32, s8, s10"); k.e("s_cselect_b32 s33, s9, s11"); k.e(f"s_mov_b32 s34, {640*1280}"); k.e("s_mov_b32 s35, 0x20000")
    k.e("s_cselect_b32 s52, s12, s14"); k.e("s_cselect_b32 s53, s13, s15"); k.e(f"s_mov_b32 s54, {640*40}"); k.e("s_mov_b32 s55, 0x20000")
    k.e("s_cmp_eq_u32 s3, 3")
    k.e("s_cselect_b32 s52, s18, s52"); k.e("s_cselect_b32 s53, s19, s53"); k.e("s_cselect_b32 s54, 1280, s54")
    k.e("s_mov_b32 s46, 2560"); k.e("s_cselect_b32 s70, 128, s46")
    k.e("s_lshl_b32 s46, s3, 10"); k.e(f"s_add_u32 s71, s46, {KVB_}")
    k.e("s_lshl_b32 s72, s3, 10")
    vm = VM(k)
    def issue_stage(t):
        slot = (t % NSL) * SLOT
        k.e("s_lshl_b32 s74, s48, 7"); k.e(f"s_mul_i32 s75, s48, {64*1280}"); k.e("s_mul_i32 s76, s48, s70")
        if ABL in ("same", "samenoread"):
            k.e("s_mov_b32 s74, 0"); k.e("s_mov_b32 s75, 0"); k.e("s_mov_b32 s76, 0")
        for i in range(2):
            k.e(f"s_add_u32 m0, s72, {slot + XB_ + i*4096}"); k.e("s_nop 0")
            vm.issue(f"buffer_load_dwordx4 v{200+i}, s[28:31], s74 offen lds", ("S", t))
        for i in range(5):
            k.e(f"s_add_u32 m0, s72, {slot + WB_ + i*4096}"); k.e("s_nop 0")
            vm.issue(f"buffer_load_dwordx4 v{202+i}, s[32:35], s75 offen lds", ("S", t))
        k.e(f"s_add_u32 m0, s71, {slot}"); k.e("s_nop 0")
        vm.issue("buffer_load_dwordx4 v207, s[52:55], s76 offen lds", ("S", t))
        k.e("s_add_u32 s48, s48, 1"); k.e("s_cmp_eq_u32 s48, 10"); k.e("s_cselect_b32 s48, 0, s48")
    if PFK1:
        k.e("s_lshr_b32 s46, s2, 3"); k.e("s_mul_i32 s46, s46, 200"); k.e("s_mul_i32 s47, s3, 50"); k.e("s_add_u32 s46, s46, s47"); k.e("s_lshl_b32 s46, s46, 7")
        k.e("v_lshlrev_b32 v6, 7, v2"); k.e(f"v_mov_b32 v7, {OOB}"); k.e("v_cmp_gt_u32 vcc, 50, v2"); k.e("v_cndmask_b32 v6, v7, v6, vcc")
        k.e("buffer_load_dword v20, v6, s[32:35], s46 offen")
        k.e("s_lshl_b32 s46, s40, 6"); k.e("s_lshl_b32 s47, s43, 4"); k.e("s_add_u32 s46, s46, s47"); k.e("s_lshl_b32 s47, s3, 2"); k.e("s_add_u32 s46, s46, s47"); k.e("s_mul_i32 s46, s46, 1280")
        k.e("v_lshlrev_b32 v6, 7, v2"); k.e("v_cmp_gt_u32 vcc, 40, v2"); k.e("v_cndmask_b32 v6, v7, v6, vcc")
        k.e("buffer_load_dword v21, v6, s[28:31], s46 offen")
        vm.q += ["pf", "pf"]
    if PFK1 == 2: issue_stage(0); issue_stage(1)
    else: issue_stage(0); issue_stage(1)
    st.stamp()
    def prepack_loads():
        k.e("s_getpc_b64 s[80:81]")
        k.e(f"{name}_pc:")
        k.e(f"s_add_u32 s80, s80, korder_table-{name}_pc"); k.e("s_addc_u32 s81, s81, 0")
        k.e("v_lshrrev_b32 v10, 5, v2"); k.e("v_bfe_u32 v11, v2, 3, 2"); k.e("v_and_b32 v12, 7, v2"); k.e("v_lshlrev_b32 v12, 4, v12")
        for pas in range(2):
            P = f"{name}_pp{pas}"
            k.e("s_mul_i32 s46, s2, 6"); k.e("s_add_u32 s46, s46, s3"); k.e("s_mov_b32 s49, 0")
            if pas:
                k.e("s_add_u32 s46, s46, 4"); k.e("s_cmp_lt_u32 s3, 2"); k.e("s_cselect_b32 s46, s46, 9999")
            k.e("s_cmp_lt_u32 s46, 400"); k.e(f"s_cbranch_scc1 {P}_lo")
            k.e("s_cmp_lt_u32 s46, 940"); k.e(f"s_cbranch_scc1 {P}_w3")
            k.e("s_cmp_lt_u32 s46, 1480"); k.e(f"s_cbranch_scc1 {P}_w4")
            k.e("s_mov_b32 s46, 0"); k.e("s_mov_b32 s49, 1"); k.e(f"s_branch {P}_w2")
            k.e(f"{P}_lo:")
            k.e("s_cmp_ge_u32 s46, 200"); k.e(f"s_cbranch_scc1 {P}_wo")
            for nm, ptr, start, dst, ld, ncg, nks, order in (("w2", 20, 0, L.W2P, 1280, 10, 20, "t80"), ("wo", 22, 200, L.WOP, 1280, 10, 20, "oord"),
                                                               ("w3", 24, 400, L.W3P, 3456, 27, 20, "t80"), ("w4", 26, 940, L.W4P, 1280, 10, 54, "t14")):
                k.e(f"{P}_{nm}:")
                if start: k.e(f"s_sub_u32 s46, s46, {start}")
                k.e(f"s_mul_hi_u32 s47, s46, {(1<<32)//ncg + 1}")
                k.e(f"s_mul_i32 s50, s47, {ncg}"); k.e("s_sub_u32 s50, s46, s50")
                k.e(f"s_mov_b32 s84, s{ptr}"); k.e(f"s_mov_b32 s85, s{ptr+1}"); k.e(f"s_mov_b32 s86, {32*nks*ld}")
                k.e(f"s_mov_b32 s51, {ld}")
                k.e(f"s_lshl_b32 s79, s47, 5"); k.e(f"s_add_u32 s79, s79, {TBL_OFF[order]}")
                k.e(f"s_lshl_b32 s82, s50, 2"); k.e(f"s_mul_i32 s82, s82, {nks}"); k.e("s_add_u32 s82, s82, s47"); k.e("s_lshl_b32 s82, s82, 10"); k.e(f"s_add_u32 s82, s82, {dst}")
                k.e(f"s_mov_b32 s83, {nks*1024}")
                k.e(f"s_mov_b32 s{56+pas}, {1 if nm == 'w3' else 0}")
                k.e(f"s_branch {P}_go")
            k.e(f"{P}_go:")
            k.e("s_mov_b32 s87, 0x20000")
            k.e("s_cmp_eq_u32 s49, 0"); k.e(f"s_cselect_b32 s82, s82, {OOB}"); k.e(f"s_cselect_b32 s50, s50, 0x00ffff00")
            k.e(f"s_mov_b32 s{8+4*pas}, s82"); k.e(f"s_mov_b32 s{9+4*pas}, s83"); k.e(f"s_mov_b32 s{10+4*pas}, s47"); k.e(f"s_mov_b32 s{11+4*pas}, s50")
            k.e("s_add_u32 s90, s80, s79"); k.e("s_addc_u32 s91, s81, 0")
            k.e("s_load_dwordx8 s[92:99], s[90:91], 0")
            k.e("s_lshl_b32 s50, s50, 7")
            k.e("s_waitcnt lgkmcnt(0)")
            for i in range(4):
                k.e(f"v_mul_lo_u32 v6, v10, s{96+i}"); k.e("v_add_u32 v6, v6, v11"); k.e(f"v_add_u32 v6, s{92+i}, v6")
                k.e("v_mul_lo_u32 v6, v6, s51"); k.e("v_add_u32 v6, v6, v12")
                k.e("s_lshl_b32 s46, s3, 12"); k.e(f"s_add_u32 m0, s46, {PPB + pas*4*4096 + i*1024}"); k.e("s_nop 0")
                vm.issue("buffer_load_dwordx4 v6, s[84:87], s50 offen lds", "P")
    srd(k, 72 + 0, 4, 0, L.WS_END) if False else None
    k.e("v_lshrrev_b32 v14, 4, v2")
    for q in range(4): k.e(f"v_mov_b32 v{96+q}, 0x3f803f80")
    vm.wait(("S", 0))
    st.stamp()
    k.e("s_barrier")
    issue_stage(2); issue_stage(3)
    def prepack_process():
        ONES = 96
        vm.wait("P")
        k.e("v_lshrrev_b32 v5, 4, v2"); k.e("v_lshlrev_b32 v5, 2, v5"); k.e("v_and_b32 v6, 15, v2"); k.e("v_lshrrev_b32 v7, 2, v6"); k.e("v_add_u32 v5, v5, v7")
        k.e("v_lshlrev_b32 v5, 7, v5"); k.e("v_and_b32 v6, 3, v2"); k.e("v_lshlrev_b32 v6, 3, v6"); k.e("v_add_u32 v5, v5, v6")
        k.e("s_lshl_b32 s46, s3, 12"); k.e(f"s_add_u32 s46, s46, {PPB}"); k.e("v_add_u32 v5, s46, v5")
        for pas in range(2):
            if pas:
                k.e(f"s_cmp_ge_u32 s3, 2"); k.e(f"s_cbranch_scc1 {name}_ppdone")
                k.e("v_add_u32 v5, 16384, v5")
            for c in range(4):
                k.e(f"ds_read_b64_tr_b16 v[{100+4*c}:{101+4*c}], v5 offset:{c*32}")
                k.e(f"ds_read_b64_tr_b16 v[{102+4*c}:{103+4*c}], v5 offset:{c*32+2048}")
            k.e("s_waitcnt lgkmcnt(0)")
            k.e(f"s_mov_b32 s46, s{8+4*pas}")
            for c in range(4):
                k.e(f"buffer_store_dwordx4 {r4(100+4*c)}, v3, s[96:99], s46 offen")
                if c < 3: k.e(f"s_add_u32 s46, s46, s{9+4*pas}")
            sk = k.label("nocs")
            k.e(f"s_cmp_eq_u32 s{56+pas}, 0"); k.e(f"s_cbranch_scc1 {sk}")
            for c in range(4):
                k.e(f"v_dot2_f32_bf16 v{120+c}, v{100+4*c}, v{ONES}, 0")
                for q in range(1, 4): k.e(f"v_dot2_f32_bf16 v{120+c}, v{100+4*c+q}, v{ONES}, v{120+c}")
            for c in range(4): allreduce16(k, "v_add_f32", 120 + c, 124)
            k.e("v_cmp_eq_u32 vcc, 1, v14"); k.e("v_cndmask_b32 v120, v120, v121, vcc")
            k.e("v_cmp_eq_u32 vcc, 2, v14"); k.e("v_cndmask_b32 v120, v120, v122, vcc")
            k.e("v_cmp_eq_u32 vcc, 3, v14"); k.e("v_cndmask_b32 v120, v120, v123, vcc")
            k.e(f"s_mul_i32 s46, s{10+4*pas}, {1728*4}"); k.e(f"s_lshl_b32 s47, s{11+4*pas}, 8"); k.e("s_add_u32 s46, s46, s47"); k.e(f"s_add_u32 s46, s46, {L.CS3P}")
            k.e("v_lshlrev_b32 v6, 2, v2")
            k.e("buffer_store_dword v120, v6, s[96:99], s46 offen")
            k.e(f"{sk}:")
        k.e(f"{name}_ppdone:")
        z = k.label("nz")
        k.e("s_cmp_lg_u32 s2, 0"); k.e(f"s_cbranch_scc1 {z}")
        for q in range(4): k.e(f"v_mov_b32 v{100+q}, 0")
        k.e("s_lshl_b32 s46, s3, 10"); k.e(f"s_add_u32 s46, s46, {L.FLAGS}")
        k.e("buffer_store_dwordx4 v[100:103], v3, s[96:99], s46 offen")
        k.e("s_cmp_ge_u32 s3, 2"); k.e(f"s_cbranch_scc1 {z}")
        k.e("s_lshl_b32 s46, s3, 6"); k.e("v_add_u32 v6, s46, v2")
        k.e("v_mul_u32_u24 v7, 205, v6"); k.e("v_lshrrev_b32 v7, 12, v7")
        k.e("v_mul_u32_u24 v8, 20, v7"); k.e("v_sub_u32 v8, v6, v8")
        k.e("v_mov_b32 v9, v7"); k.e("v_cmp_lt_u32 vcc, 2, v7"); k.e("v_subrev_u32 v10, 1, v7"); k.e("v_cndmask_b32 v9, v9, v10, vcc")
        k.e("v_cmp_eq_u32 vcc, 5, v7"); k.e("v_mov_b32 v10, 3"); k.e("v_cndmask_b32 v9, v9, v10, vcc")
        k.e("v_mov_b32 v10, 0")
        for c, row in ((1, 2047), (3, 1), (4, 2046), (5, 2047)):
            k.e(f"v_cmp_eq_u32 vcc, {c}, v7"); k.e(f"v_mov_b32 v11, {row}"); k.e("v_cndmask_b32 v10, v10, v11, vcc")
        k.e("v_lshrrev_b32 v11, 4, v10"); k.e(f"v_mul_u32_u24 v11, {20*1024}, v11")
        k.e("v_mul_u32_u24 v9, 5, v9"); k.e("v_lshrrev_b32 v12, 2, v8"); k.e("v_add_u32 v9, v9, v12"); k.e("v_lshlrev_b32 v9, 10, v9"); k.e("v_add_u32 v11, v11, v9")
        k.e("v_and_b32 v12, 3, v8"); k.e("v_lshlrev_b32 v12, 4, v12"); k.e("v_and_b32 v9, 15, v10"); k.e("v_add_u32 v12, v12, v9"); k.e("v_lshlrev_b32 v12, 4, v12"); k.e("v_add_u32 v11, v11, v12")
        k.e("v_cmp_gt_u32 vcc, 120, v6"); k.e(f"v_mov_b32 v12, {OOB}"); k.e("v_cndmask_b32 v11, v12, v11, vcc")
        k.e(f"s_mov_b32 s46, {L.HS}")
        k.e("buffer_store_dwordx4 v[100:103], v11, s[96:99], s46 offen")
        k.e(f"{z}:")
    for t in range(10):
        if t + 1 < 10 and (ABL != "nodma" or t + 1 < 4): vm.wait(("S", t + 1))
        k.e("s_barrier")
        if t + 4 < 10 and ABL != "nodma": issue_stage(t + 4)
        if t == 0: prepack_loads(); srd(k, 96, 4, 0, L.WS_END)
        if t == 3: prepack_process()
    if st.on:
        st.stamp(); k.e("s_waitcnt vmcnt(0)"); st.stamp(); st.stamp(real=True); st.kidx = 2; st.flush(); st.kidx = 1
        st.n = 2
    k.e("s_endpgm")
    k.e(f"{name}_compute:")
    k.e("s_lshr_b32 s44, s3, 1"); k.e("s_and_b32 s45, s3, 1")
    k.e("v_and_b32 v13, 15, v2"); k.e("v_lshrrev_b32 v14, 4, v2")
    for r in range(2):
        k.e("s_and_b32 s46, s43, 1"); k.e(f"s_xor_b32 s46, s46, {r}"); k.e("s_lshl_b32 s47, s44, 1"); k.e("s_add_u32 s46, s46, s47"); k.e("s_lshl_b32 s46, s46, 4")
        k.e("v_add_u32 v6, s46, v13")
        k.e("v_bfe_u32 v7, v6, 1, 3"); k.e("v_xor_b32 v7, v7, v14"); k.e("v_lshlrev_b32 v7, 4, v7"); k.e("v_lshlrev_b32 v6, 7, v6")
        k.e(f"v_add_u32 v{184+2*r}, v6, v7"); k.e(f"v_xor_b32 v{185+2*r}, 64, v{184+2*r}")
    k.e("v_lshrrev_b32 v6, 1, v14"); k.e("v_lshlrev_b32 v6, 4, v6")
    k.e("v_and_b32 v9, 1, v14"); k.e("v_lshlrev_b32 v7, 2, v9"); k.e("v_add_u32 v6, v6, v7")
    k.e("v_lshrrev_b32 v7, 2, v13"); k.e("v_add_u32 v6, v6, v7"); k.e(f"v_mul_u32_u24 v6, {WROW}, v6")
    k.e("v_and_b32 v7, 3, v2"); k.e("v_lshlrev_b32 v7, 3, v7"); k.e("v_add_u32 v6, v6, v7")
    k.e("v_lshlrev_b32 v8, 5, v9")
    k.e("s_mul_i32 s46, s45, 160"); k.e(f"s_add_u32 s46, s46, {WB_}"); k.e("v_add_u32 v6, s46, v6")
    k.e("v_add_u32 v10, v6, v8"); k.e("v_sub_u32 v11, v6, v8")
    k.e("s_cmp_eq_u32 s45, 0"); k.e("s_cselect_b64 vcc, -1, 0")
    k.e("v_cndmask_b32 v188, v11, v10, vcc"); k.e("v_cndmask_b32 v191, v10, v11, vcc")
    k.e("v_lshlrev_b32 v6, 3, v14"); k.e("v_lshrrev_b32 v8, 2, v13"); k.e("v_add_u32 v6, v6, v8"); k.e("v_mul_u32_u24 v6, 40, v6"); k.e("v_add_u32 v6, v6, v7")
    k.e(f"v_add_u32 v189, {KVB_}, v6")
    k.e("v_lshlrev_b32 v6, 4, v14"); k.e(f"v_add_u32 v190, {GWB_}, v6")
    ONES = 96
    for q in range(4): k.e(f"v_mov_b32 v{ONES+q}, 0x3f803f80")
    for q in range(16, 96): k.e(f"v_mov_b32 v{q}, 0")
    k.e("s_lshr_b32 s46, s43, 1"); k.e("s_cmp_eq_u32 s46, s44"); k.e("s_cselect_b32 s79, 1, 0"); k.e("s_cmp_eq_u32 s45, 0"); k.e("s_cselect_b32 s79, s79, 0")
    k.e("s_mul_i32 s47, s43, 10"); k.e("s_mul_i32 s46, s45, 5"); k.e("s_add_u32 s47, s47, s46")
    for c in range(5):
        k.e(f"s_add_u32 s46, s47, {c}"); k.e("s_lshl_b32 s46, s46, 2"); k.e("v_add_u32 v9, s46, v14")
        k.e("v_mul_u32_u24 v10, 205, v9"); k.e("v_lshrrev_b32 v10, 10, v10")
        k.e("v_mul_u32_u24 v11, 5, v10"); k.e("v_sub_u32 v11, v9, v11")
        k.e(f"v_mul_u32_u24 v12, {64*1280}, v10")
        k.e("v_lshrrev_b32 v9, 1, v11"); k.e("v_lshlrev_b32 v9, 9, v9"); k.e("v_and_b32 v10, 1, v11"); k.e("v_lshl_or_b32 v9, v10, 3, v9")
        k.e(f"v_add_u32 v{212+c}, v12, v9")
        k.e("v_cmp_eq_u32 vcc, 4, v11"); k.e("v_mov_b32 v9, 4"); k.e("v_mov_b32 v10, 3"); k.e(f"v_cndmask_b32 v{217+c}, v9, v10, vcc")
    k.e("s_waitcnt lgkmcnt(0)")
    srd(k, 96, 4, 0, L.WS_END)
    A = lambda r, c: 16 + (r * 5 + c) * 4
    CSa = lambda c: 56 + 4 * c
    SXa = lambda r: 76 + 4 * r
    KVa = lambda c: 84 + 4 * c
    F = lambda b: 100 + 40 * b
    MF = "v_mfma_f32_16x16x32_bf16"
    def reads(step, b, isH):
        f = F(b); out = []
        if ABL in ("noread", "samenoread"): return ["s_nop 0"]
        for r in range(2): out.append(f"ds_read_b128 {r4(f+4*r)}, v{192+2*r+step}")
        for c in range(5):
            va, o = (196 if c % 2 == 0 else 199), step * 32 * WROW + c * 32
            out.append(f"ds_read_b64_tr_b16 {r2(f+8+4*c)}, v{va} offset:{o}")
            out.append(f"ds_read_b64_tr_b16 {r2(f+10+4*c)}, v{va} offset:{o + 8*WROW}")
        if not isH: out.append(f"ds_read_b128 {r4(f+36)}, v198 offset:{64*step}")
        return out
    def kvreads(step, b):
        f = F(b)
        lab = k.label("kr"); k.e("s_cmp_eq_u32 s79, 0"); k.e(f"s_cbranch_scc1 {lab}")
        for c in range(2):
            o = step * 32 * 40 + c * 32
            k.e(f"ds_read_b64_tr_b16 {r2(f+28+4*c)}, v197 offset:{o}"); k.e(f"ds_read_b64_tr_b16 {r2(f+30+4*c)}, v197 offset:{o + 160}")
        k.e(f"{lab}:")
    def slot_addrs(sreg):
        for r in range(2):
            for sp in range(2): k.e(f"v_add_u32 v{192+2*r+sp}, s{sreg}, v{184+2*r+sp}")
        k.e(f"v_add_u32 v196, s{sreg}, v188"); k.e(f"v_add_u32 v199, s{sreg}, v191"); k.e(f"v_add_u32 v197, s{sreg}, v189"); k.e(f"v_add_u32 v198, s{sreg}, v190")
    def compute(b, isH, side):
        f = F(b); side = list(side)
        dots = []
        for r in range(2):
            for q in range(4):
                dots.append(f"v_dot2_f32_bf16 v{92+r}, v{f+4*r+q}, v{f+4*r+q}, v{92+r}" if isH else f"v_dot2_f32_bf16 v{94+r}, v{f+4*r+q}, v{f+36+q}, v{94+r}")
        mf = []
        for c in range(5):
            for r in range(2): mf.append(f"{MF} {r4(A(r,c))}, {r4(f+8+4*c)}, {r4(f+4*r)}, {r4(A(r,c))}")
            if isH: mf.append(f"{MF} {r4(CSa(c))}, {r4(f+8+4*c)}, {r4(ONES)}, {r4(CSa(c))}")
        if isH:
            for r in range(2): mf.append(f"{MF} {r4(SXa(r))}, {r4(ONES)}, {r4(f+4*r)}, {r4(SXa(r))}")
        if ABL in ("noread", "samenoread"): mf = mf[:1]; dots = []
        for m in mf:
            k.e(m)
            if side: k.e(side.pop(0))
            if dots and len(side) <= len(dots): k.e(dots.pop(0))
        for x in side + dots: k.e(x)
        sk = k.label("kv")
        k.e("s_cmp_eq_u32 s79, 0"); k.e(f"s_cbranch_scc1 {sk}")
        for c in range(2):
            if isH: k.e(f"{MF} {r4(KVa(c))}, {r4(f)}, {r4(f+28+4*c)}, {r4(KVa(c))}")
            else: k.e(f"{MF} {r4(KVa(c))}, {r4(f+28+4*c)}, {r4(f)}, {r4(KVa(c))}")
        k.e(f"{sk}:")
    if not INNER: st.stamp(); st.stamp()
    k.e("s_mov_b32 s78, 0"); k.e("s_mov_b32 s83, 0")
    k.e("s_barrier")
    if not INNER: st.stamp()
    k.e("s_cmp_lg_u32 s42, 0"); k.e(f"s_cbranch_scc1 {name}_H")
    for isH in (0, 1):
        lp = f"{name}_loop{isH}"
        if isH: k.e(f"{name}_H:")
        slot_addrs(78)
        for x in reads(0, 0, isH): k.e(x)
        k.e("s_waitcnt lgkmcnt(8)")
        kvreads(0, 0)
        k.e(f"{lp}:")
        istamp(0)
        k.e("s_waitcnt lgkmcnt(0)")
        istamp(1)
        kvreads(1, 1)
        compute(0, isH, reads(1, 1, isH))
        istamp(2)
        k.e(f"s_add_u32 s78, s78, {SLOT}"); k.e(f"s_cmp_eq_u32 s78, {NSL*SLOT}"); k.e("s_cselect_b32 s78, 0, s78")
        k.e("s_waitcnt lgkmcnt(0)")
        istamp(3)
        k.e("s_barrier")
        istamp(4)
        slot_addrs(78)
        kvreads(0, 0)
        compute(1, isH, reads(0, 0, isH))
        istamp(5)
        k.e("s_add_u32 s83, s83, 1"); k.e("s_cmp_lt_u32 s83, 10"); k.e(f"s_cbranch_scc1 {lp}")
        if INNER: pass
        elif isH == 0: st.stamp()
        elif st.on:
            r = st.pairs[st.n - 1]; k.e(f"s_memtime s[{r}:{r+1}]")
        k.e("s_waitcnt lgkmcnt(0)"); k.e("s_nop 7")
        for r in range(2):
            k.e("s_and_b32 s46, s43, 1"); k.e(f"s_xor_b32 s46, s46, {r}"); k.e("s_lshl_b32 s47, s44, 1"); k.e("s_add_u32 s46, s46, s47")
            k.e("s_lshl_b32 s47, s40, 2"); k.e(f"s_add_u32 s{84+r}, s46, s47")
            k.e(f"s_lshl_b32 s47, s{84+r}, 4"); k.e(f"v_add_u32 v{5+r}, s47, v13")
        if not isH: epi_q6(k, A, KVa)
        else: epi_h5(k, A, CSa, SXa, KVa)
        if not isH: k.e(f"s_branch {name}_fin")
    k.e(f"{name}_fin:")
    if st.on: k.e("s_waitcnt vmcnt(0)")
    if INNER:
        st.pairs = [60, 62, 64, 66, 16, 68, 92, 94, 100]; st.n = 8
    st.stamp(real=True)
    st.flush()
    k.e(f"{name}_end:")
    k.e("s_endpgm")
    return k, 224, 256, K1_LDS, 512

def epi_q6(k, A, KVa):
    T = 100
    k.e(f"s_mov_b32 s70, {f32bits(QSCALE)}"); k.e(f"s_mov_b32 s71, {L.QF}")
    for r in range(2):
        k.e(f"v_lshrrev_b32 v7, 5, v{5+r}"); k.e("v_mul_u32_u24 v7, 1280, v7"); k.e(f"v_and_b32 v8, 31, v{5+r}")
        for c in range(5):
            a = A(r, c)
            for h in (0, 2): k.e(f"v_pk_mul_f32 v[{a+h}:{a+h+1}], v[{a+h}:{a+h+1}], s[70:71] op_sel:[0,0] op_sel_hi:[1,0]") if False else None
            for q in range(4): k.e(f"v_mul_f32 v{a+q}, s70, v{a+q}")
        for c in range(5):
            a = A(r, c); t = T + 2 * (c + 5 * r)
            k.e(f"v_cvt_pk_bf16_f32 v{t}, v{a}, v{a+1}"); k.e(f"v_cvt_pk_bf16_f32 v{t+1}, v{a+2}, v{a+3}")
            k.e(f"v_lshlrev_b32 v9, v{217+c}, v8"); k.e(f"v_add3_u32 v{130+c+5*r}, v9, v7, v{212+c}")
        for c in range(5):
            t = T + 2 * (c + 5 * r)
            k.e(f"buffer_store_dwordx2 v[{t}:{t+1}], v{130+c+5*r}, s[96:99], s71 offen")
    g = k.label("ng")
    k.e("s_or_b32 s46, s43, s45"); k.e("s_cmp_lg_u32 s46, 0"); k.e(f"s_cbranch_scc1 {g}")
    for r in range(2):
        allreduce16(k, "v_add_f32", 94 + r, 7)
        k.e(f"v_mul_f32 v{94+r}, {f32bits(-LOG2E)}, v{94+r}"); k.e(f"v_exp_f32 v{94+r}, v{94+r}"); k.e("s_nop 0")
        k.e(f"v_add_f32 v{94+r}, 1.0, v{94+r}"); k.e(f"v_rcp_f32 v{94+r}, v{94+r}")
        k.e(f"v_lshlrev_b32 v7, 2, v{5+r}"); k.e(f"s_mov_b32 s46, {L.G}")
        k.e(f"buffer_store_dword v{94+r}, v7, s[96:99], s46 offen")
    k.e(f"{g}:")
    e = k.label("nk")
    k.e("s_cmp_eq_u32 s79, 0"); k.e(f"s_cbranch_scc1 {e}")
    T = 150
    k.e("s_lshr_b32 s71, s84, 1"); k.e("s_mul_i32 s71, s71, 3072"); k.e(f"s_add_u32 s71, s71, {L.KVF}")
    k.e("v_and_b32 v8, 31, v5")
    a = KVa(0); k.e(f"v_cvt_pk_bf16_f32 v{T}, v{a}, v{a+1}"); k.e(f"v_cvt_pk_bf16_f32 v{T+1}, v{a+2}, v{a+3}")
    a = KVa(1); k.e(f"v_cvt_pk_bf16_f32 v{T+2}, v{a}, v{a+1}"); k.e(f"v_cvt_pk_bf16_f32 v{T+3}, v{a+2}, v{a+3}")
    k.e("v_lshrrev_b32 v9, 1, v14"); k.e("v_lshlrev_b32 v9, 5, v9"); k.e("v_add_u32 v9, v9, v8"); k.e("v_lshlrev_b32 v9, 4, v9")
    k.e("v_and_b32 v10, 1, v14"); k.e("v_lshlrev_b32 v10, 3, v10"); k.e("v_add_u32 v9, v9, v10")
    k.e(f"buffer_store_dwordx2 v[{T}:{T+1}], v9, s[96:99], s71 offen")
    gen1.k2_addr(k, 8, 12, 9)
    k.e("v_cmp_eq_u32 vcc, 0, v14"); k.e(f"v_mov_b32 v9, {OOB}"); k.e("v_cndmask_b32 v12, v9, v12, vcc")
    k.e(f"buffer_store_dwordx2 v[{T+2}:{T+3}], v12, s[96:99], s71 offen")
    k.e(f"v_dot2_f32_bf16 v11, v{T}, v{T}, 0"); k.e(f"v_dot2_f32_bf16 v11, v{T+1}, v{T+1}, v11")
    k.e(f"v_dot2_f32_bf16 v10, v{T+2}, v{T+2}, 0"); k.e(f"v_dot2_f32_bf16 v10, v{T+3}, v{T+3}, v10")
    k.e("v_cndmask_b32 v10, 0, v10, vcc"); k.e("v_add_f32 v11, v11, v10")
    allreduce16(k, "v_add_f32", 11, 10)
    for ror in (8, 4, 2, 1): k.e(f"v_max_f32_dpp v11, v11, v11 row_ror:{ror} row_mask:0xf bank_mask:0xf")
    k.e("s_lshl_b32 s46, s84, 2"); k.e(f"s_add_u32 s46, s46, {L.KMAX}"); k.e("v_mov_b32 v10, 0")
    k.e("buffer_store_dword v11, v10, s[96:99], s46 offen")
    k.e(f"{e}:")

def assemble_text(ks):
    s = ""
    for (k, vg, nwg, lds, *rest) in ks:
        blk = rest[0] if rest else 256
        s += f"; @launch kernel={k.name} grid=({nwg},1,1) block=({blk},1,1) lds={lds}\n"
    s += '.amdgcn_target "amdgcn-amd-amdhsa--gfx950"\n.text\n'
    for (k, vg, nwg, lds, *rest) in ks: s += kernel_text(k, vg)
    s += TBL_TEXT
    s += '.section .rodata,"a"\n'
    for (k, vg, nwg, lds, *rest) in ks: s += descriptor(k.name, (vg + 7) // 8 * 8, 102)
    return s

def build_all():
    gen4.RAWX = True
    return [gen_k1(), gen4.gen_main()]

if __name__ == "__main__":
    PROF = "--prof" in sys.argv; gen3.PROF = PROF; gen4.PROF = PROF
    for a in sys.argv:
        if a.startswith("--abl="): ABL = a[6:]
    INNER = "--inner" in sys.argv
    if "--nopfk1" in sys.argv: PFK1 = 0
    gen4.FINE = "--fine" in sys.argv
    gen4.NOB = "--nob" in sys.argv; gen4.NOA = "--noa" in sys.argv
    for a in sys.argv:
        if a.startswith("--pa="): gen4.PRIO_A = int(a[5:])
        if a.startswith("--pb="): gen4.PRIO_B = int(a[5:])
        if a.startswith("--pe="): gen4.PRIO_E = int(a[5:])
    ks = build_all()
    open(sys.argv[1], "w").write(assemble_text(ks))
    for (k, vg, nwg, lds, *rest) in ks: print(k.name, "vgpr", vg, "wg", nwg, "lds", lds, "lines", len(k.lines))
```

```python
import sys
sys.path.insert(0, "work")
from asmfw import *
import layout as L
import korder as KO
import gen1, gen3
from gen1 import srd, ldptr, f32bits, KA, OOB, LOG2E, GELU_C1, GELU_C2
from gen3 import r4, r2, r16, allreduce16, decode_gj, store_t80, VStamps

ADIAG = False; RAWX = False; PROF = False; NOA = False; NOB = False; FINE = False; PFS = 0; PFALL = False
PRIO_A, PRIO_B, PRIO_E = 0, 0, 0
PRIO_P2, PRIO_P3, PRIO_P4 = 0, 0, 0
FL_X1, FL_H, FL_O = 0, 1024, 2048
CH, NB = 4, 4
CHB = CH * 3072
NCH = 64 // CH
SPIN_MAX = 400000

class VM:
    def __init__(self, k): self.k = k; self.q = []
    def issue(self, instr, tag): self.k.e(instr); self.q.append(tag)
    def wait(self, tag):
        idx = [i for i, t in enumerate(self.q) if t == tag]
        if not idx: return
        n = len(self.q) - 1 - idx[-1]
        self.k.e(f"s_waitcnt vmcnt({min(n, 63)})"); self.q = self.q[idx[-1] + 1:]
    def drained(self): self.q = []

def emit_publish(k, fl_base):
    lab = k.label("pub")
    k.e("s_waitcnt vmcnt(0)"); k.e("s_barrier")
    k.e("s_cmp_lg_u32 s3, 0"); k.e(f"s_cbranch_scc1 {lab}")
    k.e("s_lshl_b32 s46, s40, 3"); k.e("s_add_u32 s46, s46, s41"); k.e("s_lshl_b32 s46, s46, 2"); k.e(f"s_add_u32 s46, s46, {fl_base}")
    k.e("v_mov_b32 v4, 0"); k.e("v_mov_b32 v5, 1")
    k.e("s_mov_b64 s[34:35], exec"); k.e("s_mov_b64 exec, 1")
    k.e("buffer_store_dword v5, v4, s[28:31], s46 offen sc1")
    k.e("s_mov_b64 exec, s[34:35]")
    k.e(f"{lab}:")

def emit_wait(k, fl_base):
    lab = k.label("poll"); done = k.label("pdone")
    k.e("s_lshl_b32 s46, s40, 5"); k.e(f"s_add_u32 s46, s46, {fl_base}")
    k.e("v_and_b32 v4, 7, v2"); k.e("v_lshlrev_b32 v4, 2, v4")
    k.e(f"s_mov_b32 s47, {SPIN_MAX}")
    k.e(f"{lab}:")
    k.e("buffer_load_dword v5, v4, s[28:31], s46 offen sc1")
    k.e("s_waitcnt vmcnt(0)")
    k.e("v_cmp_ne_u32 vcc, 1, v5")
    k.e("s_cmp_eq_u64 vcc, 0")
    k.e(f"s_cbranch_scc1 {done}")
    k.e("s_sleep 1")
    k.e("s_sub_u32 s47, s47, 1"); k.e("s_cmp_lg_u32 s47, 0"); k.e(f"s_cbranch_scc1 {lab}")
    k.e(f"{done}:")

def emit_attn(k, st):
    name = k.name
    Q1 = [16, 24]; Q2 = [20, 28]; O = [32, 48]; Sx = [64, 80]; P = [96, 104]
    K1 = [112, 120]; K2r = [116, 124]; V0 = [128, 136]; V1 = [132, 140]
    vKa, vK2a = 5, 6
    MF = "v_mfma_f32_32x32x16_bf16"; MF8 = "v_mfma_f32_32x32x8_bf16"
    decode_gj(k, 0)
    if PRIO_A: k.e(f"s_setprio {PRIO_A}")
    k.e("s_and_b32 s42, s3, 1"); k.e("s_lshr_b32 s43, s3, 1")
    k.e("v_and_b32 v7, 31, v2"); k.e("v_lshlrev_b32 v8, 3, v7")
    k.e("s_lshl_b32 s46, s40, 6"); k.e("s_lshl_b32 s47, s43, 5"); k.e("s_add_u32 s46, s46, s47")
    k.e("v_add_u32 v9, s46, v7"); k.e("v_lshlrev_b32 v10, 2, v9")
    k.e("v_lshlrev_b32 v11, 3, v2")
    k.e("s_mul_i32 s44, s3, 3072")
    k.e("s_waitcnt lgkmcnt(0)")
    srd(k, 12, 4, L.QF, L.SZ_QF); srd(k, 8, 4, L.KVF, L.SZ_KVF); srd(k, 16, 4, L.KMAX, 512)
    srd(k, 20, 4, L.G, 8192); srd(k, 24, 4, L.OF, L.SZ_XF); srd(k, 28, 4, L.FLAGS, 4096)
    k.e("s_lshl_b32 s46, s41, 2"); k.e("s_lshl_b32 s47, s42, 1"); k.e("s_add_u32 s46, s46, s47"); k.e("s_lshl_b32 s46, s46, 6")
    k.e("s_lshl_b32 s47, s40, 1"); k.e("s_add_u32 s46, s46, s47"); k.e("s_add_u32 s46, s46, s43"); k.e("s_mul_i32 s46, s46, 1280")
    for qb in range(2):
        k.e(f"buffer_load_dwordx4 {r4(Q1[qb])}, v3, s[12:15], s46 offen")
        k.e(f"buffer_load_dwordx2 {r2(Q2[qb])}, v8, s[12:15], s46 offen offset:1024")
        if qb == 0: k.e(f"s_add_u32 s46, s46, {64*1280}")
    k.e("buffer_load_dwordx2 v[64:65], v11, s[16:19], 0 offen")
    k.e("buffer_load_dword v12, v10, s[20:23], 0 offen")
    def dma_all(chunk):
        k.e(f"s_add_u32 s45, s44, {chunk*CHB}"); k.e(f"s_add_u32 m0, s44, {chunk*CHB}"); k.e("s_nop 0")
        for i in range(3): k.e(f"buffer_load_dwordx4 v3, s[8:11], s45 offen offset:{i*1024} lds")
    for c in range(NB - 1): dma_all(c)
    st.stamp()
    for qb in range(2):
        for i in range(16): k.e(f"v_mov_b32 v{O[qb]+i}, 0")
    k.e("v_lshrrev_b32 v14, 3, v7"); k.e("v_lshlrev_b32 v15, 9, v14"); k.e("v_add_u32 v15, 1344, v15")
    k.e("v_and_b32 v14, 7, v7"); k.e("v_lshlrev_b32 v14, 3, v14"); k.e("v_add_u32 v15, v15, v14")
    k.e("v_cmp_gt_u32 vcc, 32, v2"); k.e("v_mov_b32 v14, 1424"); k.e("v_cndmask_b32 v15, v14, v15, vcc")
    k.e(f"v_mov_b32 v{vKa}, v3"); k.e(f"v_mov_b32 v{vK2a}, v15")
    for j in range(4, 8): k.e(f"v_mov_b32 v{P[1]+j}, 0")
    for j in range(12, 16): k.e(f"v_mov_b32 v{Sx[1]+j}, 0")
    for j in range(4): k.e(f"v_mov_b32 v{V1[1]+j}, 0")
    k.e(f"s_waitcnt vmcnt({3*(NB-1)})")
    st.stamp()
    k.e("v_max_f32 v64, v64, v65")
    for ror in (8, 4, 2, 1):
        k.e(f"v_max_f32_dpp v64, v64, v64 row_ror:{ror} row_mask:0xf bank_mask:0xf")
    allreduce16(k, "v_max_f32", 64, 65)
    for qb in range(2):
        t = 66 + 4 * qb
        k.e(f"v_cndmask_b32 v{t+2}, 0, v{Q2[qb]}, vcc"); k.e(f"v_cndmask_b32 v{t+3}, 0, v{Q2[qb]+1}, vcc")
        k.e(f"v_dot2_f32_bf16 v{t}, v{Q1[qb]}, v{Q1[qb]}, 0")
        for j in (1, 2, 3): k.e(f"v_dot2_f32_bf16 v{t}, v{Q1[qb]+j}, v{Q1[qb]+j}, v{t}")
        for j in (2, 3): k.e(f"v_dot2_f32_bf16 v{t}, v{t+j}, v{t+j}, v{t}")
    for qb in range(2):
        t = 66 + 4 * qb
        k.e(f"v_mov_b32 v{t+1}, v{t}"); k.e(f"v_permlane32_swap_b32 v{t}, v{t+1}"); k.e(f"v_add_f32 v{t}, v{t}, v{t+1}")
        k.e(f"v_mul_f32 v{t}, v{t}, v64"); k.e(f"v_sqrt_f32 v{t}, v{t}")
    for qb in range(2):
        t = 66 + 4 * qb
        k.e(f"v_mul_f32 v{t}, {f32bits(-1.01)}, v{t}")
        k.e(f"v_and_b32 v{t+1}, 0xffff0000, v{t}"); k.e(f"v_sub_f32 v{t+2}, v{t}, v{t+1}")
        k.e(f"v_cvt_pk_bf16_f32 v{t+2}, v{t+1}, v{t+2}")
        k.e(f"v_cndmask_b32 v{Q2[qb]}, v{t+2}, v{Q2[qb]}, vcc"); k.e(f"v_cndmask_b32 v{Q2[qb]+1}, 0, v{Q2[qb]+1}, vcc")
    k.e(f"s_waitcnt vmcnt({3*(NB-2)})"); k.e("s_barrier")
    def rd(kind, tile, b):
        o = tile * 3072
        if kind == 0: return f"ds_read_b128 {r4(K1[b])}, v{vKa} offset:{o}"
        if kind == 1: return f"ds_read_b64 {r2(K2r[b])}, v{vK2a} offset:{o}"
        if kind == 2: return f"ds_read_b128 {r4(V0[b])}, v{vKa} offset:{o+1024}"
        return f"ds_read_b128 {r4(V1[b])}, v{vKa} offset:{o+2048}"
    for kind in range(4): k.e(rd(kind, 0, 0))
    k.e("s_waitcnt lgkmcnt(2)")
    k.e(f"{MF} {r16(Sx[0])}, {r4(K1[0])}, {r4(Q1[0])}, 0")
    k.e(f"{MF8} {r16(Sx[0])}, {r2(K2r[0])}, {r2(Q2[0])}, {r16(Sx[0])}")
    k.e("s_mov_b32 s52, 0"); k.e("s_mov_b32 s53, 0")
    k.e(f"s_add_u32 s54, s44, {(NB-1)*CHB}"); k.e(f"s_add_u32 s56, s44, {(NB-1)*CHB}")
    k.e("s_nop 7"); k.e("s_nop 3")
    st.stamp()
    if ADIAG:
        for r in (70, 71, 72): k.e(f"s_mov_b32 s{r}, 0")
    loop = f"{name}_aloop"
    k.e(f"{loop}:")
    def E(i, S): return f"v_exp_f32 v{S+i}, v{S+i}"
    def C(j, S, Pq): return f"v_cvt_pk_bf16_f32 v{Pq+j}, v{S+2*j}, v{S+2*j+1}"
    for T in range(CH):
        b = T % 2; nb = 1 - b
        for qb in range(2):
            S = Sx[qb]; N = Sx[1 - qb]; Pq = P[qb]
            pq_prev = P[1 - qb]; o_prev = O[1 - qb]
            v1_prev = V1[b] if qb == 1 else V1[nb]
            kb = b if qb == 0 else nb
            nq = 1 - qb
            Cp = lambda j: C(j, N, pq_prev)
            seq = [E(0, S), E(1, S), Cp(6), E(2, S), E(3, S), Cp(7),
                   f"{MF} {r16(N)}, {r4(K1[kb])}, {r4(Q1[nq])}, 0",
                   E(4, S), E(5, S), C(0, S, Pq), E(6, S), E(7, S), C(1, S, Pq),
                   f"{MF8} {r16(N)}, {r2(K2r[kb])}, {r2(Q2[nq])}, {r16(N)}",
                   E(8, S), E(9, S), C(2, S, Pq), E(10, S), E(11, S), C(3, S, Pq),
                   f"{MF} {r16(o_prev)}, {r4(v1_prev)}, {r4(pq_prev+4)}, {r16(o_prev)}",
                   E(12, S), E(13, S), C(4, S, Pq), E(14, S), E(15, S), C(5, S, Pq),
                   f"{MF} {r16(O[qb])}, {r4(V0[b])}, {r4(Pq)}, {r16(O[qb])}"]
            side = {}
            def add(i, s): side.setdefault(i, []).append(s)
            if qb == 0:
                nt = T + 1
                if T == CH - 1:
                    add(4, f"s_add_u32 s53, s53, {CHB}"); add(4, f"s_cmp_eq_u32 s53, {NB*CHB}"); add(4, "s_cselect_b32 s53, 0, s53")
                    add(5, f"v_add_u32 v{vKa}, s53, v3"); add(5, f"v_add_u32 v{vK2a}, s53, v15")
                    if ADIAG: add(5, "s_memtime s[60:61]")
                    add(5, f"s_waitcnt vmcnt({3*(NB-2)}) lgkmcnt(0)")
                    if ADIAG: add(5, "s_memtime s[62:63]")
                    add(5, "s_barrier")
                    if ADIAG:
                        for x in ("s_memtime s[64:65]", "s_waitcnt lgkmcnt(0)", "s_sub_u32 s62, s62, s60", "s_add_u32 s70, s70, s62", "s_sub_u32 s64, s64, s60", "s_add_u32 s71, s71, s64"): add(5, x)
                    nt = 0
                else:
                    add(5, "s_waitcnt lgkmcnt(0)")
                add(6, rd(0, nt, nb)); add(13, rd(1, nt, nb)); add(20, rd(3, nt, nb)); add(27, rd(2, nt, nb))
            else:
                add(5, "s_waitcnt lgkmcnt(2)")
                if T < 3:
                    if T == 0:
                        add(6, f"s_cmp_lt_u32 s54, {NCH*CHB}"); add(6, f"s_cselect_b32 s55, s54, {OOB}"); add(6, "s_mov_b32 m0, s56")
                    if ADIAG: add(13, "s_memtime s[66:67]")
                    add(13, f"buffer_load_dwordx4 v3, s[8:11], s55 offen offset:{T*1024} lds")
                    if ADIAG:
                        for x in ("s_memtime s[68:69]", "s_waitcnt lgkmcnt(0)", "s_sub_u32 s68, s68, s66", "s_add_u32 s72, s72, s68"): add(13, x)
                    if T == 2:
                        add(20, f"s_add_u32 s54, s54, {CHB}"); add(20, f"s_add_u32 s56, s56, {CHB}")
                        add(27, f"s_sub_u32 s57, s56, s44"); add(27, f"s_cmp_eq_u32 s57, {NB*CHB}"); add(27, "s_cselect_b32 s56, s44, s56")
            for i, ins in enumerate(seq):
                k.e(ins)
                for s in side.get(i, []): k.e(s)
    k.e("s_add_u32 s52, s52, 1"); k.e(f"s_cmp_lt_u32 s52, {NCH}")
    k.e(f"s_cbranch_scc1 {loop}")
    st.stamp()
    k.e(C(6, Sx[1], P[1])); k.e(C(7, Sx[1], P[1]))
    k.e("s_nop 1")
    k.e(f"{MF} {r16(O[1])}, {r4(V1[(CH-1)%2])}, {r4(P[1]+4)}, {r16(O[1])}")
    k.e("v_lshrrev_b32 v18, 4, v9"); k.e(f"v_mul_u32_u24 v18, {20*1024}, v18")
    k.e("v_and_b32 v19, 15, v9"); k.e("v_lshlrev_b32 v19, 4, v19"); k.e("v_add_u32 v18, v18, v19")
    k.e("v_lshrrev_b32 v14, 5, v2"); k.e("v_lshlrev_b32 v19, 8, v14"); k.e("v_add_u32 v19, v18, v19")
    k.e("s_lshl_b32 s46, s41, 1"); k.e("s_add_u32 s46, s46, s42"); k.e("s_lshl_b32 s46, s46, 10")
    k.e("s_lshr_b32 s47, s41, 1"); k.e("s_add_u32 s47, s47, 16"); k.e("s_lshl_b32 s47, s47, 10")
    k.e("s_and_b32 s48, s41, 1"); k.e("s_lshl_b32 s48, s48, 1"); k.e("s_add_u32 s48, s48, s42"); k.e("s_lshl_b32 s48, s48, 8"); k.e("s_add_u32 s47, s47, s48")
    k.e("v_cmp_eq_u32 vcc, 0, v14"); k.e(f"v_mov_b32 v20, {OOB}"); k.e("v_cndmask_b32 v18, v20, v18, vcc")
    k.e("s_nop 4")
    for qb in range(2): k.e(f"v_rcp_f32 v{16+qb}, v{O[qb]+12}")
    for qb in range(2): k.e(f"v_mul_f32 v{16+qb}, v{16+qb}, v12")
    for qb in range(2):
        o = O[qb]
        for q in range(12): k.e(f"v_mul_f32 v{o+q}, v{16+qb}, v{o+q}")
        for q in range(4): k.e(f"v_cvt_pk_bf16_f32 v{64+4*qb+q}, v{o+2*q}, v{o+2*q+1}")
        for q in range(2): k.e(f"v_cvt_pk_bf16_f32 v{72+2*qb+q}, v{o+8+2*q}, v{o+9+2*q}")
        k.e(f"buffer_store_dwordx4 {r4(64+4*qb)}, v19, s[24:27], s46 offen offset:{qb*512} sc1")
    k.e(f"buffer_store_dwordx4 {r4(72)}, v18, s[24:27], s47 offen sc1")
    emit_publish(k, FL_O)
    st.stamp(); st.stamp(real=True)
    if ADIAG:
        for i, r in enumerate((70, 71, 72)):
            k.e(f"v_mov_b32 v255, s{r}"); k.e(f"global_store_dword v254, v255, s[96:97] offset:{4*(10+i)}")

ACC, SET0, XK, OMG = 16, 96, 240, 250
A5 = lambda r, c: ACC + (r * 5 + c) * 4

def ksplit_phase(k, vm, xoff, xsize, nksx, woff, wsize, nks, sc1, wait, first_zero, extra_after_issue=None, NSET=4, prio=None):
    PRIO_B = globals()['PRIO_B'] if prio is None else prio
    nl = 9
    XS = lambda s, r: SET0 + s * 36 + r * 4
    WS = lambda s, c: SET0 + s * 36 + 16 + c * 4
    T = (nks + 3) // 4
    srd(k, 52, 4, woff, wsize)
    k.e(f"s_mul_i32 s46, s45, {nks*1024}"); k.e("v_add_u32 v10, s46, v3")
    for c in range(1, 5): k.e(f"v_add_u32 v{10+c}, {c*nks*1024}, v10")
    k.e("s_lshl_b32 s58, s3, 10")
    def soff(i, sreg):
        if 4 * i + 3 >= nks:
            k.e(f"s_add_u32 s{sreg}, s3, {4*i}")
            k.e(f"s_lshl_b32 s47, s{sreg}, 10"); k.e(f"s_cmp_lt_u32 s{sreg}, {nks}"); k.e(f"s_cselect_b32 s{sreg}, s47, {OOB}")
        else:
            k.e(f"s_add_u32 s{sreg}, s58, {4*i*1024}")
    ldW = lambda i, c: vm.issue(f"buffer_load_dwordx4 {r4(WS(i%NSET,c))}, v{10+c}, s[52:55], s59 offen", ("W", i))
    sc = " sc1" if sc1 else ""
    ldX = lambda i, r: vm.issue(f"buffer_load_dwordx4 {r4(XS(i%NSET,r))}, v{6+r}, s[48:51], s59 offen{sc}", ("X", i))
    npre = min(NSET, T)
    srd(k, 48, 4, xoff, xsize)
    for r in range(4):
        k.e(f"s_add_u32 s46, s3, {r}"); k.e("s_and_b32 s46, s46, 3"); k.e("s_lshl_b32 s47, s40, 2"); k.e("s_add_u32 s46, s46, s47")
        k.e(f"s_mul_i32 s46, s46, {nksx*1024}"); k.e(f"v_add_u32 v{6+r}, s46, v3")
    if wait:
        for i in range(npre):
            soff(i, 59)
            for c in range(5): ldW(i, c)
        wait(k); vm.drained()
        for i in range(npre):
            soff(i, 59)
            for r in range(4): ldX(i, r)
    else:
        for i in range(npre):
            soff(i, 59)
            for c in range(5): ldW(i, c)
            for r in range(4): ldX(i, r)
    if extra_after_issue: extra_after_issue()
    if PRIO_B: k.e(f"s_setprio {PRIO_B}")
    for i in range(T):
        vm.wait(("X", i))
        s = i % NSET; n = i + NSET
        if n < T: soff(n, 59)
        for c in range(5):
            for r in range(4):
                cc = "0" if (i == 0 and first_zero) else r4(A5(r, c))
                k.e(f"v_mfma_f32_16x16x32_bf16 {r4(A5(r,c))}, {r4(WS(s,c))}, {r4(XS(s,r))}, {cc}")
            if n < T: ldW(n, c)
        if n < T:
            for r in range(4): ldX(n, r)
    k.e(f"s_setprio {PRIO_E}")

def l2_prefetch(k, vm, poff, psize, stride):
    n = psize // stride; per_wg = (n + 31) // 32; per_wave = (per_wg + 3) // 4; n_i = (per_wave + 63) // 64
    srd(k, 88, 4, poff, psize)
    k.e("s_sub_u32 s46, s2, 256"); k.e("s_lshr_b32 s46, s46, 3"); k.e("s_lshl_b32 s46, s46, 2"); k.e("s_add_u32 s46, s46, s3")
    k.e(f"s_mul_i32 s46, s46, {per_wave*stride}")
    k.e(f"v_mul_u32_u24 v4, {stride}, v2")
    for i in range(n_i):
        if (i + 1) * 64 > per_wave:
            k.e(f"v_cmp_gt_u32 vcc, {per_wave - i*64}, v2"); k.e(f"v_mov_b32 v5, {OOB}"); k.e("v_cndmask_b32 v4, v5, v4, vcc")
        vm.issue(f"buffer_load_dword v251, v4, s[88:91], s46 offen", "pf")
        if i + 1 < n_i: k.e(f"s_add_u32 s46, s46, {64*stride}")

def reduce4(k, pre=None):
    blk = 5 * 1024
    for j in range(1, 4):
        k.e(f"s_add_u32 s46, s3, {j}"); k.e("s_and_b32 s46, s46, 3")
        k.e(f"s_mul_i32 s46, s46, {3*blk}"); k.e(f"s_add_u32 s46, s46, {(j-1)*blk}")
        k.e("v_add_u32 v4, s46, v3")
        for c in range(5): k.e(f"ds_write_b128 v4, {r4(A5(j,c))} offset:{c*1024}")
    if pre: pre()
    k.e(f"s_mul_i32 s46, s3, {3*blk}"); k.e("v_add_u32 v5, s46, v3")
    k.e("s_waitcnt lgkmcnt(0)"); k.e("s_barrier")
    for j in range(1, 4):
        for c in range(5): k.e(f"ds_read_b128 {r4(A5(j,c))}, v5 offset:{((j-1)*5 + c)*1024}")
    for j in range(1, 4):
        k.e(f"s_waitcnt lgkmcnt({(3-j)*5})")
        for c in range(5):
            a, t = A5(0, c), A5(j, c)
            k.e(f"v_pk_add_f32 v[{a}:{a+1}], v[{a}:{a+1}], v[{t}:{t+1}]"); k.e(f"v_pk_add_f32 v[{a+2}:{a+3}], v[{a+2}:{a+3}], v[{t+2}:{t+3}]")

def p3_params(k):
    k.e("s_sub_u32 s46, s41, 6"); k.e("s_max_i32 s95, s46, 0")
    k.e("s_mul_i32 s92, s41, 14"); k.e("s_lshl_b32 s46, s95, 1"); k.e("s_sub_u32 s92, s92, s46")
    k.e("s_lshl_b32 s46, s3, 2"); k.e("s_cmp_eq_u32 s3, 3"); k.e("s_cselect_b32 s46, 11, s46")
    k.e("s_mul_i32 s47, s3, 3"); k.e("s_cmp_ge_u32 s41, 6"); k.e("s_cselect_b32 s46, s47, s46")
    k.e("s_add_u32 s45, s92, s46")
    k.e("s_cmp_lt_u32 s3, 2"); k.e("s_cselect_b32 s93, 4, 3"); k.e("s_cmp_ge_u32 s41, 6"); k.e("s_cselect_b32 s93, 3, s93")

def emit_bchain(k, st):
    decode_gj(k, 256)
    k.e("s_waitcnt lgkmcnt(0)")
    srd(k, 28, 4, L.FLAGS, 4096)
    k.e("v_cmp_gt_u32 s[38:39], 32, v2")
    vm = VM(k)
    k.e("s_mul_i32 s45, s41, 5")
    k.e("s_lshl_b32 s70, s40, 2"); k.e("s_add_u32 s70, s70, s3")
    def extra2():
        srd(k, 84, 4, L.G, 8192)
        k.e("s_lshl_b32 s47, s70, 4"); k.e("v_and_b32 v5, 15, v2"); k.e("v_add_u32 v5, s47, v5"); k.e("v_lshlrev_b32 v4, 2, v5")
        if RAWX:
            srd(k, 76, 32, 0, 2048 * 1280)
            k.e("v_mul_u32_u24 v5, 1280, v5"); k.e("v_lshrrev_b32 v15, 4, v2"); k.e("v_lshlrev_b32 v15, 3, v15"); k.e("v_add_u32 v5, v5, v15")
            k.e("s_mul_i32 s89, s41, 160")
            for c in range(5): vm.issue(f"buffer_load_dwordx2 v[{XK+2*c}:{XK+2*c+1}], v5, s[76:79], s89 offen offset:{c*32}", "xr")
        else:
            srd(k, 76, 4, L.XF, L.SZ_XF)
            for c in range(5):
                k.e(f"s_add_u32 s88, s45, {c}"); gen1.f16_soff(k, 89, 70, 88, 20)
                vm.issue(f"buffer_load_dwordx2 v[{XK+2*c}:{XK+2*c+1}], v3, s[76:79], s89 offen", "xr")
        vm.issue(f"buffer_load_dword v{OMG}, v4, s[84:87], 0 offen", "xr")
        if RAWX:
            p3_params(k)
            srd(k, 80, 4, L.CS3P, 20 * 1728 * 4)
            k.e("v_lshlrev_b32 v4, 2, v2"); k.e("s_lshl_b32 s89, s45, 6")
            for ks in range(20):
                vm.issue(f"buffer_load_dword v{220+ks}, v4, s[80:83], s89 offen", "cp")
                k.e(f"s_add_u32 s89, s89, {1728*4}")
            k.e("s_mul_i32 s45, s41, 5")
        if PFS:
            l2_prefetch(k, vm, L.W3P, L.SZ_W3, PFS)
            if PFALL: l2_prefetch(k, vm, L.W4P, L.SZ_W4, PFS)
    ksplit_phase(k, vm, L.HS, L.SZ_XF, 20, L.W2P, L.SZ_WDD, 20, False, None, True, extra2, NSET=3 if RAWX else 4, prio=PRIO_P2)
    st.stamp()
    T = SET0
    def pre2():
        srd(k, 72, 4, L.X1F, L.SZ_XF); srd(k, 80, 4, L.X1ST, 2048 * 64)
        k.e(f"s_mul_i32 s71, s70, {20*1024}"); k.e(f"v_add_u32 v12, s71, v3")
        k.e(f"v_mov_b32 v13, {OOB}"); k.e("v_cndmask_b32 v13, v13, v12, s[38:39]")
        vm.wait("xr")
        if RAWX:
            vm.wait("cp")
            for q in range(1, 10): k.e(f"v_add_f32 v220, v220, v{220+q}"); k.e(f"v_add_f32 v230, v230, v{230+q}")
            k.e("v_add_f32 v251, v220, v230")
        k.e(f"v_sub_f32 v{OMG}, 1.0, v{OMG}")
        for c in range(5):
            xr = XK + 2 * c; u = T + 24 + 4 * c
            k.e(f"v_lshlrev_b32 v{u}, 16, v{xr}"); k.e(f"v_and_b32 v{u+1}, 0xffff0000, v{xr}")
            k.e(f"v_lshlrev_b32 v{u+2}, 16, v{xr+1}"); k.e(f"v_and_b32 v{u+3}, 0xffff0000, v{xr+1}")
        k.e("s_lshl_b32 s47, s70, 4"); k.e("v_and_b32 v14, 15, v2"); k.e("v_add_u32 v14, s47, v14")
        k.e("v_lshlrev_b32 v14, 6, v14"); k.e("s_lshl_b32 s89, s41, 3")
        k.e("v_cmp_gt_u32 vcc, 16, v2"); k.e(f"v_mov_b32 v9, {OOB}"); k.e("v_cndmask_b32 v14, v9, v14, vcc")
    reduce4(k, pre2)
    if FINE: st.stamp()
    for c in range(5):
        a = A5(0, c); u = T + 24 + 4 * c
        k.e(f"v_pk_add_f32 v[{a}:{a+1}], v[{a}:{a+1}], v[{u}:{u+1}]"); k.e(f"v_pk_add_f32 v[{a+2}:{a+3}], v[{a+2}:{a+3}], v[{u+2}:{u+3}]")
    for c in range(5):
        a = A5(0, c)
        k.e(f"v_cvt_pk_bf16_f32 v{XK+2*c}, v{a}, v{a+1}"); k.e(f"v_cvt_pk_bf16_f32 v{XK+2*c+1}, v{a+2}, v{a+3}")
    store_t80(k, XK, 12, 13, 72, 41, T, " sc1")
    k.e("s_mov_b32 s71, 0x3f803f80")
    k.e(f"v_dot2_f32_bf16 v6, v{XK}, s71, 0"); k.e(f"v_dot2_f32_bf16 v7, v{XK}, v{XK}, 0")
    for q in range(1, 10):
        k.e(f"v_dot2_f32_bf16 v6, v{XK+q}, s71, v6"); k.e(f"v_dot2_f32_bf16 v7, v{XK+q}, v{XK+q}, v7")
    allreduce16(k, "v_add_f32", 6, 8); allreduce16(k, "v_add_f32", 7, 9)
    k.e("buffer_store_dwordx2 v[6:7], v14, s[80:83], s89 offen sc1")
    k.e("s_setprio 0")
    p3_params(k)
    WS3 = lambda s, c: 96 + s * 16 + c * 4
    XB = lambda s, r: 192 + s * 16 + r * 4
    CN = lambda r: 224 + 4 * r
    A3 = lambda r, c: ACC + (r * 4 + c) * 4
    NS3 = 6
    srd(k, 52, 4, L.W3P, L.SZ_W3)
    k.e(f"s_mul_i32 s46, s45, {20*1024}"); k.e("v_add_u32 v10, s46, v3")
    for c in range(1, 4): k.e(f"v_add_u32 v{10+c}, {c*20*1024}, v10")
    k.e("s_cmp_eq_u32 s93, 4"); k.e("s_cselect_b64 vcc, -1, 0")
    k.e(f"v_mov_b32 v9, {OOB}"); k.e("v_cndmask_b32 v13, v9, v13, vcc")
    if FINE: st.stamp()
    emit_publish(k, FL_X1)
    if FINE: st.stamp()
    vm.drained()
    ldW3 = lambda i, c: vm.issue(f"buffer_load_dwordx4 {r4(WS3(i%NS3,c))}, v{10+c}, s[52:55], s59 offen", ("W", i))
    for i in range(NS3):
        k.e(f"s_mov_b32 s59, {i*1024}")
        for c in range(4): ldW3(i, c)
    if not FINE: st.stamp()
    emit_wait(k, FL_X1); vm.drained()
    st.stamp()
    srd(k, 48, 4, L.X1F, L.SZ_XF); srd(k, 76, 4, L.X1ST, 2048 * 64); srd(k, 84, 4, L.G, 8192)
    k.e(f"s_mul_i32 s59, s70, {20*1024}")
    for ks in range(20):
        if ks % 4 == 0 and ks: k.e(f"s_add_u32 s59, s59, 4096")
        vm.issue(f"buffer_load_dwordx4 {r4(ACC+4*ks)}, v3, s[48:51], s59 offen offset:{(ks%4)*1024} sc1", "xs")
    k.e("v_lshrrev_b32 v9, 4, v2"); k.e("v_lshlrev_b32 v8, 4, v9")
    for r in range(4):
        k.e("s_lshl_b32 s46, s40, 6"); k.e(f"s_add_u32 s46, s46, {16*r}"); k.e("v_and_b32 v5, 15, v2"); k.e("v_add_u32 v5, s46, v5")
        k.e("v_lshlrev_b32 v6, 6, v5"); k.e("v_add_u32 v6, v6, v8")
        vm.issue(f"buffer_load_dwordx4 {r4(192+4*r)}, v6, s[76:79], 0 offen sc1", "st")
        k.e("v_lshlrev_b32 v6, 2, v5")
        vm.issue(f"buffer_load_dword v{208+r}, v6, s[84:87], 0 offen", "st")
    k.e(f"s_mul_i32 s46, s3, {20*1024}"); k.e("v_add_u32 v4, s46, v3")
    vm.wait("xs")
    k.e(f"s_setprio {PRIO_E}")
    for ks in range(20): k.e(f"ds_write_b128 v4, {r4(ACC+4*ks)} offset:{ks*1024}")
    vm.wait("st")
    for r in range(4):
        s_ = 192 + 4 * r; c_ = CN(r)
        k.e(f"v_add_f32 v{s_}, v{s_}, v{s_+2}"); k.e(f"v_add_f32 v{s_+1}, v{s_+1}, v{s_+3}")
        allreduce16(k, "v_add_f32", s_, s_ + 2); allreduce16(k, "v_add_f32", s_ + 1, s_ + 3)
        k.e(f"v_mul_f32 v{c_}, {f32bits(-1/640)}, v{s_}"); k.e(f"v_mul_f32 v{s_+1}, {f32bits(1/640)}, v{s_+1}")
        k.e(f"v_fma_f32 v{s_+1}, -v{c_}, v{c_}, v{s_+1}"); k.e(f"v_add_f32 v{s_+1}, {f32bits(1e-5)}, v{s_+1}"); k.e(f"v_rsq_f32 v{s_+1}, v{s_+1}")
        k.e(f"v_sub_f32 v{s_+2}, 1.0, v{208+r}")
        k.e(f"v_mul_f32 v{s_+3}, v{s_+1}, v{s_+1}")
        k.e(f"v_mul_f32 v{c_+2}, {f32bits(GELU_C2)}, v{s_+1}")
        k.e(f"v_mul_f32 v{c_+3}, v{s_+1}, v{s_+2}")
        k.e(f"v_mul_f32 v{s_+3}, v{s_+3}, v{s_+1}")
        k.e(f"v_mul_f32 v{c_+1}, {f32bits(GELU_C1)}, v{s_+3}")
    k.e("v_mov_b32 v14, v3"); k.e(f"v_add_u32 v15, {60*1024}, v3")
    k.e("s_waitcnt lgkmcnt(0)"); k.e("s_barrier")
    def rdX(i, r):
        o = (r * 20 + i) * 1024
        return f"ds_read_b128 {r4(XB(i%2,r))}, v14 offset:{o}" if r < 3 else f"ds_read_b128 {r4(XB(i%2,r))}, v15 offset:{o-60*1024}"
    if FINE: st.stamp()
    k.e(f"s_setprio {PRIO_P3}")
    for r in range(4): k.e(rdX(0, r))
    k.e("s_cmp_eq_u32 s93, 4"); k.e("s_cselect_b64 vcc, -1, 0")
    CSR = None
    for i in range(20):
        vm.wait(("W", i))
        k.e("s_waitcnt lgkmcnt(0)")
        n = i + NS3
        if n < 20: k.e(f"s_mov_b32 s59, {n*1024}")
        for c in range(4):
            if c == 3:
                lab = k.label("sk"); k.e(f"s_cbranch_vccz {lab}")
            for r in range(4):
                cc = "0" if i == 0 else r4(A3(r, c))
                k.e(f"v_mfma_f32_16x16x32_bf16 {r4(A3(r,c))}, {r4(WS3(i%NS3,c))}, {r4(XB(i%2,r))}, {cc}")
                if c == 0 and i + 1 < 20: k.e(rdX(i + 1, r))
            if c == 3: k.e(f"{lab}:")
            if n < 20: ldW3(n, c)
        if RAWX and i in (14, 15):
            CSR = WS3(14 % NS3, 0)
            for c in (0, 1) if i == 14 else (2, 3):
                for q in range(4): k.e(f"ds_bpermute_b32 v{CSR+4*c+q}, v8, v251 offset:{(16*c+q)*4}")
        if i == 14:
            CSR = WS3(14 % NS3, 0)
            if RAWX:
                pass
            else:
                srd(k, 80, 4, L.CS3, 1728 * 4)
                k.e("s_lshl_b32 s71, s45, 6")
                for c in range(4): vm.issue(f"buffer_load_dwordx4 {r4(CSR+4*c)}, v8, s[80:83], s71 offen offset:{c*64}", "cs")
    k.e(f"s_setprio {PRIO_E}")
    st.stamp()
    srd(k, 72, 4, L.HF, L.SZ_HF)
    k.e("s_mul_i32 s88, s41, 7"); k.e("s_sub_u32 s88, s88, s95")
    k.e("s_lshl_b32 s46, s3, 1"); k.e("s_cmp_eq_u32 s3, 3"); k.e("s_cselect_b32 s46, 5, s46")
    k.e("s_cmp_ge_u32 s41, 6"); k.e("s_cselect_b32 s46, s3, s46")
    k.e("s_add_u32 s89, s88, s46"); k.e("s_lshl_b32 s89, s89, 10")
    k.e("s_lshr_b32 s46, s3, 1"); k.e("s_add_u32 s46, s46, 4"); k.e("s_cmp_ge_u32 s41, 6"); k.e("s_cselect_b32 s46, s46, 6")
    k.e("s_add_u32 s90, s88, s46"); k.e("s_lshl_b32 s90, s90, 10"); k.e("s_and_b32 s46, s3, 1"); k.e("s_lshl_b32 s46, s46, 9"); k.e("s_add_u32 s90, s90, s46")
    TT = 192; ONE = 208; PK = 212
    k.e(f"v_mov_b32 v{ONE}, 1.0"); k.e(f"v_mov_b32 v{ONE+1}, 1.0")
    vm.wait("cs")
    k.e("s_waitcnt lgkmcnt(0)")
    p2 = lambda x: f"v[{x}:{x+1}]"
    for r in range(4):
        c_ = CN(r)
        regs = [A3(r, c) for c in range(4)]
        bc = lambda x: p2(x & ~1)
        sel = lambda x: (x & 1)
        def bsel(x, pos, n=3):
            lo = [0] * n; hi = [1] * n
            lo[pos] = x & 1; hi[pos] = x & 1
            return f"op_sel:[{','.join(map(str,lo))}] op_sel_hi:[{','.join(map(str,hi))}]"
        for c, a in enumerate(regs):
            for h in (0, 2): k.e(f"v_pk_fma_f32 {p2(a+h)}, {bc(c_)}, {p2(CSR+4*c+h)}, {p2(a+h)} {bsel(c_,0)}")
        for c, a in enumerate(regs):
            for h in (0, 2): k.e(f"v_pk_mul_f32 {p2(TT+4*c+h)}, {p2(a+h)}, {p2(a+h)}")
        for c, a in enumerate(regs):
            for h in (0, 2):
                k.e(f"v_pk_fma_f32 {p2(TT+4*c+h)}, {p2(TT+4*c+h)}, {bc(c_+1)}, {bc(c_+2)} op_sel:[0,{(c_+1)&1},{(c_+2)&1}] op_sel_hi:[1,{(c_+1)&1},{(c_+2)&1}]")
        for c, a in enumerate(regs):
            for h in (0, 2): k.e(f"v_pk_mul_f32 {p2(TT+4*c+h)}, {p2(TT+4*c+h)}, {p2(a+h)}")
        for c in range(4):
            for q in range(4): k.e(f"v_exp_f32 v{TT+4*c+q}, v{TT+4*c+q}")
        for c, a in enumerate(regs):
            for h in (0, 2): k.e(f"v_pk_mul_f32 {p2(a+h)}, {p2(a+h)}, {bc(c_+3)} {bsel(c_+3,1,2)}")
        for c in range(4):
            for h in (0, 2): k.e(f"v_pk_add_f32 {p2(TT+4*c+h)}, {p2(TT+4*c+h)}, {p2(ONE)}")
        for c in range(4):
            for q in range(4): k.e(f"v_rcp_f32 v{TT+4*c+q}, v{TT+4*c+q}")
        for c, a in enumerate(regs):
            for h in (0, 2): k.e(f"v_pk_mul_f32 {p2(a+h)}, {p2(a+h)}, {p2(TT+4*c+h)}")
        pk = PK + 8 * (r % 2)
        for c, a in enumerate(regs):
            k.e(f"v_cvt_pk_bf16_f32 v{pk+2*c}, v{a}, v{a+1}"); k.e(f"v_cvt_pk_bf16_f32 v{pk+2*c+1}, v{a+2}, v{a+3}")
        k.e("s_lshl_b32 s46, s40, 2"); k.e(f"s_add_u32 s46, s46, {r}"); k.e(f"s_mul_i32 s46, s46, {54*1024}"); k.e("v_add_u32 v12, s46, v3")
        k.e(f"buffer_store_dwordx4 {r4(pk)}, v12, s[72:75], s89 offen sc1")
        l3 = k.label("c3"); le = k.label("ce")
        k.e(f"s_cbranch_vccz {l3}")
        k.e(f"buffer_store_dwordx4 {r4(pk+4)}, v12, s[72:75], s89 offen offset:1024 sc1")
        k.e(f"s_branch {le}")
        k.e(f"{l3}:")
        k.e(f"v_mov_b32 v{pk+6}, v{pk+4}"); k.e(f"v_mov_b32 v{pk+7}, v{pk+5}")
        k.e(f"v_mov_b32 v13, {OOB}"); k.e("v_cndmask_b32 v13, v13, v12, s[38:39]")
        k.e(f"v_permlane32_swap_b32 v{pk+4}, v{pk+6}"); k.e(f"v_permlane32_swap_b32 v{pk+5}, v{pk+7}")
        k.e(f"buffer_store_dwordx4 {r4(pk+4)}, v13, s[72:75], s90 offen sc1")
        k.e(f"{le}:")
        k.e("s_nop 1")
    k.e("s_mul_i32 s45, s41, 5")
    k.e("s_setprio 0")
    if FINE: st.stamp()
    emit_publish(k, FL_H); vm.drained()
    st.stamp()
    ksplit_phase(k, vm, L.HF, L.SZ_HF, 54, L.W4P, L.SZ_W4, 54, True, lambda kk: emit_wait(kk, FL_H), True, prio=PRIO_P4)
    k.e("s_setprio 0")
    st.stamp()
    def waitO(kk):
        emit_wait(kk, FL_O); st.stamp()
    ksplit_phase(k, vm, L.OF, L.SZ_XF, 20, L.WOP, L.SZ_WDD, 20, True, waitO, False, prio=PRIO_E)
    T = SET0
    def pre4():
        srd(k, 72, 6, 0, 2048 * 1280)
        k.e("s_lshl_b32 s47, s70, 4"); k.e("v_and_b32 v14, 15, v2"); k.e("v_add_u32 v14, s47, v14")
        k.e("v_mul_u32_u24 v12, 1280, v14"); k.e("v_lshrrev_b32 v13, 4, v2"); k.e("v_lshlrev_b32 v13, 3, v13"); k.e("v_add_u32 v12, v12, v13")
        k.e("s_lshl_b32 s71, s45, 5")
        for c in range(5):
            xr = XK + 2 * c; u = T + 24 + 4 * c
            k.e(f"v_lshlrev_b32 v{u}, 16, v{xr}"); k.e(f"v_and_b32 v{u+1}, 0xffff0000, v{xr}")
            k.e(f"v_lshlrev_b32 v{u+2}, 16, v{xr+1}"); k.e(f"v_and_b32 v{u+3}, 0xffff0000, v{xr+1}")
    reduce4(k, pre4)
    for c in range(5):
        a = A5(0, c); u = T + 24 + 4 * c
        for h in (0, 2):
            k.e(f"v_pk_fma_f32 v[{a+h}:{a+h+1}], v[{OMG}:{OMG+1}], v[{u+h}:{u+h+1}], v[{a+h}:{a+h+1}] op_sel:[0,0,0] op_sel_hi:[0,1,1]")
    for c in range(5):
        a = A5(0, c)
        k.e(f"v_cvt_pk_bf16_f32 v{T+2*c}, v{a}, v{a+1}"); k.e(f"v_cvt_pk_bf16_f32 v{T+2*c+1}, v{a+2}, v{a+3}")
        k.e(f"buffer_store_dwordx2 v[{T+2*c}:{T+2*c+1}], v12, s[72:75], s71 offen offset:{c*32}")
    st.stamp()
    if st.on: k.e("s_waitcnt vmcnt(0)")
    st.stamp(); st.stamp(real=True)

class SStamps:
    def __init__(self, k, on, kidx, pairs, vt=254):
        self.k = k; self.on = on; self.n = 0; self.kidx = kidx; self.pairs = pairs; self.real = []; self.vt = vt
    def stamp(self, real=False):
        if not self.on: return
        r = self.pairs[self.n]; self.n += 1
        self.k.e(f"s_memtime s[{r}:{r+1}]" if not real else f"s_memrealtime s[{r}:{r+1}]")
    def flush(self):
        if not self.on: return
        k = self.k
        k.e("s_waitcnt vmcnt(0) lgkmcnt(0)")
        k.e(f"s_add_u32 s96, s4, {L.STAMP + self.kidx*512*4*64}"); k.e("s_addc_u32 s97, s5, 0")
        k.e("s_lshl_b32 s98, s2, 2"); k.e("s_add_u32 s98, s98, s3"); k.e("s_lshl_b32 s98, s98, 6")
        k.e(f"v_mov_b32 v{self.vt}, s98")
        for i in range(self.n):
            k.e(f"v_mov_b32 v{self.vt+1}, s{self.pairs[i]}")
            k.e(f"global_store_dword v{self.vt}, v{self.vt+1}, s[96:97] offset:{4*i}")
            k.e("s_nop 1")
        k.e("s_waitcnt vmcnt(0)")

def gen_main():
    k = Kern("main_kernel")
    name = k.name
    k.e("s_cmp_ge_u32 s2, 512"); k.e(f"s_cbranch_scc1 {name}_end")
    ldptr(k, 4, "ws"); ldptr(k, 6, "out"); ldptr(k, 32, "x")
    k.e("v_lshrrev_b32 v1, 6, v0"); k.e("v_and_b32 v2, 63, v0")
    k.e("v_readfirstlane_b32 s3, v1")
    k.e("v_lshlrev_b32 v3, 4, v2")
    k.e("s_cmp_ge_u32 s2, 256"); k.e(f"s_cbranch_scc1 {name}_B")
    stA = VStamps(k, PROF, 8); stA.stamp(); stA.stamp(real=True)
    if NOA:
        decode_gj(k, 0); k.e("s_waitcnt lgkmcnt(0)"); srd(k, 28, 4, L.FLAGS, 4096); emit_publish(k, FL_O)
        for _ in range(5): stA.stamp()
        stA.stamp(real=True)
    else:
        emit_attn(k, stA)
    stA.flush()
    k.e("s_endpgm")
    k.e(f"{name}_B:")
    stB = SStamps(k, PROF, 8, list(range(8, 28, 2)) + [60, 62, 64, 66, 68, 98]); stB.stamp(); stB.stamp(real=True)
    if NOB: k.e("s_endpgm")
    emit_bchain(k, stB)
    stB.flush()
    k.e(f"{name}_end:")
    k.e("s_endpgm")
    return k, 256, 512, 81920

def epi_kv4(g):
    k = g.k
    n0 = len(k.lines)
    gen1.epi_kv(g)
    lines = k.lines
    i = lines.index("v_and_b32 v10, 11, v7", n0)
    T = g.tmp0
    new = ["v_cmp_eq_u32 s[88:89], 9, v7", f"v_cndmask_b32 v{T+7}, v{T+7}, 0, s[88:89]" if False else f"v_mov_b32 v14, 0", f"v_cndmask_b32 v{T+7}, v{T+7}, v14, s[88:89]", "s_or_b64 vcc, vcc, s[88:89]"]
    k.lines = lines[:i] + new + lines[i:]

def build_all():
    gen1.PROF = False
    gen3.TABLES[2] = ("t14", KO.t14b, 54)
    gen3.TBL_TEXT, gen3.TBL_OFF = gen3.table_text()
    ks = []
    ks.append(gen3.gen_prep())
    segD = lambda xoff, woff, wsize=L.SZ_WDD: dict(xoff=xoff, xsize=L.SZ_XF, nksx=20, woff=woff, wsize=wsize, nksw=20, nks=20)
    ks.append(gen1.gen_gemm("p1q_kernel", 256, 4, 5, 3, [segD(L.XF, L.WQP)], gen1.dec_p1q, gen1.epi_q, kidx=1))
    ks.append(gen1.gen_gemm("p1h_kernel", 256, 4, 5, 3, [segD(L.XF, L.W1P)], gen1.dec_p1h, gen3.epi_h3, kidx=2))
    ks.append(gen1.gen_gemm("p1kv_kernel", 32, 4, 4, 3, [segD(L.XF, L.WKVP, 4*20*1024)], gen1.dec_kv, epi_kv4, swap=[False, False, True, True], kidx=3))
    ks.append(gen_main())
    return ks

if __name__ == "__main__":
    PROF = "--prof" in sys.argv; gen3.PROF = PROF
    FINE = "--fine" in sys.argv
    PFALL = "--pfall" in sys.argv
    for a in sys.argv:
        if a.startswith("--pfs="): PFS = int(a[6:])
    NOB = "--nob" in sys.argv; NOA = "--noa" in sys.argv
    for a in sys.argv:
        if a.startswith("--pa="): PRIO_A = int(a[5:])
        if a.startswith("--pb="): PRIO_B = int(a[5:])
        if a.startswith("--pe="): PRIO_E = int(a[5:])
    ks = build_all()
    out = sys.argv[1]
    open(out, "w").write(gen3.assemble_text(ks))
    for (k, vg, nwg, lds) in ks: print(k.name, "vgpr", vg, "wg", nwg, "lds", lds, "lines", len(k.lines))
```

```python
import sys
sys.path.insert(0, "work")
from asmfw import *
import layout as L
import korder as KO
import gen1, gen3, gen4
from gen1 import srd, ldptr, f32bits, KA, OOB, LOG2E, GELU_C1, GELU_C2
from gen3 import r4, r2, r16, allreduce16, decode_gj, store_t80
from gen4 import VM, SStamps

PROF = False
WT = ''
DIAG = False
ABL = ''
WROW = 352
XB_, WB_, KVB_, DUM_ = 0, 8192, 8192 + 22528, 8192 + 22528 + 3072
SLOT = 34816
NSL = 4
PPB = NSL * SLOT
K1_LDS = PPB + 6 * 4096
assert K1_LDS <= 163840
TBL = [("t80", KO.t80, 20), ("t14", KO.t14b, 54), ("oord", KO.oord, 20)]
def table_text():
    s = ".p2align 6\n.type korder_table,@object\nkorder_table:\n"
    offs = {}; o = 0
    for nm, fn, n in TBL:
        offs[nm] = o
        for ks in range(n):
            b = [fn(ks, i // 2, i % 2)[0] for i in range(4)]; d = [fn(ks, i // 2, i % 2)[1] for i in range(4)]
            s += ".long " + ", ".join(str(x) for x in b + d) + "\n"; o += 32
    s += f".size korder_table, {o}\n"
    return s, offs
TBL_TEXT, TBL_OFF = table_text()
QSCALE = LOG2E / (20 ** 0.5)

def gen_k1():
    k = Kern("front_kernel")
    name = k.name
    st = SStamps(k, PROF, 1, [60, 62, 64, 66, 16, 68, 100], vt=210)
    k.e("s_cmp_ge_u32 s2, 256"); k.e(f"s_cbranch_scc1 {name}_end")
    st.stamp(); st.stamp(real=True)
    for r, nm in ((4, "ws"), (6, "x"), (8, "wq"), (10, "w1"), (12, "wk"), (14, "wv"), (16, "gw"), (18, "w2"), (20, "wo"), (22, "w3"), (24, "w4")):
        ldptr(k, r, nm)
    k.e("v_lshrrev_b32 v1, 6, v0"); k.e("v_and_b32 v2, 63, v0")
    k.e("v_lshlrev_b32 v3, 4, v2")
    k.e("v_readfirstlane_b32 s3, v1")
    k.e("s_and_b32 s46, s2, 7"); k.e("s_lshr_b32 s47, s2, 3")
    k.e("s_lshr_b32 s40, s46, 1"); k.e("s_lshl_b32 s40, s40, 3"); k.e("s_lshr_b32 s49, s47, 2"); k.e("s_add_u32 s40, s40, s49")
    k.e("s_and_b32 s41, s46, 1"); k.e("s_lshl_b32 s41, s41, 2"); k.e("s_and_b32 s49, s47, 3"); k.e("s_add_u32 s41, s41, s49")
    k.e("s_lshr_b32 s42, s41, 2"); k.e("s_and_b32 s43, s41, 3")
    k.e("s_lshr_b32 s44, s3, 1"); k.e("s_and_b32 s45, s3, 1")
    k.e("s_mul_i32 s46, s40, 3"); k.e("s_mul_i32 s47, s46, 6554"); k.e("s_lshr_b32 s47, s47, 16"); k.e("s_mul_i32 s47, s47, 10"); k.e("s_sub_u32 s48, s46, s47")
    k.e("v_lshrrev_b32 v4, 3, v2"); k.e("v_and_b32 v5, 7, v2")
    for i in range(2):
        k.e(f"s_lshl_b32 s46, s3, 3"); k.e(f"s_add_u32 s46, s46, {32*i}")
        k.e("v_add_u32 v6, s46, v4")
        k.e("v_bfe_u32 v7, v6, 1, 3"); k.e("v_xor_b32 v7, v7, v5"); k.e("v_lshlrev_b32 v7, 4, v7")
        k.e("s_lshl_b32 s47, s40, 6"); k.e("v_add_u32 v6, s47, v6"); k.e("v_mul_u32_u24 v6, 1280, v6")
        k.e(f"v_add_u32 v{200+i}, v6, v7")
    k.e(f"s_mov_b32 s50, {(1<<32)//WROW + 1}"); k.e("s_mul_i32 s51, s43, 320")
    def w_off(dst, add):
        k.e(f"s_add_u32 s46, s3, {add}"); k.e("s_lshl_b32 s46, s46, 10"); k.e("v_add_u32 v6, s46, v3")
        k.e("v_mul_hi_u32 v7, v6, s50")
        k.e(f"v_mul_u32_u24 v8, {WROW}, v7"); k.e("v_sub_u32 v8, v6, v8")
        k.e("v_and_b32 v9, 0x33, v7")
        k.e("v_bfe_u32 v10, v7, 2, 1"); k.e("v_lshlrev_b32 v10, 3, v10"); k.e("v_or_b32 v9, v9, v10")
        k.e("v_bfe_u32 v10, v7, 3, 1"); k.e("v_lshlrev_b32 v10, 2, v10"); k.e("v_or_b32 v9, v9, v10")
        k.e("v_mul_u32_u24 v9, 1280, v9"); k.e("v_add_u32 v9, v9, v8"); k.e("v_add_u32 v9, s51, v9")
        k.e("v_cmp_gt_u32 vcc, 320, v8"); k.e(f"v_mov_b32 v10, {OOB}"); k.e(f"v_cndmask_b32 v{dst}, v10, v9, vcc")
    for i in range(5): w_off(202 + i, 4 * i)
    w_off(207, 20)
    k.e("s_sub_u32 s46, s3, 2"); k.e("s_lshl_b32 s46, s46, 10"); k.e("v_add_u32 v6, s46, v3")
    k.e("s_cmp_lt_u32 s3, 2"); k.e("s_cselect_b64 vcc, -1, 0"); k.e("v_cndmask_b32 v207, v6, v207, vcc")
    w_off(208, 18)
    k.e(f"v_mov_b32 v7, {OOB}")
    k.e("v_add_u32 v6, 2048, v3"); k.e("v_cmp_gt_u32 vcc, 2560, v6"); k.e("v_cndmask_b32 v6, v7, v6, vcc")
    k.e("v_cmp_gt_u32 vcc, 128, v3"); k.e("v_cndmask_b32 v8, v7, v3, vcc")
    k.e("s_cmp_eq_u32 s3, 0"); k.e("s_cselect_b64 vcc, -1, 0"); k.e("v_cndmask_b32 v208, v208, v6, vcc")
    k.e("s_cmp_eq_u32 s3, 1"); k.e("s_cselect_b64 vcc, -1, 0"); k.e("v_cndmask_b32 v208, v208, v8, vcc")
    k.e("s_waitcnt lgkmcnt(0)")
    srd(k, 28, 6, 0, 2048 * 1280)
    k.e("s_cmp_eq_u32 s42, 0")
    k.e("s_cselect_b32 s32, s8, s10"); k.e("s_cselect_b32 s33, s9, s11"); k.e(f"s_mov_b32 s34, {640*1280}"); k.e("s_mov_b32 s35, 0x20000")
    k.e("s_cselect_b32 s36, s12, s14"); k.e("s_cselect_b32 s37, s13, s15"); k.e(f"s_mov_b32 s38, {640*40}"); k.e("s_mov_b32 s39, 0x20000")
    k.e("s_cmp_lt_u32 s3, 2")
    k.e("s_cselect_b32 s52, s32, s36"); k.e("s_cselect_b32 s53, s33, s37"); k.e("s_cselect_b32 s54, s34, s38"); k.e("s_mov_b32 s55, 0x20000")
    k.e("s_mov_b32 s46, 2560"); k.e(f"s_cselect_b32 s70, {64*1280}, s46")
    k.e("s_sub_u32 s46, s3, 2"); k.e("s_lshl_b32 s46, s46, 10"); k.e(f"s_add_u32 s46, s46, {KVB_}")
    k.e("s_lshl_b32 s47, s3, 10"); k.e(f"s_add_u32 s47, s47, {WB_ + 20*1024}")
    k.e("s_cmp_lt_u32 s3, 2"); k.e("s_cselect_b32 s71, s47, s46")
    k.e("s_cmp_eq_u32 s3, 1")
    k.e("s_cselect_b32 s56, s16, s36"); k.e("s_cselect_b32 s57, s17, s37"); k.e("s_mov_b32 s46, 1280"); k.e("s_cselect_b32 s58, s46, s38"); k.e("s_mov_b32 s59, 0x20000")
    k.e("s_mov_b32 s46, 2560"); k.e("s_cselect_b32 s72, 128, s46")
    k.e(f"s_mov_b32 s46, {KVB_ + 2048}"); k.e(f"s_cselect_b32 s73, {DUM_}, s46")
    k.e("s_cmp_ge_u32 s3, 2")
    k.e("s_cselect_b32 s56, s32, s56"); k.e("s_cselect_b32 s57, s33, s57"); k.e("s_cselect_b32 s58, s34, s58")
    k.e(f"s_cselect_b32 s72, {64*1280}, s72")
    k.e("s_lshl_b32 s46, s3, 10"); k.e(f"s_add_u32 s46, s46, {WB_ + 18*1024}"); k.e("s_cmp_ge_u32 s3, 2"); k.e("s_cselect_b32 s73, s46, s73")
    vm = VM(k)
    def stage_groups(slot_sreg, valid_sreg=None):
        pre = ["s_lshl_b32 s74, s48, 7", f"s_mul_i32 s75, s48, {64*1280}", "s_mul_i32 s76, s48, s70", "s_mul_i32 s77, s48, s72"]
        if valid_sreg is not None:
            pre.append(f"s_cmp_lg_u32 s{valid_sreg}, 0")
            pre += [f"s_cselect_b32 s{r}, s{r}, {OOB}" for r in (74, 75, 76, 77)]
        pre += ["s_lshl_b32 s90, s3, 10", f"s_add_u32 s90, s90, s{slot_sreg}"]
        g = []
        for i in range(2): g.append([f"s_add_u32 m0, s90, {XB_ + i*4096}", "s_nop 0", f"buffer_load_dwordx4 v{200+i}, s[28:31], s74 offen lds"])
        for i in range(5): g.append([f"s_add_u32 m0, s90, {WB_ + i*4096}", "s_nop 0", f"buffer_load_dwordx4 v{202+i}, s[32:35], s75 offen lds"])
        g.append([f"s_add_u32 m0, s{slot_sreg}, s71", "s_nop 0", "buffer_load_dwordx4 v207, s[52:55], s76 offen lds"])
        g.append([f"s_add_u32 m0, s{slot_sreg}, s73", "s_nop 0", "buffer_load_dwordx4 v208, s[56:59], s77 offen lds"])
        tail = ["s_add_u32 s48, s48, 1", "s_cmp_eq_u32 s48, 10", "s_cselect_b32 s48, 0, s48"]
        return pre, g, tail
    def issue_stage(slot_sreg, tag, valid_sreg=None):
        pre, g, tail = stage_groups(slot_sreg, valid_sreg)
        for x in pre: k.e(x)
        for grp in g:
            for x in grp: k.e(x)
            vm.q.append(tag)
        for x in tail: k.e(x)
    for t in range(3):
        k.e(f"s_mov_b32 s78, {t*SLOT}"); issue_stage(78, ("S", t))
    st.stamp()
    k.e("s_getpc_b64 s[80:81]")
    k.e(f"{name}_pc:")
    k.e(f"s_add_u32 s80, s80, korder_table-{name}_pc"); k.e("s_addc_u32 s81, s81, 0")
    k.e("v_lshrrev_b32 v10, 5, v2"); k.e("v_bfe_u32 v11, v2, 3, 2"); k.e("v_and_b32 v12, 7, v2"); k.e("v_lshlrev_b32 v12, 4, v12")
    for pas in range(2):
        P = f"{name}_pp{pas}"
        k.e("s_mul_i32 s46, s2, 6"); k.e("s_add_u32 s46, s46, s3"); k.e("s_mov_b32 s49, 0")
        if pas:
            k.e("s_add_u32 s46, s46, 4"); k.e("s_cmp_lt_u32 s3, 2"); k.e("s_cselect_b32 s46, s46, 9999")
        k.e("s_cmp_lt_u32 s46, 400"); k.e(f"s_cbranch_scc1 {P}_lo")
        k.e("s_cmp_lt_u32 s46, 940"); k.e(f"s_cbranch_scc1 {P}_w3")
        k.e("s_cmp_lt_u32 s46, 1480"); k.e(f"s_cbranch_scc1 {P}_w4")
        k.e("s_mov_b32 s46, 0"); k.e("s_mov_b32 s49, 1"); k.e(f"s_branch {P}_w2")
        k.e(f"{P}_lo:")
        k.e("s_cmp_ge_u32 s46, 200"); k.e(f"s_cbranch_scc1 {P}_wo")
        for nm, ptr, start, dst, ld, ncg, nks, order in (("w2", 18, 0, L.W2P, 1280, 10, 20, "t80"), ("wo", 20, 200, L.WOP, 1280, 10, 20, "oord"),
                                                           ("w3", 22, 400, L.W3P, 3456, 27, 20, "t80"), ("w4", 24, 940, L.W4P, 1280, 10, 54, "t14")):
            k.e(f"{P}_{nm}:")
            if start: k.e(f"s_sub_u32 s46, s46, {start}")
            k.e(f"s_mul_hi_u32 s47, s46, {(1<<32)//ncg + 1}")
            k.e(f"s_mul_i32 s50, s47, {ncg}"); k.e("s_sub_u32 s50, s46, s50")
            k.e(f"s_mov_b32 s84, s{ptr}"); k.e(f"s_mov_b32 s85, s{ptr+1}"); k.e(f"s_mov_b32 s86, {32*nks*ld}")
            k.e(f"s_mov_b32 s51, {ld}")
            k.e(f"s_lshl_b32 s79, s47, 5"); k.e(f"s_add_u32 s79, s79, {TBL_OFF[order]}")
            k.e(f"s_lshl_b32 s82, s50, 2"); k.e(f"s_mul_i32 s82, s82, {nks}"); k.e("s_add_u32 s82, s82, s47"); k.e("s_lshl_b32 s82, s82, 10"); k.e(f"s_add_u32 s82, s82, {dst}")
            k.e(f"s_mov_b32 s83, {nks*1024}")
            k.e(f"s_mov_b32 s{26+pas}, {1 if nm == 'w3' else 0}")
            k.e(f"s_branch {P}_go")
        k.e(f"{P}_go:")
        k.e("s_mov_b32 s87, 0x20000")
        k.e("s_cmp_eq_u32 s49, 0"); k.e(f"s_cselect_b32 s82, s82, {OOB}"); k.e(f"s_cselect_b32 s50, s50, 0x00ffff00")
        k.e(f"s_mov_b32 s{8+4*pas}, s82"); k.e(f"s_mov_b32 s{9+4*pas}, s83"); k.e(f"s_mov_b32 s{10+4*pas}, s47"); k.e(f"s_mov_b32 s{11+4*pas}, s50")
        k.e("s_add_u32 s90, s80, s79"); k.e("s_addc_u32 s91, s81, 0")
        k.e("s_load_dwordx8 s[92:99], s[90:91], 0")
        k.e("s_lshl_b32 s50, s50, 7")
        k.e("s_waitcnt lgkmcnt(0)")
        for i in range(4):
            k.e(f"v_mul_lo_u32 v6, v10, s{96+i}"); k.e("v_add_u32 v6, v6, v11"); k.e(f"v_add_u32 v6, s{92+i}, v6")
            k.e("v_mul_lo_u32 v6, v6, s51"); k.e("v_add_u32 v6, v6, v12")
            k.e("s_lshl_b32 s46, s3, 12"); k.e(f"s_add_u32 m0, s46, {PPB + pas*4*4096 + i*1024}"); k.e("s_nop 0")
            vm.issue("buffer_load_dwordx4 v6, s[84:87], s50 offen lds", ("P", pas))
    k.e("v_and_b32 v13, 15, v2"); k.e("v_lshrrev_b32 v14, 4, v2")
    for r in range(2):
        k.e("s_and_b32 s46, s43, 1"); k.e(f"s_xor_b32 s46, s46, {r}"); k.e("s_lshl_b32 s47, s44, 1"); k.e("s_add_u32 s46, s46, s47"); k.e("s_lshl_b32 s46, s46, 4")
        k.e("v_add_u32 v6, s46, v13")
        k.e("v_bfe_u32 v7, v6, 1, 3"); k.e("v_xor_b32 v7, v7, v14"); k.e("v_lshlrev_b32 v7, 4, v7"); k.e("v_lshlrev_b32 v6, 7, v6")
        k.e(f"v_add_u32 v{184+2*r}, v6, v7"); k.e(f"v_xor_b32 v{185+2*r}, 64, v{184+2*r}")
    k.e("v_lshrrev_b32 v6, 1, v14"); k.e("v_lshlrev_b32 v6, 4, v6")
    k.e("v_and_b32 v7, 1, v14"); k.e("v_lshlrev_b32 v7, 2, v7"); k.e("v_add_u32 v6, v6, v7")
    k.e("v_lshrrev_b32 v7, 2, v13"); k.e("v_add_u32 v6, v6, v7"); k.e(f"v_mul_u32_u24 v6, {WROW}, v6")
    k.e("v_and_b32 v7, 3, v2"); k.e("v_lshlrev_b32 v7, 3, v7"); k.e("v_add_u32 v6, v6, v7")
    k.e("s_mul_i32 s46, s45, 160"); k.e(f"s_add_u32 s46, s46, {WB_}"); k.e("v_add_u32 v188, s46, v6")
    k.e("v_lshlrev_b32 v6, 3, v14"); k.e("v_lshrrev_b32 v8, 2, v13"); k.e("v_add_u32 v6, v6, v8"); k.e("v_mul_u32_u24 v6, 40, v6"); k.e("v_add_u32 v6, v6, v7")
    k.e(f"v_add_u32 v189, {KVB_}, v6")
    k.e("v_lshlrev_b32 v6, 4, v14"); k.e(f"v_add_u32 v190, {DUM_}, v6")
    ONES = 96
    for q in range(4): k.e(f"v_mov_b32 v{ONES+q}, 0x3f803f80")
    for q in range(92, 96): k.e(f"v_mov_b32 v{q}, 0")
    for q in range(16, 92): k.e(f"v_mov_b32 v{q}, 0")
    k.e("s_lshr_b32 s46, s43, 1"); k.e("s_cmp_eq_u32 s46, s44"); k.e("s_cselect_b32 s79, 1, 0"); k.e("s_cmp_eq_u32 s45, 0"); k.e("s_cselect_b32 s79, s79, 0")
    srd(k, 96, 4, 0, L.WS_END)
    k.e("s_waitcnt vmcnt(0)"); vm.drained()
    st.stamp()
    k.e("v_lshrrev_b32 v5, 4, v2"); k.e("v_lshlrev_b32 v5, 2, v5"); k.e("v_and_b32 v6, 15, v2"); k.e("v_lshrrev_b32 v7, 2, v6"); k.e("v_add_u32 v5, v5, v7")
    k.e("v_lshlrev_b32 v5, 7, v5"); k.e("v_and_b32 v6, 3, v2"); k.e("v_lshlrev_b32 v6, 3, v6"); k.e("v_add_u32 v5, v5, v6")
    k.e("s_lshl_b32 s46, s3, 12"); k.e(f"s_add_u32 s46, s46, {PPB}"); k.e("v_add_u32 v5, s46, v5")
    for pas in range(2):
        if pas:
            k.e(f"s_cmp_ge_u32 s3, 2"); k.e(f"s_cbranch_scc1 {name}_ppdone")
            k.e("v_add_u32 v5, 16384, v5")
        for c in range(4):
            k.e(f"ds_read_b64_tr_b16 v[{100+4*c}:{101+4*c}], v5 offset:{c*32}")
            k.e(f"ds_read_b64_tr_b16 v[{102+4*c}:{103+4*c}], v5 offset:{c*32+2048}")
        k.e("s_waitcnt lgkmcnt(0)")
        k.e(f"s_mov_b32 s46, s{8+4*pas}")
        for c in range(4):
            k.e(f"buffer_store_dwordx4 {r4(100+4*c)}, v3, s[96:99], s46 offen")
            if c < 3: k.e(f"s_add_u32 s46, s46, s{9+4*pas}")
        sk = k.label("nocs")
        k.e(f"s_cmp_eq_u32 s{26+pas}, 0"); k.e(f"s_cbranch_scc1 {sk}")
        for c in range(4):
            k.e(f"v_dot2_f32_bf16 v{120+c}, v{100+4*c}, v{ONES}, 0")
            for q in range(1, 4): k.e(f"v_dot2_f32_bf16 v{120+c}, v{100+4*c+q}, v{ONES}, v{120+c}")
        for c in range(4): allreduce16(k, "v_add_f32", 120 + c, 124)
        k.e("v_cmp_eq_u32 vcc, 1, v14"); k.e("v_cndmask_b32 v120, v120, v121, vcc")
        k.e("v_cmp_eq_u32 vcc, 2, v14"); k.e("v_cndmask_b32 v120, v120, v122, vcc")
        k.e("v_cmp_eq_u32 vcc, 3, v14"); k.e("v_cndmask_b32 v120, v120, v123, vcc")
        k.e(f"s_mul_i32 s46, s{10+4*pas}, {1728*4}"); k.e(f"s_lshl_b32 s47, s{11+4*pas}, 8"); k.e("s_add_u32 s46, s46, s47"); k.e(f"s_add_u32 s46, s46, {L.CS3P}")
        k.e("v_lshlrev_b32 v6, 2, v2")
        k.e("buffer_store_dword v120, v6, s[96:99], s46 offen")
        k.e(f"{sk}:")
    k.e(f"{name}_ppdone:")
    z = k.label("nz")
    k.e("s_cmp_lg_u32 s2, 0"); k.e(f"s_cbranch_scc1 {z}")
    for q in range(4): k.e(f"v_mov_b32 v{100+q}, 0")
    k.e("s_lshl_b32 s46, s3, 10"); k.e(f"s_add_u32 s46, s46, {L.FLAGS}")
    k.e("buffer_store_dwordx4 v[100:103], v3, s[96:99], s46 offen")
    k.e("s_cmp_ge_u32 s3, 2"); k.e(f"s_cbranch_scc1 {z}")
    k.e("s_lshl_b32 s46, s3, 6"); k.e("v_add_u32 v6, s46, v2")
    k.e("v_mul_u32_u24 v7, 205, v6"); k.e("v_lshrrev_b32 v7, 12, v7")
    k.e("v_mul_u32_u24 v8, 20, v7"); k.e("v_sub_u32 v8, v6, v8")
    k.e("v_add_u32 v9, 1, v7"); k.e("v_lshrrev_b32 v9, 1, v9"); k.e("v_add_u32 v9, 1, v9")
    k.e("v_mov_b32 v9, v7"); k.e("v_cmp_lt_u32 vcc, 2, v7"); k.e("v_subrev_u32 v10, 1, v7"); k.e("v_cndmask_b32 v9, v9, v10, vcc")
    k.e("v_cmp_eq_u32 vcc, 5, v7"); k.e("v_mov_b32 v10, 3"); k.e("v_cndmask_b32 v9, v9, v10, vcc")
    k.e("v_mov_b32 v10, 0")
    for c, row in ((1, 2047), (3, 1), (4, 2046), (5, 2047)):
        k.e(f"v_cmp_eq_u32 vcc, {c}, v7"); k.e(f"v_mov_b32 v11, {row}"); k.e("v_cndmask_b32 v10, v10, v11, vcc")
    k.e("v_lshrrev_b32 v11, 4, v10"); k.e(f"v_mul_u32_u24 v11, {20*1024}, v11")
    k.e("v_mul_u32_u24 v9, 5, v9"); k.e("v_lshrrev_b32 v12, 2, v8"); k.e("v_add_u32 v9, v9, v12"); k.e("v_lshlrev_b32 v9, 10, v9"); k.e("v_add_u32 v11, v11, v9")
    k.e("v_and_b32 v12, 3, v8"); k.e("v_lshlrev_b32 v12, 4, v12"); k.e("v_and_b32 v9, 15, v10"); k.e("v_add_u32 v12, v12, v9"); k.e("v_lshlrev_b32 v12, 4, v12"); k.e("v_add_u32 v11, v11, v12")
    k.e("v_cmp_gt_u32 vcc, 120, v6"); k.e(f"v_mov_b32 v12, {OOB}"); k.e("v_cndmask_b32 v11, v12, v11, vcc")
    k.e(f"s_mov_b32 s46, {L.HS}")
    k.e("buffer_store_dwordx4 v[100:103], v11, s[96:99], s46 offen")
    k.e(f"{z}:")
    A = lambda r, c: 16 + (r * 5 + c) * 4
    CSa = lambda c: 56 + 4 * c
    SXa = lambda r: 76 + 4 * r
    KVa = lambda c: 84 + 4 * c
    F = lambda b: 100 + 40 * b
    MF = "v_mfma_f32_16x16x32_bf16"
    def reads(step, b, isH):
        f = F(b)
        out = []
        if ABL == "noread": return out
        for r in range(2): out.append(f"ds_read_b128 {r4(f+4*r)}, v{192+2*r+step}")
        for c in range(5):
            o = step * 32 * WROW + c * 32
            out.append(f"ds_read_b64_tr_b16 {r2(f+8+4*c)}, v196 offset:{o}")
            out.append(f"ds_read_b64_tr_b16 {r2(f+10+4*c)}, v196 offset:{o + 8*WROW}")
        return out
    def kvreads(step, b):
        f = F(b); out = []
        for c in range(2):
            o = step * 32 * 40 + c * 32
            out.append(f"ds_read_b64_tr_b16 {r2(f+28+4*c)}, v197 offset:{o}")
            out.append(f"ds_read_b64_tr_b16 {r2(f+30+4*c)}, v197 offset:{o + 160}")
        return out
    def compute(b, isH, side):
        f = F(b)
        side = list(side)
        def pop():
            if side:
                for x in side.pop(0): k.e(x)
        for c in range(5):
            for r in range(2):
                if ABL != "nomfma": k.e(f"{MF} {r4(A(r,c))}, {r4(f+8+4*c)}, {r4(f+4*r)}, {r4(A(r,c))}")
            if isH and ABL != "nomfma": k.e(f"{MF} {r4(CSa(c))}, {r4(f+8+4*c)}, {r4(ONES)}, {r4(CSa(c))}")
            pop()
        if isH:
            for r in range(2):
                k.e(f"{MF} {r4(SXa(r))}, {r4(ONES)}, {r4(f+4*r)}, {r4(SXa(r))}")
                for q in range(4):
                    if ABL != "nodot": k.e(f"v_dot2_f32_bf16 v{92+r}, v{f+4*r+q}, v{f+4*r+q}, v{92+r}")
        else:
            for r in range(2):
                for q in range(4):
                    if ABL != "nodot": k.e(f"v_dot2_f32_bf16 v{94+r}, v{f+4*r+q}, v{f+36+q}, v{94+r}")
        while side: pop()
        sk = k.label("kv")
        k.e("s_cmp_eq_u32 s79, 0"); k.e(f"s_cbranch_scc1 {sk}")
        for c in range(2):
            if isH: k.e(f"{MF} {r4(KVa(c))}, {r4(f)}, {r4(f+28+4*c)}, {r4(KVa(c))}")
            else: k.e(f"{MF} {r4(KVa(c))}, {r4(f+28+4*c)}, {r4(f)}, {r4(KVa(c))}")
        k.e(f"{sk}:")
    if PROF and DIAG:
        k.e("s_waitcnt lgkmcnt(0)"); k.e("s_add_u32 s64, s60, 0"); k.e("s_add_u32 s66, s60, 0")
    st.stamp()
    k.e("s_mov_b32 s78, 0")
    k.e(f"s_mov_b32 s82, {3*SLOT}")
    k.e("s_mov_b32 s83, 0")
    k.e("s_cmp_lg_u32 s42, 0"); k.e(f"s_cbranch_scc1 {name}_H")
    for isH in (0, 1):
        lp = f"{name}_loop{isH}"
        if isH: k.e(f"{name}_H:")
        k.e(f"{lp}:")
        if PROF and DIAG:
            k.e("s_memtime s[84:85]")
        if ABL == "empty":
            k.e("s_barrier"); k.e("s_add_u32 s83, s83, 1"); k.e("s_cmp_lt_u32 s83, 10"); k.e(f"s_cbranch_scc1 {lp}")
        k.e("s_waitcnt vmcnt(18)")
        if PROF and DIAG:
            k.e("s_memtime s[86:87]")
        k.e("s_barrier")
        if PROF and DIAG:
            k.e("s_memtime s[88:89]"); k.e("s_waitcnt lgkmcnt(0)")
            k.e("s_sub_u32 s86, s86, s84"); k.e("s_add_u32 s64, s64, s86"); k.e("s_sub_u32 s88, s88, s84"); k.e("s_add_u32 s66, s66, s88")
        k.e("s_cmp_lt_u32 s83, 7"); k.e("s_cselect_b32 s49, 1, 0")
        for r in range(2):
            for sp in range(2): k.e(f"v_add_u32 v{192+2*r+sp}, s78, v{184+2*r+sp}")
        k.e("v_add_u32 v196, s78, v188"); k.e("v_add_u32 v197, s78, v189"); k.e("v_add_u32 v198, s78, v190")
        for x in reads(0, 0, isH): k.e(x)
        lab = k.label("kr"); k.e("s_cmp_eq_u32 s79, 0"); k.e(f"s_cbranch_scc1 {lab}")
        for x in kvreads(0, 0): k.e(x)
        k.e(f"{lab}:")
        if not isH: k.e(f"ds_read_b128 {r4(F(0)+36)}, v198")
        pre, grp, tail = stage_groups(82, 49)
        if ABL == "nodma": grp = [[] for _ in grp]
        for x in pre: k.e(x)
        k.e("s_waitcnt lgkmcnt(0)")
        for x in reads(1, 1, isH): k.e(x)
        lab = k.label("kr"); k.e("s_cmp_eq_u32 s79, 0"); k.e(f"s_cbranch_scc1 {lab}")
        for x in kvreads(1, 1): k.e(x)
        k.e(f"{lab}:")
        if not isH: k.e(f"ds_read_b128 {r4(F(1)+36)}, v198 offset:64")
        compute(0, isH, grp[:5])
        k.e("s_waitcnt lgkmcnt(0)")
        compute(1, isH, grp[5:])
        for x in tail: k.e(x)
        k.e(f"s_add_u32 s78, s78, {SLOT}"); k.e(f"s_cmp_eq_u32 s78, {NSL*SLOT}"); k.e("s_cselect_b32 s78, 0, s78")
        k.e(f"s_add_u32 s82, s82, {SLOT}"); k.e(f"s_cmp_eq_u32 s82, {NSL*SLOT}"); k.e("s_cselect_b32 s82, 0, s82")
        k.e("s_add_u32 s83, s83, 1"); k.e("s_cmp_lt_u32 s83, 10"); k.e(f"s_cbranch_scc1 {lp}")
        st.stamp() if isH == 0 else None
        if isH and st.on:
            r = st.pairs[st.n - 1]; k.e(f"s_memtime s[{r}:{r+1}]")
        k.e("s_nop 7")
        for r in range(2):
            k.e("s_and_b32 s46, s43, 1"); k.e(f"s_xor_b32 s46, s46, {r}"); k.e("s_lshl_b32 s47, s44, 1"); k.e("s_add_u32 s46, s46, s47")
            k.e("s_lshl_b32 s47, s40, 2"); k.e(f"s_add_u32 s{84+r}, s46, s47")
            k.e(f"s_lshl_b32 s47, s{84+r}, 4"); k.e(f"v_add_u32 v{5+r}, s47, v13")
        if not isH: epi_q5(k, A, KVa)
        else: epi_h5(k, A, CSa, SXa, KVa)
        if not isH: k.e(f"s_branch {name}_fin")
    k.e(f"{name}_fin:")
    if st.on: k.e("s_waitcnt vmcnt(0)")
    st.stamp(real=True)
    st.flush()
    k.e(f"{name}_end:")
    k.e("s_endpgm")
    return k, 216, 256, K1_LDS

def epi_q5(k, A, KVa):
    T = 100
    k.e(f"s_mov_b32 s70, {f32bits(QSCALE)}")
    k.e("s_mul_i32 s71, s43, 10"); k.e("s_mul_i32 s46, s45, 5"); k.e("s_add_u32 s71, s71, s46")
    for r in range(2):
        k.e(f"v_lshrrev_b32 v7, 5, v{5+r}"); k.e(f"v_and_b32 v8, 31, v{5+r}")
        for c in range(5):
            a = A(r, c)
            for q in range(4): k.e(f"v_mul_f32 v{a+q}, s70, v{a+q}")
            t = T + 2 * (c + 5 * r)
            k.e(f"v_cvt_pk_bf16_f32 v{t}, v{a}, v{a+1}"); k.e(f"v_cvt_pk_bf16_f32 v{t+1}, v{a+2}, v{a+3}")
            k.e(f"s_add_u32 s46, s71, {c}"); k.e("s_lshl_b32 s46, s46, 2")
            k.e("v_add_u32 v9, s46, v14")
            k.e("v_mul_u32_u24 v10, 205, v9"); k.e("v_lshrrev_b32 v10, 10, v10")
            k.e("v_mul_u32_u24 v11, 5, v10"); k.e("v_sub_u32 v11, v9, v11")
            k.e("v_lshlrev_b32 v12, 6, v10"); k.e("v_add_u32 v12, v12, v7"); k.e("v_mul_u32_u24 v12, 1280, v12")
            k.e("v_lshrrev_b32 v9, 1, v11"); k.e("v_lshlrev_b32 v9, 5, v9"); k.e("v_add_u32 v9, v9, v8"); k.e("v_lshlrev_b32 v9, 4, v9")
            k.e("v_and_b32 v10, 1, v11"); k.e("v_lshlrev_b32 v10, 3, v10"); k.e("v_add_u32 v9, v9, v10")
            k.e("v_lshlrev_b32 v10, 3, v8"); k.e("v_add_u32 v10, 1024, v10")
            k.e("v_cmp_eq_u32 vcc, 4, v11"); k.e("v_cndmask_b32 v9, v9, v10, vcc")
            k.e("v_add_u32 v12, v12, v9")
            k.e(f"s_mov_b32 s46, {L.QF}")
            k.e(f"buffer_store_dwordx2 v[{t}:{t+1}], v12, s[96:99], s46 offen")
    g = k.label("ng")
    k.e("s_or_b32 s46, s43, s45"); k.e("s_cmp_lg_u32 s46, 0"); k.e(f"s_cbranch_scc1 {g}")
    for r in range(2):
        allreduce16(k, "v_add_f32", 94 + r, 7)
        k.e(f"v_mul_f32 v{94+r}, {f32bits(-LOG2E)}, v{94+r}"); k.e(f"v_exp_f32 v{94+r}, v{94+r}"); k.e("s_nop 0")
        k.e(f"v_add_f32 v{94+r}, 1.0, v{94+r}"); k.e(f"v_rcp_f32 v{94+r}, v{94+r}")
        k.e(f"v_lshlrev_b32 v7, 2, v{5+r}"); k.e(f"s_mov_b32 s46, {L.G}")
        k.e(f"buffer_store_dword v{94+r}, v7, s[96:99], s46 offen")
    k.e(f"{g}:")
    e = k.label("nk")
    k.e("s_cmp_eq_u32 s79, 0"); k.e(f"s_cbranch_scc1 {e}")
    T = 130
    k.e("s_lshr_b32 s71, s84, 1"); k.e("s_mul_i32 s71, s71, 3072"); k.e(f"s_add_u32 s71, s71, {L.KVF}")
    k.e("v_and_b32 v8, 31, v5")
    a = KVa(0); k.e(f"v_cvt_pk_bf16_f32 v{T}, v{a}, v{a+1}"); k.e(f"v_cvt_pk_bf16_f32 v{T+1}, v{a+2}, v{a+3}")
    a = KVa(1); k.e(f"v_cvt_pk_bf16_f32 v{T+2}, v{a}, v{a+1}"); k.e(f"v_cvt_pk_bf16_f32 v{T+3}, v{a+2}, v{a+3}")
    k.e("v_lshrrev_b32 v9, 1, v14"); k.e("v_lshlrev_b32 v9, 5, v9"); k.e("v_add_u32 v9, v9, v8"); k.e("v_lshlrev_b32 v9, 4, v9")
    k.e("v_and_b32 v10, 1, v14"); k.e("v_lshlrev_b32 v10, 3, v10"); k.e("v_add_u32 v9, v9, v10")
    k.e(f"buffer_store_dwordx2 v[{T}:{T+1}], v9, s[96:99], s71 offen")
    gen1.k2_addr(k, 8, 12, 9)
    k.e("v_cmp_eq_u32 vcc, 0, v14"); k.e(f"v_mov_b32 v9, {OOB}"); k.e("v_cndmask_b32 v12, v9, v12, vcc")
    k.e(f"buffer_store_dwordx2 v[{T+2}:{T+3}], v12, s[96:99], s71 offen")
    k.e(f"v_dot2_f32_bf16 v11, v{T}, v{T}, 0"); k.e(f"v_dot2_f32_bf16 v11, v{T+1}, v{T+1}, v11")
    k.e(f"v_dot2_f32_bf16 v10, v{T+2}, v{T+2}, 0"); k.e(f"v_dot2_f32_bf16 v10, v{T+3}, v{T+3}, v10")
    k.e("v_cndmask_b32 v10, 0, v10, vcc"); k.e("v_add_f32 v11, v11, v10")
    allreduce16(k, "v_add_f32", 11, 10)
    for ror in (8, 4, 2, 1): k.e(f"v_max_f32_dpp v11, v11, v11 row_ror:{ror} row_mask:0xf bank_mask:0xf")
    k.e("s_lshl_b32 s46, s84, 2"); k.e(f"s_add_u32 s46, s46, {L.KMAX}"); k.e("v_mov_b32 v10, 0")
    k.e("buffer_store_dword v11, v10, s[96:99], s46 offen")
    k.e(f"{e}:")

def epi_h5(k, A, CSa, SXa, KVa):
    T = 100
    p2 = lambda x: f"v[{x}:{x+1}]"
    C1, C2, ONE = 140, 142, 144
    k.e(f"v_mov_b32 v{C1}, {f32bits(GELU_C1)}"); k.e(f"v_mov_b32 v{C1+1}, v{C1}")
    k.e(f"v_mov_b32 v{C2}, {f32bits(GELU_C2)}"); k.e(f"v_mov_b32 v{C2+1}, v{C2}")
    k.e(f"v_mov_b32 v{ONE}, 1.0"); k.e(f"v_mov_b32 v{ONE+1}, 1.0")
    k.e("s_lshr_b32 s85, s43, 1") if False else None
    k.e("s_lshr_b32 s70, s43, 1"); k.e("s_add_u32 s70, s70, 1"); k.e("s_and_b32 s46, s43, 1"); k.e("s_sub_u32 s47, 0, s70"); k.e("s_cmp_eq_u32 s46, 0"); k.e("s_cselect_b32 s70, s70, s47")
    k.e("s_lshl_b32 s88, s43, 1"); k.e("s_add_u32 s88, s88, s45")
    srd(k, 72, 4, L.HS, L.SZ_XF)
    for r in range(2):
        MN, RS = 146, 148
        allreduce16(k, "v_add_f32", 92 + r, 7)
        k.e(f"v_mul_f32 v{MN}, {f32bits(-1/640)}, v{SXa(r)}"); k.e(f"v_mul_f32 v{RS}, {f32bits(1/640)}, v{92+r}")
        k.e(f"v_fma_f32 v{RS}, -v{MN}, v{MN}, v{RS}"); k.e(f"v_add_f32 v{RS}, {f32bits(1e-5)}, v{RS}"); k.e(f"v_rsq_f32 v{RS}, v{RS}")
        k.e(f"v_mov_b32 v{MN+1}, v{MN}")
        k.e(f"v_add_u32 v11, s70, v{5+r}")
        k.e("v_lshrrev_b32 v12, 4, v11"); k.e(f"v_mul_u32_u24 v12, {20*1024}, v12")
        k.e("v_and_b32 v9, 15, v11"); k.e("v_lshlrev_b32 v10, 4, v14"); k.e("v_add_u32 v9, v9, v10"); k.e("v_lshlrev_b32 v9, 4, v9")
        k.e("v_add_u32 v12, v12, v9")
        k.e(f"v_mov_b32 v{RS+1}, v{RS}")
        k.e("v_cmp_gt_u32 vcc, 2048, v11"); k.e(f"v_mov_b32 v9, {OOB}"); k.e("v_cndmask_b32 v12, v9, v12, vcc")
        k.e("v_cmp_gt_u32 vcc, 32, v2"); k.e("v_cndmask_b32 v15, v9, v12, vcc")
        regs = [A(r, c) for c in range(5)]
        for c, a in enumerate(regs):
            for h in (0, 2): k.e(f"v_pk_fma_f32 {p2(a+h)}, {p2(MN)}, {p2(CSa(c)+h)}, {p2(a+h)}")
        for a in regs:
            for h in (0, 2): k.e(f"v_pk_mul_f32 {p2(a+h)}, {p2(a+h)}, {p2(RS)}")
        gen3.gelu_multi(k, regs, [152 + 4 * c for c in range(5)], C1, C2, ONE)
        PK = T + 12 * r
        for c, a in enumerate(regs):
            k.e(f"v_cvt_pk_bf16_f32 v{PK+2*c}, v{a}, v{a+1}"); k.e(f"v_cvt_pk_bf16_f32 v{PK+2*c+1}, v{a+2}, v{a+3}")
        store_t80(k, PK, 12, 15, 72, 88, 172 + 4 * r, WT)
    e = k.label("nv")
    k.e("s_cmp_eq_u32 s79, 0"); k.e(f"s_cbranch_scc1 {e}")
    T = 130
    k.e("s_lshr_b32 s71, s84, 1"); k.e("s_mul_i32 s71, s71, 3072"); k.e("s_and_b32 s46, s84, 1"); k.e("s_lshl_b32 s46, s46, 10"); k.e("s_add_u32 s71, s71, s46")
    k.e(f"s_add_u32 s71, s71, {L.KVF + 1024}")
    k.e("v_and_b32 v9, 1, v14"); k.e("v_lshlrev_b32 v9, 5, v9"); k.e("v_add_u32 v9, v9, v13"); k.e("v_lshlrev_b32 v9, 4, v9")
    k.e("v_lshrrev_b32 v10, 1, v14"); k.e("v_lshlrev_b32 v10, 3, v10"); k.e("v_add_u32 v9, v9, v10")
    a = KVa(0); k.e(f"v_cvt_pk_bf16_f32 v{T}, v{a}, v{a+1}"); k.e(f"v_cvt_pk_bf16_f32 v{T+1}, v{a+2}, v{a+3}")
    k.e(f"buffer_store_dwordx2 v[{T}:{T+1}], v9, s[96:99], s71 offen")
    a = KVa(1); k.e(f"v_cvt_pk_bf16_f32 v{T+2}, v{a}, v{a+1}"); k.e(f"v_cvt_pk_bf16_f32 v{T+3}, v{a+2}, v{a+3}")
    k.e("v_cmp_gt_u32 vcc, 4, v13")
    k.e(f"v_cndmask_b32 v{T+2}, 0, v{T+2}, vcc"); k.e(f"v_cndmask_b32 v{T+3}, 0, v{T+3}, vcc")
    k.e("v_mov_b32 v10, 0x3f803f80")
    k.e("v_and_b32 v11, 11, v13"); k.e("v_cmp_eq_u32 vcc, 8, v11")
    k.e(f"v_cndmask_b32 v{T+2}, v{T+2}, v10, vcc"); k.e(f"v_cndmask_b32 v{T+3}, v{T+3}, v10, vcc")
    k.e("v_cmp_eq_u32 vcc, 9, v13"); k.e(f"v_cndmask_b32 v{T+2}, v{T+2}, v10, vcc")
    k.e("v_lshrrev_b32 v11, 2, v13"); k.e("v_cmp_ne_u32 vcc, 1, v11")
    k.e("v_add_u32 v9, 256, v9"); k.e(f"v_mov_b32 v10, {OOB}"); k.e("v_cndmask_b32 v9, v10, v9, vcc")
    k.e(f"buffer_store_dwordx2 v[{T+2}:{T+3}], v9, s[96:99], s71 offen")
    k.e(f"{e}:")


def build_all():
    gen4.RAWX = True
    ks = [gen_k1(), gen4.gen_main()]
    return ks

def assemble_text(ks):
    s = ""
    for (k, vg, nwg, lds) in ks:
        s += f"; @launch kernel={k.name} grid=({nwg},1,1) block=(256,1,1) lds={lds}\n"
    s += '.amdgcn_target "amdgcn-amd-amdhsa--gfx950"\n.text\n'
    for (k, vg, nwg, lds) in ks:
        s += kernel_text(k, vg)
    s += TBL_TEXT
    s += '.section .rodata,"a"\n'
    for (k, vg, nwg, lds) in ks:
        s += descriptor(k.name, (vg + 7) // 8 * 8, 102)
    return s

if __name__ == "__main__":
    PROF = "--prof" in sys.argv; gen3.PROF = PROF; gen4.PROF = PROF
    DIAG = "--diag" in sys.argv
    for a in sys.argv:
        if a.startswith("--abl="): ABL = a[6:]
    gen4.FINE = "--fine" in sys.argv
    gen4.NOB = "--nob" in sys.argv; gen4.NOA = "--noa" in sys.argv
    for a in sys.argv:
        if a.startswith("--pa="): gen4.PRIO_A = int(a[5:])
        if a.startswith("--pb="): gen4.PRIO_B = int(a[5:])
        if a.startswith("--pe="): gen4.PRIO_E = int(a[5:])
    ks = build_all()
    open(sys.argv[1], "w").write(assemble_text(ks))
    for (k, vg, nwg, lds) in ks: print(k.name, "vgpr", vg, "wg", nwg, "lds", lds, "lines", len(k.lines))
```

```python
import sys
sys.path.insert(0, "work")
from asmfw import *
import layout as L
import korder as KO
import gen1, gen3, gen4, gen5
from gen1 import srd, ldptr, f32bits, KA, OOB, LOG2E, GELU_C1, GELU_C2
from gen3 import r4, r2, r16, allreduce16, store_t80
from gen4 import VM, SStamps
from gen5 import TBL_OFF, TBL_TEXT, QSCALE, epi_h5

PROF = False
ABL = ''
INNER = False
PFK1 = 1
CODEPF = True
WROW = 320
XB_, WB_, KVB_, GWB_ = 0, 8192, 8192 + 20480, 8192 + 20480 + 3072
SLOT = 32768
NSL = 4
PPB = NSL * SLOT
K1_LDS = PPB + 6 * 4096

def gen_k1():
    k = Kern("front_kernel")
    name = k.name
    st = SStamps(k, PROF, 1, [60, 62, 64, 66, 16, 68, 100], vt=210)
    def istamp(i):
        if not (PROF and INNER): return
        lab = k.label("is"); r = [64, 66, 16, 68, 92, 94][i]
        k.e("s_cmp_lg_u32 s83, 5"); k.e(f"s_cbranch_scc1 {lab}"); k.e(f"s_memtime s[{r}:{r+1}]"); k.e(f"{lab}:")
    k.e("s_cmp_ge_u32 s2, 256"); k.e(f"s_cbranch_scc1 {name}_end")
    st.stamp(); st.stamp(real=True)
    for r, nm in ((6, "x"), (8, "wq"), (10, "w1"), (12, "wk"), (14, "wv"), (18, "gw")): ldptr(k, r, nm)
    ldptr(k, 4, "ws")
    for r, nm in ((20, "w2"), (22, "wo"), (24, "w3"), (26, "w4")): ldptr(k, r, nm)
    k.e("v_lshrrev_b32 v1, 6, v0"); k.e("v_and_b32 v2, 63, v0")
    k.e("v_lshlrev_b32 v3, 4, v2")
    k.e("v_readfirstlane_b32 s3, v1")
    k.e("s_and_b32 s46, s2, 7"); k.e("s_lshr_b32 s47, s2, 3")
    k.e("s_lshr_b32 s40, s46, 1"); k.e("s_lshl_b32 s40, s40, 3"); k.e("s_lshr_b32 s49, s47, 2"); k.e("s_add_u32 s40, s40, s49")
    k.e("s_and_b32 s41, s46, 1"); k.e("s_lshl_b32 s41, s41, 2"); k.e("s_and_b32 s49, s47, 3"); k.e("s_add_u32 s41, s41, s49")
    k.e("s_lshr_b32 s42, s41, 2"); k.e("s_and_b32 s43, s41, 3")
    if CODEPF:
        k.e("s_getpc_b64 s[36:37]")
        k.e(f"{name}_cp:")
        k.e(f"s_sub_u32 s36, s36, {name}_cp-{name}"); k.e("s_subb_u32 s37, s37, 0")
        k.e("s_lshl_b32 s46, s3, 13"); k.e("v_lshlrev_b32 v6, 7, v2"); k.e("v_add_u32 v6, s46, v6")
        k.e(f"v_cmp_gt_u32 vcc, code_end-{name}, v6")
        k.e("s_and_saveexec_b64 s[38:39], vcc")
        lab = k.label("cp")
        k.e(f"s_cbranch_execz {lab}")
        k.e("global_load_dword v222, v6, s[36:37]")
        k.e(f"{lab}:")
        k.e("s_mov_b64 exec, s[38:39]")
    k.e("s_cmp_ge_u32 s3, 4"); k.e(f"s_cbranch_scc0 {name}_compute")
    k.e("s_sub_u32 s3, s3, 4")
    k.e("s_mul_i32 s46, s40, 3"); k.e("s_mul_i32 s47, s46, 6554"); k.e("s_lshr_b32 s47, s47, 16"); k.e("s_mul_i32 s47, s47, 10"); k.e("s_sub_u32 s48, s46, s47")
    k.e("v_lshrrev_b32 v4, 3, v2"); k.e("v_and_b32 v5, 7, v2")
    k.e("s_lshl_b32 s46, s3, 3"); k.e("v_add_u32 v6, s46, v4")
    k.e("v_bfe_u32 v7, v6, 1, 3"); k.e("v_xor_b32 v7, v7, v5"); k.e("v_lshlrev_b32 v7, 4, v7")
    k.e("s_lshl_b32 s47, s40, 6"); k.e("v_add_u32 v6, s47, v6"); k.e("v_mul_u32_u24 v6, 1280, v6")
    k.e("v_add_u32 v200, v6, v7"); k.e(f"v_add_u32 v201, {32*1280}, v200")
    k.e(f"s_mov_b32 s50, {(1<<32)//WROW + 1}"); k.e("s_mul_i32 s51, s43, 320")
    for i in range(5):
        k.e(f"s_add_u32 s46, s3, {4*i}"); k.e("s_lshl_b32 s46, s46, 10"); k.e("v_add_u32 v6, s46, v3")
        k.e("v_mul_hi_u32 v7, v6, s50")
        k.e(f"v_mul_u32_u24 v8, {WROW}, v7"); k.e("v_sub_u32 v8, v6, v8")
        k.e("v_bfe_u32 v10, v7, 2, 1")
        k.e("v_and_b32 v9, 0x33, v7"); k.e("v_lshl_or_b32 v9, v10, 3, v9")
        k.e("v_bfe_u32 v11, v7, 3, 1"); k.e("v_lshl_or_b32 v9, v11, 2, v9")
        k.e("v_lshlrev_b32 v10, 5, v10"); k.e("v_xor_b32 v8, v8, v10")
        k.e("v_mul_u32_u24 v9, 1280, v9"); k.e("v_add_u32 v9, v9, v8"); k.e(f"v_add_u32 v{202+i}, s51, v9")
    k.e("s_lshl_b32 s46, s3, 10"); k.e("v_add_u32 v6, s46, v3"); k.e(f"v_mov_b32 v7, {OOB}")
    k.e("v_cmp_gt_u32 vcc, 2560, v6"); k.e("v_cndmask_b32 v6, v7, v6, vcc")
    k.e("v_cmp_gt_u32 vcc, 128, v3"); k.e("v_cndmask_b32 v8, v7, v3, vcc")
    k.e("s_cmp_eq_u32 s3, 3"); k.e("s_cselect_b64 vcc, -1, 0"); k.e("v_cndmask_b32 v207, v6, v8, vcc")
    k.e("s_waitcnt lgkmcnt(0)")
    srd(k, 28, 6, 0, 2048 * 1280)
    k.e("s_cmp_eq_u32 s42, 0")
    k.e("s_cselect_b32 s32, s8, s10"); k.e("s_cselect_b32 s33, s9, s11"); k.e(f"s_mov_b32 s34, {640*1280}"); k.e("s_mov_b32 s35, 0x20000")
    k.e("s_cselect_b32 s52, s12, s14"); k.e("s_cselect_b32 s53, s13, s15"); k.e(f"s_mov_b32 s54, {640*40}"); k.e("s_mov_b32 s55, 0x20000")
    k.e("s_cmp_eq_u32 s3, 3")
    k.e("s_cselect_b32 s52, s18, s52"); k.e("s_cselect_b32 s53, s19, s53"); k.e("s_cselect_b32 s54, 1280, s54")
    k.e("s_mov_b32 s46, 2560"); k.e("s_cselect_b32 s70, 128, s46")
    k.e("s_lshl_b32 s46, s3, 10"); k.e(f"s_add_u32 s71, s46, {KVB_}")
    k.e("s_lshl_b32 s72, s3, 10")
    vm = VM(k)
    if CODEPF: vm.q.append('cp')
    def issue_stage(t):
        slot = (t % NSL) * SLOT
        k.e("s_lshl_b32 s74, s48, 7"); k.e(f"s_mul_i32 s75, s48, {64*1280}"); k.e("s_mul_i32 s76, s48, s70")
        if ABL in ("same", "samenoread"):
            k.e("s_mov_b32 s74, 0"); k.e("s_mov_b32 s75, 0"); k.e("s_mov_b32 s76, 0")
        for i in range(2):
            k.e(f"s_add_u32 m0, s72, {slot + XB_ + i*4096}"); k.e("s_nop 0")
            vm.issue(f"buffer_load_dwordx4 v{200+i}, s[28:31], s74 offen lds", ("S", t))
        for i in range(5):
            k.e(f"s_add_u32 m0, s72, {slot + WB_ + i*4096}"); k.e("s_nop 0")
            vm.issue(f"buffer_load_dwordx4 v{202+i}, s[32:35], s75 offen lds", ("S", t))
        k.e(f"s_add_u32 m0, s71, {slot}"); k.e("s_nop 0")
        vm.issue("buffer_load_dwordx4 v207, s[52:55], s76 offen lds", ("S", t))
        k.e("s_add_u32 s48, s48, 1"); k.e("s_cmp_eq_u32 s48, 10"); k.e("s_cselect_b32 s48, 0, s48")
    if PFK1:
        k.e("s_lshr_b32 s46, s2, 3"); k.e("s_mul_i32 s46, s46, 200"); k.e("s_mul_i32 s47, s3, 50"); k.e("s_add_u32 s46, s46, s47"); k.e("s_lshl_b32 s46, s46, 7")
        k.e("v_lshlrev_b32 v6, 7, v2"); k.e(f"v_mov_b32 v7, {OOB}"); k.e("v_cmp_gt_u32 vcc, 50, v2"); k.e("v_cndmask_b32 v6, v7, v6, vcc")
        k.e("buffer_load_dword v20, v6, s[32:35], s46 offen")
        k.e("s_lshl_b32 s46, s40, 6"); k.e("s_lshl_b32 s47, s43, 4"); k.e("s_add_u32 s46, s46, s47"); k.e("s_lshl_b32 s47, s3, 2"); k.e("s_add_u32 s46, s46, s47"); k.e("s_mul_i32 s46, s46, 1280")
        k.e("v_lshlrev_b32 v6, 7, v2"); k.e("v_cmp_gt_u32 vcc, 40, v2"); k.e("v_cndmask_b32 v6, v7, v6, vcc")
        k.e("buffer_load_dword v21, v6, s[28:31], s46 offen")
        vm.q += ["pf", "pf"]
    if PFK1 == 2: issue_stage(0); issue_stage(1)
    else: issue_stage(0); issue_stage(1)
    st.stamp()
    def prepack_loads():
        k.e("s_getpc_b64 s[80:81]")
        k.e(f"{name}_pc:")
        k.e(f"s_add_u32 s80, s80, korder_table-{name}_pc"); k.e("s_addc_u32 s81, s81, 0")
        k.e("v_lshrrev_b32 v10, 5, v2"); k.e("v_bfe_u32 v11, v2, 3, 2"); k.e("v_and_b32 v12, 7, v2"); k.e("v_lshlrev_b32 v12, 4, v12")
        for pas in range(2):
            P = f"{name}_pp{pas}"
            k.e("s_mul_i32 s46, s2, 6"); k.e("s_add_u32 s46, s46, s3"); k.e("s_mov_b32 s49, 0")
            if pas:
                k.e("s_add_u32 s46, s46, 4"); k.e("s_cmp_lt_u32 s3, 2"); k.e("s_cselect_b32 s46, s46, 9999")
            k.e("s_cmp_lt_u32 s46, 400"); k.e(f"s_cbranch_scc1 {P}_lo")
            k.e("s_cmp_lt_u32 s46, 940"); k.e(f"s_cbranch_scc1 {P}_w3")
            k.e("s_cmp_lt_u32 s46, 1480"); k.e(f"s_cbranch_scc1 {P}_w4")
            k.e("s_mov_b32 s46, 0"); k.e("s_mov_b32 s49, 1"); k.e(f"s_branch {P}_w2")
            k.e(f"{P}_lo:")
            k.e("s_cmp_ge_u32 s46, 200"); k.e(f"s_cbranch_scc1 {P}_wo")
            for nm, ptr, start, dst, ld, ncg, nks, order in (("w2", 20, 0, L.W2P, 1280, 10, 20, "t80"), ("wo", 22, 200, L.WOP, 1280, 10, 20, "oord"),
                                                               ("w3", 24, 400, L.W3P, 3456, 27, 20, "t80"), ("w4", 26, 940, L.W4P, 1280, 10, 54, "t14")):
                k.e(f"{P}_{nm}:")
                if start: k.e(f"s_sub_u32 s46, s46, {start}")
                k.e(f"s_mul_hi_u32 s47, s46, {(1<<32)//ncg + 1}")
                k.e(f"s_mul_i32 s50, s47, {ncg}"); k.e("s_sub_u32 s50, s46, s50")
                k.e(f"s_mov_b32 s84, s{ptr}"); k.e(f"s_mov_b32 s85, s{ptr+1}"); k.e(f"s_mov_b32 s86, {32*nks*ld}")
                k.e(f"s_mov_b32 s51, {ld}")
                k.e(f"s_lshl_b32 s79, s47, 5"); k.e(f"s_add_u32 s79, s79, {TBL_OFF[order]}")
                k.e(f"s_lshl_b32 s82, s50, 2"); k.e(f"s_mul_i32 s82, s82, {nks}"); k.e("s_add_u32 s82, s82, s47"); k.e("s_lshl_b32 s82, s82, 10"); k.e(f"s_add_u32 s82, s82, {dst}")
                k.e(f"s_mov_b32 s83, {nks*1024}")
                k.e(f"s_mov_b32 s{56+pas}, {1 if nm == 'w3' else 0}")
                k.e(f"s_branch {P}_go")
            k.e(f"{P}_go:")
            k.e("s_mov_b32 s87, 0x20000")
            k.e("s_cmp_eq_u32 s49, 0"); k.e(f"s_cselect_b32 s82, s82, {OOB}"); k.e(f"s_cselect_b32 s50, s50, 0x00ffff00")
            k.e(f"s_mov_b32 s{8+4*pas}, s82"); k.e(f"s_mov_b32 s{9+4*pas}, s83"); k.e(f"s_mov_b32 s{10+4*pas}, s47"); k.e(f"s_mov_b32 s{11+4*pas}, s50")
            k.e("s_add_u32 s90, s80, s79"); k.e("s_addc_u32 s91, s81, 0")
            k.e("s_load_dwordx8 s[92:99], s[90:91], 0")
            k.e("s_lshl_b32 s50, s50, 7")
            k.e("s_waitcnt lgkmcnt(0)")
            for i in range(4):
                k.e(f"v_mul_lo_u32 v6, v10, s{96+i}"); k.e("v_add_u32 v6, v6, v11"); k.e(f"v_add_u32 v6, s{92+i}, v6")
                k.e("v_mul_lo_u32 v6, v6, s51"); k.e("v_add_u32 v6, v6, v12")
                k.e("s_lshl_b32 s46, s3, 12"); k.e(f"s_add_u32 m0, s46, {PPB + pas*4*4096 + i*1024}"); k.e("s_nop 0")
                vm.issue("buffer_load_dwordx4 v6, s[84:87], s50 offen lds", "P")
    srd(k, 72 + 0, 4, 0, L.WS_END) if False else None
    k.e("v_lshrrev_b32 v14, 4, v2")
    for q in range(4): k.e(f"v_mov_b32 v{96+q}, 0x3f803f80")
    vm.wait(("S", 0))
    st.stamp()
    k.e("s_barrier")
    issue_stage(2); issue_stage(3)
    def prepack_process():
        ONES = 96
        vm.wait("P")
        k.e("v_lshrrev_b32 v5, 4, v2"); k.e("v_lshlrev_b32 v5, 2, v5"); k.e("v_and_b32 v6, 15, v2"); k.e("v_lshrrev_b32 v7, 2, v6"); k.e("v_add_u32 v5, v5, v7")
        k.e("v_lshlrev_b32 v5, 7, v5"); k.e("v_and_b32 v6, 3, v2"); k.e("v_lshlrev_b32 v6, 3, v6"); k.e("v_add_u32 v5, v5, v6")
        k.e("s_lshl_b32 s46, s3, 12"); k.e(f"s_add_u32 s46, s46, {PPB}"); k.e("v_add_u32 v5, s46, v5")
        for pas in range(2):
            if pas:
                k.e(f"s_cmp_ge_u32 s3, 2"); k.e(f"s_cbranch_scc1 {name}_ppdone")
                k.e("v_add_u32 v5, 16384, v5")
            for c in range(4):
                k.e(f"ds_read_b64_tr_b16 v[{100+4*c}:{101+4*c}], v5 offset:{c*32}")
                k.e(f"ds_read_b64_tr_b16 v[{102+4*c}:{103+4*c}], v5 offset:{c*32+2048}")
            k.e("s_waitcnt lgkmcnt(0)")
            k.e(f"s_mov_b32 s46, s{8+4*pas}")
            for c in range(4):
                k.e(f"buffer_store_dwordx4 {r4(100+4*c)}, v3, s[96:99], s46 offen")
                if c < 3: k.e(f"s_add_u32 s46, s46, s{9+4*pas}")
            sk = k.label("nocs")
            k.e(f"s_cmp_eq_u32 s{56+pas}, 0"); k.e(f"s_cbranch_scc1 {sk}")
            for c in range(4):
                k.e(f"v_dot2_f32_bf16 v{120+c}, v{100+4*c}, v{ONES}, 0")
                for q in range(1, 4): k.e(f"v_dot2_f32_bf16 v{120+c}, v{100+4*c+q}, v{ONES}, v{120+c}")
            for c in range(4): allreduce16(k, "v_add_f32", 120 + c, 124)
            k.e("v_cmp_eq_u32 vcc, 1, v14"); k.e("v_cndmask_b32 v120, v120, v121, vcc")
            k.e("v_cmp_eq_u32 vcc, 2, v14"); k.e("v_cndmask_b32 v120, v120, v122, vcc")
            k.e("v_cmp_eq_u32 vcc, 3, v14"); k.e("v_cndmask_b32 v120, v120, v123, vcc")
            k.e(f"s_mul_i32 s46, s{10+4*pas}, {1728*4}"); k.e(f"s_lshl_b32 s47, s{11+4*pas}, 8"); k.e("s_add_u32 s46, s46, s47"); k.e(f"s_add_u32 s46, s46, {L.CS3P}")
            k.e("v_lshlrev_b32 v6, 2, v2")
            k.e("buffer_store_dword v120, v6, s[96:99], s46 offen")
            k.e(f"{sk}:")
        k.e(f"{name}_ppdone:")
        z = k.label("nz")
        k.e("s_cmp_lg_u32 s2, 0"); k.e(f"s_cbranch_scc1 {z}")
        for q in range(4): k.e(f"v_mov_b32 v{100+q}, 0")
        k.e("s_lshl_b32 s46, s3, 10"); k.e(f"s_add_u32 s46, s46, {L.FLAGS}")
        k.e("buffer_store_dwordx4 v[100:103], v3, s[96:99], s46 offen")
        k.e("s_cmp_ge_u32 s3, 2"); k.e(f"s_cbranch_scc1 {z}")
        k.e("s_lshl_b32 s46, s3, 6"); k.e("v_add_u32 v6, s46, v2")
        k.e("v_mul_u32_u24 v7, 205, v6"); k.e("v_lshrrev_b32 v7, 12, v7")
        k.e("v_mul_u32_u24 v8, 20, v7"); k.e("v_sub_u32 v8, v6, v8")
        k.e("v_mov_b32 v9, v7"); k.e("v_cmp_lt_u32 vcc, 2, v7"); k.e("v_subrev_u32 v10, 1, v7"); k.e("v_cndmask_b32 v9, v9, v10, vcc")
        k.e("v_cmp_eq_u32 vcc, 5, v7"); k.e("v_mov_b32 v10, 3"); k.e("v_cndmask_b32 v9, v9, v10, vcc")
        k.e("v_mov_b32 v10, 0")
        for c, row in ((1, 2047), (3, 1), (4, 2046), (5, 2047)):
            k.e(f"v_cmp_eq_u32 vcc, {c}, v7"); k.e(f"v_mov_b32 v11, {row}"); k.e("v_cndmask_b32 v10, v10, v11, vcc")
        k.e("v_lshrrev_b32 v11, 4, v10"); k.e(f"v_mul_u32_u24 v11, {20*1024}, v11")
        k.e("v_mul_u32_u24 v9, 5, v9"); k.e("v_lshrrev_b32 v12, 2, v8"); k.e("v_add_u32 v9, v9, v12"); k.e("v_lshlrev_b32 v9, 10, v9"); k.e("v_add_u32 v11, v11, v9")
        k.e("v_and_b32 v12, 3, v8"); k.e("v_lshlrev_b32 v12, 4, v12"); k.e("v_and_b32 v9, 15, v10"); k.e("v_add_u32 v12, v12, v9"); k.e("v_lshlrev_b32 v12, 4, v12"); k.e("v_add_u32 v11, v11, v12")
        k.e("v_cmp_gt_u32 vcc, 120, v6"); k.e(f"v_mov_b32 v12, {OOB}"); k.e("v_cndmask_b32 v11, v12, v11, vcc")
        k.e(f"s_mov_b32 s46, {L.HS}")
        k.e("buffer_store_dwordx4 v[100:103], v11, s[96:99], s46 offen")
        k.e(f"{z}:")
    for t in range(10):
        if t + 1 < 10 and (ABL != "nodma" or t + 1 < 4): vm.wait(("S", t + 1))
        k.e("s_barrier")
        if t + 4 < 10 and ABL != "nodma": issue_stage(t + 4)
        if t == 0: prepack_loads(); srd(k, 96, 4, 0, L.WS_END)
        if t == 3: prepack_process()
    if st.on:
        st.stamp(); k.e("s_waitcnt vmcnt(0)"); st.stamp(); st.stamp(real=True); st.kidx = 2; st.flush(); st.kidx = 1
        st.n = 2
    k.e("s_endpgm")
    k.e(f"{name}_compute:")
    k.e("s_lshr_b32 s44, s3, 1"); k.e("s_and_b32 s45, s3, 1")
    k.e("v_and_b32 v13, 15, v2"); k.e("v_lshrrev_b32 v14, 4, v2")
    for r in range(2):
        k.e("s_and_b32 s46, s43, 1"); k.e(f"s_xor_b32 s46, s46, {r}"); k.e("s_lshl_b32 s47, s44, 1"); k.e("s_add_u32 s46, s46, s47"); k.e("s_lshl_b32 s46, s46, 4")
        k.e("v_add_u32 v6, s46, v13")
        k.e("v_bfe_u32 v7, v6, 1, 3"); k.e("v_xor_b32 v7, v7, v14"); k.e("v_lshlrev_b32 v7, 4, v7"); k.e("v_lshlrev_b32 v6, 7, v6")
        k.e(f"v_add_u32 v{184+2*r}, v6, v7"); k.e(f"v_xor_b32 v{185+2*r}, 64, v{184+2*r}")
    k.e("v_lshrrev_b32 v6, 1, v14"); k.e("v_lshlrev_b32 v6, 4, v6")
    k.e("v_and_b32 v9, 1, v14"); k.e("v_lshlrev_b32 v7, 2, v9"); k.e("v_add_u32 v6, v6, v7")
    k.e("v_lshrrev_b32 v7, 2, v13"); k.e("v_add_u32 v6, v6, v7"); k.e(f"v_mul_u32_u24 v6, {WROW}, v6")
    k.e("v_and_b32 v7, 3, v2"); k.e("v_lshlrev_b32 v7, 3, v7"); k.e("v_add_u32 v6, v6, v7")
    k.e("v_lshlrev_b32 v8, 5, v9")
    k.e("s_mul_i32 s46, s45, 160"); k.e(f"s_add_u32 s46, s46, {WB_}"); k.e("v_add_u32 v6, s46, v6")
    k.e("v_add_u32 v10, v6, v8"); k.e("v_sub_u32 v11, v6, v8")
    k.e("s_cmp_eq_u32 s45, 0"); k.e("s_cselect_b64 vcc, -1, 0")
    k.e("v_cndmask_b32 v188, v11, v10, vcc"); k.e("v_cndmask_b32 v191, v10, v11, vcc")
    k.e("v_lshlrev_b32 v6, 3, v14"); k.e("v_lshrrev_b32 v8, 2, v13"); k.e("v_add_u32 v6, v6, v8"); k.e("v_mul_u32_u24 v6, 40, v6"); k.e("v_add_u32 v6, v6, v7")
    k.e(f"v_add_u32 v189, {KVB_}, v6")
    k.e("v_lshlrev_b32 v6, 4, v14"); k.e(f"v_add_u32 v190, {GWB_}, v6")
    ONES = 96
    for q in range(4): k.e(f"v_mov_b32 v{ONES+q}, 0x3f803f80")
    for q in range(16, 96): k.e(f"v_mov_b32 v{q}, 0")
    k.e("s_lshr_b32 s46, s43, 1"); k.e("s_cmp_eq_u32 s46, s44"); k.e("s_cselect_b32 s79, 1, 0"); k.e("s_cmp_eq_u32 s45, 0"); k.e("s_cselect_b32 s79, s79, 0")
    k.e("s_mul_i32 s47, s43, 10"); k.e("s_mul_i32 s46, s45, 5"); k.e("s_add_u32 s47, s47, s46")
    for c in range(5):
        k.e(f"s_add_u32 s46, s47, {c}"); k.e("s_lshl_b32 s46, s46, 2"); k.e("v_add_u32 v9, s46, v14")
        k.e("v_mul_u32_u24 v10, 205, v9"); k.e("v_lshrrev_b32 v10, 10, v10")
        k.e("v_mul_u32_u24 v11, 5, v10"); k.e("v_sub_u32 v11, v9, v11")
        k.e(f"v_mul_u32_u24 v12, {64*1280}, v10")
        k.e("v_lshrrev_b32 v9, 1, v11"); k.e("v_lshlrev_b32 v9, 9, v9"); k.e("v_and_b32 v10, 1, v11"); k.e("v_lshl_or_b32 v9, v10, 3, v9")
        k.e(f"v_add_u32 v{212+c}, v12, v9")
        k.e("v_cmp_eq_u32 vcc, 4, v11"); k.e("v_mov_b32 v9, 4"); k.e("v_mov_b32 v10, 3"); k.e(f"v_cndmask_b32 v{217+c}, v9, v10, vcc")
    k.e("s_waitcnt lgkmcnt(0)")
    srd(k, 96, 4, 0, L.WS_END)
    A = lambda r, c: 16 + (r * 5 + c) * 4
    CSa = lambda c: 56 + 4 * c
    SXa = lambda r: 76 + 4 * r
    KVa = lambda c: 84 + 4 * c
    F = lambda b: 100 + 40 * b
    MF = "v_mfma_f32_16x16x32_bf16"
    def reads(step, b, isH):
        f = F(b); out = []
        if ABL in ("noread", "samenoread"): return ["s_nop 0"]
        for r in range(2): out.append(f"ds_read_b128 {r4(f+4*r)}, v{192+2*r+step}")
        for c in range(5):
            va, o = (196 if c % 2 == 0 else 199), step * 32 * WROW + c * 32
            out.append(f"ds_read_b64_tr_b16 {r2(f+8+4*c)}, v{va} offset:{o}")
            out.append(f"ds_read_b64_tr_b16 {r2(f+10+4*c)}, v{va} offset:{o + 8*WROW}")
        if not isH: out.append(f"ds_read_b128 {r4(f+36)}, v198 offset:{64*step}")
        return out
    def kvreads(step, b):
        f = F(b)
        lab = k.label("kr"); k.e("s_cmp_eq_u32 s79, 0"); k.e(f"s_cbranch_scc1 {lab}")
        for c in range(2):
            o = step * 32 * 40 + c * 32
            k.e(f"ds_read_b64_tr_b16 {r2(f+28+4*c)}, v197 offset:{o}"); k.e(f"ds_read_b64_tr_b16 {r2(f+30+4*c)}, v197 offset:{o + 160}")
        k.e(f"{lab}:")
    def slot_addrs(sreg):
        for r in range(2):
            for sp in range(2): k.e(f"v_add_u32 v{192+2*r+sp}, s{sreg}, v{184+2*r+sp}")
        k.e(f"v_add_u32 v196, s{sreg}, v188"); k.e(f"v_add_u32 v199, s{sreg}, v191"); k.e(f"v_add_u32 v197, s{sreg}, v189"); k.e(f"v_add_u32 v198, s{sreg}, v190")
    def compute(b, isH, side):
        f = F(b); side = list(side)
        dots = []
        for r in range(2):
            for q in range(4):
                dots.append(f"v_dot2_f32_bf16 v{92+r}, v{f+4*r+q}, v{f+4*r+q}, v{92+r}" if isH else f"v_dot2_f32_bf16 v{94+r}, v{f+4*r+q}, v{f+36+q}, v{94+r}")
        mf = []
        for c in range(5):
            for r in range(2): mf.append(f"{MF} {r4(A(r,c))}, {r4(f+8+4*c)}, {r4(f+4*r)}, {r4(A(r,c))}")
            if isH: mf.append(f"{MF} {r4(CSa(c))}, {r4(f+8+4*c)}, {r4(ONES)}, {r4(CSa(c))}")
        if isH:
            for r in range(2): mf.append(f"{MF} {r4(SXa(r))}, {r4(ONES)}, {r4(f+4*r)}, {r4(SXa(r))}")
        if ABL in ("noread", "samenoread"): mf = mf[:1]; dots = []
        for m in mf:
            k.e(m)
            if side: k.e(side.pop(0))
            if dots and len(side) <= len(dots): k.e(dots.pop(0))
        for x in side + dots: k.e(x)
        sk = k.label("kv")
        k.e("s_cmp_eq_u32 s79, 0"); k.e(f"s_cbranch_scc1 {sk}")
        for c in range(2):
            if isH: k.e(f"{MF} {r4(KVa(c))}, {r4(f)}, {r4(f+28+4*c)}, {r4(KVa(c))}")
            else: k.e(f"{MF} {r4(KVa(c))}, {r4(f+28+4*c)}, {r4(f)}, {r4(KVa(c))}")
        k.e(f"{sk}:")
    if not INNER: st.stamp(); st.stamp()
    k.e("s_mov_b32 s78, 0"); k.e("s_mov_b32 s83, 0")
    k.e("s_barrier")
    if not INNER: st.stamp()
    k.e("s_cmp_lg_u32 s42, 0"); k.e(f"s_cbranch_scc1 {name}_H")
    for isH in (0, 1):
        lp = f"{name}_loop{isH}"
        if isH: k.e(f"{name}_H:")
        slot_addrs(78)
        for x in reads(0, 0, isH): k.e(x)
        k.e("s_waitcnt lgkmcnt(8)")
        kvreads(0, 0)
        k.e(f"{lp}:")
        istamp(0)
        k.e("s_waitcnt lgkmcnt(0)")
        istamp(1)
        kvreads(1, 1)
        compute(0, isH, reads(1, 1, isH))
        istamp(2)
        k.e(f"s_add_u32 s78, s78, {SLOT}"); k.e(f"s_cmp_eq_u32 s78, {NSL*SLOT}"); k.e("s_cselect_b32 s78, 0, s78")
        k.e("s_waitcnt lgkmcnt(0)")
        istamp(3)
        k.e("s_barrier")
        istamp(4)
        slot_addrs(78)
        kvreads(0, 0)
        compute(1, isH, reads(0, 0, isH))
        istamp(5)
        k.e("s_add_u32 s83, s83, 1"); k.e("s_cmp_lt_u32 s83, 10"); k.e(f"s_cbranch_scc1 {lp}")
        if INNER: pass
        elif isH == 0: st.stamp()
        elif st.on:
            r = st.pairs[st.n - 1]; k.e(f"s_memtime s[{r}:{r+1}]")
        k.e("s_waitcnt lgkmcnt(0)"); k.e("s_nop 7")
        for r in range(2):
            k.e("s_and_b32 s46, s43, 1"); k.e(f"s_xor_b32 s46, s46, {r}"); k.e("s_lshl_b32 s47, s44, 1"); k.e("s_add_u32 s46, s46, s47")
            k.e("s_lshl_b32 s47, s40, 2"); k.e(f"s_add_u32 s{84+r}, s46, s47")
            k.e(f"s_lshl_b32 s47, s{84+r}, 4"); k.e(f"v_add_u32 v{5+r}, s47, v13")
        if not isH: epi_q6(k, A, KVa)
        else: epi_h5(k, A, CSa, SXa, KVa)
        if not isH: k.e(f"s_branch {name}_fin")
    k.e(f"{name}_fin:")
    if st.on: k.e("s_waitcnt vmcnt(0)")
    if INNER:
        st.pairs = [60, 62, 64, 66, 16, 68, 92, 94, 100]; st.n = 8
    st.stamp(real=True)
    st.flush()
    k.e(f"{name}_end:")
    k.e("s_endpgm")
    return k, 224, 256, K1_LDS, 512

def epi_q6(k, A, KVa):
    T = 100
    k.e(f"s_mov_b32 s70, {f32bits(QSCALE)}"); k.e(f"s_mov_b32 s71, {L.QF}")
    for r in range(2):
        k.e(f"v_lshrrev_b32 v7, 5, v{5+r}"); k.e("v_mul_u32_u24 v7, 1280, v7"); k.e(f"v_and_b32 v8, 31, v{5+r}")
        for c in range(5):
            a = A(r, c)
            for h in (0, 2): k.e(f"v_pk_mul_f32 v[{a+h}:{a+h+1}], v[{a+h}:{a+h+1}], s[70:71] op_sel:[0,0] op_sel_hi:[1,0]") if False else None
            for q in range(4): k.e(f"v_mul_f32 v{a+q}, s70, v{a+q}")
        for c in range(5):
            a = A(r, c); t = T + 2 * (c + 5 * r)
            k.e(f"v_cvt_pk_bf16_f32 v{t}, v{a}, v{a+1}"); k.e(f"v_cvt_pk_bf16_f32 v{t+1}, v{a+2}, v{a+3}")
            k.e(f"v_lshlrev_b32 v9, v{217+c}, v8"); k.e(f"v_add3_u32 v{130+c+5*r}, v9, v7, v{212+c}")
        for c in range(5):
            t = T + 2 * (c + 5 * r)
            k.e(f"buffer_store_dwordx2 v[{t}:{t+1}], v{130+c+5*r}, s[96:99], s71 offen")
    g = k.label("ng")
    k.e("s_or_b32 s46, s43, s45"); k.e("s_cmp_lg_u32 s46, 0"); k.e(f"s_cbranch_scc1 {g}")
    for r in range(2):
        allreduce16(k, "v_add_f32", 94 + r, 7)
        k.e(f"v_mul_f32 v{94+r}, {f32bits(-LOG2E)}, v{94+r}"); k.e(f"v_exp_f32 v{94+r}, v{94+r}"); k.e("s_nop 0")
        k.e(f"v_add_f32 v{94+r}, 1.0, v{94+r}"); k.e(f"v_rcp_f32 v{94+r}, v{94+r}")
        k.e(f"v_lshlrev_b32 v7, 2, v{5+r}"); k.e(f"s_mov_b32 s46, {L.G}")
        k.e(f"buffer_store_dword v{94+r}, v7, s[96:99], s46 offen")
    k.e(f"{g}:")
    e = k.label("nk")
    k.e("s_cmp_eq_u32 s79, 0"); k.e(f"s_cbranch_scc1 {e}")
    T = 150
    k.e("s_lshr_b32 s71, s84, 1"); k.e("s_mul_i32 s71, s71, 3072"); k.e(f"s_add_u32 s71, s71, {L.KVF}")
    k.e("v_and_b32 v8, 31, v5")
    a = KVa(0); k.e(f"v_cvt_pk_bf16_f32 v{T}, v{a}, v{a+1}"); k.e(f"v_cvt_pk_bf16_f32 v{T+1}, v{a+2}, v{a+3}")
    a = KVa(1); k.e(f"v_cvt_pk_bf16_f32 v{T+2}, v{a}, v{a+1}"); k.e(f"v_cvt_pk_bf16_f32 v{T+3}, v{a+2}, v{a+3}")
    k.e("v_lshrrev_b32 v9, 1, v14"); k.e("v_lshlrev_b32 v9, 5, v9"); k.e("v_add_u32 v9, v9, v8"); k.e("v_lshlrev_b32 v9, 4, v9")
    k.e("v_and_b32 v10, 1, v14"); k.e("v_lshlrev_b32 v10, 3, v10"); k.e("v_add_u32 v9, v9, v10")
    k.e(f"buffer_store_dwordx2 v[{T}:{T+1}], v9, s[96:99], s71 offen")
    gen1.k2_addr(k, 8, 12, 9)
    k.e("v_cmp_eq_u32 vcc, 0, v14"); k.e(f"v_mov_b32 v9, {OOB}"); k.e("v_cndmask_b32 v12, v9, v12, vcc")
    k.e(f"buffer_store_dwordx2 v[{T+2}:{T+3}], v12, s[96:99], s71 offen")
    k.e(f"v_dot2_f32_bf16 v11, v{T}, v{T}, 0"); k.e(f"v_dot2_f32_bf16 v11, v{T+1}, v{T+1}, v11")
    k.e(f"v_dot2_f32_bf16 v10, v{T+2}, v{T+2}, 0"); k.e(f"v_dot2_f32_bf16 v10, v{T+3}, v{T+3}, v10")
    k.e("v_cndmask_b32 v10, 0, v10, vcc"); k.e("v_add_f32 v11, v11, v10")
    allreduce16(k, "v_add_f32", 11, 10)
    for ror in (8, 4, 2, 1): k.e(f"v_max_f32_dpp v11, v11, v11 row_ror:{ror} row_mask:0xf bank_mask:0xf")
    k.e("s_lshl_b32 s46, s84, 2"); k.e(f"s_add_u32 s46, s46, {L.KMAX}"); k.e("v_mov_b32 v10, 0")
    k.e("buffer_store_dword v11, v10, s[96:99], s46 offen")
    k.e(f"{e}:")

def assemble_text(ks):
    s = ""
    for (k, vg, nwg, lds, *rest) in ks:
        blk = rest[0] if rest else 256
        s += f"; @launch kernel={k.name} grid=({nwg},1,1) block=({blk},1,1) lds={lds}\n"
    s += '.amdgcn_target "amdgcn-amd-amdhsa--gfx950"\n.text\n'
    for (k, vg, nwg, lds, *rest) in ks: s += kernel_text(k, vg)
    s += "code_end:\n"
    s += TBL_TEXT
    s += '.section .rodata,"a"\n'
    for (k, vg, nwg, lds, *rest) in ks: s += descriptor(k.name, (vg + 7) // 8 * 8, 102)
    return s

def build_all():
    gen4.RAWX = True
    return [gen_k1(), gen4.gen_main()]

if __name__ == "__main__":
    PROF = "--prof" in sys.argv; gen3.PROF = PROF; gen4.PROF = PROF
    for a in sys.argv:
        if a.startswith("--abl="): ABL = a[6:]
    gen4.ADIAG = "--adiag" in sys.argv
    INNER = "--inner" in sys.argv
    if "--nopfk1" in sys.argv: PFK1 = 0
    if "--nocodepf" in sys.argv: CODEPF = False
    gen4.FINE = "--fine" in sys.argv
    gen4.NOB = "--nob" in sys.argv; gen4.NOA = "--noa" in sys.argv
    for a in sys.argv:
        if a.startswith("--pa="): gen4.PRIO_A = int(a[5:])
        if a.startswith("--pb="): gen4.PRIO_B = int(a[5:])
        if a.startswith("--pe="): gen4.PRIO_E = int(a[5:])
        if a.startswith("--pp="): gen4.PRIO_P2, gen4.PRIO_P3, gen4.PRIO_P4 = [int(c) for c in a[5:]]
    ks = build_all()
    open(sys.argv[1], "w").write(assemble_text(ks))
    for (k, vg, nwg, lds, *rest) in ks: print(k.name, "vgpr", vg, "wg", nwg, "lds", lds, "lines", len(k.lines))
```

```python
import sys
sys.path.insert(0, "work")
from asmfw import *
import layout as L
import korder as KO
import gen1, gen3, gen4, gen5
from gen1 import srd, ldptr, f32bits, KA, OOB, LOG2E, GELU_C1, GELU_C2
from gen3 import r4, r2, r16, allreduce16, store_t80
from gen4 import VM, SStamps
from gen5 import TBL_OFF, TBL_TEXT, QSCALE, epi_h5

PROF = False
ABL = ''
INNER = False
PFK1 = 1
CODEPF = True
TLBPF = True
LSTAMP = False
WROW = 320
XB_, WB_, KVB_, GWB_ = 0, 8192, 8192 + 20480, 8192 + 20480 + 3072
SLOT = 32768
NSL = 4
PPB = NSL * SLOT
K1_LDS = PPB + 6 * 4096

def gen_k1():
    k = Kern("front_kernel")
    name = k.name
    st = SStamps(k, PROF, 1, [60, 62, 64, 66, 16, 68, 92, 94, 58, 100], vt=254)
    def istamp(i):
        if not (PROF and INNER): return
        lab = k.label("is"); r = [64, 66, 16, 68, 92, 94][i]
        k.e("s_cmp_lg_u32 s83, 5"); k.e(f"s_cbranch_scc1 {lab}"); k.e(f"s_memtime s[{r}:{r+1}]"); k.e(f"{lab}:")
    k.e("s_cmp_ge_u32 s2, 256"); k.e(f"s_cbranch_scc1 {name}_end")
    st.stamp(); st.stamp(real=True)
    for r, nm in ((6, "x"), (8, "wq"), (10, "w1"), (12, "wk"), (14, "wv"), (18, "gw")): ldptr(k, r, nm)
    ldptr(k, 4, "ws")
    for r, nm in ((20, "w2"), (22, "wo"), (24, "w3"), (26, "w4")): ldptr(k, r, nm)
    k.e("v_lshrrev_b32 v1, 6, v0"); k.e("v_and_b32 v2, 63, v0")
    k.e("v_lshlrev_b32 v3, 4, v2")
    k.e("v_readfirstlane_b32 s3, v1")
    k.e("s_and_b32 s46, s2, 7"); k.e("s_lshr_b32 s47, s2, 3")
    k.e("s_lshr_b32 s40, s46, 1"); k.e("s_lshl_b32 s40, s40, 3"); k.e("s_lshr_b32 s49, s47, 2"); k.e("s_add_u32 s40, s40, s49")
    k.e("s_and_b32 s41, s46, 1"); k.e("s_lshl_b32 s41, s41, 2"); k.e("s_and_b32 s49, s47, 3"); k.e("s_add_u32 s41, s41, s49")
    k.e("s_lshr_b32 s42, s41, 2"); k.e("s_and_b32 s43, s41, 3")
    k.e("s_cmp_ge_u32 s3, 4"); k.e(f"s_cbranch_scc0 {name}_compute")
    k.e("s_sub_u32 s3, s3, 4")
    k.e("s_mul_i32 s46, s40, 3"); k.e("s_mul_i32 s47, s46, 6554"); k.e("s_lshr_b32 s47, s47, 16"); k.e("s_mul_i32 s47, s47, 10"); k.e("s_sub_u32 s48, s46, s47")
    k.e("v_lshrrev_b32 v4, 3, v2"); k.e("v_and_b32 v5, 7, v2")
    k.e("s_lshl_b32 s46, s3, 3"); k.e("v_add_u32 v6, s46, v4")
    k.e("v_bfe_u32 v7, v6, 1, 3"); k.e("v_xor_b32 v7, v7, v5"); k.e("v_lshlrev_b32 v7, 4, v7")
    k.e("s_lshl_b32 s47, s40, 6"); k.e("v_add_u32 v6, s47, v6"); k.e("v_mul_u32_u24 v6, 1280, v6")
    k.e("v_add_u32 v200, v6, v7"); k.e(f"v_add_u32 v201, {32*1280}, v200")
    k.e(f"s_mov_b32 s50, {(1<<32)//WROW + 1}"); k.e("s_mul_i32 s51, s43, 320")
    for i in range(5):
        k.e(f"s_add_u32 s46, s3, {4*i}"); k.e("s_lshl_b32 s46, s46, 10"); k.e("v_add_u32 v6, s46, v3")
        k.e("v_mul_hi_u32 v7, v6, s50")
        k.e(f"v_mul_u32_u24 v8, {WROW}, v7"); k.e("v_sub_u32 v8, v6, v8")
        k.e("v_bfe_u32 v10, v7, 2, 1")
        k.e("v_and_b32 v9, 0x33, v7"); k.e("v_lshl_or_b32 v9, v10, 3, v9")
        k.e("v_bfe_u32 v11, v7, 3, 1"); k.e("v_lshl_or_b32 v9, v11, 2, v9")
        k.e("v_lshlrev_b32 v10, 5, v10"); k.e("v_xor_b32 v8, v8, v10")
        k.e("v_mul_u32_u24 v9, 1280, v9"); k.e("v_add_u32 v9, v9, v8"); k.e(f"v_add_u32 v{202+i}, s51, v9")
    k.e("s_lshl_b32 s46, s3, 10"); k.e("v_add_u32 v6, s46, v3"); k.e(f"v_mov_b32 v7, {OOB}")
    k.e("v_cmp_gt_u32 vcc, 2560, v6"); k.e("v_cndmask_b32 v6, v7, v6, vcc")
    k.e("v_cmp_gt_u32 vcc, 128, v3"); k.e("v_cndmask_b32 v8, v7, v3, vcc")
    k.e("s_cmp_eq_u32 s3, 3"); k.e("s_cselect_b64 vcc, -1, 0"); k.e("v_cndmask_b32 v207, v6, v8, vcc")
    k.e("s_waitcnt lgkmcnt(0)")
    srd(k, 28, 6, 0, 2048 * 1280)
    k.e("s_cmp_eq_u32 s42, 0")
    k.e("s_cselect_b32 s32, s8, s10"); k.e("s_cselect_b32 s33, s9, s11"); k.e(f"s_mov_b32 s34, {640*1280}"); k.e("s_mov_b32 s35, 0x20000")
    k.e("s_cselect_b32 s52, s12, s14"); k.e("s_cselect_b32 s53, s13, s15"); k.e(f"s_mov_b32 s54, {640*40}"); k.e("s_mov_b32 s55, 0x20000")
    k.e("s_cmp_eq_u32 s3, 3")
    k.e("s_cselect_b32 s52, s18, s52"); k.e("s_cselect_b32 s53, s19, s53"); k.e("s_cselect_b32 s54, 1280, s54")
    k.e("s_mov_b32 s46, 2560"); k.e("s_cselect_b32 s70, 128, s46")
    k.e("s_lshl_b32 s46, s3, 10"); k.e(f"s_add_u32 s71, s46, {KVB_}")
    k.e("s_lshl_b32 s72, s3, 10")
    vm = VM(k)
    def issue_stage(t):
        slot = (t % NSL) * SLOT
        k.e("s_lshl_b32 s74, s48, 7"); k.e(f"s_mul_i32 s75, s48, {64*1280}"); k.e("s_mul_i32 s76, s48, s70")
        if ABL in ("same", "samenoread"):
            k.e("s_mov_b32 s74, 0"); k.e("s_mov_b32 s75, 0"); k.e("s_mov_b32 s76, 0")
        for i in range(2):
            k.e(f"s_add_u32 m0, s72, {slot + XB_ + i*4096}"); k.e("s_nop 0")
            vm.issue(f"buffer_load_dwordx4 v{200+i}, s[28:31], s74 offen lds", ("S", t))
        for i in range(5):
            k.e(f"s_add_u32 m0, s72, {slot + WB_ + i*4096}"); k.e("s_nop 0")
            vm.issue(f"buffer_load_dwordx4 v{202+i}, s[32:35], s75 offen lds", ("S", t))
        k.e(f"s_add_u32 m0, s71, {slot}"); k.e("s_nop 0")
        vm.issue("buffer_load_dwordx4 v207, s[52:55], s76 offen lds", ("S", t))
        k.e("s_add_u32 s48, s48, 1"); k.e("s_cmp_eq_u32 s48, 10"); k.e("s_cselect_b32 s48, 0, s48")
    def do_pf():
            k.e("s_lshr_b32 s46, s2, 3"); k.e("s_mul_i32 s46, s46, 200"); k.e("s_mul_i32 s47, s3, 50"); k.e("s_add_u32 s46, s46, s47"); k.e("s_lshl_b32 s46, s46, 7")
            k.e("v_lshlrev_b32 v6, 7, v2"); k.e(f"v_mov_b32 v7, {OOB}"); k.e("v_cmp_gt_u32 vcc, 50, v2"); k.e("v_cndmask_b32 v6, v7, v6, vcc")
            k.e("buffer_load_dword v20, v6, s[32:35], s46 offen")
            k.e("s_lshl_b32 s46, s40, 6"); k.e("s_lshl_b32 s47, s43, 4"); k.e("s_add_u32 s46, s46, s47"); k.e("s_lshl_b32 s47, s3, 2"); k.e("s_add_u32 s46, s46, s47"); k.e("s_mul_i32 s46, s46, 1280")
            k.e("v_lshlrev_b32 v6, 7, v2"); k.e("v_cmp_gt_u32 vcc, 40, v2"); k.e("v_cndmask_b32 v6, v7, v6, vcc")
            k.e("buffer_load_dword v21, v6, s[28:31], s46 offen")
            vm.q += ["pf", "pf"]
    if PFK1 == 1: do_pf()
    issue_stage(0)
    if PFK1 == 3: do_pf()
    issue_stage(1)
    st.stamp()
    def prepack_loads():
        k.e("s_getpc_b64 s[80:81]")
        k.e(f"{name}_pc:")
        k.e(f"s_add_u32 s80, s80, korder_table-{name}_pc"); k.e("s_addc_u32 s81, s81, 0")
        k.e("v_lshrrev_b32 v10, 5, v2"); k.e("v_bfe_u32 v11, v2, 3, 2"); k.e("v_and_b32 v12, 7, v2"); k.e("v_lshlrev_b32 v12, 4, v12")
        for pas in range(2):
            P = f"{name}_pp{pas}"
            k.e("s_mul_i32 s46, s2, 6"); k.e("s_add_u32 s46, s46, s3"); k.e("s_mov_b32 s49, 0")
            if pas:
                k.e("s_add_u32 s46, s46, 4"); k.e("s_cmp_lt_u32 s3, 2"); k.e("s_cselect_b32 s46, s46, 9999")
            k.e("s_cmp_lt_u32 s46, 400"); k.e(f"s_cbranch_scc1 {P}_lo")
            k.e("s_cmp_lt_u32 s46, 940"); k.e(f"s_cbranch_scc1 {P}_w3")
            k.e("s_cmp_lt_u32 s46, 1480"); k.e(f"s_cbranch_scc1 {P}_w4")
            k.e("s_mov_b32 s46, 0"); k.e("s_mov_b32 s49, 1"); k.e(f"s_branch {P}_w2")
            k.e(f"{P}_lo:")
            k.e("s_cmp_ge_u32 s46, 200"); k.e(f"s_cbranch_scc1 {P}_wo")
            for nm, ptr, start, dst, ld, ncg, nks, order in (("w2", 20, 0, L.W2P, 1280, 10, 20, "t80"), ("wo", 22, 200, L.WOP, 1280, 10, 20, "oord"),
                                                               ("w3", 24, 400, L.W3P, 3456, 27, 20, "t80"), ("w4", 26, 940, L.W4P, 1280, 10, 54, "t14")):
                k.e(f"{P}_{nm}:")
                if start: k.e(f"s_sub_u32 s46, s46, {start}")
                k.e(f"s_mul_hi_u32 s47, s46, {(1<<32)//ncg + 1}")
                k.e(f"s_mul_i32 s50, s47, {ncg}"); k.e("s_sub_u32 s50, s46, s50")
                k.e(f"s_mov_b32 s84, s{ptr}"); k.e(f"s_mov_b32 s85, s{ptr+1}"); k.e(f"s_mov_b32 s86, {32*nks*ld}")
                k.e(f"s_mov_b32 s51, {ld}")
                k.e(f"s_lshl_b32 s79, s47, 5"); k.e(f"s_add_u32 s79, s79, {TBL_OFF[order]}")
                k.e(f"s_lshl_b32 s82, s50, 2"); k.e(f"s_mul_i32 s82, s82, {nks}"); k.e("s_add_u32 s82, s82, s47"); k.e("s_lshl_b32 s82, s82, 10"); k.e(f"s_add_u32 s82, s82, {dst}")
                k.e(f"s_mov_b32 s83, {nks*1024}")
                k.e(f"s_mov_b32 s{56+pas}, {1 if nm == 'w3' else 0}")
                k.e(f"s_branch {P}_go")
            k.e(f"{P}_go:")
            k.e("s_mov_b32 s87, 0x20000")
            k.e("s_cmp_eq_u32 s49, 0"); k.e(f"s_cselect_b32 s82, s82, {OOB}"); k.e(f"s_cselect_b32 s50, s50, 0x00ffff00")
            k.e(f"s_mov_b32 s{8+4*pas}, s82"); k.e(f"s_mov_b32 s{9+4*pas}, s83"); k.e(f"s_mov_b32 s{10+4*pas}, s47"); k.e(f"s_mov_b32 s{11+4*pas}, s50")
            k.e("s_add_u32 s90, s80, s79"); k.e("s_addc_u32 s91, s81, 0")
            k.e("s_load_dwordx8 s[92:99], s[90:91], 0")
            k.e("s_lshl_b32 s50, s50, 7")
            k.e("s_waitcnt lgkmcnt(0)")
            for i in range(4):
                k.e(f"v_mul_lo_u32 v6, v10, s{96+i}"); k.e("v_add_u32 v6, v6, v11"); k.e(f"v_add_u32 v6, s{92+i}, v6")
                k.e("v_mul_lo_u32 v6, v6, s51"); k.e("v_add_u32 v6, v6, v12")
                k.e("s_lshl_b32 s46, s3, 12"); k.e(f"s_add_u32 m0, s46, {PPB + pas*4*4096 + i*1024}"); k.e("s_nop 0")
                vm.issue("buffer_load_dwordx4 v6, s[84:87], s50 offen lds", "P")
    srd(k, 72 + 0, 4, 0, L.WS_END) if False else None
    k.e("v_lshrrev_b32 v14, 4, v2")
    for q in range(4): k.e(f"v_mov_b32 v{96+q}, 0x3f803f80")
    vm.wait(("S", 0))
    st.stamp()
    k.e("s_barrier")
    issue_stage(2); issue_stage(3)
    def prepack_process():
        ONES = 96
        vm.wait("P")
        k.e("v_lshrrev_b32 v5, 4, v2"); k.e("v_lshlrev_b32 v5, 2, v5"); k.e("v_and_b32 v6, 15, v2"); k.e("v_lshrrev_b32 v7, 2, v6"); k.e("v_add_u32 v5, v5, v7")
        k.e("v_lshlrev_b32 v5, 7, v5"); k.e("v_and_b32 v6, 3, v2"); k.e("v_lshlrev_b32 v6, 3, v6"); k.e("v_add_u32 v5, v5, v6")
        k.e("s_lshl_b32 s46, s3, 12"); k.e(f"s_add_u32 s46, s46, {PPB}"); k.e("v_add_u32 v5, s46, v5")
        for pas in range(2):
            if pas:
                k.e(f"s_cmp_ge_u32 s3, 2"); k.e(f"s_cbranch_scc1 {name}_ppdone")
                k.e("v_add_u32 v5, 16384, v5")
            for c in range(4):
                k.e(f"ds_read_b64_tr_b16 v[{100+4*c}:{101+4*c}], v5 offset:{c*32}")
                k.e(f"ds_read_b64_tr_b16 v[{102+4*c}:{103+4*c}], v5 offset:{c*32+2048}")
            k.e("s_waitcnt lgkmcnt(0)")
            k.e(f"s_mov_b32 s46, s{8+4*pas}")
            for c in range(4):
                k.e(f"buffer_store_dwordx4 {r4(100+4*c)}, v3, s[96:99], s46 offen")
                if c < 3: k.e(f"s_add_u32 s46, s46, s{9+4*pas}")
            sk = k.label("nocs")
            k.e(f"s_cmp_eq_u32 s{56+pas}, 0"); k.e(f"s_cbranch_scc1 {sk}")
            for c in range(4):
                k.e(f"v_dot2_f32_bf16 v{120+c}, v{100+4*c}, v{ONES}, 0")
                for q in range(1, 4): k.e(f"v_dot2_f32_bf16 v{120+c}, v{100+4*c+q}, v{ONES}, v{120+c}")
            for c in range(4): allreduce16(k, "v_add_f32", 120 + c, 124)
            k.e("v_cmp_eq_u32 vcc, 1, v14"); k.e("v_cndmask_b32 v120, v120, v121, vcc")
            k.e("v_cmp_eq_u32 vcc, 2, v14"); k.e("v_cndmask_b32 v120, v120, v122, vcc")
            k.e("v_cmp_eq_u32 vcc, 3, v14"); k.e("v_cndmask_b32 v120, v120, v123, vcc")
            k.e(f"s_mul_i32 s46, s{10+4*pas}, {1728*4}"); k.e(f"s_lshl_b32 s47, s{11+4*pas}, 8"); k.e("s_add_u32 s46, s46, s47"); k.e(f"s_add_u32 s46, s46, {L.CS3P}")
            k.e("v_lshlrev_b32 v6, 2, v2")
            k.e("buffer_store_dword v120, v6, s[96:99], s46 offen")
            k.e(f"{sk}:")
        k.e(f"{name}_ppdone:")
        z = k.label("nz")
        k.e("s_cmp_lg_u32 s2, 0"); k.e(f"s_cbranch_scc1 {z}")
        for q in range(4): k.e(f"v_mov_b32 v{100+q}, 0")
        k.e("s_lshl_b32 s46, s3, 10"); k.e(f"s_add_u32 s46, s46, {L.FLAGS}")
        k.e("buffer_store_dwordx4 v[100:103], v3, s[96:99], s46 offen")
        k.e("s_cmp_ge_u32 s3, 2"); k.e(f"s_cbranch_scc1 {z}")
        k.e("s_lshl_b32 s46, s3, 6"); k.e("v_add_u32 v6, s46, v2")
        k.e("v_mul_u32_u24 v7, 205, v6"); k.e("v_lshrrev_b32 v7, 12, v7")
        k.e("v_mul_u32_u24 v8, 20, v7"); k.e("v_sub_u32 v8, v6, v8")
        k.e("v_mov_b32 v9, v7"); k.e("v_cmp_lt_u32 vcc, 2, v7"); k.e("v_subrev_u32 v10, 1, v7"); k.e("v_cndmask_b32 v9, v9, v10, vcc")
        k.e("v_cmp_eq_u32 vcc, 5, v7"); k.e("v_mov_b32 v10, 3"); k.e("v_cndmask_b32 v9, v9, v10, vcc")
        k.e("v_mov_b32 v10, 0")
        for c, row in ((1, 2047), (3, 1), (4, 2046), (5, 2047)):
            k.e(f"v_cmp_eq_u32 vcc, {c}, v7"); k.e(f"v_mov_b32 v11, {row}"); k.e("v_cndmask_b32 v10, v10, v11, vcc")
        k.e("v_lshrrev_b32 v11, 4, v10"); k.e(f"v_mul_u32_u24 v11, {20*1024}, v11")
        k.e("v_mul_u32_u24 v9, 5, v9"); k.e("v_lshrrev_b32 v12, 2, v8"); k.e("v_add_u32 v9, v9, v12"); k.e("v_lshlrev_b32 v9, 10, v9"); k.e("v_add_u32 v11, v11, v9")
        k.e("v_and_b32 v12, 3, v8"); k.e("v_lshlrev_b32 v12, 4, v12"); k.e("v_and_b32 v9, 15, v10"); k.e("v_add_u32 v12, v12, v9"); k.e("v_lshlrev_b32 v12, 4, v12"); k.e("v_add_u32 v11, v11, v12")
        k.e("v_cmp_gt_u32 vcc, 120, v6"); k.e(f"v_mov_b32 v12, {OOB}"); k.e("v_cndmask_b32 v11, v12, v11, vcc")
        k.e(f"s_mov_b32 s46, {L.HS}")
        k.e("buffer_store_dwordx4 v[100:103], v11, s[96:99], s46 offen")
        k.e(f"{z}:")
    for t in range(10):
        if t + 1 < 10 and (ABL != "nodma" or t + 1 < 4): vm.wait(("S", t + 1))
        if PROF and LSTAMP: k.e(f"s_memtime s[{[36,38,58,6,18,16,64,66,68,30][t]}:{[36,38,58,6,18,16,64,66,68,30][t]+1}]") if t not in (3,4) or True else None
        k.e("s_barrier")
        if t + 4 < 10 and ABL != "nodma": issue_stage(t + 4)
        if t == 5: prepack_loads(); srd(k, 96, 4, 0, L.WS_END)
    k.e('s_barrier'); k.e('s_barrier')
    prepack_process()
    if st.on and LSTAMP:
        sp = st.pairs; st.pairs = [60, 62, 36, 38, 58, 6, 18, 16, 64, 66, 68, 30]; st.n = 12; st.kidx = 2; st.flush(); st.kidx = 1; st.pairs = sp
        st.n = 2
    elif st.on:
        st.stamp(); k.e("s_waitcnt vmcnt(0)"); st.stamp(); st.stamp(real=True); st.kidx = 2; st.flush(); st.kidx = 1
        st.n = 2
    k.e("s_endpgm")
    k.e(f"{name}_compute:")
    if TLBPF:
        lab = k.label("tp")
        k.e("s_cmp_lg_u32 s3, 0"); k.e(f"s_cbranch_scc1 {lab}")
        ldptr(k, 30, "out")
        k.e("s_waitcnt lgkmcnt(0)")
        pages = [(6, 0), (6, 2 << 20), (8, 0), (10, 0), (12, 0), (14, 0), (18, 0), (20, 0), (22, 0), (24, 0), (24, 2 << 20), (26, 0), (26, 2 << 20), (30, 0), (30, 2 << 20)]
        pages += [(4, i * (2 << 20)) for i in range((L.WS_END + (2 << 20) - 1) // (2 << 20))]
        k.e("v_mov_b32 v16, s4"); k.e("v_mov_b32 v17, s5")
        for i, (p, off) in enumerate(pages):
            if off:
                k.e(f"s_add_u32 s46, s{p}, {off}"); k.e(f"s_addc_u32 s47, s{p+1}, 0")
                k.e(f"v_writelane_b32 v16, s46, {i}"); k.e(f"v_writelane_b32 v17, s47, {i}")
            else:
                k.e(f"v_writelane_b32 v16, s{p}, {i}"); k.e(f"v_writelane_b32 v17, s{p+1}, {i}")
        k.e("global_load_dword v15, v[16:17], off")
        k.e(f"{lab}:")
    if CODEPF:
        k.e("s_getpc_b64 s[36:37]")
        k.e(f"{name}_cp:")
        k.e(f"s_sub_u32 s36, s36, {name}_cp-{name}"); k.e("s_subb_u32 s37, s37, 0")
        k.e("s_lshl_b32 s46, s3, 14"); k.e("v_lshlrev_b32 v6, 7, v2"); k.e("v_add_u32 v6, s46, v6")
        k.e(f"v_cmp_gt_u32 vcc, code_end-{name}, v6")
        k.e("s_and_saveexec_b64 s[38:39], vcc")
        lab = k.label("cp")
        k.e(f"s_cbranch_execz {lab}")
        k.e("global_load_dword v15, v6, s[36:37]")
        k.e(f"{lab}:")
        k.e("s_mov_b64 exec, s[38:39]")
        k.e("v_add_u32 v6, 8192, v6")
        k.e(f"v_cmp_gt_u32 vcc, code_end-{name}, v6")
        k.e("s_and_saveexec_b64 s[38:39], vcc")
        lab = k.label("cp")
        k.e(f"s_cbranch_execz {lab}")
        k.e("global_load_dword v15, v6, s[36:37]")
        k.e(f"{lab}:")
        k.e("s_mov_b64 exec, s[38:39]")
    k.e("s_lshr_b32 s44, s3, 1"); k.e("s_and_b32 s45, s3, 1")
    k.e("v_and_b32 v13, 15, v2"); k.e("v_lshrrev_b32 v14, 4, v2")
    for r in range(4):
        k.e("s_and_b32 s46, s43, 1"); k.e(f"s_xor_b32 s46, s46, {r % 2}")
        if r < 2: k.e("s_lshl_b32 s47, s44, 1")
        else: k.e("s_xor_b32 s47, s44, 1"); k.e("s_lshl_b32 s47, s47, 1")
        k.e("s_add_u32 s46, s46, s47"); k.e("s_lshl_b32 s46, s46, 4")
        k.e("v_add_u32 v6, s46, v13")
        k.e("s_lshl_b32 s47, s44, 2"); k.e("v_add_u32 v8, s47, v14")
        k.e("v_bfe_u32 v7, v6, 1, 3"); k.e("v_xor_b32 v7, v7, v8"); k.e("v_lshlrev_b32 v7, 4, v7"); k.e("v_lshlrev_b32 v6, 7, v6")
        k.e(f"v_add_u32 v{228+r}, v6, v7")
    k.e("v_lshrrev_b32 v6, 1, v14"); k.e("v_lshlrev_b32 v6, 4, v6")
    k.e("v_and_b32 v9, 1, v14"); k.e("v_lshlrev_b32 v7, 2, v9"); k.e("v_add_u32 v6, v6, v7")
    k.e("v_lshrrev_b32 v7, 2, v13"); k.e("v_add_u32 v6, v6, v7")
    k.e("s_lshl_b32 s47, s44, 5"); k.e("v_add_u32 v6, s47, v6")
    k.e(f"v_mul_u32_u24 v6, {WROW}, v6")
    k.e("v_and_b32 v7, 3, v2"); k.e("v_lshlrev_b32 v7, 3, v7"); k.e("v_add_u32 v6, v6, v7")
    k.e("v_lshlrev_b32 v8, 5, v9")
    k.e("s_mul_i32 s46, s45, 160"); k.e(f"s_add_u32 s46, s46, {WB_}"); k.e("v_add_u32 v6, s46, v6")
    k.e("v_add_u32 v10, v6, v8"); k.e("v_sub_u32 v11, v6, v8")
    k.e("s_cmp_eq_u32 s45, 0"); k.e("s_cselect_b64 vcc, -1, 0")
    k.e("v_cndmask_b32 v232, v11, v10, vcc"); k.e("v_cndmask_b32 v233, v10, v11, vcc")
    k.e("v_lshlrev_b32 v6, 3, v14"); k.e("v_lshrrev_b32 v8, 2, v13"); k.e("v_add_u32 v6, v6, v8"); k.e("s_lshl_b32 s47, s44, 5"); k.e("v_add_u32 v6, s47, v6")
    k.e("v_mul_u32_u24 v6, 40, v6"); k.e("v_add_u32 v6, v6, v7"); k.e(f"v_add_u32 v234, {KVB_}, v6")
    k.e("v_lshlrev_b32 v6, 4, v14"); k.e("s_lshl_b32 s47, s44, 6"); k.e(f"s_add_u32 s47, s47, {GWB_}"); k.e("v_add_u32 v235, s47, v6")
    ONES = 144
    for q in range(4): k.e(f"v_mov_b32 v{ONES+q}, 0x3f803f80")
    for q in range(16, 144): k.e(f"v_mov_b32 v{q}, 0")
    k.e("s_lshr_b32 s46, s43, 1"); k.e("s_cmp_eq_u32 s46, s44"); k.e("s_cselect_b32 s79, 1, 2"); k.e("s_cmp_eq_u32 s45, 0"); k.e("s_cselect_b32 s79, s79, 0")
    k.e("s_mul_i32 s47, s43, 10"); k.e("s_mul_i32 s46, s45, 5"); k.e("s_add_u32 s47, s47, s46")
    for c in range(5):
        k.e(f"s_add_u32 s46, s47, {c}"); k.e("s_lshl_b32 s46, s46, 2"); k.e("v_add_u32 v9, s46, v14")
        k.e("v_mul_u32_u24 v10, 205, v9"); k.e("v_lshrrev_b32 v10, 10, v10")
        k.e("v_mul_u32_u24 v11, 5, v10"); k.e("v_sub_u32 v11, v9, v11")
        k.e(f"v_mul_u32_u24 v12, {64*1280}, v10")
        k.e("v_lshrrev_b32 v9, 1, v11"); k.e("v_lshlrev_b32 v9, 9, v9"); k.e("v_and_b32 v10, 1, v11"); k.e("v_lshl_or_b32 v9, v10, 3, v9")
        k.e(f"v_add_u32 v{244+c}, v12, v9")
        k.e("v_cmp_eq_u32 vcc, 4, v11"); k.e("v_mov_b32 v9, 4"); k.e("v_mov_b32 v10, 3"); k.e(f"v_cndmask_b32 v{249+c}, v9, v10, vcc")
    k.e("s_waitcnt lgkmcnt(0)")
    srd(k, 96, 4, 0, L.WS_END)
    A = lambda r, c: 16 + (r * 5 + c) * 4
    CSa = lambda c: 96 + 4 * c
    SXa = lambda r: 116 + 4 * r
    KVa = lambda c: 132 + 4 * c
    DQ = 140
    F = lambda b: 148 + 40 * b
    KVF_ = lambda b: 234 + 0
    MF = "v_mfma_f32_16x16x32_bf16"
    assert F(1) + 40 <= 228
    def reads(b, isH):
        f = F(b); out = []
        for r in range(4): out.append(f"ds_read_b128 {r4(f+4*r)}, v{4+r if False else 218+r}")
        return out
    XA = [4, 5, 6, 7]; WE, WO_, KA_, GA = 8, 9, 10, 11
    def slot_addrs(sreg):
        for r in range(4): k.e(f"v_add_u32 v{XA[r]}, s{sreg}, v{228+r}")
        k.e(f"v_add_u32 v{WE}, s{sreg}, v232"); k.e(f"v_add_u32 v{WO_}, s{sreg}, v233"); k.e(f"v_add_u32 v{KA_}, s{sreg}, v234"); k.e(f"v_add_u32 v{GA}, s{sreg}, v235")
    def reads(b, isH):
        f = F(b); out = []
        for r in range(4): out.append(f"ds_read_b128 {r4(f+4*r)}, v{XA[r]}")
        for c in range(5):
            va = WE if c % 2 == 0 else WO_
            out.append(f"ds_read_b64_tr_b16 {r2(f+16+4*c)}, v{va} offset:{c*32}")
            out.append(f"ds_read_b64_tr_b16 {r2(f+18+4*c)}, v{va} offset:{c*32 + 8*WROW}")
        if not isH: out.append(f"ds_read_b128 {r4(f+36)}, v{GA}")
        return out
    def KVB(b, c, isH): return (236 + 4 * c) if b == 0 else ((F(c) + 36) if isH else (96 + 4 * c))
    def kvreads(b, isH):
        lab = k.label("kr"); k.e("s_cmp_eq_u32 s79, 0"); k.e(f"s_cbranch_scc1 {lab}")
        for c in range(2):
            k.e(f"ds_read_b64_tr_b16 {r2(KVB(b,c,isH))}, v{KA_} offset:{c*32}"); k.e(f"ds_read_b64_tr_b16 {r2(KVB(b,c,isH)+2)}, v{KA_} offset:{c*32 + 160}")
        k.e(f"{lab}:")
    def kvmfma(b, isH):
        f = F(b)
        sk = k.label("kv"); h = k.label("kvh")
        k.e("s_cmp_eq_u32 s79, 0"); k.e(f"s_cbranch_scc1 {sk}")
        k.e("s_cmp_eq_u32 s79, 2"); k.e(f"s_cbranch_scc1 {h}")
        for xr, lab in ((0, None), (2, h)):
            if lab: k.e(f"s_branch {sk}"); k.e(f"{lab}:")
            for c in range(2):
                if isH: k.e(f"{MF} {r4(KVa(c))}, {r4(f+4*xr)}, {r4(KVB(b,c,isH))}, {r4(KVa(c))}")
                else: k.e(f"{MF} {r4(KVa(c))}, {r4(KVB(b,c,isH))}, {r4(f+4*xr)}, {r4(KVa(c))}")
        k.e(f"{sk}:")
    def compute(b, isH, side):
        f = F(b); side = list(side)
        dots = []
        for q in range(4):
            for r in range(4):
                dots.append(f"v_dot2_f32_bf16 v{DQ+r}, v{f+4*r+q}, v{f+4*r+q}, v{DQ+r}" if isH else f"v_dot2_f32_bf16 v{DQ+r}, v{f+4*r+q}, v{f+36+q}, v{DQ+r}")
        mf = []
        for c in range(5):
            for r in range(4): mf.append(f"{MF} {r4(A(r,c))}, {r4(f+16+4*c)}, {r4(f+4*r)}, {r4(A(r,c))}")
            if isH: mf.append(f"{MF} {r4(CSa(c))}, {r4(f+16+4*c)}, {r4(ONES)}, {r4(CSa(c))}")
        if isH:
            for r in range(4): mf.append(f"{MF} {r4(SXa(r))}, {r4(ONES)}, {r4(f+4*r)}, {r4(SXa(r))}")
        for i, m in enumerate(mf):
            k.e(m)
            if side: k.e(side.pop(0))
            elif dots: k.e(dots.pop(0))
            if dots and i % 2 == 1: k.e(dots.pop(0))
        for x in side + dots: k.e(x)
    st.stamp(); st.stamp() if not INNER else None
    k.e("s_mov_b32 s78, 0"); k.e("s_mov_b32 s83, 0")
    k.e("s_barrier")
    st.stamp()
    k.e("s_cmp_lg_u32 s42, 0"); k.e(f"s_cbranch_scc1 {name}_H")
    for isH in (0, 1):
        lp = f"{name}_loop{isH}"
        if isH: k.e(f"{name}_H:")
        slot_addrs(78)
        for x in reads(0, isH): k.e(x)
        k.e("s_waitcnt lgkmcnt(8)")
        kvreads(0, isH)
        k.e(f"{lp}:")
        for b in range(2):
            k.e(f"s_add_u32 s78, s78, {SLOT}"); k.e(f"s_cmp_eq_u32 s78, {NSL*SLOT}"); k.e("s_cselect_b32 s78, 0, s78")
            k.e("s_waitcnt lgkmcnt(0)")
            k.e("s_barrier")
            slot_addrs(78)
            kvmfma(b, isH)
            kvreads(1 - b, isH)
            compute(b, isH, reads(1 - b, isH))
        k.e("s_add_u32 s83, s83, 1"); k.e("s_cmp_lt_u32 s83, 5"); k.e(f"s_cbranch_scc1 {lp}")
        if isH == 0: st.stamp()
        elif st.on:
            r = st.pairs[st.n - 1]; k.e(f"s_memtime s[{r}:{r+1}]")
        k.e("s_waitcnt vmcnt(0) lgkmcnt(0)"); k.e("s_nop 7")
        NB_S = 20
        k.e("s_xor_b32 s46, s3, 2"); k.e(f"s_mul_i32 s46, s46, {NB_S*1024}"); k.e("v_add_u32 v4, s46, v3")
        send = [A(2, c) for c in range(5)] + [A(3, c) for c in range(5)]
        if isH: send += [CSa(c) for c in range(5)] + [SXa(2), SXa(3)]
        send += [KVa(0), KVa(1), DQ]
        k.e("s_barrier")
        for i, rg in enumerate(send): k.e(f"ds_write_b128 v4, {r4(rg)} offset:{i*1024}")
        k.e(f"s_mul_i32 s46, s3, {NB_S*1024}"); k.e("v_add_u32 v5, s46, v3")
        k.e("s_waitcnt lgkmcnt(0)"); k.e("s_barrier")
        recv = [A(0, c) for c in range(5)] + [A(1, c) for c in range(5)]
        if isH: recv += [CSa(c) for c in range(5)] + [SXa(0), SXa(1)]
        recv += [KVa(0), KVa(1)]
        TMP = 148
        n = len(recv) + 1
        for i in range(n):
            k.e(f"ds_read_b128 {r4(TMP+4*i)}, v5 offset:{i*1024}")
            if i == 11: k.e("s_waitcnt lgkmcnt(4)")
        k.e("s_waitcnt lgkmcnt(0)")
        for i, rg in enumerate(recv):
            t = TMP + 4 * i
            k.e(f"v_pk_add_f32 v[{rg}:{rg+1}], v[{rg}:{rg+1}], v[{t}:{t+1}]"); k.e(f"v_pk_add_f32 v[{rg+2}:{rg+3}], v[{rg+2}:{rg+3}], v[{t+2}:{t+3}]")
        t = TMP + 4 * len(recv)
        k.e(f"v_add_f32 v{DQ}, v{DQ}, v{t+2}"); k.e(f"v_add_f32 v{DQ+1}, v{DQ+1}, v{t+3}")
        for r in range(2):
            k.e("s_and_b32 s46, s43, 1"); k.e(f"s_xor_b32 s46, s46, {r}"); k.e("s_lshl_b32 s47, s44, 1"); k.e("s_add_u32 s46, s46, s47")
            k.e("s_lshl_b32 s47, s40, 2"); k.e(f"s_add_u32 s{84+r}, s46, s47")
            k.e(f"s_lshl_b32 s47, s{84+r}, 4"); k.e(f"v_add_u32 v{5+r}, s47, v13")
        if st.on:
            k.e("s_memtime s[92:93]")
        k.e("s_cmp_eq_u32 s79, 1"); k.e("s_cselect_b32 s79, 1, 0")
        if not isH: epi_q8(k, A, KVa, DQ)
        else: epi_h8(k, A, CSa, SXa, KVa, DQ)
        if not isH: k.e(f"s_branch {name}_fin")
    k.e(f"{name}_fin:")
    if st.on:
        k.e("s_memtime s[94:95]"); k.e("s_waitcnt vmcnt(0)"); k.e("s_memtime s[58:59]"); st.n = 9
    st.stamp(real=True)
    st.flush()
    k.e(f"{name}_end:")
    k.e("s_endpgm")
    return k, 256, 256, K1_LDS, 512

def epi_q6(k, A, KVa):
    T = 100
    k.e(f"s_mov_b32 s70, {f32bits(QSCALE)}"); k.e(f"s_mov_b32 s71, {L.QF}")
    for r in range(2):
        k.e(f"v_lshrrev_b32 v7, 5, v{5+r}"); k.e("v_mul_u32_u24 v7, 1280, v7"); k.e(f"v_and_b32 v8, 31, v{5+r}")
        for c in range(5):
            a = A(r, c)
            for h in (0, 2): k.e(f"v_pk_mul_f32 v[{a+h}:{a+h+1}], v[{a+h}:{a+h+1}], s[70:71] op_sel:[0,0] op_sel_hi:[1,0]") if False else None
            for q in range(4): k.e(f"v_mul_f32 v{a+q}, s70, v{a+q}")
        for c in range(5):
            a = A(r, c); t = T + 2 * (c + 5 * r)
            k.e(f"v_cvt_pk_bf16_f32 v{t}, v{a}, v{a+1}"); k.e(f"v_cvt_pk_bf16_f32 v{t+1}, v{a+2}, v{a+3}")
            k.e(f"v_lshlrev_b32 v9, v{217+c}, v8"); k.e(f"v_add3_u32 v{130+c+5*r}, v9, v7, v{212+c}")
        for c in range(5):
            t = T + 2 * (c + 5 * r)
            k.e(f"buffer_store_dwordx2 v[{t}:{t+1}], v{130+c+5*r}, s[96:99], s71 offen")
    g = k.label("ng")
    k.e("s_or_b32 s46, s43, s45"); k.e("s_cmp_lg_u32 s46, 0"); k.e(f"s_cbranch_scc1 {g}")
    for r in range(2):
        allreduce16(k, "v_add_f32", 94 + r, 7)
        k.e(f"v_mul_f32 v{94+r}, {f32bits(-LOG2E)}, v{94+r}"); k.e(f"v_exp_f32 v{94+r}, v{94+r}"); k.e("s_nop 0")
        k.e(f"v_add_f32 v{94+r}, 1.0, v{94+r}"); k.e(f"v_rcp_f32 v{94+r}, v{94+r}")
        k.e(f"v_lshlrev_b32 v7, 2, v{5+r}"); k.e(f"s_mov_b32 s46, {L.G}")
        k.e(f"buffer_store_dword v{94+r}, v7, s[96:99], s46 offen")
    k.e(f"{g}:")
    e = k.label("nk")
    k.e("s_cmp_eq_u32 s79, 0"); k.e(f"s_cbranch_scc1 {e}")
    T = 150
    k.e("s_lshr_b32 s71, s84, 1"); k.e("s_mul_i32 s71, s71, 3072"); k.e(f"s_add_u32 s71, s71, {L.KVF}")
    k.e("v_and_b32 v8, 31, v5")
    a = KVa(0); k.e(f"v_cvt_pk_bf16_f32 v{T}, v{a}, v{a+1}"); k.e(f"v_cvt_pk_bf16_f32 v{T+1}, v{a+2}, v{a+3}")
    a = KVa(1); k.e(f"v_cvt_pk_bf16_f32 v{T+2}, v{a}, v{a+1}"); k.e(f"v_cvt_pk_bf16_f32 v{T+3}, v{a+2}, v{a+3}")
    k.e("v_lshrrev_b32 v9, 1, v14"); k.e("v_lshlrev_b32 v9, 5, v9"); k.e("v_add_u32 v9, v9, v8"); k.e("v_lshlrev_b32 v9, 4, v9")
    k.e("v_and_b32 v10, 1, v14"); k.e("v_lshlrev_b32 v10, 3, v10"); k.e("v_add_u32 v9, v9, v10")
    k.e(f"buffer_store_dwordx2 v[{T}:{T+1}], v9, s[96:99], s71 offen")
    gen1.k2_addr(k, 8, 12, 9)
    k.e("v_cmp_eq_u32 vcc, 0, v14"); k.e(f"v_mov_b32 v9, {OOB}"); k.e("v_cndmask_b32 v12, v9, v12, vcc")
    k.e(f"buffer_store_dwordx2 v[{T+2}:{T+3}], v12, s[96:99], s71 offen")
    k.e(f"v_dot2_f32_bf16 v11, v{T}, v{T}, 0"); k.e(f"v_dot2_f32_bf16 v11, v{T+1}, v{T+1}, v11")
    k.e(f"v_dot2_f32_bf16 v10, v{T+2}, v{T+2}, 0"); k.e(f"v_dot2_f32_bf16 v10, v{T+3}, v{T+3}, v10")
    k.e("v_cndmask_b32 v10, 0, v10, vcc"); k.e("v_add_f32 v11, v11, v10")
    allreduce16(k, "v_add_f32", 11, 10)
    for ror in (8, 4, 2, 1): k.e(f"v_max_f32_dpp v11, v11, v11 row_ror:{ror} row_mask:0xf bank_mask:0xf")
    k.e("s_lshl_b32 s46, s84, 2"); k.e(f"s_add_u32 s46, s46, {L.KMAX}"); k.e("v_mov_b32 v10, 0")
    k.e("buffer_store_dword v11, v10, s[96:99], s46 offen")
    k.e(f"{e}:")

def epi_q8(k, A, KVa, DQ):
    T = 148
    k.e(f"s_mov_b32 s70, {f32bits(QSCALE)}"); k.e(f"s_mov_b32 s71, {L.QF}")
    for r in range(2):
        k.e(f"v_lshrrev_b32 v7, 5, v{5+r}"); k.e("v_mul_u32_u24 v7, 1280, v7"); k.e(f"v_and_b32 v8, 31, v{5+r}")
        for c in range(5):
            a = A(r, c)
            for h in (0, 2): k.e(f"v_pk_mul_f32 v[{a+h}:{a+h+1}], v[{a+h}:{a+h+1}], s[70:71] op_sel:[0,0] op_sel_hi:[1,0]") if False else None
            for q in range(4): k.e(f"v_mul_f32 v{a+q}, s70, v{a+q}")
        for c in range(5):
            a = A(r, c); t = T + 2 * (c + 5 * r)
            k.e(f"v_cvt_pk_bf16_f32 v{t}, v{a}, v{a+1}"); k.e(f"v_cvt_pk_bf16_f32 v{t+1}, v{a+2}, v{a+3}")
            k.e(f"v_lshlrev_b32 v9, v{249+c}, v8"); k.e(f"v_add3_u32 v{180+c+5*r}, v9, v7, v{244+c}")
        for c in range(5):
            t = T + 2 * (c + 5 * r)
            k.e(f"buffer_store_dwordx2 v[{t}:{t+1}], v{180+c+5*r}, s[96:99], s71 offen")
    g = k.label("ng")
    k.e("s_or_b32 s46, s43, s45"); k.e("s_cmp_lg_u32 s46, 0"); k.e(f"s_cbranch_scc1 {g}")
    for r in range(2):
        allreduce16(k, "v_add_f32", DQ + r, 7)
        k.e(f"v_mul_f32 v{DQ+r}, {f32bits(-LOG2E)}, v{DQ+r}"); k.e(f"v_exp_f32 v{DQ+r}, v{DQ+r}"); k.e("s_nop 0")
        k.e(f"v_add_f32 v{DQ+r}, 1.0, v{DQ+r}"); k.e(f"v_rcp_f32 v{DQ+r}, v{DQ+r}")
        k.e(f"v_lshlrev_b32 v7, 2, v{5+r}"); k.e(f"s_mov_b32 s46, {L.G}")
        k.e(f"buffer_store_dword v{DQ+r}, v7, s[96:99], s46 offen")
    k.e(f"{g}:")
    e = k.label("nk")
    k.e("s_cmp_eq_u32 s79, 0"); k.e(f"s_cbranch_scc1 {e}")
    T = 200
    k.e("s_lshr_b32 s71, s84, 1"); k.e("s_mul_i32 s71, s71, 3072"); k.e(f"s_add_u32 s71, s71, {L.KVF}")
    k.e("v_and_b32 v8, 31, v5")
    a = KVa(0); k.e(f"v_cvt_pk_bf16_f32 v{T}, v{a}, v{a+1}"); k.e(f"v_cvt_pk_bf16_f32 v{T+1}, v{a+2}, v{a+3}")
    a = KVa(1); k.e(f"v_cvt_pk_bf16_f32 v{T+2}, v{a}, v{a+1}"); k.e(f"v_cvt_pk_bf16_f32 v{T+3}, v{a+2}, v{a+3}")
    k.e("v_lshrrev_b32 v9, 1, v14"); k.e("v_lshlrev_b32 v9, 5, v9"); k.e("v_add_u32 v9, v9, v8"); k.e("v_lshlrev_b32 v9, 4, v9")
    k.e("v_and_b32 v10, 1, v14"); k.e("v_lshlrev_b32 v10, 3, v10"); k.e("v_add_u32 v9, v9, v10")
    k.e(f"buffer_store_dwordx2 v[{T}:{T+1}], v9, s[96:99], s71 offen")
    gen1.k2_addr(k, 8, 12, 9)
    k.e("v_cmp_eq_u32 vcc, 0, v14"); k.e(f"v_mov_b32 v9, {OOB}"); k.e("v_cndmask_b32 v12, v9, v12, vcc")
    k.e(f"buffer_store_dwordx2 v[{T+2}:{T+3}], v12, s[96:99], s71 offen")
    k.e(f"v_dot2_f32_bf16 v11, v{T}, v{T}, 0"); k.e(f"v_dot2_f32_bf16 v11, v{T+1}, v{T+1}, v11")
    k.e(f"v_dot2_f32_bf16 v10, v{T+2}, v{T+2}, 0"); k.e(f"v_dot2_f32_bf16 v10, v{T+3}, v{T+3}, v10")
    k.e("v_cndmask_b32 v10, 0, v10, vcc"); k.e("v_add_f32 v11, v11, v10")
    allreduce16(k, "v_add_f32", 11, 10)
    for ror in (8, 4, 2, 1): k.e(f"v_max_f32_dpp v11, v11, v11 row_ror:{ror} row_mask:0xf bank_mask:0xf")
    k.e("s_lshl_b32 s46, s84, 2"); k.e(f"s_add_u32 s46, s46, {L.KMAX}"); k.e("v_mov_b32 v10, 0")
    k.e("buffer_store_dword v11, v10, s[96:99], s46 offen")
    k.e(f"{e}:")

def epi_h8(k, A, CSa, SXa, KVa, DQ):
    T = 148
    p2 = lambda x: f"v[{x}:{x+1}]"
    C1, C2, ONE = 196, 198, 200
    k.e(f"v_mov_b32 v{C1}, {f32bits(GELU_C1)}"); k.e(f"v_mov_b32 v{C1+1}, v{C1}")
    k.e(f"v_mov_b32 v{C2}, {f32bits(GELU_C2)}"); k.e(f"v_mov_b32 v{C2+1}, v{C2}")
    k.e(f"v_mov_b32 v{ONE}, 1.0"); k.e(f"v_mov_b32 v{ONE+1}, 1.0")
    k.e("s_lshr_b32 s85, s43, 1") if False else None
    k.e("s_lshr_b32 s70, s43, 1"); k.e("s_add_u32 s70, s70, 1"); k.e("s_and_b32 s46, s43, 1"); k.e("s_sub_u32 s47, 0, s70"); k.e("s_cmp_eq_u32 s46, 0"); k.e("s_cselect_b32 s70, s70, s47")
    k.e("s_lshl_b32 s88, s43, 1"); k.e("s_add_u32 s88, s88, s45")
    srd(k, 72, 4, L.HS, L.SZ_XF)
    for r in range(2):
        MN, RS = 202, 204
        allreduce16(k, "v_add_f32", DQ + r, 7)
        k.e(f"v_mul_f32 v{MN}, {f32bits(-1/640)}, v{SXa(r)}"); k.e(f"v_mul_f32 v{RS}, {f32bits(1/640)}, v{DQ+r}")
        k.e(f"v_fma_f32 v{RS}, -v{MN}, v{MN}, v{RS}"); k.e(f"v_add_f32 v{RS}, {f32bits(1e-5)}, v{RS}"); k.e(f"v_rsq_f32 v{RS}, v{RS}")
        k.e(f"v_mov_b32 v{MN+1}, v{MN}")
        k.e(f"v_add_u32 v11, s70, v{5+r}")
        k.e("v_lshrrev_b32 v12, 4, v11"); k.e(f"v_mul_u32_u24 v12, {20*1024}, v12")
        k.e("v_and_b32 v9, 15, v11"); k.e("v_lshlrev_b32 v10, 4, v14"); k.e("v_add_u32 v9, v9, v10"); k.e("v_lshlrev_b32 v9, 4, v9")
        k.e("v_add_u32 v12, v12, v9")
        k.e(f"v_mov_b32 v{RS+1}, v{RS}")
        k.e("v_cmp_gt_u32 vcc, 2048, v11"); k.e(f"v_mov_b32 v9, {OOB}"); k.e("v_cndmask_b32 v12, v9, v12, vcc")
        k.e("v_cmp_gt_u32 vcc, 32, v2"); k.e("v_cndmask_b32 v15, v9, v12, vcc")
        regs = [A(r, c) for c in range(5)]
        for c, a in enumerate(regs):
            for h in (0, 2): k.e(f"v_pk_fma_f32 {p2(a+h)}, {p2(MN)}, {p2(CSa(c)+h)}, {p2(a+h)}")
        for a in regs:
            for h in (0, 2): k.e(f"v_pk_mul_f32 {p2(a+h)}, {p2(a+h)}, {p2(RS)}")
        gen3.gelu_multi(k, regs, [206 + 4 * c for c in range(5)], C1, C2, ONE)
        PK = T + 12 * r
        for c, a in enumerate(regs):
            k.e(f"v_cvt_pk_bf16_f32 v{PK+2*c}, v{a}, v{a+1}"); k.e(f"v_cvt_pk_bf16_f32 v{PK+2*c+1}, v{a+2}, v{a+3}")
        store_t80(k, PK, 12, 15, 72, 88, 228 + 4 * r)
    e = k.label("nv")
    k.e("s_cmp_eq_u32 s79, 0"); k.e(f"s_cbranch_scc1 {e}")
    T = 180
    k.e("s_lshr_b32 s71, s84, 1"); k.e("s_mul_i32 s71, s71, 3072"); k.e("s_and_b32 s46, s84, 1"); k.e("s_lshl_b32 s46, s46, 10"); k.e("s_add_u32 s71, s71, s46")
    k.e(f"s_add_u32 s71, s71, {L.KVF + 1024}")
    k.e("v_and_b32 v9, 1, v14"); k.e("v_lshlrev_b32 v9, 5, v9"); k.e("v_add_u32 v9, v9, v13"); k.e("v_lshlrev_b32 v9, 4, v9")
    k.e("v_lshrrev_b32 v10, 1, v14"); k.e("v_lshlrev_b32 v10, 3, v10"); k.e("v_add_u32 v9, v9, v10")
    a = KVa(0); k.e(f"v_cvt_pk_bf16_f32 v{T}, v{a}, v{a+1}"); k.e(f"v_cvt_pk_bf16_f32 v{T+1}, v{a+2}, v{a+3}")
    k.e(f"buffer_store_dwordx2 v[{T}:{T+1}], v9, s[96:99], s71 offen")
    a = KVa(1); k.e(f"v_cvt_pk_bf16_f32 v{T+2}, v{a}, v{a+1}"); k.e(f"v_cvt_pk_bf16_f32 v{T+3}, v{a+2}, v{a+3}")
    k.e("v_cmp_gt_u32 vcc, 4, v13")
    k.e(f"v_cndmask_b32 v{T+2}, 0, v{T+2}, vcc"); k.e(f"v_cndmask_b32 v{T+3}, 0, v{T+3}, vcc")
    k.e("v_mov_b32 v10, 0x3f803f80")
    k.e("v_and_b32 v11, 11, v13"); k.e("v_cmp_eq_u32 vcc, 8, v11")
    k.e(f"v_cndmask_b32 v{T+2}, v{T+2}, v10, vcc"); k.e(f"v_cndmask_b32 v{T+3}, v{T+3}, v10, vcc")
    k.e("v_cmp_eq_u32 vcc, 9, v13"); k.e(f"v_cndmask_b32 v{T+2}, v{T+2}, v10, vcc")
    k.e("v_lshrrev_b32 v11, 2, v13"); k.e("v_cmp_ne_u32 vcc, 1, v11")
    k.e("v_add_u32 v9, 256, v9"); k.e(f"v_mov_b32 v10, {OOB}"); k.e("v_cndmask_b32 v9, v10, v9, vcc")
    k.e(f"buffer_store_dwordx2 v[{T+2}:{T+3}], v9, s[96:99], s71 offen")
    k.e(f"{e}:")


def assemble_text(ks):
    s = ""
    for (k, vg, nwg, lds, *rest) in ks:
        blk = rest[0] if rest else 256
        s += f"; @launch kernel={k.name} grid=({nwg},1,1) block=({blk},1,1) lds={lds}\n"
    s += '.amdgcn_target "amdgcn-amd-amdhsa--gfx950"\n.text\n'
    for (k, vg, nwg, lds, *rest) in ks: s += kernel_text(k, vg)
    s += "code_end:\n"
    s += TBL_TEXT
    s += '.section .rodata,"a"\n'
    for (k, vg, nwg, lds, *rest) in ks: s += descriptor(k.name, (vg + 7) // 8 * 8, 102)
    return s

def build_all():
    gen4.RAWX = True
    return [gen_k1(), gen4.gen_main()]

if __name__ == "__main__":
    PROF = "--prof" in sys.argv; gen3.PROF = PROF; gen4.PROF = PROF
    for a in sys.argv:
        if a.startswith("--abl="): ABL = a[6:]
    gen4.ADIAG = "--adiag" in sys.argv
    INNER = "--inner" in sys.argv
    if "--nopfk1" in sys.argv: PFK1 = 0
    if "--pfk3" in sys.argv: PFK1 = 3
    if "--nocodepf" in sys.argv: CODEPF = False
    if "--notlbpf" in sys.argv: TLBPF = False
    LSTAMP = "--lstamp" in sys.argv
    gen4.FINE = "--fine" in sys.argv
    gen4.NOB = "--nob" in sys.argv; gen4.NOA = "--noa" in sys.argv
    for a in sys.argv:
        if a.startswith("--pa="): gen4.PRIO_A = int(a[5:])
        if a.startswith("--pb="): gen4.PRIO_B = int(a[5:])
        if a.startswith("--pe="): gen4.PRIO_E = int(a[5:])
        if a.startswith("--pp="): gen4.PRIO_P2, gen4.PRIO_P3, gen4.PRIO_P4 = [int(c) for c in a[5:]]
    ks = build_all()
    open(sys.argv[1], "w").write(assemble_text(ks))
    for (k, vg, nwg, lds, *rest) in ks: print(k.name, "vgpr", vg, "wg", nwg, "lds", lds, "lines", len(k.lines))
```

```python
import sys
sys.path.insert(0, "work")
from asmfw import *
import layout as L
import korder as KO
import gen1, gen3
from gen1 import srd, ldptr, f32bits, KA, OOB, LOG2E, GELU_C1, GELU_C2
from gen3 import r4, r2, r16, allreduce16, decode_gj, store_t80, VStamps

ADIAG = False; RAWX = False; PROF = False; NOA = False; NOB = False; FINE = False; PFS = 0; PFALL = False
PRIO_A, PRIO_B, PRIO_E = 0, 0, 0
PRIO_P2, PRIO_P3, PRIO_P4 = 0, 0, 0
FL_X1, FL_H, FL_O = 0, 1024, 2048
CH, NB = 4, 4
CHB = CH * 3072
NCH = 64 // CH
SPIN_MAX = 400000

class VM:
    def __init__(self, k): self.k = k; self.q = []
    def issue(self, instr, tag): self.k.e(instr); self.q.append(tag)
    def wait(self, tag):
        idx = [i for i, t in enumerate(self.q) if t == tag]
        if not idx: return
        n = len(self.q) - 1 - idx[-1]
        self.k.e(f"s_waitcnt vmcnt({min(n, 63)})"); self.q = self.q[idx[-1] + 1:]
    def drained(self): self.q = []

def emit_publish(k, fl_base):
    lab = k.label("pub")
    k.e("s_waitcnt vmcnt(0)"); k.e("s_barrier")
    k.e("s_cmp_lg_u32 s3, 0"); k.e(f"s_cbranch_scc1 {lab}")
    k.e("s_lshl_b32 s46, s40, 3"); k.e("s_add_u32 s46, s46, s41"); k.e("s_lshl_b32 s46, s46, 2"); k.e(f"s_add_u32 s46, s46, {fl_base}")
    k.e("v_mov_b32 v4, 0"); k.e("v_mov_b32 v5, 1")
    k.e("s_mov_b64 s[34:35], exec"); k.e("s_mov_b64 exec, 1")
    k.e("buffer_store_dword v5, v4, s[28:31], s46 offen sc1")
    k.e("s_mov_b64 exec, s[34:35]")
    k.e(f"{lab}:")

def emit_wait(k, fl_base):
    lab = k.label("poll"); done = k.label("pdone")
    k.e("s_lshl_b32 s46, s40, 5"); k.e(f"s_add_u32 s46, s46, {fl_base}")
    k.e("v_and_b32 v4, 7, v2"); k.e("v_lshlrev_b32 v4, 2, v4")
    k.e(f"s_mov_b32 s47, {SPIN_MAX}")
    k.e(f"{lab}:")
    k.e("buffer_load_dword v5, v4, s[28:31], s46 offen sc1")
    k.e("s_waitcnt vmcnt(0)")
    k.e("v_cmp_ne_u32 vcc, 1, v5")
    k.e("s_cmp_eq_u64 vcc, 0")
    k.e(f"s_cbranch_scc1 {done}")
    k.e("s_sleep 1")
    k.e("s_sub_u32 s47, s47, 1"); k.e("s_cmp_lg_u32 s47, 0"); k.e(f"s_cbranch_scc1 {lab}")
    k.e(f"{done}:")

def emit_attn(k, st):
    name = k.name
    Q1 = [16, 24]; Q2 = [20, 28]; O = [32, 48]; Sx = [64, 80]; P = [96, 104]
    K1 = [112, 120]; K2r = [116, 124]; V0 = [128, 136]; V1 = [132, 140]
    vKa, vK2a = 5, 6
    MF = "v_mfma_f32_32x32x16_bf16"; MF8 = "v_mfma_f32_32x32x8_bf16"
    decode_gj(k, 0)
    if PRIO_A: k.e(f"s_setprio {PRIO_A}")
    k.e("s_and_b32 s42, s3, 1"); k.e("s_lshr_b32 s43, s3, 1")
    k.e("v_and_b32 v7, 31, v2"); k.e("v_lshlrev_b32 v8, 3, v7")
    k.e("s_lshl_b32 s46, s40, 6"); k.e("s_lshl_b32 s47, s43, 5"); k.e("s_add_u32 s46, s46, s47")
    k.e("v_add_u32 v9, s46, v7"); k.e("v_lshlrev_b32 v10, 2, v9")
    k.e("v_lshlrev_b32 v11, 3, v2")
    k.e("s_mul_i32 s44, s3, 3072")
    k.e("s_waitcnt lgkmcnt(0)")
    srd(k, 12, 4, L.QF, L.SZ_QF); srd(k, 8, 4, L.KVF, L.SZ_KVF); srd(k, 16, 4, L.KMAX, 512)
    srd(k, 20, 4, L.G, 8192); srd(k, 24, 4, L.OF, L.SZ_XF); srd(k, 28, 4, L.FLAGS, 4096)
    k.e("s_lshl_b32 s46, s41, 2"); k.e("s_lshl_b32 s47, s42, 1"); k.e("s_add_u32 s46, s46, s47"); k.e("s_lshl_b32 s46, s46, 6")
    k.e("s_lshl_b32 s47, s40, 1"); k.e("s_add_u32 s46, s46, s47"); k.e("s_add_u32 s46, s46, s43"); k.e("s_mul_i32 s46, s46, 1280")
    for qb in range(2):
        k.e(f"buffer_load_dwordx4 {r4(Q1[qb])}, v3, s[12:15], s46 offen")
        k.e(f"buffer_load_dwordx2 {r2(Q2[qb])}, v8, s[12:15], s46 offen offset:1024")
        if qb == 0: k.e(f"s_add_u32 s46, s46, {64*1280}")
    k.e("buffer_load_dwordx2 v[64:65], v11, s[16:19], 0 offen")
    k.e("buffer_load_dword v12, v10, s[20:23], 0 offen")
    def dma_all(chunk):
        k.e(f"s_add_u32 s45, s44, {chunk*CHB}"); k.e(f"s_add_u32 m0, s44, {chunk*CHB}"); k.e("s_nop 0")
        for i in range(3): k.e(f"buffer_load_dwordx4 v3, s[8:11], s45 offen offset:{i*1024} lds")
    for c in range(NB - 1): dma_all(c)
    st.stamp()
    for qb in range(2):
        for i in range(16): k.e(f"v_mov_b32 v{O[qb]+i}, 0")
    k.e("v_lshrrev_b32 v14, 3, v7"); k.e("v_lshlrev_b32 v15, 9, v14"); k.e("v_add_u32 v15, 1344, v15")
    k.e("v_and_b32 v14, 7, v7"); k.e("v_lshlrev_b32 v14, 3, v14"); k.e("v_add_u32 v15, v15, v14")
    k.e("v_cmp_gt_u32 vcc, 32, v2"); k.e("v_mov_b32 v14, 1424"); k.e("v_cndmask_b32 v15, v14, v15, vcc")
    k.e(f"v_mov_b32 v{vKa}, v3"); k.e(f"v_mov_b32 v{vK2a}, v15")
    for j in range(4, 8): k.e(f"v_mov_b32 v{P[1]+j}, 0")
    for j in range(12, 16): k.e(f"v_mov_b32 v{Sx[1]+j}, 0")
    for j in range(4): k.e(f"v_mov_b32 v{V1[1]+j}, 0")
    k.e(f"s_waitcnt vmcnt({3*(NB-1)})")
    st.stamp()
    k.e("v_max_f32 v64, v64, v65")
    for ror in (8, 4, 2, 1):
        k.e(f"v_max_f32_dpp v64, v64, v64 row_ror:{ror} row_mask:0xf bank_mask:0xf")
    allreduce16(k, "v_max_f32", 64, 65)
    for qb in range(2):
        t = 66 + 4 * qb
        k.e(f"v_cndmask_b32 v{t+2}, 0, v{Q2[qb]}, vcc"); k.e(f"v_cndmask_b32 v{t+3}, 0, v{Q2[qb]+1}, vcc")
        k.e(f"v_dot2_f32_bf16 v{t}, v{Q1[qb]}, v{Q1[qb]}, 0")
        for j in (1, 2, 3): k.e(f"v_dot2_f32_bf16 v{t}, v{Q1[qb]+j}, v{Q1[qb]+j}, v{t}")
        for j in (2, 3): k.e(f"v_dot2_f32_bf16 v{t}, v{t+j}, v{t+j}, v{t}")
    for qb in range(2):
        t = 66 + 4 * qb
        k.e(f"v_mov_b32 v{t+1}, v{t}"); k.e(f"v_permlane32_swap_b32 v{t}, v{t+1}"); k.e(f"v_add_f32 v{t}, v{t}, v{t+1}")
        k.e(f"v_mul_f32 v{t}, v{t}, v64"); k.e(f"v_sqrt_f32 v{t}, v{t}")
    for qb in range(2):
        t = 66 + 4 * qb
        k.e(f"v_mul_f32 v{t}, {f32bits(-1.01)}, v{t}")
        k.e(f"v_and_b32 v{t+1}, 0xffff0000, v{t}"); k.e(f"v_sub_f32 v{t+2}, v{t}, v{t+1}")
        k.e(f"v_cvt_pk_bf16_f32 v{t+2}, v{t+1}, v{t+2}")
        k.e(f"v_cndmask_b32 v{Q2[qb]}, v{t+2}, v{Q2[qb]}, vcc"); k.e(f"v_cndmask_b32 v{Q2[qb]+1}, 0, v{Q2[qb]+1}, vcc")
    k.e(f"s_waitcnt vmcnt({3*(NB-2)})"); k.e("s_barrier")
    def rd(kind, tile, b):
        o = tile * 3072
        if kind == 0: return f"ds_read_b128 {r4(K1[b])}, v{vKa} offset:{o}"
        if kind == 1: return f"ds_read_b64 {r2(K2r[b])}, v{vK2a} offset:{o}"
        if kind == 2: return f"ds_read_b128 {r4(V0[b])}, v{vKa} offset:{o+1024}"
        return f"ds_read_b128 {r4(V1[b])}, v{vKa} offset:{o+2048}"
    for kind in range(4): k.e(rd(kind, 0, 0))
    k.e("s_waitcnt lgkmcnt(2)")
    k.e(f"{MF} {r16(Sx[0])}, {r4(K1[0])}, {r4(Q1[0])}, 0")
    k.e(f"{MF8} {r16(Sx[0])}, {r2(K2r[0])}, {r2(Q2[0])}, {r16(Sx[0])}")
    k.e("s_mov_b32 s52, 0"); k.e("s_mov_b32 s53, 0")
    k.e(f"s_add_u32 s54, s44, {(NB-1)*CHB}"); k.e(f"s_add_u32 s56, s44, {(NB-1)*CHB}")
    k.e("s_nop 7"); k.e("s_nop 3")
    st.stamp()
    if ADIAG:
        for r in (70, 71, 72): k.e(f"s_mov_b32 s{r}, 0")
    loop = f"{name}_aloop"
    k.e(f"{loop}:")
    def E(i, S): return f"v_exp_f32 v{S+i}, v{S+i}"
    def C(j, S, Pq): return f"v_cvt_pk_bf16_f32 v{Pq+j}, v{S+2*j}, v{S+2*j+1}"
    for T in range(CH):
        b = T % 2; nb = 1 - b
        for qb in range(2):
            S = Sx[qb]; N = Sx[1 - qb]; Pq = P[qb]
            pq_prev = P[1 - qb]; o_prev = O[1 - qb]
            v1_prev = V1[b] if qb == 1 else V1[nb]
            kb = b if qb == 0 else nb
            nq = 1 - qb
            Cp = lambda j: C(j, N, pq_prev)
            seq = [E(0, S), E(1, S), Cp(6), E(2, S), E(3, S), Cp(7),
                   f"{MF} {r16(N)}, {r4(K1[kb])}, {r4(Q1[nq])}, 0",
                   E(4, S), E(5, S), C(0, S, Pq), E(6, S), E(7, S), C(1, S, Pq),
                   f"{MF8} {r16(N)}, {r2(K2r[kb])}, {r2(Q2[nq])}, {r16(N)}",
                   E(8, S), E(9, S), C(2, S, Pq), E(10, S), E(11, S), C(3, S, Pq),
                   f"{MF} {r16(o_prev)}, {r4(v1_prev)}, {r4(pq_prev+4)}, {r16(o_prev)}",
                   E(12, S), E(13, S), C(4, S, Pq), E(14, S), E(15, S), C(5, S, Pq),
                   f"{MF} {r16(O[qb])}, {r4(V0[b])}, {r4(Pq)}, {r16(O[qb])}"]
            side = {}
            def add(i, s): side.setdefault(i, []).append(s)
            if qb == 0:
                nt = T + 1
                if T == CH - 1:
                    add(4, f"s_add_u32 s53, s53, {CHB}"); add(4, f"s_cmp_eq_u32 s53, {NB*CHB}"); add(4, "s_cselect_b32 s53, 0, s53")
                    add(5, f"v_add_u32 v{vKa}, s53, v3"); add(5, f"v_add_u32 v{vK2a}, s53, v15")
                    if ADIAG: add(5, "s_memtime s[60:61]")
                    add(5, f"s_waitcnt vmcnt({3*(NB-2)}) lgkmcnt(0)")
                    if ADIAG: add(5, "s_memtime s[62:63]")
                    add(5, "s_barrier")
                    if ADIAG:
                        for x in ("s_memtime s[64:65]", "s_waitcnt lgkmcnt(0)", "s_sub_u32 s62, s62, s60", "s_add_u32 s70, s70, s62", "s_sub_u32 s64, s64, s60", "s_add_u32 s71, s71, s64"): add(5, x)
                    nt = 0
                else:
                    add(5, "s_waitcnt lgkmcnt(0)")
                add(6, rd(0, nt, nb)); add(13, rd(1, nt, nb)); add(20, rd(3, nt, nb)); add(27, rd(2, nt, nb))
            else:
                add(5, "s_waitcnt lgkmcnt(2)")
                if T < 3:
                    if T == 0:
                        add(6, f"s_cmp_lt_u32 s54, {NCH*CHB}"); add(6, f"s_cselect_b32 s55, s54, {OOB}"); add(6, "s_mov_b32 m0, s56")
                    if ADIAG: add(13, "s_memtime s[66:67]")
                    add(13, f"buffer_load_dwordx4 v3, s[8:11], s55 offen offset:{T*1024} lds")
                    if ADIAG:
                        for x in ("s_memtime s[68:69]", "s_waitcnt lgkmcnt(0)", "s_sub_u32 s68, s68, s66", "s_add_u32 s72, s72, s68"): add(13, x)
                    if T == 2:
                        add(20, f"s_add_u32 s54, s54, {CHB}"); add(20, f"s_add_u32 s56, s56, {CHB}")
                        add(27, f"s_sub_u32 s57, s56, s44"); add(27, f"s_cmp_eq_u32 s57, {NB*CHB}"); add(27, "s_cselect_b32 s56, s44, s56")
            for i, ins in enumerate(seq):
                k.e(ins)
                for s in side.get(i, []): k.e(s)
    k.e("s_add_u32 s52, s52, 1"); k.e(f"s_cmp_lt_u32 s52, {NCH}")
    k.e(f"s_cbranch_scc1 {loop}")
    st.stamp()
    k.e(C(6, Sx[1], P[1])); k.e(C(7, Sx[1], P[1]))
    k.e("s_nop 1")
    k.e(f"{MF} {r16(O[1])}, {r4(V1[(CH-1)%2])}, {r4(P[1]+4)}, {r16(O[1])}")
    k.e("s_nop 7"); k.e("s_nop 3")
    k.e(f"s_mov_b32 s58, {f32bits(2.0 ** -80)}")
    k.e(f"v_cmp_nle_f32 vcc, s58, v{O[0]+12}"); k.e(f"v_cmp_nle_f32 s[60:61], s58, v{O[1]+12}")
    k.e("s_or_b64 vcc, vcc, s[60:61]"); k.e("s_cmp_eq_u64 vcc, 0")
    k.e(f"s_cbranch_scc1 {name}_fast")
    emit_attn_slow(k, Q1, Q2, O, Sx, P, K1, K2r, V0, V1)
    k.e(f"{name}_fast:")
    k.e("v_lshrrev_b32 v18, 4, v9"); k.e(f"v_mul_u32_u24 v18, {20*1024}, v18")
    k.e("v_and_b32 v19, 15, v9"); k.e("v_lshlrev_b32 v19, 4, v19"); k.e("v_add_u32 v18, v18, v19")
    k.e("v_lshrrev_b32 v14, 5, v2"); k.e("v_lshlrev_b32 v19, 8, v14"); k.e("v_add_u32 v19, v18, v19")
    k.e("s_lshl_b32 s46, s41, 1"); k.e("s_add_u32 s46, s46, s42"); k.e("s_lshl_b32 s46, s46, 10")
    k.e("s_lshr_b32 s47, s41, 1"); k.e("s_add_u32 s47, s47, 16"); k.e("s_lshl_b32 s47, s47, 10")
    k.e("s_and_b32 s48, s41, 1"); k.e("s_lshl_b32 s48, s48, 1"); k.e("s_add_u32 s48, s48, s42"); k.e("s_lshl_b32 s48, s48, 8"); k.e("s_add_u32 s47, s47, s48")
    k.e("v_cmp_eq_u32 vcc, 0, v14"); k.e(f"v_mov_b32 v20, {OOB}"); k.e("v_cndmask_b32 v18, v20, v18, vcc")
    k.e("s_nop 4")
    for qb in range(2): k.e(f"v_rcp_f32 v{16+qb}, v{O[qb]+12}")
    for qb in range(2): k.e(f"v_mul_f32 v{16+qb}, v{16+qb}, v12")
    for qb in range(2):
        o = O[qb]
        for q in range(12): k.e(f"v_mul_f32 v{o+q}, v{16+qb}, v{o+q}")
        for q in range(4): k.e(f"v_cvt_pk_bf16_f32 v{64+4*qb+q}, v{o+2*q}, v{o+2*q+1}")
        for q in range(2): k.e(f"v_cvt_pk_bf16_f32 v{72+2*qb+q}, v{o+8+2*q}, v{o+9+2*q}")
        k.e(f"buffer_store_dwordx4 {r4(64+4*qb)}, v19, s[24:27], s46 offen offset:{qb*512} sc1")
    k.e(f"buffer_store_dwordx4 {r4(72)}, v18, s[24:27], s47 offen sc1")
    emit_publish(k, FL_O)
    st.stamp(); st.stamp(real=True)
    if ADIAG:
        for i, r in enumerate((70, 71, 72)):
            k.e(f"v_mov_b32 v255, s{r}"); k.e(f"global_store_dword v254, v255, s[96:97] offset:{4*(10+i)}")

def emit_attn_slow(k, Q1, Q2, O, Sx, P, K1, K2r, V0, V1):
    name = k.name
    MF = "v_mfma_f32_32x32x16_bf16"; MF8 = "v_mfma_f32_32x32x8_bf16"
    k.e("s_waitcnt vmcnt(0) lgkmcnt(0)")
    k.e("v_cmp_gt_u32 vcc, 32, v2")
    Z = [144, 146]; M = [148, 149]
    for qb in range(2):
        k.e(f"v_cndmask_b32 v{Z[qb]}, 0, v{Q2[qb]}, vcc"); k.e(f"v_cndmask_b32 v{Z[qb]+1}, 0, v{Q2[qb]+1}, vcc")
        k.e(f"v_mov_b32 v{M[qb]}, 0xff800000")
    def loads(with_v):
        k.e(f"buffer_load_dwordx4 {r4(K1[0])}, v3, s[8:11], s59 offen")
        k.e(f"buffer_load_dwordx2 {r2(K2r[0])}, v15, s[8:11], s59 offen")
        if with_v:
            k.e(f"buffer_load_dwordx4 {r4(V0[0])}, v3, s[8:11], s59 offen offset:1024")
            k.e(f"buffer_load_dwordx4 {r4(V1[0])}, v3, s[8:11], s59 offen offset:2048")
        k.e("s_waitcnt vmcnt(0)")
    k.e("s_mov_b32 s59, 0")
    l1 = f"{name}_slow1"
    k.e(f"{l1}:")
    loads(False)
    for qb in range(2):
        k.e(f"{MF} {r16(Sx[qb])}, {r4(K1[0])}, {r4(Q1[qb])}, 0")
        k.e(f"{MF8} {r16(Sx[qb])}, {r2(K2r[0])}, {r2(Z[qb])}, {r16(Sx[qb])}")
    k.e("s_nop 7"); k.e("s_nop 7")
    for qb in range(2):
        for i in range(0, 16, 2): k.e(f"v_max3_f32 v{M[qb]}, v{M[qb]}, v{Sx[qb]+i}, v{Sx[qb]+i+1}")
    k.e("s_add_u32 s59, s59, 3072"); k.e(f"s_cmp_lt_u32 s59, {64*3072}"); k.e(f"s_cbranch_scc1 {l1}")
    for qb in range(2):
        t = 150
        k.e(f"v_mov_b32 v{t}, v{M[qb]}"); k.e(f"v_permlane32_swap_b32 v{M[qb]}, v{t}"); k.e(f"v_max_f32 v{M[qb]}, v{M[qb]}, v{t}")
        k.e(f"v_sub_f32 v{t}, 0, v{M[qb]}")
        k.e(f"v_and_b32 v{t+1}, 0xffff0000, v{t}"); k.e(f"v_sub_f32 v{t+2}, v{t}, v{t+1}")
        k.e(f"v_cvt_pk_bf16_f32 v{t+2}, v{t+1}, v{t+2}")
        k.e(f"v_cndmask_b32 v{Q2[qb]}, v{t+2}, v{Q2[qb]}, vcc")
        for i in range(16): k.e(f"v_mov_b32 v{O[qb]+i}, 0")
    k.e("s_mov_b32 s59, 0")
    l2 = f"{name}_slow2"
    k.e(f"{l2}:")
    loads(True)
    for qb in range(2):
        k.e(f"{MF} {r16(Sx[qb])}, {r4(K1[0])}, {r4(Q1[qb])}, 0")
        k.e(f"{MF8} {r16(Sx[qb])}, {r2(K2r[0])}, {r2(Q2[qb])}, {r16(Sx[qb])}")
    k.e("s_nop 7"); k.e("s_nop 7")
    for qb in range(2):
        for i in range(16): k.e(f"v_exp_f32 v{Sx[qb]+i}, v{Sx[qb]+i}")
        k.e("s_nop 1")
        for j in range(8): k.e(f"v_cvt_pk_bf16_f32 v{P[qb]+j}, v{Sx[qb]+2*j}, v{Sx[qb]+2*j+1}")
    k.e("s_nop 1")
    for qb in range(2):
        k.e(f"{MF} {r16(O[qb])}, {r4(V0[0])}, {r4(P[qb])}, {r16(O[qb])}")
        k.e(f"{MF} {r16(O[qb])}, {r4(V1[0])}, {r4(P[qb]+4)}, {r16(O[qb])}")
    k.e("s_nop 7"); k.e("s_nop 7")
    k.e("s_add_u32 s59, s59, 3072"); k.e(f"s_cmp_lt_u32 s59, {64*3072}"); k.e(f"s_cbranch_scc1 {l2}")

ACC, SET0, XK, OMG = 16, 96, 240, 250
A5 = lambda r, c: ACC + (r * 5 + c) * 4

def ksplit_phase(k, vm, xoff, xsize, nksx, woff, wsize, nks, sc1, wait, first_zero, extra_after_issue=None, NSET=4, prio=None):
    PRIO_B = globals()['PRIO_B'] if prio is None else prio
    nl = 9
    XS = lambda s, r: SET0 + s * 36 + r * 4
    WS = lambda s, c: SET0 + s * 36 + 16 + c * 4
    T = (nks + 3) // 4
    srd(k, 52, 4, woff, wsize)
    k.e(f"s_mul_i32 s46, s45, {nks*1024}"); k.e("v_add_u32 v10, s46, v3")
    for c in range(1, 5): k.e(f"v_add_u32 v{10+c}, {c*nks*1024}, v10")
    k.e("s_lshl_b32 s58, s3, 10")
    def soff(i, sreg):
        if 4 * i + 3 >= nks:
            k.e(f"s_add_u32 s{sreg}, s3, {4*i}")
            k.e(f"s_lshl_b32 s47, s{sreg}, 10"); k.e(f"s_cmp_lt_u32 s{sreg}, {nks}"); k.e(f"s_cselect_b32 s{sreg}, s47, {OOB}")
        else:
            k.e(f"s_add_u32 s{sreg}, s58, {4*i*1024}")
    ldW = lambda i, c: vm.issue(f"buffer_load_dwordx4 {r4(WS(i%NSET,c))}, v{10+c}, s[52:55], s59 offen", ("W", i))
    sc = " sc1" if sc1 else ""
    ldX = lambda i, r: vm.issue(f"buffer_load_dwordx4 {r4(XS(i%NSET,r))}, v{6+r}, s[48:51], s59 offen{sc}", ("X", i))
    npre = min(NSET, T)
    srd(k, 48, 4, xoff, xsize)
    for r in range(4):
        k.e(f"s_add_u32 s46, s3, {r}"); k.e("s_and_b32 s46, s46, 3"); k.e("s_lshl_b32 s47, s40, 2"); k.e("s_add_u32 s46, s46, s47")
        k.e(f"s_mul_i32 s46, s46, {nksx*1024}"); k.e(f"v_add_u32 v{6+r}, s46, v3")
    if wait:
        for i in range(npre):
            soff(i, 59)
            for c in range(5): ldW(i, c)
        wait(k); vm.drained()
        for i in range(npre):
            soff(i, 59)
            for r in range(4): ldX(i, r)
    else:
        for i in range(npre):
            soff(i, 59)
            for c in range(5): ldW(i, c)
            for r in range(4): ldX(i, r)
    if extra_after_issue: extra_after_issue()
    if PRIO_B: k.e(f"s_setprio {PRIO_B}")
    for i in range(T):
        vm.wait(("X", i))
        s = i % NSET; n = i + NSET
        if n < T: soff(n, 59)
        for c in range(5):
            for r in range(4):
                cc = "0" if (i == 0 and first_zero) else r4(A5(r, c))
                k.e(f"v_mfma_f32_16x16x32_bf16 {r4(A5(r,c))}, {r4(WS(s,c))}, {r4(XS(s,r))}, {cc}")
            if n < T: ldW(n, c)
        if n < T:
            for r in range(4): ldX(n, r)
    k.e(f"s_setprio {PRIO_E}")

def l2_prefetch(k, vm, poff, psize, stride):
    n = psize // stride; per_wg = (n + 31) // 32; per_wave = (per_wg + 3) // 4; n_i = (per_wave + 63) // 64
    srd(k, 88, 4, poff, psize)
    k.e("s_sub_u32 s46, s2, 256"); k.e("s_lshr_b32 s46, s46, 3"); k.e("s_lshl_b32 s46, s46, 2"); k.e("s_add_u32 s46, s46, s3")
    k.e(f"s_mul_i32 s46, s46, {per_wave*stride}")
    k.e(f"v_mul_u32_u24 v4, {stride}, v2")
    for i in range(n_i):
        if (i + 1) * 64 > per_wave:
            k.e(f"v_cmp_gt_u32 vcc, {per_wave - i*64}, v2"); k.e(f"v_mov_b32 v5, {OOB}"); k.e("v_cndmask_b32 v4, v5, v4, vcc")
        vm.issue(f"buffer_load_dword v251, v4, s[88:91], s46 offen", "pf")
        if i + 1 < n_i: k.e(f"s_add_u32 s46, s46, {64*stride}")

def reduce4(k, pre=None):
    blk = 5 * 1024
    for j in range(1, 4):
        k.e(f"s_add_u32 s46, s3, {j}"); k.e("s_and_b32 s46, s46, 3")
        k.e(f"s_mul_i32 s46, s46, {3*blk}"); k.e(f"s_add_u32 s46, s46, {(j-1)*blk}")
        k.e("v_add_u32 v4, s46, v3")
        for c in range(5): k.e(f"ds_write_b128 v4, {r4(A5(j,c))} offset:{c*1024}")
    if pre: pre()
    k.e(f"s_mul_i32 s46, s3, {3*blk}"); k.e("v_add_u32 v5, s46, v3")
    k.e("s_waitcnt lgkmcnt(0)"); k.e("s_barrier")
    for j in range(1, 4):
        for c in range(5): k.e(f"ds_read_b128 {r4(A5(j,c))}, v5 offset:{((j-1)*5 + c)*1024}")
    for j in range(1, 4):
        k.e(f"s_waitcnt lgkmcnt({(3-j)*5})")
        for c in range(5):
            a, t = A5(0, c), A5(j, c)
            k.e(f"v_pk_add_f32 v[{a}:{a+1}], v[{a}:{a+1}], v[{t}:{t+1}]"); k.e(f"v_pk_add_f32 v[{a+2}:{a+3}], v[{a+2}:{a+3}], v[{t+2}:{t+3}]")

def p3_params(k):
    k.e("s_sub_u32 s46, s41, 6"); k.e("s_max_i32 s95, s46, 0")
    k.e("s_mul_i32 s92, s41, 14"); k.e("s_lshl_b32 s46, s95, 1"); k.e("s_sub_u32 s92, s92, s46")
    k.e("s_lshl_b32 s46, s3, 2"); k.e("s_cmp_eq_u32 s3, 3"); k.e("s_cselect_b32 s46, 11, s46")
    k.e("s_mul_i32 s47, s3, 3"); k.e("s_cmp_ge_u32 s41, 6"); k.e("s_cselect_b32 s46, s47, s46")
    k.e("s_add_u32 s45, s92, s46")
    k.e("s_cmp_lt_u32 s3, 2"); k.e("s_cselect_b32 s93, 4, 3"); k.e("s_cmp_ge_u32 s41, 6"); k.e("s_cselect_b32 s93, 3, s93")

def emit_bchain(k, st):
    decode_gj(k, 256)
    k.e("s_waitcnt lgkmcnt(0)")
    srd(k, 28, 4, L.FLAGS, 4096)
    k.e("v_cmp_gt_u32 s[38:39], 32, v2")
    vm = VM(k)
    k.e("s_mul_i32 s45, s41, 5")
    k.e("s_lshl_b32 s70, s40, 2"); k.e("s_add_u32 s70, s70, s3")
    def extra2():
        srd(k, 84, 4, L.G, 8192)
        k.e("s_lshl_b32 s47, s70, 4"); k.e("v_and_b32 v5, 15, v2"); k.e("v_add_u32 v5, s47, v5"); k.e("v_lshlrev_b32 v4, 2, v5")
        if RAWX:
            srd(k, 76, 32, 0, 2048 * 1280)
            k.e("v_mul_u32_u24 v5, 1280, v5"); k.e("v_lshrrev_b32 v15, 4, v2"); k.e("v_lshlrev_b32 v15, 3, v15"); k.e("v_add_u32 v5, v5, v15")
            k.e("s_mul_i32 s89, s41, 160")
            for c in range(5): vm.issue(f"buffer_load_dwordx2 v[{XK+2*c}:{XK+2*c+1}], v5, s[76:79], s89 offen offset:{c*32}", "xr")
        else:
            srd(k, 76, 4, L.XF, L.SZ_XF)
            for c in range(5):
                k.e(f"s_add_u32 s88, s45, {c}"); gen1.f16_soff(k, 89, 70, 88, 20)
                vm.issue(f"buffer_load_dwordx2 v[{XK+2*c}:{XK+2*c+1}], v3, s[76:79], s89 offen", "xr")
        vm.issue(f"buffer_load_dword v{OMG}, v4, s[84:87], 0 offen", "xr")
        if RAWX:
            p3_params(k)
            srd(k, 80, 4, L.CS3P, 20 * 1728 * 4)
            k.e("v_lshlrev_b32 v4, 2, v2"); k.e("s_lshl_b32 s89, s45, 6")
            for ks in range(20):
                vm.issue(f"buffer_load_dword v{220+ks}, v4, s[80:83], s89 offen", "cp")
                k.e(f"s_add_u32 s89, s89, {1728*4}")
            k.e("s_mul_i32 s45, s41, 5")
        if PFS:
            l2_prefetch(k, vm, L.W3P, L.SZ_W3, PFS)
            if PFALL: l2_prefetch(k, vm, L.W4P, L.SZ_W4, PFS)
    ksplit_phase(k, vm, L.HS, L.SZ_XF, 20, L.W2P, L.SZ_WDD, 20, False, None, True, extra2, NSET=3 if RAWX else 4, prio=PRIO_P2)
    st.stamp()
    T = SET0
    def pre2():
        srd(k, 72, 4, L.X1F, L.SZ_XF); srd(k, 80, 4, L.X1ST, 2048 * 64)
        k.e(f"s_mul_i32 s71, s70, {20*1024}"); k.e(f"v_add_u32 v12, s71, v3")
        k.e(f"v_mov_b32 v13, {OOB}"); k.e("v_cndmask_b32 v13, v13, v12, s[38:39]")
        vm.wait("xr")
        if RAWX:
            vm.wait("cp")
            for q in range(1, 10): k.e(f"v_add_f32 v220, v220, v{220+q}"); k.e(f"v_add_f32 v230, v230, v{230+q}")
            k.e("v_add_f32 v251, v220, v230")
        k.e(f"v_sub_f32 v{OMG}, 1.0, v{OMG}")
        for c in range(5):
            xr = XK + 2 * c; u = T + 24 + 4 * c
            k.e(f"v_lshlrev_b32 v{u}, 16, v{xr}"); k.e(f"v_and_b32 v{u+1}, 0xffff0000, v{xr}")
            k.e(f"v_lshlrev_b32 v{u+2}, 16, v{xr+1}"); k.e(f"v_and_b32 v{u+3}, 0xffff0000, v{xr+1}")
        k.e("s_lshl_b32 s47, s70, 4"); k.e("v_and_b32 v14, 15, v2"); k.e("v_add_u32 v14, s47, v14")
        k.e("v_lshlrev_b32 v14, 6, v14"); k.e("s_lshl_b32 s89, s41, 3")
        k.e("v_cmp_gt_u32 vcc, 16, v2"); k.e(f"v_mov_b32 v9, {OOB}"); k.e("v_cndmask_b32 v14, v9, v14, vcc")
    reduce4(k, pre2)
    if FINE: st.stamp()
    for c in range(5):
        a = A5(0, c); u = T + 24 + 4 * c
        k.e(f"v_pk_add_f32 v[{a}:{a+1}], v[{a}:{a+1}], v[{u}:{u+1}]"); k.e(f"v_pk_add_f32 v[{a+2}:{a+3}], v[{a+2}:{a+3}], v[{u+2}:{u+3}]")
    for c in range(5):
        a = A5(0, c)
        k.e(f"v_cvt_pk_bf16_f32 v{XK+2*c}, v{a}, v{a+1}"); k.e(f"v_cvt_pk_bf16_f32 v{XK+2*c+1}, v{a+2}, v{a+3}")
    store_t80(k, XK, 12, 13, 72, 41, T, " sc1")
    k.e("s_mov_b32 s71, 0x3f803f80")
    k.e(f"v_dot2_f32_bf16 v6, v{XK}, s71, 0"); k.e(f"v_dot2_f32_bf16 v7, v{XK}, v{XK}, 0")
    for q in range(1, 10):
        k.e(f"v_dot2_f32_bf16 v6, v{XK+q}, s71, v6"); k.e(f"v_dot2_f32_bf16 v7, v{XK+q}, v{XK+q}, v7")
    allreduce16(k, "v_add_f32", 6, 8); allreduce16(k, "v_add_f32", 7, 9)
    k.e("buffer_store_dwordx2 v[6:7], v14, s[80:83], s89 offen sc1")
    k.e("s_setprio 0")
    p3_params(k)
    WS3 = lambda s, c: 96 + s * 16 + c * 4
    XB = lambda s, r: 192 + s * 16 + r * 4
    CN = lambda r: 224 + 4 * r
    A3 = lambda r, c: ACC + (r * 4 + c) * 4
    NS3 = 6
    srd(k, 52, 4, L.W3P, L.SZ_W3)
    k.e(f"s_mul_i32 s46, s45, {20*1024}"); k.e("v_add_u32 v10, s46, v3")
    for c in range(1, 4): k.e(f"v_add_u32 v{10+c}, {c*20*1024}, v10")
    k.e("s_cmp_eq_u32 s93, 4"); k.e("s_cselect_b64 vcc, -1, 0")
    k.e(f"v_mov_b32 v9, {OOB}"); k.e("v_cndmask_b32 v13, v9, v13, vcc")
    if FINE: st.stamp()
    emit_publish(k, FL_X1)
    if FINE: st.stamp()
    vm.drained()
    ldW3 = lambda i, c: vm.issue(f"buffer_load_dwordx4 {r4(WS3(i%NS3,c))}, v{10+c}, s[52:55], s59 offen", ("W", i))
    for i in range(NS3):
        k.e(f"s_mov_b32 s59, {i*1024}")
        for c in range(4): ldW3(i, c)
    if not FINE: st.stamp()
    emit_wait(k, FL_X1); vm.drained()
    st.stamp()
    srd(k, 48, 4, L.X1F, L.SZ_XF); srd(k, 76, 4, L.X1ST, 2048 * 64); srd(k, 84, 4, L.G, 8192)
    k.e(f"s_mul_i32 s59, s70, {20*1024}")
    for ks in range(20):
        if ks % 4 == 0 and ks: k.e(f"s_add_u32 s59, s59, 4096")
        vm.issue(f"buffer_load_dwordx4 {r4(ACC+4*ks)}, v3, s[48:51], s59 offen offset:{(ks%4)*1024} sc1", "xs")
    k.e("v_lshrrev_b32 v9, 4, v2"); k.e("v_lshlrev_b32 v8, 4, v9")
    for r in range(4):
        k.e("s_lshl_b32 s46, s40, 6"); k.e(f"s_add_u32 s46, s46, {16*r}"); k.e("v_and_b32 v5, 15, v2"); k.e("v_add_u32 v5, s46, v5")
        k.e("v_lshlrev_b32 v6, 6, v5"); k.e("v_add_u32 v6, v6, v8")
        vm.issue(f"buffer_load_dwordx4 {r4(192+4*r)}, v6, s[76:79], 0 offen sc1", "st")
        k.e("v_lshlrev_b32 v6, 2, v5")
        vm.issue(f"buffer_load_dword v{208+r}, v6, s[84:87], 0 offen", "st")
    k.e(f"s_mul_i32 s46, s3, {20*1024}"); k.e("v_add_u32 v4, s46, v3")
    vm.wait("xs")
    k.e(f"s_setprio {PRIO_E}")
    for ks in range(20): k.e(f"ds_write_b128 v4, {r4(ACC+4*ks)} offset:{ks*1024}")
    vm.wait("st")
    for r in range(4):
        s_ = 192 + 4 * r; c_ = CN(r)
        k.e(f"v_add_f32 v{s_}, v{s_}, v{s_+2}"); k.e(f"v_add_f32 v{s_+1}, v{s_+1}, v{s_+3}")
        allreduce16(k, "v_add_f32", s_, s_ + 2); allreduce16(k, "v_add_f32", s_ + 1, s_ + 3)
        k.e(f"v_mul_f32 v{c_}, {f32bits(-1/640)}, v{s_}"); k.e(f"v_mul_f32 v{s_+1}, {f32bits(1/640)}, v{s_+1}")
        k.e(f"v_fma_f32 v{s_+1}, -v{c_}, v{c_}, v{s_+1}"); k.e(f"v_add_f32 v{s_+1}, {f32bits(1e-5)}, v{s_+1}"); k.e(f"v_rsq_f32 v{s_+1}, v{s_+1}")
        k.e(f"v_sub_f32 v{s_+2}, 1.0, v{208+r}")
        k.e(f"v_mul_f32 v{s_+3}, v{s_+1}, v{s_+1}")
        k.e(f"v_mul_f32 v{c_+2}, {f32bits(GELU_C2)}, v{s_+1}")
        k.e(f"v_mul_f32 v{c_+3}, v{s_+1}, v{s_+2}")
        k.e(f"v_mul_f32 v{s_+3}, v{s_+3}, v{s_+1}")
        k.e(f"v_mul_f32 v{c_+1}, {f32bits(GELU_C1)}, v{s_+3}")
    k.e("v_mov_b32 v14, v3"); k.e(f"v_add_u32 v15, {60*1024}, v3")
    k.e("s_waitcnt lgkmcnt(0)"); k.e("s_barrier")
    def rdX(i, r):
        o = (r * 20 + i) * 1024
        return f"ds_read_b128 {r4(XB(i%2,r))}, v14 offset:{o}" if r < 3 else f"ds_read_b128 {r4(XB(i%2,r))}, v15 offset:{o-60*1024}"
    if FINE: st.stamp()
    k.e(f"s_setprio {PRIO_P3}")
    for r in range(4): k.e(rdX(0, r))
    k.e("s_cmp_eq_u32 s93, 4"); k.e("s_cselect_b64 vcc, -1, 0")
    CSR = None
    for i in range(20):
        vm.wait(("W", i))
        k.e("s_waitcnt lgkmcnt(0)")
        n = i + NS3
        if n < 20: k.e(f"s_mov_b32 s59, {n*1024}")
        for c in range(4):
            if c == 3:
                lab = k.label("sk"); k.e(f"s_cbranch_vccz {lab}")
            for r in range(4):
                cc = "0" if i == 0 else r4(A3(r, c))
                k.e(f"v_mfma_f32_16x16x32_bf16 {r4(A3(r,c))}, {r4(WS3(i%NS3,c))}, {r4(XB(i%2,r))}, {cc}")
                if c == 0 and i + 1 < 20: k.e(rdX(i + 1, r))
            if c == 3: k.e(f"{lab}:")
            if n < 20: ldW3(n, c)
        if RAWX and i in (14, 15):
            CSR = WS3(14 % NS3, 0)
            for c in (0, 1) if i == 14 else (2, 3):
                for q in range(4): k.e(f"ds_bpermute_b32 v{CSR+4*c+q}, v8, v251 offset:{(16*c+q)*4}")
        if i == 14:
            CSR = WS3(14 % NS3, 0)
            if RAWX:
                pass
            else:
                srd(k, 80, 4, L.CS3, 1728 * 4)
                k.e("s_lshl_b32 s71, s45, 6")
                for c in range(4): vm.issue(f"buffer_load_dwordx4 {r4(CSR+4*c)}, v8, s[80:83], s71 offen offset:{c*64}", "cs")
    k.e(f"s_setprio {PRIO_E}")
    st.stamp()
    srd(k, 72, 4, L.HF, L.SZ_HF)
    k.e("s_mul_i32 s88, s41, 7"); k.e("s_sub_u32 s88, s88, s95")
    k.e("s_lshl_b32 s46, s3, 1"); k.e("s_cmp_eq_u32 s3, 3"); k.e("s_cselect_b32 s46, 5, s46")
    k.e("s_cmp_ge_u32 s41, 6"); k.e("s_cselect_b32 s46, s3, s46")
    k.e("s_add_u32 s89, s88, s46"); k.e("s_lshl_b32 s89, s89, 10")
    k.e("s_lshr_b32 s46, s3, 1"); k.e("s_add_u32 s46, s46, 4"); k.e("s_cmp_ge_u32 s41, 6"); k.e("s_cselect_b32 s46, s46, 6")
    k.e("s_add_u32 s90, s88, s46"); k.e("s_lshl_b32 s90, s90, 10"); k.e("s_and_b32 s46, s3, 1"); k.e("s_lshl_b32 s46, s46, 9"); k.e("s_add_u32 s90, s90, s46")
    TT = 192; ONE = 208; PK = 212
    k.e(f"v_mov_b32 v{ONE}, 1.0"); k.e(f"v_mov_b32 v{ONE+1}, 1.0")
    vm.wait("cs")
    k.e("s_waitcnt lgkmcnt(0)")
    p2 = lambda x: f"v[{x}:{x+1}]"
    for r in range(4):
        c_ = CN(r)
        regs = [A3(r, c) for c in range(4)]
        bc = lambda x: p2(x & ~1)
        sel = lambda x: (x & 1)
        def bsel(x, pos, n=3):
            lo = [0] * n; hi = [1] * n
            lo[pos] = x & 1; hi[pos] = x & 1
            return f"op_sel:[{','.join(map(str,lo))}] op_sel_hi:[{','.join(map(str,hi))}]"
        for c, a in enumerate(regs):
            for h in (0, 2): k.e(f"v_pk_fma_f32 {p2(a+h)}, {bc(c_)}, {p2(CSR+4*c+h)}, {p2(a+h)} {bsel(c_,0)}")
        for c, a in enumerate(regs):
            for h in (0, 2): k.e(f"v_pk_mul_f32 {p2(TT+4*c+h)}, {p2(a+h)}, {p2(a+h)}")
        for c, a in enumerate(regs):
            for h in (0, 2):
                k.e(f"v_pk_fma_f32 {p2(TT+4*c+h)}, {p2(TT+4*c+h)}, {bc(c_+1)}, {bc(c_+2)} op_sel:[0,{(c_+1)&1},{(c_+2)&1}] op_sel_hi:[1,{(c_+1)&1},{(c_+2)&1}]")
        for c, a in enumerate(regs):
            for h in (0, 2): k.e(f"v_pk_mul_f32 {p2(TT+4*c+h)}, {p2(TT+4*c+h)}, {p2(a+h)}")
        for c in range(4):
            for q in range(4): k.e(f"v_exp_f32 v{TT+4*c+q}, v{TT+4*c+q}")
        for c, a in enumerate(regs):
            for h in (0, 2): k.e(f"v_pk_mul_f32 {p2(a+h)}, {p2(a+h)}, {bc(c_+3)} {bsel(c_+3,1,2)}")
        for c in range(4):
            for h in (0, 2): k.e(f"v_pk_add_f32 {p2(TT+4*c+h)}, {p2(TT+4*c+h)}, {p2(ONE)}")
        for c in range(4):
            for q in range(4): k.e(f"v_rcp_f32 v{TT+4*c+q}, v{TT+4*c+q}")
        for c, a in enumerate(regs):
            for h in (0, 2): k.e(f"v_pk_mul_f32 {p2(a+h)}, {p2(a+h)}, {p2(TT+4*c+h)}")
        pk = PK + 8 * (r % 2)
        for c, a in enumerate(regs):
            k.e(f"v_cvt_pk_bf16_f32 v{pk+2*c}, v{a}, v{a+1}"); k.e(f"v_cvt_pk_bf16_f32 v{pk+2*c+1}, v{a+2}, v{a+3}")
        k.e("s_lshl_b32 s46, s40, 2"); k.e(f"s_add_u32 s46, s46, {r}"); k.e(f"s_mul_i32 s46, s46, {54*1024}"); k.e("v_add_u32 v12, s46, v3")
        k.e(f"buffer_store_dwordx4 {r4(pk)}, v12, s[72:75], s89 offen sc1")
        l3 = k.label("c3"); le = k.label("ce")
        k.e(f"s_cbranch_vccz {l3}")
        k.e(f"buffer_store_dwordx4 {r4(pk+4)}, v12, s[72:75], s89 offen offset:1024 sc1")
        k.e(f"s_branch {le}")
        k.e(f"{l3}:")
        k.e(f"v_mov_b32 v{pk+6}, v{pk+4}"); k.e(f"v_mov_b32 v{pk+7}, v{pk+5}")
        k.e(f"v_mov_b32 v13, {OOB}"); k.e("v_cndmask_b32 v13, v13, v12, s[38:39]")
        k.e(f"v_permlane32_swap_b32 v{pk+4}, v{pk+6}"); k.e(f"v_permlane32_swap_b32 v{pk+5}, v{pk+7}")
        k.e(f"buffer_store_dwordx4 {r4(pk+4)}, v13, s[72:75], s90 offen sc1")
        k.e(f"{le}:")
        k.e("s_nop 1")
    k.e("s_mul_i32 s45, s41, 5")
    k.e("s_setprio 0")
    if FINE: st.stamp()
    emit_publish(k, FL_H); vm.drained()
    st.stamp()
    ksplit_phase(k, vm, L.HF, L.SZ_HF, 54, L.W4P, L.SZ_W4, 54, True, lambda kk: emit_wait(kk, FL_H), True, prio=PRIO_P4)
    k.e("s_setprio 0")
    st.stamp()
    def waitO(kk):
        emit_wait(kk, FL_O); st.stamp()
    ksplit_phase(k, vm, L.OF, L.SZ_XF, 20, L.WOP, L.SZ_WDD, 20, True, waitO, False, prio=PRIO_E)
    T = SET0
    def pre4():
        srd(k, 72, 6, 0, 2048 * 1280)
        k.e("s_lshl_b32 s47, s70, 4"); k.e("v_and_b32 v14, 15, v2"); k.e("v_add_u32 v14, s47, v14")
        k.e("v_mul_u32_u24 v12, 1280, v14"); k.e("v_lshrrev_b32 v13, 4, v2"); k.e("v_lshlrev_b32 v13, 3, v13"); k.e("v_add_u32 v12, v12, v13")
        k.e("s_lshl_b32 s71, s45, 5")
        for c in range(5):
            xr = XK + 2 * c; u = T + 24 + 4 * c
            k.e(f"v_lshlrev_b32 v{u}, 16, v{xr}"); k.e(f"v_and_b32 v{u+1}, 0xffff0000, v{xr}")
            k.e(f"v_lshlrev_b32 v{u+2}, 16, v{xr+1}"); k.e(f"v_and_b32 v{u+3}, 0xffff0000, v{xr+1}")
    reduce4(k, pre4)
    for c in range(5):
        a = A5(0, c); u = T + 24 + 4 * c
        for h in (0, 2):
            k.e(f"v_pk_fma_f32 v[{a+h}:{a+h+1}], v[{OMG}:{OMG+1}], v[{u+h}:{u+h+1}], v[{a+h}:{a+h+1}] op_sel:[0,0,0] op_sel_hi:[0,1,1]")
    for c in range(5):
        a = A5(0, c)
        k.e(f"v_cvt_pk_bf16_f32 v{T+2*c}, v{a}, v{a+1}"); k.e(f"v_cvt_pk_bf16_f32 v{T+2*c+1}, v{a+2}, v{a+3}")
        k.e(f"buffer_store_dwordx2 v[{T+2*c}:{T+2*c+1}], v12, s[72:75], s71 offen offset:{c*32}")
    st.stamp()
    if st.on: k.e("s_waitcnt vmcnt(0)")
    st.stamp(); st.stamp(real=True)

class SStamps:
    def __init__(self, k, on, kidx, pairs, vt=254):
        self.k = k; self.on = on; self.n = 0; self.kidx = kidx; self.pairs = pairs; self.real = []; self.vt = vt
    def stamp(self, real=False):
        if not self.on: return
        r = self.pairs[self.n]; self.n += 1
        self.k.e(f"s_memtime s[{r}:{r+1}]" if not real else f"s_memrealtime s[{r}:{r+1}]")
    def flush(self):
        if not self.on: return
        k = self.k
        k.e("s_waitcnt vmcnt(0) lgkmcnt(0)")
        k.e(f"s_add_u32 s96, s4, {L.STAMP + self.kidx*512*4*64}"); k.e("s_addc_u32 s97, s5, 0")
        k.e("s_lshl_b32 s98, s2, 2"); k.e("s_add_u32 s98, s98, s3"); k.e("s_lshl_b32 s98, s98, 6")
        k.e(f"v_mov_b32 v{self.vt}, s98")
        for i in range(self.n):
            k.e(f"v_mov_b32 v{self.vt+1}, s{self.pairs[i]}")
            k.e(f"global_store_dword v{self.vt}, v{self.vt+1}, s[96:97] offset:{4*i}")
            k.e("s_nop 1")
        k.e("s_waitcnt vmcnt(0)")

def gen_main():
    k = Kern("main_kernel")
    name = k.name
    k.e("s_cmp_ge_u32 s2, 512"); k.e(f"s_cbranch_scc1 {name}_end")
    ldptr(k, 4, "ws"); ldptr(k, 6, "out"); ldptr(k, 32, "x")
    k.e("v_lshrrev_b32 v1, 6, v0"); k.e("v_and_b32 v2, 63, v0")
    k.e("v_readfirstlane_b32 s3, v1")
    k.e("v_lshlrev_b32 v3, 4, v2")
    k.e("s_cmp_ge_u32 s2, 256"); k.e(f"s_cbranch_scc1 {name}_B")
    stA = VStamps(k, PROF, 8); stA.stamp(); stA.stamp(real=True)
    if NOA:
        decode_gj(k, 0); k.e("s_waitcnt lgkmcnt(0)"); srd(k, 28, 4, L.FLAGS, 4096); emit_publish(k, FL_O)
        for _ in range(5): stA.stamp()
        stA.stamp(real=True)
    else:
        emit_attn(k, stA)
    stA.flush()
    k.e("s_endpgm")
    k.e(f"{name}_B:")
    stB = SStamps(k, PROF, 8, list(range(8, 28, 2)) + [60, 62, 64, 66, 68, 98]); stB.stamp(); stB.stamp(real=True)
    if NOB: k.e("s_endpgm")
    emit_bchain(k, stB)
    stB.flush()
    k.e(f"{name}_end:")
    k.e("s_endpgm")
    return k, 256, 512, 81920

def epi_kv4(g):
    k = g.k
    n0 = len(k.lines)
    gen1.epi_kv(g)
    lines = k.lines
    i = lines.index("v_and_b32 v10, 11, v7", n0)
    T = g.tmp0
    new = ["v_cmp_eq_u32 s[88:89], 9, v7", f"v_cndmask_b32 v{T+7}, v{T+7}, 0, s[88:89]" if False else f"v_mov_b32 v14, 0", f"v_cndmask_b32 v{T+7}, v{T+7}, v14, s[88:89]", "s_or_b64 vcc, vcc, s[88:89]"]
    k.lines = lines[:i] + new + lines[i:]

def build_all():
    gen1.PROF = False
    gen3.TABLES[2] = ("t14", KO.t14b, 54)
    gen3.TBL_TEXT, gen3.TBL_OFF = gen3.table_text()
    ks = []
    ks.append(gen3.gen_prep())
    segD = lambda xoff, woff, wsize=L.SZ_WDD: dict(xoff=xoff, xsize=L.SZ_XF, nksx=20, woff=woff, wsize=wsize, nksw=20, nks=20)
    ks.append(gen1.gen_gemm("p1q_kernel", 256, 4, 5, 3, [segD(L.XF, L.WQP)], gen1.dec_p1q, gen1.epi_q, kidx=1))
    ks.append(gen1.gen_gemm("p1h_kernel", 256, 4, 5, 3, [segD(L.XF, L.W1P)], gen1.dec_p1h, gen3.epi_h3, kidx=2))
    ks.append(gen1.gen_gemm("p1kv_kernel", 32, 4, 4, 3, [segD(L.XF, L.WKVP, 4*20*1024)], gen1.dec_kv, epi_kv4, swap=[False, False, True, True], kidx=3))
    ks.append(gen_main())
    return ks

if __name__ == "__main__":
    PROF = "--prof" in sys.argv; gen3.PROF = PROF
    FINE = "--fine" in sys.argv
    PFALL = "--pfall" in sys.argv
    for a in sys.argv:
        if a.startswith("--pfs="): PFS = int(a[6:])
    NOB = "--nob" in sys.argv; NOA = "--noa" in sys.argv
    for a in sys.argv:
        if a.startswith("--pa="): PRIO_A = int(a[5:])
        if a.startswith("--pb="): PRIO_B = int(a[5:])
        if a.startswith("--pe="): PRIO_E = int(a[5:])
    ks = build_all()
    out = sys.argv[1]
    open(out, "w").write(gen3.assemble_text(ks))
    for (k, vg, nwg, lds) in ks: print(k.name, "vgpr", vg, "wg", nwg, "lds", lds, "lines", len(k.lines))
```

```python
import sys
sys.path.insert(0, "work")
from asmfw import *
import layout as L
import korder as KO
import gen1, gen3, gen4, gen5
from gen1 import srd, ldptr, f32bits, KA, OOB, LOG2E, GELU_C1, GELU_C2
from gen3 import r4, r2, r16, allreduce16, store_t80
from gen4 import VM, SStamps
from gen5 import TBL_OFF, TBL_TEXT, QSCALE, epi_h5

PROF = False
ABL = ''
INNER = False
PFK1 = 1
CODEPF = True
TLBPF = True
LSTAMP = False
WT = ''
PPC = False
PPSPLIT = True
WTQ = ''
WROW = 320
XB_, WB_, KVB_, GWB_ = 0, 8192, 8192 + 20480, 8192 + 20480 + 3072
SLOT = 32768
NSL = 4
PPB = NSL * SLOT
K1_LDS = PPB + 6 * 4096

def gen_k1():
    k = Kern("front_kernel")
    name = k.name
    st = SStamps(k, PROF, 1, [60, 62, 64, 66, 16, 68, 100], vt=210)
    def istamp(i):
        if not (PROF and INNER): return
        lab = k.label("is"); r = [64, 66, 16, 68, 92, 94][i]
        k.e("s_cmp_lg_u32 s83, 5"); k.e(f"s_cbranch_scc1 {lab}"); k.e(f"s_memtime s[{r}:{r+1}]"); k.e(f"{lab}:")
    k.e("s_cmp_ge_u32 s2, 256"); k.e(f"s_cbranch_scc1 {name}_end")
    st.stamp(); st.stamp(real=True)
    for r, nm in ((6, "x"), (8, "wq"), (10, "w1"), (12, "wk"), (14, "wv"), (18, "gw")): ldptr(k, r, nm)
    ldptr(k, 4, "ws")
    for r, nm in ((20, "w2"), (22, "wo"), (24, "w3"), (26, "w4")): ldptr(k, r, nm)
    k.e("v_lshrrev_b32 v1, 6, v0"); k.e("v_and_b32 v2, 63, v0")
    k.e("v_lshlrev_b32 v3, 4, v2")
    k.e("v_readfirstlane_b32 s3, v1")
    k.e("s_and_b32 s46, s2, 7"); k.e("s_lshr_b32 s47, s2, 3")
    k.e("s_lshr_b32 s40, s46, 1"); k.e("s_lshl_b32 s40, s40, 3"); k.e("s_lshr_b32 s49, s47, 2"); k.e("s_add_u32 s40, s40, s49")
    k.e("s_and_b32 s41, s46, 1"); k.e("s_lshl_b32 s41, s41, 2"); k.e("s_and_b32 s49, s47, 3"); k.e("s_add_u32 s41, s41, s49")
    k.e("s_lshr_b32 s42, s41, 2"); k.e("s_and_b32 s43, s41, 3")
    k.e("s_cmp_ge_u32 s3, 4"); k.e(f"s_cbranch_scc0 {name}_compute")
    k.e("s_sub_u32 s3, s3, 4")
    k.e("s_mul_i32 s46, s40, 3"); k.e("s_mul_i32 s47, s46, 6554"); k.e("s_lshr_b32 s47, s47, 16"); k.e("s_mul_i32 s47, s47, 10"); k.e("s_sub_u32 s48, s46, s47")
    k.e("v_lshrrev_b32 v4, 3, v2"); k.e("v_and_b32 v5, 7, v2")
    k.e("s_lshl_b32 s46, s3, 3"); k.e("v_add_u32 v6, s46, v4")
    k.e("v_bfe_u32 v7, v6, 1, 3"); k.e("v_xor_b32 v7, v7, v5"); k.e("v_lshlrev_b32 v7, 4, v7")
    k.e("s_lshl_b32 s47, s40, 6"); k.e("v_add_u32 v6, s47, v6"); k.e("v_mul_u32_u24 v6, 1280, v6")
    k.e("v_add_u32 v200, v6, v7"); k.e(f"v_add_u32 v201, {32*1280}, v200")
    k.e(f"s_mov_b32 s50, {(1<<32)//WROW + 1}"); k.e("s_mul_i32 s51, s43, 320")
    for i in range(5):
        k.e(f"s_add_u32 s46, s3, {4*i}"); k.e("s_lshl_b32 s46, s46, 10"); k.e("v_add_u32 v6, s46, v3")
        k.e("v_mul_hi_u32 v7, v6, s50")
        k.e(f"v_mul_u32_u24 v8, {WROW}, v7"); k.e("v_sub_u32 v8, v6, v8")
        k.e("v_bfe_u32 v10, v7, 2, 1")
        k.e("v_and_b32 v9, 0x33, v7"); k.e("v_lshl_or_b32 v9, v10, 3, v9")
        k.e("v_bfe_u32 v11, v7, 3, 1"); k.e("v_lshl_or_b32 v9, v11, 2, v9")
        k.e("v_lshlrev_b32 v10, 5, v10"); k.e("v_xor_b32 v8, v8, v10")
        k.e("v_mul_u32_u24 v9, 1280, v9"); k.e("v_add_u32 v9, v9, v8"); k.e(f"v_add_u32 v{202+i}, s51, v9")
    k.e("s_lshl_b32 s46, s3, 10"); k.e("v_add_u32 v6, s46, v3"); k.e(f"v_mov_b32 v7, {OOB}")
    k.e("v_cmp_gt_u32 vcc, 2560, v6"); k.e("v_cndmask_b32 v6, v7, v6, vcc")
    k.e("v_cmp_gt_u32 vcc, 128, v3"); k.e("v_cndmask_b32 v8, v7, v3, vcc")
    k.e("s_cmp_eq_u32 s3, 3"); k.e("s_cselect_b64 vcc, -1, 0"); k.e("v_cndmask_b32 v207, v6, v8, vcc")
    k.e("s_waitcnt lgkmcnt(0)")
    srd(k, 28, 6, 0, 2048 * 1280)
    k.e("s_cmp_eq_u32 s42, 0")
    k.e("s_cselect_b32 s32, s8, s10"); k.e("s_cselect_b32 s33, s9, s11"); k.e(f"s_mov_b32 s34, {640*1280}"); k.e("s_mov_b32 s35, 0x20000")
    k.e("s_cselect_b32 s52, s12, s14"); k.e("s_cselect_b32 s53, s13, s15"); k.e(f"s_mov_b32 s54, {640*40}"); k.e("s_mov_b32 s55, 0x20000")
    k.e("s_cmp_eq_u32 s3, 3")
    k.e("s_cselect_b32 s52, s18, s52"); k.e("s_cselect_b32 s53, s19, s53"); k.e("s_cselect_b32 s54, 1280, s54")
    k.e("s_mov_b32 s46, 2560"); k.e("s_cselect_b32 s70, 128, s46")
    k.e("s_lshl_b32 s46, s3, 10"); k.e(f"s_add_u32 s71, s46, {KVB_}")
    k.e("s_lshl_b32 s72, s3, 10")
    vm = VM(k)
    def issue_stage(t):
        slot = (t % NSL) * SLOT
        k.e("s_lshl_b32 s74, s48, 7"); k.e(f"s_mul_i32 s75, s48, {64*1280}"); k.e("s_mul_i32 s76, s48, s70")
        if ABL in ("same", "samenoread"):
            k.e("s_mov_b32 s74, 0"); k.e("s_mov_b32 s75, 0"); k.e("s_mov_b32 s76, 0")
        for i in range(2):
            k.e(f"s_add_u32 m0, s72, {slot + XB_ + i*4096}"); k.e("s_nop 0")
            vm.issue(f"buffer_load_dwordx4 v{200+i}, s[28:31], s74 offen lds", ("S", t))
        for i in range(5):
            k.e(f"s_add_u32 m0, s72, {slot + WB_ + i*4096}"); k.e("s_nop 0")
            vm.issue(f"buffer_load_dwordx4 v{202+i}, s[32:35], s75 offen lds", ("S", t))
        k.e(f"s_add_u32 m0, s71, {slot}"); k.e("s_nop 0")
        vm.issue("buffer_load_dwordx4 v207, s[52:55], s76 offen lds", ("S", t))
        k.e("s_add_u32 s48, s48, 1"); k.e("s_cmp_eq_u32 s48, 10"); k.e("s_cselect_b32 s48, 0, s48")
    def do_pf():
            k.e("s_lshr_b32 s46, s2, 3"); k.e("s_mul_i32 s46, s46, 200"); k.e("s_mul_i32 s47, s3, 50"); k.e("s_add_u32 s46, s46, s47"); k.e("s_lshl_b32 s46, s46, 7")
            k.e("v_lshlrev_b32 v6, 7, v2"); k.e(f"v_mov_b32 v7, {OOB}"); k.e("v_cmp_gt_u32 vcc, 50, v2"); k.e("v_cndmask_b32 v6, v7, v6, vcc")
            k.e("buffer_load_dword v20, v6, s[32:35], s46 offen")
            k.e("s_lshl_b32 s46, s40, 6"); k.e("s_lshl_b32 s47, s43, 4"); k.e("s_add_u32 s46, s46, s47"); k.e("s_lshl_b32 s47, s3, 2"); k.e("s_add_u32 s46, s46, s47"); k.e("s_mul_i32 s46, s46, 1280")
            k.e("v_lshlrev_b32 v6, 7, v2"); k.e("v_cmp_gt_u32 vcc, 40, v2"); k.e("v_cndmask_b32 v6, v7, v6, vcc")
            k.e("buffer_load_dword v21, v6, s[28:31], s46 offen")
            vm.q += ["pf", "pf"]
    if PFK1 == 1: do_pf()
    issue_stage(0)
    if PFK1 == 3: do_pf()
    issue_stage(1)
    st.stamp()
    def prepack_loads():
        k.e("s_getpc_b64 s[80:81]")
        k.e(f"{name}_pc:")
        k.e(f"s_add_u32 s80, s80, korder_table-{name}_pc"); k.e("s_addc_u32 s81, s81, 0")
        k.e("v_lshrrev_b32 v10, 5, v2"); k.e("v_bfe_u32 v11, v2, 3, 2"); k.e("v_and_b32 v12, 7, v2"); k.e("v_lshlrev_b32 v12, 4, v12")
        for pas in range(2):
            P = f"{name}_pp{pas}"
            k.e("s_mul_i32 s46, s2, 6"); k.e("s_add_u32 s46, s46, s3"); k.e("s_mov_b32 s49, 0")
            if pas:
                k.e("s_add_u32 s46, s46, 4"); k.e("s_cmp_lt_u32 s3, 2"); k.e("s_cselect_b32 s46, s46, 9999")
            k.e("s_cmp_lt_u32 s46, 400"); k.e(f"s_cbranch_scc1 {P}_lo")
            k.e("s_cmp_lt_u32 s46, 940"); k.e(f"s_cbranch_scc1 {P}_w3")
            k.e("s_cmp_lt_u32 s46, 1480"); k.e(f"s_cbranch_scc1 {P}_w4")
            k.e("s_mov_b32 s46, 0"); k.e("s_mov_b32 s49, 1"); k.e(f"s_branch {P}_w2")
            k.e(f"{P}_lo:")
            k.e("s_cmp_ge_u32 s46, 200"); k.e(f"s_cbranch_scc1 {P}_wo")
            for nm, ptr, start, dst, ld, ncg, nks, order in (("w2", 20, 0, L.W2P, 1280, 10, 20, "t80"), ("wo", 22, 200, L.WOP, 1280, 10, 20, "oord"),
                                                               ("w3", 24, 400, L.W3P, 3456, 27, 20, "t80"), ("w4", 26, 940, L.W4P, 1280, 10, 54, "t14")):
                k.e(f"{P}_{nm}:")
                if start: k.e(f"s_sub_u32 s46, s46, {start}")
                k.e(f"s_mul_hi_u32 s47, s46, {(1<<32)//ncg + 1}")
                k.e(f"s_mul_i32 s50, s47, {ncg}"); k.e("s_sub_u32 s50, s46, s50")
                k.e(f"s_mov_b32 s84, s{ptr}"); k.e(f"s_mov_b32 s85, s{ptr+1}"); k.e(f"s_mov_b32 s86, {32*nks*ld}")
                k.e(f"s_mov_b32 s51, {ld}")
                k.e(f"s_lshl_b32 s79, s47, 5"); k.e(f"s_add_u32 s79, s79, {TBL_OFF[order]}")
                k.e(f"s_lshl_b32 s82, s50, 2"); k.e(f"s_mul_i32 s82, s82, {nks}"); k.e("s_add_u32 s82, s82, s47"); k.e("s_lshl_b32 s82, s82, 10"); k.e(f"s_add_u32 s82, s82, {dst}")
                k.e(f"s_mov_b32 s83, {nks*1024}")
                k.e(f"s_mov_b32 s{56+pas}, {1 if nm == 'w3' else 0}")
                k.e(f"s_branch {P}_go")
            k.e(f"{P}_go:")
            k.e("s_mov_b32 s87, 0x20000")
            k.e("s_cmp_eq_u32 s49, 0"); k.e(f"s_cselect_b32 s82, s82, {OOB}"); k.e(f"s_cselect_b32 s50, s50, 0x00ffff00")
            k.e(f"s_mov_b32 s{8+4*pas}, s82"); k.e(f"s_mov_b32 s{9+4*pas}, s83"); k.e(f"s_mov_b32 s{10+4*pas}, s47"); k.e(f"s_mov_b32 s{11+4*pas}, s50")
            k.e("s_add_u32 s90, s80, s79"); k.e("s_addc_u32 s91, s81, 0")
            k.e("s_load_dwordx8 s[92:99], s[90:91], 0")
            k.e("s_lshl_b32 s50, s50, 7")
            k.e("s_waitcnt lgkmcnt(0)")
            for i in range(4):
                k.e(f"v_mul_lo_u32 v6, v10, s{96+i}"); k.e("v_add_u32 v6, v6, v11"); k.e(f"v_add_u32 v6, s{92+i}, v6")
                k.e("v_mul_lo_u32 v6, v6, s51"); k.e("v_add_u32 v6, v6, v12")
                k.e("s_lshl_b32 s46, s3, 12"); k.e(f"s_add_u32 m0, s46, {PPB + pas*4*4096 + i*1024}"); k.e("s_nop 0")
                vm.issue("buffer_load_dwordx4 v6, s[84:87], s50 offen lds", "P")
    srd(k, 72 + 0, 4, 0, L.WS_END) if False else None
    k.e("v_lshrrev_b32 v14, 4, v2")
    for q in range(4): k.e(f"v_mov_b32 v{96+q}, 0x3f803f80")
    vm.wait(("S", 0))
    st.stamp()
    k.e("s_barrier")
    issue_stage(2); issue_stage(3)
    def prepack_process(which=(0, 1), extras=True):
        ONES = 96
        vm.wait("P")
        k.e("v_lshrrev_b32 v5, 4, v2"); k.e("v_lshlrev_b32 v5, 2, v5"); k.e("v_and_b32 v6, 15, v2"); k.e("v_lshrrev_b32 v7, 2, v6"); k.e("v_add_u32 v5, v5, v7")
        k.e("v_lshlrev_b32 v5, 7, v5"); k.e("v_and_b32 v6, 3, v2"); k.e("v_lshlrev_b32 v6, 3, v6"); k.e("v_add_u32 v5, v5, v6")
        k.e("s_lshl_b32 s46, s3, 12"); k.e(f"s_add_u32 s46, s46, {PPB}"); k.e("v_add_u32 v5, s46, v5")
        for pas in which:
            if pas:
                k.e(f"s_cmp_ge_u32 s3, 2"); k.e(f"s_cbranch_scc1 {name}_ppdone")
                k.e("v_add_u32 v5, 16384, v5")
            for c in range(4):
                k.e(f"ds_read_b64_tr_b16 v[{100+4*c}:{101+4*c}], v5 offset:{c*32}")
                k.e(f"ds_read_b64_tr_b16 v[{102+4*c}:{103+4*c}], v5 offset:{c*32+2048}")
            k.e("s_waitcnt lgkmcnt(0)")
            k.e(f"s_mov_b32 s46, s{8+4*pas}")
            for c in range(4):
                k.e(f"buffer_store_dwordx4 {r4(100+4*c)}, v3, s[96:99], s46 offen{WT}")
                if c < 3: k.e(f"s_add_u32 s46, s46, s{9+4*pas}")
            sk = k.label("nocs")
            k.e(f"s_cmp_eq_u32 s{56+pas}, 0"); k.e(f"s_cbranch_scc1 {sk}")
            for c in range(4):
                k.e(f"v_dot2_f32_bf16 v{120+c}, v{100+4*c}, v{ONES}, 0")
                for q in range(1, 4): k.e(f"v_dot2_f32_bf16 v{120+c}, v{100+4*c+q}, v{ONES}, v{120+c}")
            for c in range(4): allreduce16(k, "v_add_f32", 120 + c, 124)
            k.e("v_cmp_eq_u32 vcc, 1, v14"); k.e("v_cndmask_b32 v120, v120, v121, vcc")
            k.e("v_cmp_eq_u32 vcc, 2, v14"); k.e("v_cndmask_b32 v120, v120, v122, vcc")
            k.e("v_cmp_eq_u32 vcc, 3, v14"); k.e("v_cndmask_b32 v120, v120, v123, vcc")
            k.e(f"s_mul_i32 s46, s{10+4*pas}, {1728*4}"); k.e(f"s_lshl_b32 s47, s{11+4*pas}, 8"); k.e("s_add_u32 s46, s46, s47"); k.e(f"s_add_u32 s46, s46, {L.CS3P}")
            k.e("v_lshlrev_b32 v6, 2, v2")
            k.e("buffer_store_dword v120, v6, s[96:99], s46 offen")
            k.e(f"{sk}:")
        if 1 in which: k.e(f"{name}_ppdone:")
        if not extras: return
        z = k.label("nz")
        k.e("s_cmp_lg_u32 s2, 0"); k.e(f"s_cbranch_scc1 {z}")
        for q in range(4): k.e(f"v_mov_b32 v{100+q}, 0")
        k.e("s_lshl_b32 s46, s3, 10"); k.e(f"s_add_u32 s46, s46, {L.FLAGS}")
        k.e("buffer_store_dwordx4 v[100:103], v3, s[96:99], s46 offen")
        k.e("s_cmp_ge_u32 s3, 2"); k.e(f"s_cbranch_scc1 {z}")
        k.e("s_lshl_b32 s46, s3, 6"); k.e("v_add_u32 v6, s46, v2")
        k.e("v_mul_u32_u24 v7, 205, v6"); k.e("v_lshrrev_b32 v7, 12, v7")
        k.e("v_mul_u32_u24 v8, 20, v7"); k.e("v_sub_u32 v8, v6, v8")
        k.e("v_mov_b32 v9, v7"); k.e("v_cmp_lt_u32 vcc, 2, v7"); k.e("v_subrev_u32 v10, 1, v7"); k.e("v_cndmask_b32 v9, v9, v10, vcc")
        k.e("v_cmp_eq_u32 vcc, 5, v7"); k.e("v_mov_b32 v10, 3"); k.e("v_cndmask_b32 v9, v9, v10, vcc")
        k.e("v_mov_b32 v10, 0")
        for c, row in ((1, 2047), (3, 1), (4, 2046), (5, 2047)):
            k.e(f"v_cmp_eq_u32 vcc, {c}, v7"); k.e(f"v_mov_b32 v11, {row}"); k.e("v_cndmask_b32 v10, v10, v11, vcc")
        k.e("v_lshrrev_b32 v11, 4, v10"); k.e(f"v_mul_u32_u24 v11, {20*1024}, v11")
        k.e("v_mul_u32_u24 v9, 5, v9"); k.e("v_lshrrev_b32 v12, 2, v8"); k.e("v_add_u32 v9, v9, v12"); k.e("v_lshlrev_b32 v9, 10, v9"); k.e("v_add_u32 v11, v11, v9")
        k.e("v_and_b32 v12, 3, v8"); k.e("v_lshlrev_b32 v12, 4, v12"); k.e("v_and_b32 v9, 15, v10"); k.e("v_add_u32 v12, v12, v9"); k.e("v_lshlrev_b32 v12, 4, v12"); k.e("v_add_u32 v11, v11, v12")
        k.e("v_cmp_gt_u32 vcc, 120, v6"); k.e(f"v_mov_b32 v12, {OOB}"); k.e("v_cndmask_b32 v11, v12, v11, vcc")
        k.e(f"s_mov_b32 s46, {L.HS}")
        k.e("buffer_store_dwordx4 v[100:103], v11, s[96:99], s46 offen")
        k.e(f"{z}:")
    for t in range(10):
        if t + 1 < 10 and (ABL != "nodma" or t + 1 < 4): vm.wait(("S", t + 1))
        if PROF and LSTAMP: k.e(f"s_memtime s[{[36,38,58,6,18,16,64,66,68,30][t]}:{[36,38,58,6,18,16,64,66,68,30][t]+1}]") if t not in (3,4) or True else None
        k.e("s_barrier")
        if t + 4 < 10 and ABL != "nodma": issue_stage(t + 4)
        if t == 5 and not PPC: prepack_loads(); srd(k, 96, 4, 0, L.WS_END)
        if PPSPLIT and t == 7: prepack_process((0,), extras=False)
        if PPSPLIT and t == 8: prepack_process((1,), extras=True)
    if not PPC and not PPSPLIT: prepack_process()
    if st.on and LSTAMP:
        sp = st.pairs; st.pairs = [60, 62, 36, 38, 58, 6, 18, 16, 64, 66, 68, 30]; st.n = 12; st.kidx = 2; st.flush(); st.kidx = 1; st.pairs = sp
        st.n = 2
    elif st.on:
        st.stamp(); k.e("s_waitcnt vmcnt(0)"); st.stamp(); st.stamp(real=True); st.kidx = 2; st.flush(); st.kidx = 1
        st.n = 2
    k.e("s_endpgm")
    k.e(f"{name}_compute:")
    if TLBPF:
        lab = k.label("tp")
        k.e("s_cmp_lg_u32 s3, 0"); k.e(f"s_cbranch_scc1 {lab}")
        ldptr(k, 30, "out")
        k.e("s_waitcnt lgkmcnt(0)")
        pages = [(6, 0), (6, 2 << 20), (8, 0), (10, 0), (12, 0), (14, 0), (18, 0), (20, 0), (22, 0), (24, 0), (24, 2 << 20), (26, 0), (26, 2 << 20), (30, 0), (30, 2 << 20)]
        pages += [(4, i * (2 << 20)) for i in range((L.WS_END + (2 << 20) - 1) // (2 << 20))]
        k.e("v_mov_b32 v16, s4"); k.e("v_mov_b32 v17, s5")
        for i, (p, off) in enumerate(pages):
            if off:
                k.e(f"s_add_u32 s46, s{p}, {off}"); k.e(f"s_addc_u32 s47, s{p+1}, 0")
                k.e(f"v_writelane_b32 v16, s46, {i}"); k.e(f"v_writelane_b32 v17, s47, {i}")
            else:
                k.e(f"v_writelane_b32 v16, s{p}, {i}"); k.e(f"v_writelane_b32 v17, s{p+1}, {i}")
        k.e("global_load_dword v222, v[16:17], off")
        k.e(f"{lab}:")
    if CODEPF:
        k.e("s_getpc_b64 s[36:37]")
        k.e(f"{name}_cp:")
        k.e(f"s_sub_u32 s36, s36, {name}_cp-{name}"); k.e("s_subb_u32 s37, s37, 0")
        k.e("s_lshl_b32 s46, s3, 14"); k.e("v_lshlrev_b32 v6, 7, v2"); k.e("v_add_u32 v6, s46, v6")
        k.e(f"v_cmp_gt_u32 vcc, code_end-{name}, v6")
        k.e("s_and_saveexec_b64 s[38:39], vcc")
        lab = k.label("cp")
        k.e(f"s_cbranch_execz {lab}")
        k.e("global_load_dword v222, v6, s[36:37]")
        k.e(f"{lab}:")
        k.e("s_mov_b64 exec, s[38:39]")
        k.e("v_add_u32 v6, 8192, v6")
        k.e(f"v_cmp_gt_u32 vcc, code_end-{name}, v6")
        k.e("s_and_saveexec_b64 s[38:39], vcc")
        lab = k.label("cp")
        k.e(f"s_cbranch_execz {lab}")
        k.e("global_load_dword v222, v6, s[36:37]")
        k.e(f"{lab}:")
        k.e("s_mov_b64 exec, s[38:39]")
    if PPC:
        k.e("s_waitcnt lgkmcnt(0)")
        vm = VM(k)
        prepack_loads()
    k.e("s_lshr_b32 s44, s3, 1"); k.e("s_and_b32 s45, s3, 1")
    k.e("v_and_b32 v13, 15, v2"); k.e("v_lshrrev_b32 v14, 4, v2")
    for r in range(2):
        k.e("s_and_b32 s46, s43, 1"); k.e(f"s_xor_b32 s46, s46, {r}"); k.e("s_lshl_b32 s47, s44, 1"); k.e("s_add_u32 s46, s46, s47"); k.e("s_lshl_b32 s46, s46, 4")
        k.e("v_add_u32 v6, s46, v13")
        k.e("v_bfe_u32 v7, v6, 1, 3"); k.e("v_xor_b32 v7, v7, v14"); k.e("v_lshlrev_b32 v7, 4, v7"); k.e("v_lshlrev_b32 v6, 7, v6")
        k.e(f"v_add_u32 v{184+2*r}, v6, v7"); k.e(f"v_xor_b32 v{185+2*r}, 64, v{184+2*r}")
    k.e("v_lshrrev_b32 v6, 1, v14"); k.e("v_lshlrev_b32 v6, 4, v6")
    k.e("v_and_b32 v9, 1, v14"); k.e("v_lshlrev_b32 v7, 2, v9"); k.e("v_add_u32 v6, v6, v7")
    k.e("v_lshrrev_b32 v7, 2, v13"); k.e("v_add_u32 v6, v6, v7"); k.e(f"v_mul_u32_u24 v6, {WROW}, v6")
    k.e("v_and_b32 v7, 3, v2"); k.e("v_lshlrev_b32 v7, 3, v7"); k.e("v_add_u32 v6, v6, v7")
    k.e("v_lshlrev_b32 v8, 5, v9")
    k.e("s_mul_i32 s46, s45, 160"); k.e(f"s_add_u32 s46, s46, {WB_}"); k.e("v_add_u32 v6, s46, v6")
    k.e("v_add_u32 v10, v6, v8"); k.e("v_sub_u32 v11, v6, v8")
    k.e("s_cmp_eq_u32 s45, 0"); k.e("s_cselect_b64 vcc, -1, 0")
    k.e("v_cndmask_b32 v188, v11, v10, vcc"); k.e("v_cndmask_b32 v191, v10, v11, vcc")
    k.e("v_lshlrev_b32 v6, 3, v14"); k.e("v_lshrrev_b32 v8, 2, v13"); k.e("v_add_u32 v6, v6, v8"); k.e("v_mul_u32_u24 v6, 40, v6"); k.e("v_add_u32 v6, v6, v7")
    k.e(f"v_add_u32 v189, {KVB_}, v6")
    k.e("v_lshlrev_b32 v6, 4, v14"); k.e(f"v_add_u32 v190, {GWB_}, v6")
    ONES = 96
    for q in range(4): k.e(f"v_mov_b32 v{ONES+q}, 0x3f803f80")
    for q in range(16, 96): k.e(f"v_mov_b32 v{q}, 0")
    k.e("s_lshr_b32 s46, s43, 1"); k.e("s_cmp_eq_u32 s46, s44"); k.e("s_cselect_b32 s79, 1, 0"); k.e("s_cmp_eq_u32 s45, 0"); k.e("s_cselect_b32 s79, s79, 0")
    k.e("s_mul_i32 s47, s43, 10"); k.e("s_mul_i32 s46, s45, 5"); k.e("s_add_u32 s47, s47, s46")
    for c in range(5):
        k.e(f"s_add_u32 s46, s47, {c}"); k.e("s_lshl_b32 s46, s46, 2"); k.e("v_add_u32 v9, s46, v14")
        k.e("v_mul_u32_u24 v10, 205, v9"); k.e("v_lshrrev_b32 v10, 10, v10")
        k.e("v_mul_u32_u24 v11, 5, v10"); k.e("v_sub_u32 v11, v9, v11")
        k.e(f"v_mul_u32_u24 v12, {64*1280}, v10")
        k.e("v_lshrrev_b32 v9, 1, v11"); k.e("v_lshlrev_b32 v9, 9, v9"); k.e("v_and_b32 v10, 1, v11"); k.e("v_lshl_or_b32 v9, v10, 3, v9")
        k.e(f"v_add_u32 v{212+c}, v12, v9")
        k.e("v_cmp_eq_u32 vcc, 4, v11"); k.e("v_mov_b32 v9, 4"); k.e("v_mov_b32 v10, 3"); k.e(f"v_cndmask_b32 v{217+c}, v9, v10, vcc")
    k.e("s_waitcnt lgkmcnt(0)")
    srd(k, 96, 4, 0, L.WS_END)
    A = lambda r, c: 16 + (r * 5 + c) * 4
    CSa = lambda c: 56 + 4 * c
    SXa = lambda r: 76 + 4 * r
    KVa = lambda c: 84 + 4 * c
    F = lambda b: 100 + 40 * b
    MF = "v_mfma_f32_16x16x32_bf16"
    def reads(step, b, isH):
        f = F(b); out = []
        if ABL in ("noread", "samenoread"): return ["s_nop 0"]
        for r in range(2): out.append(f"ds_read_b128 {r4(f+4*r)}, v{192+2*r+step}")
        for c in range(5):
            va, o = (196 if c % 2 == 0 else 199), step * 32 * WROW + c * 32
            out.append(f"ds_read_b64_tr_b16 {r2(f+8+4*c)}, v{va} offset:{o}")
            out.append(f"ds_read_b64_tr_b16 {r2(f+10+4*c)}, v{va} offset:{o + 8*WROW}")
        if not isH: out.append(f"ds_read_b128 {r4(f+36)}, v198 offset:{64*step}")
        return out
    def kvreads(step, b):
        f = F(b)
        lab = k.label("kr"); k.e("s_cmp_eq_u32 s79, 0"); k.e(f"s_cbranch_scc1 {lab}")
        for c in range(2):
            o = step * 32 * 40 + c * 32
            k.e(f"ds_read_b64_tr_b16 {r2(f+28+4*c)}, v197 offset:{o}"); k.e(f"ds_read_b64_tr_b16 {r2(f+30+4*c)}, v197 offset:{o + 160}")
        k.e(f"{lab}:")
    def slot_addrs(sreg):
        for r in range(2):
            for sp in range(2): k.e(f"v_add_u32 v{192+2*r+sp}, s{sreg}, v{184+2*r+sp}")
        k.e(f"v_add_u32 v196, s{sreg}, v188"); k.e(f"v_add_u32 v199, s{sreg}, v191"); k.e(f"v_add_u32 v197, s{sreg}, v189"); k.e(f"v_add_u32 v198, s{sreg}, v190")
    def compute(b, isH, side):
        f = F(b); side = list(side)
        dots = []
        for r in range(2):
            for q in range(4):
                dots.append(f"v_dot2_f32_bf16 v{92+r}, v{f+4*r+q}, v{f+4*r+q}, v{92+r}" if isH else f"v_dot2_f32_bf16 v{94+r}, v{f+4*r+q}, v{f+36+q}, v{94+r}")
        mf = []
        for c in range(5):
            for r in range(2): mf.append(f"{MF} {r4(A(r,c))}, {r4(f+8+4*c)}, {r4(f+4*r)}, {r4(A(r,c))}")
            if isH: mf.append(f"{MF} {r4(CSa(c))}, {r4(f+8+4*c)}, {r4(ONES)}, {r4(CSa(c))}")
        if isH:
            for r in range(2): mf.append(f"{MF} {r4(SXa(r))}, {r4(ONES)}, {r4(f+4*r)}, {r4(SXa(r))}")
        if ABL in ("noread", "samenoread"): mf = mf[:1]; dots = []
        for m in mf:
            k.e(m)
            if side: k.e(side.pop(0))
            if dots and len(side) <= len(dots): k.e(dots.pop(0))
        for x in side + dots: k.e(x)
        sk = k.label("kv")
        k.e("s_cmp_eq_u32 s79, 0"); k.e(f"s_cbranch_scc1 {sk}")
        for c in range(2):
            if isH: k.e(f"{MF} {r4(KVa(c))}, {r4(f)}, {r4(f+28+4*c)}, {r4(KVa(c))}")
            else: k.e(f"{MF} {r4(KVa(c))}, {r4(f+28+4*c)}, {r4(f)}, {r4(KVa(c))}")
        k.e(f"{sk}:")
    if not INNER: st.stamp()
    if PPC:
        for q in range(4): k.e(f"v_mov_b32 v{96+q}, 0x3f803f80")
        prepack_process()
    if not INNER: st.stamp()
    k.e("s_mov_b32 s78, 0"); k.e("s_mov_b32 s83, 0")
    k.e("s_barrier")
    if not INNER: st.stamp()
    k.e("s_cmp_lg_u32 s42, 0"); k.e(f"s_cbranch_scc1 {name}_H")
    for isH in (0, 1):
        lp = f"{name}_loop{isH}"
        if isH: k.e(f"{name}_H:")
        slot_addrs(78)
        for x in reads(0, 0, isH): k.e(x)
        k.e("s_waitcnt lgkmcnt(8)")
        kvreads(0, 0)
        k.e(f"{lp}:")
        istamp(0)
        k.e("s_waitcnt lgkmcnt(0)")
        istamp(1)
        kvreads(1, 1)
        compute(0, isH, reads(1, 1, isH))
        istamp(2)
        k.e(f"s_add_u32 s78, s78, {SLOT}"); k.e(f"s_cmp_eq_u32 s78, {NSL*SLOT}"); k.e("s_cselect_b32 s78, 0, s78")
        k.e("s_waitcnt lgkmcnt(0)")
        istamp(3)
        k.e("s_barrier")
        istamp(4)
        slot_addrs(78)
        kvreads(0, 0)
        compute(1, isH, reads(0, 0, isH))
        istamp(5)
        k.e("s_add_u32 s83, s83, 1"); k.e("s_cmp_lt_u32 s83, 10"); k.e(f"s_cbranch_scc1 {lp}")
        if INNER: pass
        elif isH == 0: st.stamp()
        elif st.on:
            r = st.pairs[st.n - 1]; k.e(f"s_memtime s[{r}:{r+1}]")
        k.e("s_waitcnt lgkmcnt(0)"); k.e("s_nop 7")
        for r in range(2):
            k.e("s_and_b32 s46, s43, 1"); k.e(f"s_xor_b32 s46, s46, {r}"); k.e("s_lshl_b32 s47, s44, 1"); k.e("s_add_u32 s46, s46, s47")
            k.e("s_lshl_b32 s47, s40, 2"); k.e(f"s_add_u32 s{84+r}, s46, s47")
            k.e(f"s_lshl_b32 s47, s{84+r}, 4"); k.e(f"v_add_u32 v{5+r}, s47, v13")
        if not isH: epi_q6(k, A, KVa)
        else: epi_h5(k, A, CSa, SXa, KVa)
        if not isH: k.e(f"s_branch {name}_fin")
    k.e(f"{name}_fin:")
    if st.on: k.e("s_waitcnt vmcnt(0)")
    if INNER:
        st.pairs = [60, 62, 64, 66, 16, 68, 92, 94, 100]; st.n = 8
    st.stamp(real=True)
    st.flush()
    k.e(f"{name}_end:")
    k.e("s_endpgm")
    return k, 224, 256, K1_LDS, 512

def epi_q6(k, A, KVa):
    T = 100
    k.e(f"s_mov_b32 s70, {f32bits(QSCALE)}"); k.e(f"s_mov_b32 s71, {L.QF}")
    for r in range(2):
        k.e(f"v_lshrrev_b32 v7, 5, v{5+r}"); k.e("v_mul_u32_u24 v7, 1280, v7"); k.e(f"v_and_b32 v8, 31, v{5+r}")
        for c in range(5):
            a = A(r, c)
            for h in (0, 2): k.e(f"v_pk_mul_f32 v[{a+h}:{a+h+1}], v[{a+h}:{a+h+1}], s[70:71] op_sel:[0,0] op_sel_hi:[1,0]") if False else None
            for q in range(4): k.e(f"v_mul_f32 v{a+q}, s70, v{a+q}")
        for c in range(5):
            a = A(r, c); t = T + 2 * (c + 5 * r)
            k.e(f"v_cvt_pk_bf16_f32 v{t}, v{a}, v{a+1}"); k.e(f"v_cvt_pk_bf16_f32 v{t+1}, v{a+2}, v{a+3}")
            k.e(f"v_lshlrev_b32 v9, v{217+c}, v8"); k.e(f"v_add3_u32 v{130+c+5*r}, v9, v7, v{212+c}")
        for c in range(5):
            t = T + 2 * (c + 5 * r)
            k.e(f"buffer_store_dwordx2 v[{t}:{t+1}], v{130+c+5*r}, s[96:99], s71 offen{WTQ}")
    g = k.label("ng")
    k.e("s_or_b32 s46, s43, s45"); k.e("s_cmp_lg_u32 s46, 0"); k.e(f"s_cbranch_scc1 {g}")
    for r in range(2):
        allreduce16(k, "v_add_f32", 94 + r, 7)
        k.e(f"v_mul_f32 v{94+r}, {f32bits(-LOG2E)}, v{94+r}"); k.e(f"v_exp_f32 v{94+r}, v{94+r}"); k.e("s_nop 0")
        k.e(f"v_add_f32 v{94+r}, 1.0, v{94+r}"); k.e(f"v_rcp_f32 v{94+r}, v{94+r}")
        k.e(f"v_lshlrev_b32 v7, 2, v{5+r}"); k.e(f"s_mov_b32 s46, {L.G}")
        k.e(f"buffer_store_dword v{94+r}, v7, s[96:99], s46 offen")
    k.e(f"{g}:")
    e = k.label("nk")
    k.e("s_cmp_eq_u32 s79, 0"); k.e(f"s_cbranch_scc1 {e}")
    T = 150
    k.e("s_lshr_b32 s71, s84, 1"); k.e("s_mul_i32 s71, s71, 3072"); k.e(f"s_add_u32 s71, s71, {L.KVF}")
    k.e("v_and_b32 v8, 31, v5")
    a = KVa(0); k.e(f"v_cvt_pk_bf16_f32 v{T}, v{a}, v{a+1}"); k.e(f"v_cvt_pk_bf16_f32 v{T+1}, v{a+2}, v{a+3}")
    a = KVa(1); k.e(f"v_cvt_pk_bf16_f32 v{T+2}, v{a}, v{a+1}"); k.e(f"v_cvt_pk_bf16_f32 v{T+3}, v{a+2}, v{a+3}")
    k.e("v_lshrrev_b32 v9, 1, v14"); k.e("v_lshlrev_b32 v9, 5, v9"); k.e("v_add_u32 v9, v9, v8"); k.e("v_lshlrev_b32 v9, 4, v9")
    k.e("v_and_b32 v10, 1, v14"); k.e("v_lshlrev_b32 v10, 3, v10"); k.e("v_add_u32 v9, v9, v10")
    k.e(f"buffer_store_dwordx2 v[{T}:{T+1}], v9, s[96:99], s71 offen")
    gen1.k2_addr(k, 8, 12, 9)
    k.e("v_cmp_eq_u32 vcc, 0, v14"); k.e(f"v_mov_b32 v9, {OOB}"); k.e("v_cndmask_b32 v12, v9, v12, vcc")
    k.e(f"buffer_store_dwordx2 v[{T+2}:{T+3}], v12, s[96:99], s71 offen")
    k.e(f"v_dot2_f32_bf16 v11, v{T}, v{T}, 0"); k.e(f"v_dot2_f32_bf16 v11, v{T+1}, v{T+1}, v11")
    k.e(f"v_dot2_f32_bf16 v10, v{T+2}, v{T+2}, 0"); k.e(f"v_dot2_f32_bf16 v10, v{T+3}, v{T+3}, v10")
    k.e("v_cndmask_b32 v10, 0, v10, vcc"); k.e("v_add_f32 v11, v11, v10")
    allreduce16(k, "v_add_f32", 11, 10)
    for ror in (8, 4, 2, 1): k.e(f"v_max_f32_dpp v11, v11, v11 row_ror:{ror} row_mask:0xf bank_mask:0xf")
    k.e("s_lshl_b32 s46, s84, 2"); k.e(f"s_add_u32 s46, s46, {L.KMAX}"); k.e("v_mov_b32 v10, 0")
    k.e("buffer_store_dword v11, v10, s[96:99], s46 offen")
    k.e(f"{e}:")

def epi_q8(k, A, KVa, DQ):
    T = 148
    k.e(f"s_mov_b32 s70, {f32bits(QSCALE)}"); k.e(f"s_mov_b32 s71, {L.QF}")
    for r in range(2):
        k.e(f"v_lshrrev_b32 v7, 5, v{5+r}"); k.e("v_mul_u32_u24 v7, 1280, v7"); k.e(f"v_and_b32 v8, 31, v{5+r}")
        for c in range(5):
            a = A(r, c)
            for h in (0, 2): k.e(f"v_pk_mul_f32 v[{a+h}:{a+h+1}], v[{a+h}:{a+h+1}], s[70:71] op_sel:[0,0] op_sel_hi:[1,0]") if False else None
            for q in range(4): k.e(f"v_mul_f32 v{a+q}, s70, v{a+q}")
        for c in range(5):
            a = A(r, c); t = T + 2 * (c + 5 * r)
            k.e(f"v_cvt_pk_bf16_f32 v{t}, v{a}, v{a+1}"); k.e(f"v_cvt_pk_bf16_f32 v{t+1}, v{a+2}, v{a+3}")
            k.e(f"v_lshlrev_b32 v9, v{249+c}, v8"); k.e(f"v_add3_u32 v{180+c+5*r}, v9, v7, v{244+c}")
        for c in range(5):
            t = T + 2 * (c + 5 * r)
            k.e(f"buffer_store_dwordx2 v[{t}:{t+1}], v{180+c+5*r}, s[96:99], s71 offen")
    g = k.label("ng")
    k.e("s_or_b32 s46, s43, s45"); k.e("s_cmp_lg_u32 s46, 0"); k.e(f"s_cbranch_scc1 {g}")
    for r in range(2):
        allreduce16(k, "v_add_f32", DQ + r, 7)
        k.e(f"v_mul_f32 v{DQ+r}, {f32bits(-LOG2E)}, v{DQ+r}"); k.e(f"v_exp_f32 v{DQ+r}, v{DQ+r}"); k.e("s_nop 0")
        k.e(f"v_add_f32 v{DQ+r}, 1.0, v{DQ+r}"); k.e(f"v_rcp_f32 v{DQ+r}, v{DQ+r}")
        k.e(f"v_lshlrev_b32 v7, 2, v{5+r}"); k.e(f"s_mov_b32 s46, {L.G}")
        k.e(f"buffer_store_dword v{DQ+r}, v7, s[96:99], s46 offen")
    k.e(f"{g}:")
    e = k.label("nk")
    k.e("s_cmp_eq_u32 s79, 0"); k.e(f"s_cbranch_scc1 {e}")
    T = 200
    k.e("s_lshr_b32 s71, s84, 1"); k.e("s_mul_i32 s71, s71, 3072"); k.e(f"s_add_u32 s71, s71, {L.KVF}")
    k.e("v_and_b32 v8, 31, v5")
    a = KVa(0); k.e(f"v_cvt_pk_bf16_f32 v{T}, v{a}, v{a+1}"); k.e(f"v_cvt_pk_bf16_f32 v{T+1}, v{a+2}, v{a+3}")
    a = KVa(1); k.e(f"v_cvt_pk_bf16_f32 v{T+2}, v{a}, v{a+1}"); k.e(f"v_cvt_pk_bf16_f32 v{T+3}, v{a+2}, v{a+3}")
    k.e("v_lshrrev_b32 v9, 1, v14"); k.e("v_lshlrev_b32 v9, 5, v9"); k.e("v_add_u32 v9, v9, v8"); k.e("v_lshlrev_b32 v9, 4, v9")
    k.e("v_and_b32 v10, 1, v14"); k.e("v_lshlrev_b32 v10, 3, v10"); k.e("v_add_u32 v9, v9, v10")
    k.e(f"buffer_store_dwordx2 v[{T}:{T+1}], v9, s[96:99], s71 offen")
    gen1.k2_addr(k, 8, 12, 9)
    k.e("v_cmp_eq_u32 vcc, 0, v14"); k.e(f"v_mov_b32 v9, {OOB}"); k.e("v_cndmask_b32 v12, v9, v12, vcc")
    k.e(f"buffer_store_dwordx2 v[{T+2}:{T+3}], v12, s[96:99], s71 offen")
    k.e(f"v_dot2_f32_bf16 v11, v{T}, v{T}, 0"); k.e(f"v_dot2_f32_bf16 v11, v{T+1}, v{T+1}, v11")
    k.e(f"v_dot2_f32_bf16 v10, v{T+2}, v{T+2}, 0"); k.e(f"v_dot2_f32_bf16 v10, v{T+3}, v{T+3}, v10")
    k.e("v_cndmask_b32 v10, 0, v10, vcc"); k.e("v_add_f32 v11, v11, v10")
    allreduce16(k, "v_add_f32", 11, 10)
    for ror in (8, 4, 2, 1): k.e(f"v_max_f32_dpp v11, v11, v11 row_ror:{ror} row_mask:0xf bank_mask:0xf")
    k.e("s_lshl_b32 s46, s84, 2"); k.e(f"s_add_u32 s46, s46, {L.KMAX}"); k.e("v_mov_b32 v10, 0")
    k.e("buffer_store_dword v11, v10, s[96:99], s46 offen")
    k.e(f"{e}:")

def epi_h8(k, A, CSa, SXa, KVa, DQ):
    T = 148
    p2 = lambda x: f"v[{x}:{x+1}]"
    C1, C2, ONE = 196, 198, 200
    k.e(f"v_mov_b32 v{C1}, {f32bits(GELU_C1)}"); k.e(f"v_mov_b32 v{C1+1}, v{C1}")
    k.e(f"v_mov_b32 v{C2}, {f32bits(GELU_C2)}"); k.e(f"v_mov_b32 v{C2+1}, v{C2}")
    k.e(f"v_mov_b32 v{ONE}, 1.0"); k.e(f"v_mov_b32 v{ONE+1}, 1.0")
    k.e("s_lshr_b32 s85, s43, 1") if False else None
    k.e("s_lshr_b32 s70, s43, 1"); k.e("s_add_u32 s70, s70, 1"); k.e("s_and_b32 s46, s43, 1"); k.e("s_sub_u32 s47, 0, s70"); k.e("s_cmp_eq_u32 s46, 0"); k.e("s_cselect_b32 s70, s70, s47")
    k.e("s_lshl_b32 s88, s43, 1"); k.e("s_add_u32 s88, s88, s45")
    srd(k, 72, 4, L.HS, L.SZ_XF)
    for r in range(2):
        MN, RS = 202, 204
        allreduce16(k, "v_add_f32", DQ + r, 7)
        k.e(f"v_mul_f32 v{MN}, {f32bits(-1/640)}, v{SXa(r)}"); k.e(f"v_mul_f32 v{RS}, {f32bits(1/640)}, v{DQ+r}")
        k.e(f"v_fma_f32 v{RS}, -v{MN}, v{MN}, v{RS}"); k.e(f"v_add_f32 v{RS}, {f32bits(1e-5)}, v{RS}"); k.e(f"v_rsq_f32 v{RS}, v{RS}")
        k.e(f"v_mov_b32 v{MN+1}, v{MN}")
        k.e(f"v_add_u32 v11, s70, v{5+r}")
        k.e("v_lshrrev_b32 v12, 4, v11"); k.e(f"v_mul_u32_u24 v12, {20*1024}, v12")
        k.e("v_and_b32 v9, 15, v11"); k.e("v_lshlrev_b32 v10, 4, v14"); k.e("v_add_u32 v9, v9, v10"); k.e("v_lshlrev_b32 v9, 4, v9")
        k.e("v_add_u32 v12, v12, v9")
        k.e(f"v_mov_b32 v{RS+1}, v{RS}")
        k.e("v_cmp_gt_u32 vcc, 2048, v11"); k.e(f"v_mov_b32 v9, {OOB}"); k.e("v_cndmask_b32 v12, v9, v12, vcc")
        k.e("v_cmp_gt_u32 vcc, 32, v2"); k.e("v_cndmask_b32 v15, v9, v12, vcc")
        regs = [A(r, c) for c in range(5)]
        for c, a in enumerate(regs):
            for h in (0, 2): k.e(f"v_pk_fma_f32 {p2(a+h)}, {p2(MN)}, {p2(CSa(c)+h)}, {p2(a+h)}")
        for a in regs:
            for h in (0, 2): k.e(f"v_pk_mul_f32 {p2(a+h)}, {p2(a+h)}, {p2(RS)}")
        gen3.gelu_multi(k, regs, [206 + 4 * c for c in range(5)], C1, C2, ONE)
        PK = T + 12 * r
        for c, a in enumerate(regs):
            k.e(f"v_cvt_pk_bf16_f32 v{PK+2*c}, v{a}, v{a+1}"); k.e(f"v_cvt_pk_bf16_f32 v{PK+2*c+1}, v{a+2}, v{a+3}")
        store_t80(k, PK, 12, 15, 72, 88, 228 + 4 * r)
    e = k.label("nv")
    k.e("s_cmp_eq_u32 s79, 0"); k.e(f"s_cbranch_scc1 {e}")
    T = 180
    k.e("s_lshr_b32 s71, s84, 1"); k.e("s_mul_i32 s71, s71, 3072"); k.e("s_and_b32 s46, s84, 1"); k.e("s_lshl_b32 s46, s46, 10"); k.e("s_add_u32 s71, s71, s46")
    k.e(f"s_add_u32 s71, s71, {L.KVF + 1024}")
    k.e("v_and_b32 v9, 1, v14"); k.e("v_lshlrev_b32 v9, 5, v9"); k.e("v_add_u32 v9, v9, v13"); k.e("v_lshlrev_b32 v9, 4, v9")
    k.e("v_lshrrev_b32 v10, 1, v14"); k.e("v_lshlrev_b32 v10, 3, v10"); k.e("v_add_u32 v9, v9, v10")
    a = KVa(0); k.e(f"v_cvt_pk_bf16_f32 v{T}, v{a}, v{a+1}"); k.e(f"v_cvt_pk_bf16_f32 v{T+1}, v{a+2}, v{a+3}")
    k.e(f"buffer_store_dwordx2 v[{T}:{T+1}], v9, s[96:99], s71 offen")
    a = KVa(1); k.e(f"v_cvt_pk_bf16_f32 v{T+2}, v{a}, v{a+1}"); k.e(f"v_cvt_pk_bf16_f32 v{T+3}, v{a+2}, v{a+3}")
    k.e("v_cmp_gt_u32 vcc, 4, v13")
    k.e(f"v_cndmask_b32 v{T+2}, 0, v{T+2}, vcc"); k.e(f"v_cndmask_b32 v{T+3}, 0, v{T+3}, vcc")
    k.e("v_mov_b32 v10, 0x3f803f80")
    k.e("v_and_b32 v11, 11, v13"); k.e("v_cmp_eq_u32 vcc, 8, v11")
    k.e(f"v_cndmask_b32 v{T+2}, v{T+2}, v10, vcc"); k.e(f"v_cndmask_b32 v{T+3}, v{T+3}, v10, vcc")
    k.e("v_cmp_eq_u32 vcc, 9, v13"); k.e(f"v_cndmask_b32 v{T+2}, v{T+2}, v10, vcc")
    k.e("v_lshrrev_b32 v11, 2, v13"); k.e("v_cmp_ne_u32 vcc, 1, v11")
    k.e("v_add_u32 v9, 256, v9"); k.e(f"v_mov_b32 v10, {OOB}"); k.e("v_cndmask_b32 v9, v10, v9, vcc")
    k.e(f"buffer_store_dwordx2 v[{T+2}:{T+3}], v9, s[96:99], s71 offen")
    k.e(f"{e}:")


def assemble_text(ks):
    s = ""
    for (k, vg, nwg, lds, *rest) in ks:
        blk = rest[0] if rest else 256
        s += f"; @launch kernel={k.name} grid=({nwg},1,1) block=({blk},1,1) lds={lds}\n"
    s += '.amdgcn_target "amdgcn-amd-amdhsa--gfx950"\n.text\n'
    for (k, vg, nwg, lds, *rest) in ks: s += kernel_text(k, vg)
    s += "code_end:\n"
    s += TBL_TEXT
    s += '.section .rodata,"a"\n'
    for (k, vg, nwg, lds, *rest) in ks: s += descriptor(k.name, (vg + 7) // 8 * 8, 102)
    return s

def build_all():
    gen4.RAWX = True
    return [gen_k1(), gen4.gen_main()]

if __name__ == "__main__":
    PROF = "--prof" in sys.argv; gen3.PROF = PROF; gen4.PROF = PROF
    for a in sys.argv:
        if a.startswith("--abl="): ABL = a[6:]
    gen4.ADIAG = "--adiag" in sys.argv
    INNER = "--inner" in sys.argv
    if "--nopfk1" in sys.argv: PFK1 = 0
    if "--pfk3" in sys.argv: PFK1 = 3
    if "--nocodepf" in sys.argv: CODEPF = False
    if "--notlbpf" in sys.argv: TLBPF = False
    LSTAMP = "--lstamp" in sys.argv
    if "--wt" in sys.argv: WT = " sc1"
    if "--wtq" in sys.argv: WTQ = " sc1"
    gen5.WT = WT
    gen4.FINE = "--fine" in sys.argv
    gen4.NOB = "--nob" in sys.argv; gen4.NOA = "--noa" in sys.argv
    for a in sys.argv:
        if a.startswith("--pa="): gen4.PRIO_A = int(a[5:])
        if a.startswith("--pb="): gen4.PRIO_B = int(a[5:])
        if a.startswith("--pe="): gen4.PRIO_E = int(a[5:])
        if a.startswith("--pp="): gen4.PRIO_P2, gen4.PRIO_P3, gen4.PRIO_P4 = [int(c) for c in a[5:]]
    ks = build_all()
    open(sys.argv[1], "w").write(assemble_text(ks))
    for (k, vg, nwg, lds, *rest) in ks: print(k.name, "vgpr", vg, "wg", nwg, "lds", lds, "lines", len(k.lines))
```

```python
import sys
sys.path.insert(0, "work")
from asmfw import *
import layout as L
import korder as KO
import gen1, gen3
from gen1 import srd, ldptr, f32bits, KA, OOB, LOG2E, GELU_C1, GELU_C2
from gen3 import r4, r2, r16, allreduce16, decode_gj, store_t80, VStamps

ADIAG = False; RAWX = False; PROF = False; NOA = False; NOB = False; FINE = False; PFS = 0; PFALL = False
PRIO_A, PRIO_B, PRIO_E = 0, 0, 0
PRIO_P2, PRIO_P3, PRIO_P4 = 0, 0, 0
FL_X1, FL_H, FL_O, FL_CL = 0, 1024, 2048, 3072
SENT = True
POLL = 0
EARLY4 = True
CODEPF2 = False
PACE2 = PACE3 = PACE4 = None
CH, NB = 4, 4
CHB = CH * 3072
NCH = 64 // CH
SPIN_MAX = 400000

class VM:
    def __init__(self, k): self.k = k; self.q = []
    def issue(self, instr, tag): self.k.e(instr); self.q.append(tag)
    def wait(self, tag):
        idx = [i for i, t in enumerate(self.q) if t == tag]
        if not idx: return
        n = len(self.q) - 1 - idx[-1]
        self.k.e(f"s_waitcnt vmcnt({min(n, 63)})"); self.q = self.q[idx[-1] + 1:]
    def drained(self): self.q = []

def emit_publish(k, fl_base, fl2=None):
    lab = k.label("pub")
    k.e("s_waitcnt vmcnt(0)"); k.e("s_barrier")
    k.e("s_cmp_lg_u32 s3, 0"); k.e(f"s_cbranch_scc1 {lab}")
    k.e("s_lshl_b32 s46, s40, 3"); k.e("s_add_u32 s46, s46, s41"); k.e("s_lshl_b32 s46, s46, 2"); k.e(f"s_add_u32 s46, s46, {fl_base}")
    k.e("v_mov_b32 v252, 0"); k.e("v_mov_b32 v253, 1")
    k.e("s_mov_b64 s[34:35], exec"); k.e("s_mov_b64 exec, 1")
    k.e("buffer_store_dword v253, v252, s[28:31], s46 offen sc1")
    if fl2 is not None: k.e(f"buffer_store_dword v253, v252, s[28:31], s46 offen offset:{fl2 - fl_base} sc1")
    k.e("s_mov_b64 exec, s[34:35]")
    k.e(f"{lab}:")

def emit_wait_sent(k):
    lab = k.label("poll"); done = k.label("pdone")
    srd(k, 64, 4, L.OF, L.SZ_XF)
    k.e("v_lshrrev_b32 v4, 2, v2"); k.e("v_lshrrev_b32 v5, 1, v4"); k.e("v_add_u32 v5, 16, v5")
    k.e("v_bfe_u32 v204, v2, 1, 1"); k.e("v_mul_u32_u24 v204, 40, v204"); k.e("v_add_u32 v5, v5, v204"); k.e("v_lshlrev_b32 v5, 10, v5")
    k.e("v_and_b32 v4, 1, v4"); k.e("v_lshlrev_b32 v4, 1, v4"); k.e("v_and_b32 v204, 1, v2"); k.e("v_add_u32 v4, v4, v204"); k.e("v_lshlrev_b32 v4, 8, v4")
    k.e("v_add_u32 v5, v5, v4")
    k.e(f"v_mov_b32 v4, {OOB}"); k.e("v_cndmask_b32 v5, v4, v5, s[38:39]")
    k.e(f"s_mul_i32 s46, s40, {4*20*1024}")
    k.e(f"s_mov_b32 s47, {SPIN_MAX}")
    k.e(f"{lab}:")
    k.e("buffer_load_dwordx4 v[204:207], v5, s[64:67], s46 offen sc1")
    k.e("s_waitcnt vmcnt(0)")
    k.e("v_max3_u32 v204, v204, v205, v206"); k.e("v_max_u32 v204, v204, v207")
    k.e("v_cmp_eq_u32 vcc, -1, v204")
    k.e("s_cmp_eq_u64 vcc, 0")
    k.e(f"s_cbranch_scc1 {done}")
    k.e("s_sleep 1")
    k.e("s_sub_u32 s47, s47, 1"); k.e("s_cmp_lg_u32 s47, 0"); k.e(f"s_cbranch_scc1 {lab}")
    k.e(f"{done}:")

def emit_wait(k, fl_base):
    lab = k.label("poll"); done = k.label("pdone")
    k.e("s_lshl_b32 s46, s40, 5"); k.e(f"s_add_u32 s46, s46, {fl_base}")
    k.e("v_and_b32 v4, 7, v2"); k.e("v_lshlrev_b32 v4, 2, v4")
    k.e(f"s_mov_b32 s47, {SPIN_MAX}")
    if POLL == 0:
        k.e(f"{lab}:")
        k.e("buffer_load_dword v253, v4, s[28:31], s46 offen sc1")
        k.e("s_waitcnt vmcnt(0)")
        k.e("v_cmp_ne_u32 vcc, 1, v253"); k.e("s_cmp_eq_u64 vcc, 0"); k.e(f"s_cbranch_scc1 {done}")
        k.e("s_sub_u32 s47, s47, 1"); k.e("s_cmp_lg_u32 s47, 0"); k.e(f"s_cbranch_scc1 {lab}")
        k.e(f"{done}:")
        return
    k.e("buffer_load_dword v253, v4, s[28:31], s46 offen sc1")
    k.e(f"{lab}:")
    k.e(f"s_sleep {POLL}")
    k.e("buffer_load_dword v252, v4, s[28:31], s46 offen sc1")
    k.e("s_waitcnt vmcnt(1)")
    k.e("v_cmp_ne_u32 vcc, 1, v253"); k.e("s_cmp_eq_u64 vcc, 0"); k.e(f"s_cbranch_scc1 {done}")
    k.e(f"s_sleep {POLL}")
    k.e("buffer_load_dword v253, v4, s[28:31], s46 offen sc1")
    k.e("s_waitcnt vmcnt(1)")
    k.e("v_cmp_ne_u32 vcc, 1, v252"); k.e("s_cmp_eq_u64 vcc, 0"); k.e(f"s_cbranch_scc1 {done}")
    k.e("s_sub_u32 s47, s47, 1"); k.e("s_cmp_lg_u32 s47, 0"); k.e(f"s_cbranch_scc1 {lab}")
    k.e(f"{done}:")
    return ["poll"]

def emit_attn(k, st):
    name = k.name
    Q1 = [16, 24]; Q2 = [20, 28]; O = [32, 48]; Sx = [64, 80]; P = [96, 104]
    K1 = [112, 120]; K2r = [116, 124]; V0 = [128, 136]; V1 = [132, 140]
    vKa, vK2a = 5, 6
    MF = "v_mfma_f32_32x32x16_bf16"; MF8 = "v_mfma_f32_32x32x8_bf16"
    decode_gj(k, 0)
    if PRIO_A: k.e(f"s_setprio {PRIO_A}")
    k.e("s_and_b32 s42, s3, 1"); k.e("s_lshr_b32 s43, s3, 1")
    k.e("v_and_b32 v7, 31, v2"); k.e("v_lshlrev_b32 v8, 3, v7")
    k.e("s_lshl_b32 s46, s40, 6"); k.e("s_lshl_b32 s47, s43, 5"); k.e("s_add_u32 s46, s46, s47")
    k.e("v_add_u32 v9, s46, v7"); k.e("v_lshlrev_b32 v10, 2, v9")
    k.e("v_lshlrev_b32 v11, 3, v2")
    k.e("s_mul_i32 s44, s3, 3072")
    k.e("s_waitcnt lgkmcnt(0)")
    srd(k, 12, 4, L.QF, L.SZ_QF); srd(k, 8, 4, L.KVF, L.SZ_KVF); srd(k, 16, 4, L.KMAX, 512)
    srd(k, 20, 4, L.G, 8192); srd(k, 24, 4, L.OF, L.SZ_XF); srd(k, 28, 4, L.FLAGS, 4096)
    k.e("s_lshl_b32 s46, s41, 2"); k.e("s_lshl_b32 s47, s42, 1"); k.e("s_add_u32 s46, s46, s47"); k.e("s_lshl_b32 s46, s46, 6")
    k.e("s_lshl_b32 s47, s40, 1"); k.e("s_add_u32 s46, s46, s47"); k.e("s_add_u32 s46, s46, s43"); k.e("s_mul_i32 s46, s46, 1280")
    for qb in range(2):
        k.e(f"buffer_load_dwordx4 {r4(Q1[qb])}, v3, s[12:15], s46 offen")
        k.e(f"buffer_load_dwordx2 {r2(Q2[qb])}, v8, s[12:15], s46 offen offset:1024")
        if qb == 0: k.e(f"s_add_u32 s46, s46, {64*1280}")
    k.e("buffer_load_dwordx2 v[64:65], v11, s[16:19], 0 offen")
    k.e("buffer_load_dword v12, v10, s[20:23], 0 offen")
    def dma_all(chunk):
        k.e(f"s_add_u32 s45, s44, {chunk*CHB}"); k.e(f"s_add_u32 m0, s44, {chunk*CHB}"); k.e("s_nop 0")
        for i in range(3): k.e(f"buffer_load_dwordx4 v3, s[8:11], s45 offen offset:{i*1024} lds")
    for c in range(NB - 1): dma_all(c)
    st.stamp()
    for qb in range(2):
        for i in range(16): k.e(f"v_mov_b32 v{O[qb]+i}, 0")
    k.e("v_lshrrev_b32 v14, 3, v7"); k.e("v_lshlrev_b32 v15, 9, v14"); k.e("v_add_u32 v15, 1344, v15")
    k.e("v_and_b32 v14, 7, v7"); k.e("v_lshlrev_b32 v14, 3, v14"); k.e("v_add_u32 v15, v15, v14")
    k.e("v_cmp_gt_u32 vcc, 32, v2"); k.e("v_mov_b32 v14, 1424"); k.e("v_cndmask_b32 v15, v14, v15, vcc")
    k.e(f"v_mov_b32 v{vKa}, v3"); k.e(f"v_mov_b32 v{vK2a}, v15")
    for j in range(4, 8): k.e(f"v_mov_b32 v{P[1]+j}, 0")
    for j in range(12, 16): k.e(f"v_mov_b32 v{Sx[1]+j}, 0")
    for j in range(4): k.e(f"v_mov_b32 v{V1[1]+j}, 0")
    k.e(f"s_waitcnt vmcnt({3*(NB-1)})")
    st.stamp()
    k.e("v_max_f32 v64, v64, v65")
    for ror in (8, 4, 2, 1):
        k.e(f"v_max_f32_dpp v64, v64, v64 row_ror:{ror} row_mask:0xf bank_mask:0xf")
    allreduce16(k, "v_max_f32", 64, 65)
    for qb in range(2):
        t = 66 + 4 * qb
        k.e(f"v_cndmask_b32 v{t+2}, 0, v{Q2[qb]}, vcc"); k.e(f"v_cndmask_b32 v{t+3}, 0, v{Q2[qb]+1}, vcc")
        k.e(f"v_dot2_f32_bf16 v{t}, v{Q1[qb]}, v{Q1[qb]}, 0")
        for j in (1, 2, 3): k.e(f"v_dot2_f32_bf16 v{t}, v{Q1[qb]+j}, v{Q1[qb]+j}, v{t}")
        for j in (2, 3): k.e(f"v_dot2_f32_bf16 v{t}, v{t+j}, v{t+j}, v{t}")
    for qb in range(2):
        t = 66 + 4 * qb
        k.e(f"v_mov_b32 v{t+1}, v{t}"); k.e(f"v_permlane32_swap_b32 v{t}, v{t+1}"); k.e(f"v_add_f32 v{t}, v{t}, v{t+1}")
        k.e(f"v_mul_f32 v{t}, v{t}, v64"); k.e(f"v_sqrt_f32 v{t}, v{t}")
    for qb in range(2):
        t = 66 + 4 * qb
        k.e(f"v_mul_f32 v{t}, {f32bits(-1.01)}, v{t}")
        k.e(f"v_and_b32 v{t+1}, 0xffff0000, v{t}"); k.e(f"v_sub_f32 v{t+2}, v{t}, v{t+1}")
        k.e(f"v_cvt_pk_bf16_f32 v{t+2}, v{t+1}, v{t+2}")
        k.e(f"v_cndmask_b32 v{Q2[qb]}, v{t+2}, v{Q2[qb]}, vcc"); k.e(f"v_cndmask_b32 v{Q2[qb]+1}, 0, v{Q2[qb]+1}, vcc")
    k.e(f"s_waitcnt vmcnt({3*(NB-2)})"); k.e("s_barrier")
    def rd(kind, tile, b):
        o = tile * 3072
        if kind == 0: return f"ds_read_b128 {r4(K1[b])}, v{vKa} offset:{o}"
        if kind == 1: return f"ds_read_b64 {r2(K2r[b])}, v{vK2a} offset:{o}"
        if kind == 2: return f"ds_read_b128 {r4(V0[b])}, v{vKa} offset:{o+1024}"
        return f"ds_read_b128 {r4(V1[b])}, v{vKa} offset:{o+2048}"
    for kind in range(4): k.e(rd(kind, 0, 0))
    k.e("s_waitcnt lgkmcnt(2)")
    k.e(f"{MF} {r16(Sx[0])}, {r4(K1[0])}, {r4(Q1[0])}, 0")
    k.e(f"{MF8} {r16(Sx[0])}, {r2(K2r[0])}, {r2(Q2[0])}, {r16(Sx[0])}")
    k.e("s_mov_b32 s52, 0"); k.e("s_mov_b32 s53, 0")
    k.e(f"s_add_u32 s54, s44, {(NB-1)*CHB}"); k.e(f"s_add_u32 s56, s44, {(NB-1)*CHB}")
    k.e("s_nop 7"); k.e("s_nop 3")
    st.stamp()
    if ADIAG:
        for r in (70, 71, 72): k.e(f"s_mov_b32 s{r}, 0")
    if SENT:
        k.e("v_mov_b32 v154, 0"); k.e("v_mov_b32 v155, 0")
        k.e("s_lshl_b32 s62, s40, 3"); k.e("s_add_u32 s62, s62, s41"); k.e("s_lshl_b32 s62, s62, 2"); k.e(f"s_add_u32 s62, s62, {FL_CL}")
    loop = f"{name}_aloop"
    k.e(f"{loop}:")
    def E(i, S): return f"v_exp_f32 v{S+i}, v{S+i}"
    def C(j, S, Pq): return f"v_cvt_pk_bf16_f32 v{Pq+j}, v{S+2*j}, v{S+2*j+1}"
    for T in range(CH):
        b = T % 2; nb = 1 - b
        for qb in range(2):
            S = Sx[qb]; N = Sx[1 - qb]; Pq = P[qb]
            pq_prev = P[1 - qb]; o_prev = O[1 - qb]
            v1_prev = V1[b] if qb == 1 else V1[nb]
            kb = b if qb == 0 else nb
            nq = 1 - qb
            Cp = lambda j: C(j, N, pq_prev)
            seq = [E(0, S), E(1, S), Cp(6), E(2, S), E(3, S), Cp(7),
                   f"{MF} {r16(N)}, {r4(K1[kb])}, {r4(Q1[nq])}, 0",
                   E(4, S), E(5, S), C(0, S, Pq), E(6, S), E(7, S), C(1, S, Pq),
                   f"{MF8} {r16(N)}, {r2(K2r[kb])}, {r2(Q2[nq])}, {r16(N)}",
                   E(8, S), E(9, S), C(2, S, Pq), E(10, S), E(11, S), C(3, S, Pq),
                   f"{MF} {r16(o_prev)}, {r4(v1_prev)}, {r4(pq_prev+4)}, {r16(o_prev)}",
                   E(12, S), E(13, S), C(4, S, Pq), E(14, S), E(15, S), C(5, S, Pq),
                   f"{MF} {r16(O[qb])}, {r4(V0[b])}, {r4(Pq)}, {r16(O[qb])}"]
            side = {}
            def add(i, s): side.setdefault(i, []).append(s)
            if qb == 0:
                nt = T + 1
                if T == CH - 1:
                    add(4, f"s_add_u32 s53, s53, {CHB}"); add(4, f"s_cmp_eq_u32 s53, {NB*CHB}"); add(4, "s_cselect_b32 s53, 0, s53")
                    add(5, f"v_add_u32 v{vKa}, s53, v3"); add(5, f"v_add_u32 v{vK2a}, s53, v15")
                    if ADIAG: add(5, "s_memtime s[60:61]")
                    add(5, f"s_waitcnt vmcnt({3*(NB-2)}) lgkmcnt(0)")
                    if ADIAG: add(5, "s_memtime s[62:63]")
                    add(5, "s_barrier")
                    if ADIAG:
                        for x in ("s_memtime s[64:65]", "s_waitcnt lgkmcnt(0)", "s_sub_u32 s62, s62, s60", "s_add_u32 s70, s70, s62", "s_sub_u32 s64, s64, s60", "s_add_u32 s71, s71, s64"): add(5, x)
                    nt = 0
                else:
                    add(5, "s_waitcnt lgkmcnt(0)")
                add(6, rd(0, nt, nb)); add(13, rd(1, nt, nb)); add(20, rd(3, nt, nb)); add(27, rd(2, nt, nb))
            else:
                add(5, "s_waitcnt lgkmcnt(2)")
                if T < 3:
                    if T == 0:
                        add(6, f"s_cmp_lt_u32 s54, {NCH*CHB}"); add(6, f"s_cselect_b32 s55, s54, {OOB}"); add(6, "s_mov_b32 m0, s56")
                    if ADIAG: add(13, "s_memtime s[66:67]")
                    add(13, f"buffer_load_dwordx4 v3, s[8:11], s55 offen offset:{T*1024} lds")
                    if ADIAG:
                        for x in ("s_memtime s[68:69]", "s_waitcnt lgkmcnt(0)", "s_sub_u32 s68, s68, s66", "s_add_u32 s72, s72, s68"): add(13, x)
                    if T == 2:
                        add(20, f"s_add_u32 s54, s54, {CHB}"); add(20, f"s_add_u32 s56, s56, {CHB}")
                        add(27, f"s_sub_u32 s57, s56, s44"); add(27, f"s_cmp_eq_u32 s57, {NB*CHB}"); add(27, "s_cselect_b32 s56, s44, s56")
            if SENT and T == 3 and qb == 1:
                lab = k.label("clf")
                add(6, f"s_cmp_lg_u32 s52, {NCH-4}"); add(6, f"s_cbranch_scc1 {lab}")
                add(6, "buffer_load_dword v154, v155, s[28:31], s62 offen sc1"); add(6, f"{lab}:")
            for i, ins in enumerate(seq):
                k.e(ins)
                for s in side.get(i, []): k.e(s)
    k.e("s_add_u32 s52, s52, 1"); k.e(f"s_cmp_lt_u32 s52, {NCH}")
    k.e(f"s_cbranch_scc1 {loop}")
    st.stamp()
    k.e(C(6, Sx[1], P[1])); k.e(C(7, Sx[1], P[1]))
    k.e("s_nop 1")
    k.e(f"{MF} {r16(O[1])}, {r4(V1[(CH-1)%2])}, {r4(P[1]+4)}, {r16(O[1])}")
    k.e("s_nop 7"); k.e("s_nop 3")
    k.e(f"s_mov_b32 s58, {f32bits(2.0 ** -80)}")
    k.e(f"v_cmp_nle_f32 vcc, s58, v{O[0]+12}"); k.e(f"v_cmp_nle_f32 s[60:61], s58, v{O[1]+12}")
    k.e("s_or_b64 vcc, vcc, s[60:61]"); k.e("s_cmp_eq_u64 vcc, 0")
    k.e(f"s_cbranch_scc1 {name}_fast")
    emit_attn_slow(k, Q1, Q2, O, Sx, P, K1, K2r, V0, V1)
    k.e(f"{name}_fast:")
    k.e("v_lshrrev_b32 v18, 4, v9"); k.e(f"v_mul_u32_u24 v18, {20*1024}, v18")
    k.e("v_and_b32 v19, 15, v9"); k.e("v_lshlrev_b32 v19, 4, v19"); k.e("v_add_u32 v18, v18, v19")
    k.e("v_lshrrev_b32 v14, 5, v2"); k.e("v_lshlrev_b32 v19, 8, v14"); k.e("v_add_u32 v19, v18, v19")
    k.e("s_lshl_b32 s46, s41, 1"); k.e("s_add_u32 s46, s46, s42"); k.e("s_lshl_b32 s46, s46, 10")
    k.e("s_lshr_b32 s47, s41, 1"); k.e("s_add_u32 s47, s47, 16"); k.e("s_lshl_b32 s47, s47, 10")
    k.e("s_and_b32 s48, s41, 1"); k.e("s_lshl_b32 s48, s48, 1"); k.e("s_add_u32 s48, s48, s42"); k.e("s_lshl_b32 s48, s48, 8"); k.e("s_add_u32 s47, s47, s48")
    k.e("v_cmp_eq_u32 vcc, 0, v14"); k.e(f"v_mov_b32 v20, {OOB}"); k.e("v_cndmask_b32 v18, v20, v18, vcc")
    k.e("s_nop 4")
    for qb in range(2): k.e(f"v_rcp_f32 v{16+qb}, v{O[qb]+12}")
    for qb in range(2): k.e(f"v_mul_f32 v{16+qb}, v{16+qb}, v12")
    for qb in range(2):
        o = O[qb]
        for q in range(12): k.e(f"v_mul_f32 v{o+q}, v{16+qb}, v{o+q}")
        for q in range(4): k.e(f"v_cvt_pk_bf16_f32 v{64+4*qb+q}, v{o+2*q}, v{o+2*q+1}")
        for q in range(2): k.e(f"v_cvt_pk_bf16_f32 v{72+2*qb+q}, v{o+8+2*q}, v{o+9+2*q}")
        if not SENT: k.e(f"buffer_store_dwordx4 {r4(64+4*qb)}, v19, s[24:27], s46 offen offset:{qb*512} sc1")
    if SENT:
        ok = k.label("clok"); sp = k.label("clsp")
        k.e("s_waitcnt vmcnt(0)")
        k.e(f"s_mov_b32 s63, {SPIN_MAX}")
        k.e(f"{sp}:")
        k.e("v_cmp_eq_u32 vcc, 1, v154"); k.e("s_cmp_lg_u64 vcc, 0"); k.e(f"s_cbranch_scc1 {ok}")
        k.e("buffer_load_dword v154, v155, s[28:31], s62 offen sc1"); k.e("s_waitcnt vmcnt(0)")
        k.e("s_sub_u32 s63, s63, 1"); k.e("s_cmp_lg_u32 s63, 0"); k.e(f"s_cbranch_scc1 {sp}")
        k.e(f"{ok}:")
        for qb in range(2): k.e(f"buffer_store_dwordx4 {r4(64+4*qb)}, v19, s[24:27], s46 offen offset:{qb*512} sc1")
    k.e(f"buffer_store_dwordx4 {r4(72)}, v18, s[24:27], s47 offen sc1")
    if not SENT: emit_publish(k, FL_O)
    st.stamp(); st.stamp(real=True)
    if ADIAG:
        for i, r in enumerate((70, 71, 72)):
            k.e(f"v_mov_b32 v255, s{r}"); k.e(f"global_store_dword v254, v255, s[96:97] offset:{4*(10+i)}")

def emit_attn_slow(k, Q1, Q2, O, Sx, P, K1, K2r, V0, V1):
    name = k.name
    MF = "v_mfma_f32_32x32x16_bf16"; MF8 = "v_mfma_f32_32x32x8_bf16"
    k.e("s_waitcnt vmcnt(0) lgkmcnt(0)")
    k.e("v_cmp_gt_u32 vcc, 32, v2")
    Z = [144, 146]; M = [148, 149]
    for qb in range(2):
        k.e(f"v_cndmask_b32 v{Z[qb]}, 0, v{Q2[qb]}, vcc"); k.e(f"v_cndmask_b32 v{Z[qb]+1}, 0, v{Q2[qb]+1}, vcc")
        k.e(f"v_mov_b32 v{M[qb]}, 0xff800000")
    def loads(with_v):
        k.e(f"buffer_load_dwordx4 {r4(K1[0])}, v3, s[8:11], s59 offen")
        k.e(f"buffer_load_dwordx2 {r2(K2r[0])}, v15, s[8:11], s59 offen")
        if with_v:
            k.e(f"buffer_load_dwordx4 {r4(V0[0])}, v3, s[8:11], s59 offen offset:1024")
            k.e(f"buffer_load_dwordx4 {r4(V1[0])}, v3, s[8:11], s59 offen offset:2048")
        k.e("s_waitcnt vmcnt(0)")
    k.e("s_mov_b32 s59, 0")
    l1 = f"{name}_slow1"
    k.e(f"{l1}:")
    loads(False)
    for qb in range(2):
        k.e(f"{MF} {r16(Sx[qb])}, {r4(K1[0])}, {r4(Q1[qb])}, 0")
        k.e(f"{MF8} {r16(Sx[qb])}, {r2(K2r[0])}, {r2(Z[qb])}, {r16(Sx[qb])}")
    k.e("s_nop 7"); k.e("s_nop 7")
    for qb in range(2):
        for i in range(0, 16, 2): k.e(f"v_max3_f32 v{M[qb]}, v{M[qb]}, v{Sx[qb]+i}, v{Sx[qb]+i+1}")
    k.e("s_add_u32 s59, s59, 3072"); k.e(f"s_cmp_lt_u32 s59, {64*3072}"); k.e(f"s_cbranch_scc1 {l1}")
    for qb in range(2):
        t = 150
        k.e(f"v_mov_b32 v{t}, v{M[qb]}"); k.e(f"v_permlane32_swap_b32 v{M[qb]}, v{t}"); k.e(f"v_max_f32 v{M[qb]}, v{M[qb]}, v{t}")
        k.e(f"v_sub_f32 v{t}, 0, v{M[qb]}")
        k.e(f"v_and_b32 v{t+1}, 0xffff0000, v{t}"); k.e(f"v_sub_f32 v{t+2}, v{t}, v{t+1}")
        k.e(f"v_cvt_pk_bf16_f32 v{t+2}, v{t+1}, v{t+2}")
        k.e(f"v_cndmask_b32 v{Q2[qb]}, v{t+2}, v{Q2[qb]}, vcc")
        for i in range(16): k.e(f"v_mov_b32 v{O[qb]+i}, 0")
    k.e("s_mov_b32 s59, 0")
    l2 = f"{name}_slow2"
    k.e(f"{l2}:")
    loads(True)
    for qb in range(2):
        k.e(f"{MF} {r16(Sx[qb])}, {r4(K1[0])}, {r4(Q1[qb])}, 0")
        k.e(f"{MF8} {r16(Sx[qb])}, {r2(K2r[0])}, {r2(Q2[qb])}, {r16(Sx[qb])}")
    k.e("s_nop 7"); k.e("s_nop 7")
    for qb in range(2):
        for i in range(16): k.e(f"v_exp_f32 v{Sx[qb]+i}, v{Sx[qb]+i}")
        k.e("s_nop 1")
        for j in range(8): k.e(f"v_cvt_pk_bf16_f32 v{P[qb]+j}, v{Sx[qb]+2*j}, v{Sx[qb]+2*j+1}")
    k.e("s_nop 1")
    for qb in range(2):
        k.e(f"{MF} {r16(O[qb])}, {r4(V0[0])}, {r4(P[qb])}, {r16(O[qb])}")
        k.e(f"{MF} {r16(O[qb])}, {r4(V1[0])}, {r4(P[qb]+4)}, {r16(O[qb])}")
    k.e("s_nop 7"); k.e("s_nop 7")
    k.e("s_add_u32 s59, s59, 3072"); k.e(f"s_cmp_lt_u32 s59, {64*3072}"); k.e(f"s_cbranch_scc1 {l2}")

ACC, SET0, XK, OMG = 16, 96, 240, 250
A5 = lambda r, c: ACC + (r * 5 + c) * 4

def ksplit_phase(k, vm, xoff, xsize, nksx, woff, wsize, nks, sc1, wait, first_zero, extra_after_issue=None, NSET=4, prio=None, verify=False,
                 XS=None, WS=None, VW=None, VX=None, w_preissued=False, only_w_prefetch=False, pace=None):
    PRIO_B = globals()['PRIO_B'] if prio is None else prio
    XS = XS or (lambda s, r: SET0 + s * 36 + r * 4)
    WS = WS or (lambda s, c: SET0 + s * 36 + 16 + c * 4)
    VW = VW or [10, 11, 12, 13, 14]
    VX = VX or [6, 7, 8, 9]
    T = (nks + 3) // 4
    def soff(i, sreg):
        if 4 * i + 3 >= nks:
            k.e(f"s_add_u32 s{sreg}, s3, {4*i}")
            k.e(f"s_lshl_b32 s47, s{sreg}, 10"); k.e(f"s_cmp_lt_u32 s{sreg}, {nks}"); k.e(f"s_cselect_b32 s{sreg}, s47, {OOB}")
        else:
            k.e(f"s_add_u32 s{sreg}, s58, {4*i*1024}")
    ldW = lambda i, c: vm.issue(f"buffer_load_dwordx4 {r4(WS(i%NSET,c))}, v{VW[c]}, s[52:55], s59 offen", ("W", i))
    sc = " sc1" if sc1 else ""
    ldX = lambda i, r: vm.issue(f"buffer_load_dwordx4 {r4(XS(i%NSET,r))}, v{VX[r]}, s[48:51], s59 offen{sc}", ("X", i))
    npre = min(NSET, T)
    if not w_preissued:
        srd(k, 52, 4, woff, wsize)
        k.e(f"s_mul_i32 s46, s45, {nks*1024}"); k.e(f"v_add_u32 v{VW[0]}, s46, v3")
        for c in range(1, 5): k.e(f"v_add_u32 v{VW[c]}, {c*nks*1024}, v{VW[0]}")
        k.e("s_lshl_b32 s58, s3, 10")
    if only_w_prefetch:
        for i in range(npre):
            soff(i, 59)
            for c in range(5): ldW(i, c)
        return
    srd(k, 48, 4, xoff, xsize)
    for r in range(4):
        k.e(f"s_add_u32 s46, s3, {r}"); k.e("s_and_b32 s46, s46, 3"); k.e("s_lshl_b32 s47, s40, 2"); k.e("s_add_u32 s46, s46, s47")
        k.e(f"s_mul_i32 s46, s46, {nksx*1024}"); k.e(f"v_add_u32 v{VX[r]}, s46, v3")
    if wait:
        if not w_preissued:
            for i in range(npre):
                soff(i, 59)
                for c in range(5): ldW(i, c)
        wait(k); vm.drained()
        for i in range(npre):
            soff(i, 59)
            for r in range(4): ldX(i, r)
    else:
        for i in range(npre):
            soff(i, 59)
            for c in range(5): ldW(i, c)
            for r in range(4): ldX(i, r)
    if extra_after_issue: extra_after_issue()
    if PRIO_B: k.e(f"s_setprio {PRIO_B}")
    for i in range(T):
        vm.wait(("X", i))
        s = i % NSET; n = i + NSET
        if verify:
            chk = k.label("vchk"); okl = k.label("vok")
            k.e(f"s_mov_b32 s60, {SPIN_MAX}")
            k.e(f"{chk}:")
            xr = [XS(s, r) + q for r in range(4) for q in range(4)]
            k.e(f"v_max3_u32 v4, v{xr[0]}, v{xr[1]}, v{xr[2]}")
            for q in range(3, 15, 2): k.e(f"v_max3_u32 v4, v4, v{xr[q]}, v{xr[q+1]}")
            k.e(f"v_max_u32 v4, v4, v{xr[15]}")
            k.e("v_cmp_eq_u32 vcc, -1, v4"); k.e("s_cmp_eq_u64 vcc, 0"); k.e(f"s_cbranch_scc1 {okl}")
            soff(i, 61)
            for r in range(4): k.e(f"buffer_load_dwordx4 {r4(XS(s,r))}, v{VX[r]}, s[48:51], s61 offen sc1")
            k.e("s_waitcnt vmcnt(0)")
            k.e("s_sub_u32 s60, s60, 1"); k.e("s_cmp_lg_u32 s60, 0"); k.e(f"s_cbranch_scc1 {chk}")
            k.e(f"{okl}:")
        if n < T: soff(n, 59)
        for c in range(5):
            for r in range(4):
                cc = "0" if (i == 0 and first_zero) else r4(A5(r, c))
                k.e(f"v_mfma_f32_16x16x32_bf16 {r4(A5(r,c))}, {r4(WS(s,c))}, {r4(XS(s,r))}, {cc}")
                if pace is not None: k.e(f"s_nop {pace}")
            if n < T: ldW(n, c)
        if n < T:
            for r in range(4): ldX(n, r)
    k.e(f"s_setprio {PRIO_E}")

def l2_prefetch(k, vm, poff, psize, stride):
    n = psize // stride; per_wg = (n + 31) // 32; per_wave = (per_wg + 3) // 4; n_i = (per_wave + 63) // 64
    srd(k, 88, 4, poff, psize)
    k.e("s_sub_u32 s46, s2, 256"); k.e("s_lshr_b32 s46, s46, 3"); k.e("s_lshl_b32 s46, s46, 2"); k.e("s_add_u32 s46, s46, s3")
    k.e(f"s_mul_i32 s46, s46, {per_wave*stride}")
    k.e(f"v_mul_u32_u24 v4, {stride}, v2")
    for i in range(n_i):
        if (i + 1) * 64 > per_wave:
            k.e(f"v_cmp_gt_u32 vcc, {per_wave - i*64}, v2"); k.e(f"v_mov_b32 v5, {OOB}"); k.e("v_cndmask_b32 v4, v5, v4, vcc")
        vm.issue(f"buffer_load_dword v251, v4, s[88:91], s46 offen", "pf")
        if i + 1 < n_i: k.e(f"s_add_u32 s46, s46, {64*stride}")

def reduce4(k, pre=None):
    blk = 5 * 1024
    for j in range(1, 4):
        k.e(f"s_add_u32 s46, s3, {j}"); k.e("s_and_b32 s46, s46, 3")
        k.e(f"s_mul_i32 s46, s46, {3*blk}"); k.e(f"s_add_u32 s46, s46, {(j-1)*blk}")
        k.e("v_add_u32 v4, s46, v3")
        for c in range(5): k.e(f"ds_write_b128 v4, {r4(A5(j,c))} offset:{c*1024}")
    if pre: pre()
    k.e(f"s_mul_i32 s46, s3, {3*blk}"); k.e("v_add_u32 v5, s46, v3")
    k.e("s_waitcnt lgkmcnt(0)"); k.e("s_barrier")
    for j in range(1, 4):
        for c in range(5): k.e(f"ds_read_b128 {r4(A5(j,c))}, v5 offset:{((j-1)*5 + c)*1024}")
    for j in range(1, 4):
        k.e(f"s_waitcnt lgkmcnt({(3-j)*5})")
        for c in range(5):
            a, t = A5(0, c), A5(j, c)
            k.e(f"v_pk_add_f32 v[{a}:{a+1}], v[{a}:{a+1}], v[{t}:{t+1}]"); k.e(f"v_pk_add_f32 v[{a+2}:{a+3}], v[{a+2}:{a+3}], v[{t+2}:{t+3}]")

def p3_params(k):
    k.e("s_sub_u32 s46, s41, 6"); k.e("s_max_i32 s95, s46, 0")
    k.e("s_mul_i32 s92, s41, 14"); k.e("s_lshl_b32 s46, s95, 1"); k.e("s_sub_u32 s92, s92, s46")
    k.e("s_lshl_b32 s46, s3, 2"); k.e("s_cmp_eq_u32 s3, 3"); k.e("s_cselect_b32 s46, 11, s46")
    k.e("s_mul_i32 s47, s3, 3"); k.e("s_cmp_ge_u32 s41, 6"); k.e("s_cselect_b32 s46, s47, s46")
    k.e("s_add_u32 s45, s92, s46")
    k.e("s_cmp_lt_u32 s3, 2"); k.e("s_cselect_b32 s93, 4, 3"); k.e("s_cmp_ge_u32 s41, 6"); k.e("s_cselect_b32 s93, 3, s93")

def emit_bchain(k, st):
    decode_gj(k, 256)
    k.e("s_waitcnt lgkmcnt(0)")
    srd(k, 28, 4, L.FLAGS, 4096)
    k.e("v_cmp_gt_u32 s[38:39], 32, v2")
    vm = VM(k)
    k.e("s_mul_i32 s45, s41, 5")
    k.e("s_lshl_b32 s70, s40, 2"); k.e("s_add_u32 s70, s70, s3")
    def extra2():
        srd(k, 84, 4, L.G, 8192)
        k.e("s_lshl_b32 s47, s70, 4"); k.e("v_and_b32 v5, 15, v2"); k.e("v_add_u32 v5, s47, v5"); k.e("v_lshlrev_b32 v4, 2, v5")
        if RAWX:
            srd(k, 76, 32, 0, 2048 * 1280)
            k.e("v_mul_u32_u24 v5, 1280, v5"); k.e("v_lshrrev_b32 v15, 4, v2"); k.e("v_lshlrev_b32 v15, 3, v15"); k.e("v_add_u32 v5, v5, v15")
            k.e("s_mul_i32 s89, s41, 160")
            for c in range(5): vm.issue(f"buffer_load_dwordx2 v[{XK+2*c}:{XK+2*c+1}], v5, s[76:79], s89 offen offset:{c*32}", "xr")
        else:
            srd(k, 76, 4, L.XF, L.SZ_XF)
            for c in range(5):
                k.e(f"s_add_u32 s88, s45, {c}"); gen1.f16_soff(k, 89, 70, 88, 20)
                vm.issue(f"buffer_load_dwordx2 v[{XK+2*c}:{XK+2*c+1}], v3, s[76:79], s89 offen", "xr")
        vm.issue(f"buffer_load_dword v{OMG}, v4, s[84:87], 0 offen", "xr")
        if SENT:
            srd(k, 64, 4, L.OF, L.SZ_XF)
            for q in range(4): k.e(f"v_mov_b32 v{204+q}, -1")
            k.e("s_lshl_b32 s46, s40, 2"); k.e("s_add_u32 s46, s46, s3"); k.e("s_mul_i32 s46, s46, 20")
            k.e("s_lshl_b32 s47, s41, 1"); k.e("s_add_u32 s47, s47, s46"); k.e("s_lshl_b32 s47, s47, 10")
            vm.issue("buffer_store_dwordx4 v[204:207], v3, s[64:67], s47 offen sc1", "se")
            vm.issue("buffer_store_dwordx4 v[204:207], v3, s[64:67], s47 offen offset:1024 sc1", "se")
            k.e("s_lshr_b32 s47, s41, 1"); k.e("s_add_u32 s47, s47, 16"); k.e("s_add_u32 s47, s47, s46"); k.e("s_lshl_b32 s47, s47, 10")
            k.e("s_and_b32 s46, s41, 1"); k.e("s_lshl_b32 s46, s46, 9"); k.e("s_add_u32 s47, s47, s46")
            k.e(f"v_mov_b32 v4, {OOB}"); k.e("v_cndmask_b32 v4, v4, v3, s[38:39]")
            vm.issue("buffer_store_dwordx4 v[204:207], v4, s[64:67], s47 offen sc1", "se")
            k.e("s_nop 1")
        if PFS:
            l2_prefetch(k, vm, L.W3P, L.SZ_W3, PFS)
            if PFALL: l2_prefetch(k, vm, L.W4P, L.SZ_W4, PFS)
    ksplit_phase(k, vm, L.HS, L.SZ_XF, 20, L.W2P, L.SZ_WDD, 20, False, None, True, extra2, NSET=3 if RAWX else 4, prio=PRIO_P2, pace=PACE2)
    st.stamp()
    k.e("s_setprio 0")
    WS3 = lambda s, c: 96 + s * 16 + c * 4
    NS3 = 6
    p3_params(k)
    srd(k, 52, 4, L.W3P, L.SZ_W3)
    k.e(f"s_mul_i32 s46, s45, {20*1024}"); k.e("v_add_u32 v10, s46, v3")
    for c in range(1, 4): k.e(f"v_add_u32 v{10+c}, {c*20*1024}, v10")
    k.e("s_cmp_eq_u32 s93, 4"); k.e("s_cselect_b64 vcc, -1, 0")
    k.e(f"v_mov_b32 v9, {OOB}"); k.e("v_cndmask_b32 v13, v9, v13, vcc")
    ldW3 = lambda i, c: vm.issue(f"buffer_load_dwordx4 {r4(WS3(i%NS3,c))}, v{10+c}, s[52:55], s59 offen", ("W3", i))
    k.e(f"s_setprio {PRIO_E}")
    T = 168
    def pre2():
        srd(k, 72, 4, L.X1F, L.SZ_XF); srd(k, 80, 4, L.X1ST, 2048 * 64)
        k.e(f"s_mul_i32 s71, s70, {20*1024}"); k.e(f"v_add_u32 v6, s71, v3")
        k.e(f"v_mov_b32 v7, {OOB}"); k.e("v_cndmask_b32 v7, v7, v6, s[38:39]")
        vm.wait("xr")
        k.e(f"v_sub_f32 v{OMG}, 1.0, v{OMG}")
        for c in range(5):
            xr = XK + 2 * c; u = T + 24 + 4 * c
            k.e(f"v_lshlrev_b32 v{u}, 16, v{xr}"); k.e(f"v_and_b32 v{u+1}, 0xffff0000, v{xr}")
            k.e(f"v_lshlrev_b32 v{u+2}, 16, v{xr+1}"); k.e(f"v_and_b32 v{u+3}, 0xffff0000, v{xr+1}")
        k.e("s_lshl_b32 s47, s70, 4"); k.e("v_and_b32 v14, 15, v2"); k.e("v_add_u32 v14, s47, v14")
        k.e("v_lshlrev_b32 v14, 6, v14"); k.e("s_lshl_b32 s89, s41, 3")
        k.e("v_cmp_gt_u32 vcc, 16, v2"); k.e(f"v_mov_b32 v9, {OOB}"); k.e("v_cndmask_b32 v14, v9, v14, vcc")
    reduce4(k, pre2)
    if FINE: st.stamp()
    for c in range(5):
        a = A5(0, c); u = T + 24 + 4 * c
        k.e(f"v_pk_add_f32 v[{a}:{a+1}], v[{a}:{a+1}], v[{u}:{u+1}]"); k.e(f"v_pk_add_f32 v[{a+2}:{a+3}], v[{a+2}:{a+3}], v[{u+2}:{u+3}]")
    for c in range(5):
        a = A5(0, c)
        k.e(f"v_cvt_pk_bf16_f32 v{XK+2*c}, v{a}, v{a+1}"); k.e(f"v_cvt_pk_bf16_f32 v{XK+2*c+1}, v{a+2}, v{a+3}")
    store_t80(k, XK, 6, 7, 72, 41, 212, " sc1")
    k.e("s_mov_b32 s71, 0x3f803f80")
    k.e(f"v_dot2_f32_bf16 v216, v{XK}, s71, 0"); k.e(f"v_dot2_f32_bf16 v217, v{XK}, v{XK}, 0")
    for q in range(1, 10):
        k.e(f"v_dot2_f32_bf16 v216, v{XK+q}, s71, v216"); k.e(f"v_dot2_f32_bf16 v217, v{XK+q}, v{XK+q}, v217")
    allreduce16(k, "v_add_f32", 216, 218); allreduce16(k, "v_add_f32", 217, 219)
    k.e("buffer_store_dwordx2 v[216:217], v14, s[80:83], s89 offen sc1")
    k.e("s_setprio 0")
    XB = lambda s, r: 192 + s * 16 + r * 4
    CN = lambda r: 224 + 4 * r
    A3 = lambda r, c: ACC + (r * 4 + c) * 4
    if FINE: st.stamp()
    emit_publish(k, FL_X1, FL_CL if SENT else None)
    if FINE: st.stamp()
    vm.drained()
    srd(k, 80, 4, L.CS3P, 20 * 1728 * 4)
    k.e("v_lshlrev_b32 v4, 2, v2"); k.e("s_lshl_b32 s89, s45, 6")
    for ks in range(20):
        vm.issue(f"buffer_load_dword v{220+ks}, v4, s[80:83], s89 offen", "cp")
        k.e(f"s_add_u32 s89, s89, {1728*4}")
    for i in range(NS3):
        k.e(f"s_mov_b32 s59, {i*1024}")
        for c in range(4): ldW3(i, c)
    if not FINE: st.stamp()
    emit_wait(k, FL_X1); vm.drained()
    st.stamp()
    srd(k, 48, 4, L.X1F, L.SZ_XF); srd(k, 76, 4, L.X1ST, 2048 * 64); srd(k, 84, 4, L.G, 8192)
    k.e(f"s_mul_i32 s59, s70, {20*1024}")
    for ks in range(20):
        if ks % 4 == 0 and ks: k.e(f"s_add_u32 s59, s59, 4096")
        vm.issue(f"buffer_load_dwordx4 {r4(ACC+4*ks)}, v3, s[48:51], s59 offen offset:{(ks%4)*1024} sc1", "xs")
    k.e("v_lshrrev_b32 v9, 4, v2"); k.e("v_lshlrev_b32 v8, 4, v9")
    for r in range(4):
        k.e("s_lshl_b32 s46, s40, 6"); k.e(f"s_add_u32 s46, s46, {16*r}"); k.e("v_and_b32 v5, 15, v2"); k.e("v_add_u32 v5, s46, v5")
        k.e("v_lshlrev_b32 v6, 6, v5"); k.e("v_add_u32 v6, v6, v8")
        vm.issue(f"buffer_load_dwordx4 {r4(192+4*r)}, v6, s[76:79], 0 offen sc1", "st")
        k.e("v_lshlrev_b32 v6, 2, v5")
        vm.issue(f"buffer_load_dword v{208+r}, v6, s[84:87], 0 offen", "st")
    k.e(f"s_mul_i32 s46, s3, {20*1024}"); k.e("v_add_u32 v4, s46, v3")
    vm.wait("xs")
    k.e(f"s_setprio {PRIO_E}")
    for ks in range(20): k.e(f"ds_write_b128 v4, {r4(ACC+4*ks)} offset:{ks*1024}")
    vm.wait("st")
    for q in range(1, 10): k.e(f"v_add_f32 v220, v220, v{220+q}"); k.e(f"v_add_f32 v230, v230, v{230+q}")
    k.e("v_add_f32 v251, v220, v230")
    for r in range(4):
        s_ = 192 + 4 * r; c_ = CN(r)
        k.e(f"v_add_f32 v{s_}, v{s_}, v{s_+2}"); k.e(f"v_add_f32 v{s_+1}, v{s_+1}, v{s_+3}")
        allreduce16(k, "v_add_f32", s_, s_ + 2); allreduce16(k, "v_add_f32", s_ + 1, s_ + 3)
        k.e(f"v_mul_f32 v{c_}, {f32bits(-1/640)}, v{s_}"); k.e(f"v_mul_f32 v{s_+1}, {f32bits(1/640)}, v{s_+1}")
        k.e(f"v_fma_f32 v{s_+1}, -v{c_}, v{c_}, v{s_+1}"); k.e(f"v_add_f32 v{s_+1}, {f32bits(1e-5)}, v{s_+1}"); k.e(f"v_rsq_f32 v{s_+1}, v{s_+1}")
        k.e(f"v_sub_f32 v{s_+2}, 1.0, v{208+r}")
        k.e(f"v_mul_f32 v{s_+3}, v{s_+1}, v{s_+1}")
        k.e(f"v_mul_f32 v{c_+2}, {f32bits(GELU_C2)}, v{s_+1}")
        k.e(f"v_mul_f32 v{c_+3}, v{s_+1}, v{s_+2}")
        k.e(f"v_mul_f32 v{s_+3}, v{s_+3}, v{s_+1}")
        k.e(f"v_mul_f32 v{c_+1}, {f32bits(GELU_C1)}, v{s_+3}")
    k.e("v_mov_b32 v14, v3"); k.e(f"v_add_u32 v15, {60*1024}, v3")
    k.e("s_waitcnt lgkmcnt(0)"); k.e("s_barrier")
    def rdX(i, r):
        o = (r * 20 + i) * 1024
        return f"ds_read_b128 {r4(XB(i%2,r))}, v14 offset:{o}" if r < 3 else f"ds_read_b128 {r4(XB(i%2,r))}, v15 offset:{o-60*1024}"
    if FINE: st.stamp()
    k.e(f"s_setprio {PRIO_P3}")
    for r in range(4): k.e(rdX(0, r))
    k.e("s_cmp_eq_u32 s93, 4"); k.e("s_cselect_b64 vcc, -1, 0")
    CSR = None
    for i in range(20):
        vm.wait(("W3", i))
        k.e("s_waitcnt lgkmcnt(0)")
        n = i + NS3
        if n < 20: k.e(f"s_mov_b32 s59, {n*1024}")
        for c in range(4):
            if c == 3:
                lab = k.label("sk"); k.e(f"s_cbranch_vccz {lab}")
            for r in range(4):
                cc = "0" if i == 0 else r4(A3(r, c))
                k.e(f"v_mfma_f32_16x16x32_bf16 {r4(A3(r,c))}, {r4(WS3(i%NS3,c))}, {r4(XB(i%2,r))}, {cc}")
                if PACE3 is not None: k.e(f"s_nop {PACE3}")
                if c == 0 and i + 1 < 20: k.e(rdX(i + 1, r))
            if c == 3: k.e(f"{lab}:")
            if n < 20: ldW3(n, c)
        if RAWX and i in (14, 15):
            CSR = WS3(14 % NS3, 0)
            for c in (0, 1) if i == 14 else (2, 3):
                for q in range(4): k.e(f"ds_bpermute_b32 v{CSR+4*c+q}, v8, v251 offset:{(16*c+q)*4}")
        if i == 14:
            CSR = WS3(14 % NS3, 0)
            if RAWX:
                pass
            else:
                srd(k, 80, 4, L.CS3, 1728 * 4)
                k.e("s_lshl_b32 s71, s45, 6")
                for c in range(4): vm.issue(f"buffer_load_dwordx4 {r4(CSR+4*c)}, v8, s[80:83], s71 offen offset:{c*64}", "cs")
    st.stamp()
    k.e("s_setprio 0")
    k.e("s_mov_b32 s91, s45")
    k.e("s_mul_i32 s45, s41, 5")
    WS4 = lambda s, c: (96 + 4 * (s * 5 + c)) if (s * 5 + c) < 8 else (144 + 4 * (s * 5 + c - 8))
    XS4 = lambda s, r: (192 + 16 * s + 4 * r) if s < 3 else (128 + 4 * r)
    VW4 = [5, 6, 7, 9, 14]
    if EARLY4: ksplit_phase(k, vm, L.HF, L.SZ_HF, 54, L.W4P, L.SZ_W4, 54, True, None, True, WS=WS4, XS=XS4, VW=VW4, VX=[10, 11, 12, 13], only_w_prefetch=True)
    k.e(f"s_setprio {PRIO_E}")
    srd(k, 72, 4, L.HF, L.SZ_HF)
    k.e("s_mul_i32 s88, s41, 7"); k.e("s_sub_u32 s88, s88, s95")
    k.e("s_lshl_b32 s46, s3, 1"); k.e("s_cmp_eq_u32 s3, 3"); k.e("s_cselect_b32 s46, 5, s46")
    k.e("s_cmp_ge_u32 s41, 6"); k.e("s_cselect_b32 s46, s3, s46")
    k.e("s_add_u32 s89, s88, s46"); k.e("s_lshl_b32 s89, s89, 10")
    k.e("s_lshr_b32 s46, s3, 1"); k.e("s_add_u32 s46, s46, 4"); k.e("s_cmp_ge_u32 s41, 6"); k.e("s_cselect_b32 s46, s46, 6")
    k.e("s_add_u32 s90, s88, s46"); k.e("s_lshl_b32 s90, s90, 10"); k.e("s_and_b32 s46, s3, 1"); k.e("s_lshl_b32 s46, s46, 9"); k.e("s_add_u32 s90, s90, s46")
    TT = 192; ONE = 208; PK = 212
    k.e(f"v_mov_b32 v{ONE}, 1.0"); k.e(f"v_mov_b32 v{ONE+1}, 1.0")
    k.e("s_waitcnt lgkmcnt(0)")
    p2 = lambda x: f"v[{x}:{x+1}]"
    for r in range(4):
        c_ = CN(r)
        regs = [A3(r, c) for c in range(4)]
        bc = lambda x: p2(x & ~1)
        sel = lambda x: (x & 1)
        def bsel(x, pos, n=3):
            lo = [0] * n; hi = [1] * n
            lo[pos] = x & 1; hi[pos] = x & 1
            return f"op_sel:[{','.join(map(str,lo))}] op_sel_hi:[{','.join(map(str,hi))}]"
        for c, a in enumerate(regs):
            for h in (0, 2): k.e(f"v_pk_fma_f32 {p2(a+h)}, {bc(c_)}, {p2(CSR+4*c+h)}, {p2(a+h)} {bsel(c_,0)}")
        for c, a in enumerate(regs):
            for h in (0, 2): k.e(f"v_pk_mul_f32 {p2(TT+4*c+h)}, {p2(a+h)}, {p2(a+h)}")
        for c, a in enumerate(regs):
            for h in (0, 2):
                k.e(f"v_pk_fma_f32 {p2(TT+4*c+h)}, {p2(TT+4*c+h)}, {bc(c_+1)}, {bc(c_+2)} op_sel:[0,{(c_+1)&1},{(c_+2)&1}] op_sel_hi:[1,{(c_+1)&1},{(c_+2)&1}]")
        for c, a in enumerate(regs):
            for h in (0, 2): k.e(f"v_pk_mul_f32 {p2(TT+4*c+h)}, {p2(TT+4*c+h)}, {p2(a+h)}")
        for c in range(4):
            for q in range(4): k.e(f"v_exp_f32 v{TT+4*c+q}, v{TT+4*c+q}")
        for c, a in enumerate(regs):
            for h in (0, 2): k.e(f"v_pk_mul_f32 {p2(a+h)}, {p2(a+h)}, {bc(c_+3)} {bsel(c_+3,1,2)}")
        for c in range(4):
            for h in (0, 2): k.e(f"v_pk_add_f32 {p2(TT+4*c+h)}, {p2(TT+4*c+h)}, {p2(ONE)}")
        for c in range(4):
            for q in range(4): k.e(f"v_rcp_f32 v{TT+4*c+q}, v{TT+4*c+q}")
        for c, a in enumerate(regs):
            for h in (0, 2): k.e(f"v_pk_mul_f32 {p2(a+h)}, {p2(a+h)}, {p2(TT+4*c+h)}")
        pk = PK + 8 * (r % 2)
        for c, a in enumerate(regs):
            k.e(f"v_cvt_pk_bf16_f32 v{pk+2*c}, v{a}, v{a+1}"); k.e(f"v_cvt_pk_bf16_f32 v{pk+2*c+1}, v{a+2}, v{a+3}")
        k.e("s_lshl_b32 s46, s40, 2"); k.e(f"s_add_u32 s46, s46, {r}"); k.e(f"s_mul_i32 s46, s46, {54*1024}"); k.e("v_add_u32 v12, s46, v3")
        k.e(f"buffer_store_dwordx4 {r4(pk)}, v12, s[72:75], s89 offen sc1")
        l3 = k.label("c3"); le = k.label("ce")
        k.e(f"s_cbranch_vccz {l3}")
        k.e(f"buffer_store_dwordx4 {r4(pk+4)}, v12, s[72:75], s89 offen offset:1024 sc1")
        k.e(f"s_branch {le}")
        k.e(f"{l3}:")
        k.e(f"v_mov_b32 v{pk+6}, v{pk+4}"); k.e(f"v_mov_b32 v{pk+7}, v{pk+5}")
        k.e(f"v_mov_b32 v13, {OOB}"); k.e("v_cndmask_b32 v13, v13, v12, s[38:39]")
        k.e(f"v_permlane32_swap_b32 v{pk+4}, v{pk+6}"); k.e(f"v_permlane32_swap_b32 v{pk+5}, v{pk+7}")
        k.e(f"buffer_store_dwordx4 {r4(pk+4)}, v13, s[72:75], s90 offen sc1")
        k.e(f"{le}:")
        k.e("s_nop 1")
    k.e("s_setprio 0")
    if FINE: st.stamp()
    emit_publish(k, FL_H); vm.drained()
    st.stamp()
    ksplit_phase(k, vm, L.HF, L.SZ_HF, 54, L.W4P, L.SZ_W4, 54, True, lambda kk: emit_wait(kk, FL_H), True, prio=PRIO_P4, WS=WS4, XS=XS4, VW=VW4, VX=[10, 11, 12, 13], w_preissued=EARLY4, pace=PACE4)
    k.e("s_setprio 0")
    st.stamp()
    def waitO(kk):
        if SENT: emit_wait_sent(kk)
        else: emit_wait(kk, FL_O)
        st.stamp()
    ksplit_phase(k, vm, L.OF, L.SZ_XF, 20, L.WOP, L.SZ_WDD, 20, True, waitO, False, prio=PRIO_E, verify=SENT, NSET=3 if SENT else 4)
    T = SET0
    def pre4():
        srd(k, 72, 6, 0, 2048 * 1280)
        k.e("s_lshl_b32 s47, s70, 4"); k.e("v_and_b32 v14, 15, v2"); k.e("v_add_u32 v14, s47, v14")
        k.e("v_mul_u32_u24 v12, 1280, v14"); k.e("v_lshrrev_b32 v13, 4, v2"); k.e("v_lshlrev_b32 v13, 3, v13"); k.e("v_add_u32 v12, v12, v13")
        k.e("s_lshl_b32 s71, s45, 5")
        for c in range(5):
            xr = XK + 2 * c; u = T + 24 + 4 * c
            k.e(f"v_lshlrev_b32 v{u}, 16, v{xr}"); k.e(f"v_and_b32 v{u+1}, 0xffff0000, v{xr}")
            k.e(f"v_lshlrev_b32 v{u+2}, 16, v{xr+1}"); k.e(f"v_and_b32 v{u+3}, 0xffff0000, v{xr+1}")
    reduce4(k, pre4)
    for c in range(5):
        a = A5(0, c); u = T + 24 + 4 * c
        for h in (0, 2):
            k.e(f"v_pk_fma_f32 v[{a+h}:{a+h+1}], v[{OMG}:{OMG+1}], v[{u+h}:{u+h+1}], v[{a+h}:{a+h+1}] op_sel:[0,0,0] op_sel_hi:[0,1,1]")
    for c in range(5):
        a = A5(0, c)
        k.e(f"v_cvt_pk_bf16_f32 v{T+2*c}, v{a}, v{a+1}"); k.e(f"v_cvt_pk_bf16_f32 v{T+2*c+1}, v{a+2}, v{a+3}")
        k.e(f"buffer_store_dwordx2 v[{T+2*c}:{T+2*c+1}], v12, s[72:75], s71 offen offset:{c*32}")
    st.stamp()
    if st.on: k.e("s_waitcnt vmcnt(0)")
    st.stamp(); st.stamp(real=True)

class SStamps:
    def __init__(self, k, on, kidx, pairs, vt=254):
        self.k = k; self.on = on; self.n = 0; self.kidx = kidx; self.pairs = pairs; self.real = []; self.vt = vt
    def stamp(self, real=False):
        if not self.on: return
        r = self.pairs[self.n]; self.n += 1
        self.k.e(f"s_memtime s[{r}:{r+1}]" if not real else f"s_memrealtime s[{r}:{r+1}]")
    def flush(self):
        if not self.on: return
        k = self.k
        k.e("s_waitcnt vmcnt(0) lgkmcnt(0)")
        k.e(f"s_add_u32 s96, s4, {L.STAMP + self.kidx*512*4*64}"); k.e("s_addc_u32 s97, s5, 0")
        k.e("s_lshl_b32 s98, s2, 2"); k.e("s_add_u32 s98, s98, s3"); k.e("s_lshl_b32 s98, s98, 6")
        k.e(f"v_mov_b32 v{self.vt}, s98")
        for i in range(self.n):
            k.e(f"v_mov_b32 v{self.vt+1}, s{self.pairs[i]}")
            k.e(f"global_store_dword v{self.vt}, v{self.vt+1}, s[96:97] offset:{4*i}")
            k.e("s_nop 1")
        k.e("s_waitcnt vmcnt(0)")

def gen_main():
    k = Kern("main_kernel")
    name = k.name
    k.e("s_cmp_ge_u32 s2, 512"); k.e(f"s_cbranch_scc1 {name}_end")
    ldptr(k, 4, "ws"); ldptr(k, 6, "out"); ldptr(k, 32, "x")
    k.e("v_lshrrev_b32 v1, 6, v0"); k.e("v_and_b32 v2, 63, v0")
    k.e("v_readfirstlane_b32 s3, v1")
    k.e("v_lshlrev_b32 v3, 4, v2")
    if CODEPF2:
        lab0 = k.label("cq")
        k.e("s_cmp_lg_u32 s3, 3"); k.e(f"s_cbranch_scc1 {lab0}")
        k.e("s_cmp_ge_u32 s2, 32"); k.e(f"s_cbranch_scc1 {lab0}")
        k.e("s_getpc_b64 s[36:37]")
        k.e(f"{name}_cp:")
        k.e(f"s_sub_u32 s36, s36, {name}_cp-{name}"); k.e("s_subb_u32 s37, s37, 0")
        k.e("v_lshlrev_b32 v6, 7, v2")
        for i in range(4):
            k.e(f"v_cmp_gt_u32 vcc, code_end-{name}, v6")
            k.e("s_and_saveexec_b64 s[38:39], vcc")
            lab = k.label("cp")
            k.e(f"s_cbranch_execz {lab}")
            k.e("global_load_dword v253, v6, s[36:37]")
            k.e(f"{lab}:")
            k.e("s_mov_b64 exec, s[38:39]")
            if i < 3: k.e("v_add_u32 v6, 8192, v6")
        k.e(f"{lab0}:")
    k.e("s_cmp_ge_u32 s2, 256"); k.e(f"s_cbranch_scc1 {name}_B")
    stA = VStamps(k, PROF, 8); stA.stamp(); stA.stamp(real=True)
    if NOA:
        decode_gj(k, 0); k.e("s_waitcnt lgkmcnt(0)"); srd(k, 28, 4, L.FLAGS, 4096); emit_publish(k, FL_O)
        for _ in range(5): stA.stamp()
        stA.stamp(real=True)
    else:
        emit_attn(k, stA)
    stA.flush()
    k.e("s_endpgm")
    k.e(f"{name}_B:")
    stB = SStamps(k, PROF, 8, list(range(8, 28, 2)) + [60, 62, 64, 66, 68, 98]); stB.stamp(); stB.stamp(real=True)
    if NOB: k.e("s_endpgm")
    emit_bchain(k, stB)
    stB.flush()
    k.e(f"{name}_end:")
    k.e("s_endpgm")
    return k, 256, 512, 81920

def epi_kv4(g):
    k = g.k
    n0 = len(k.lines)
    gen1.epi_kv(g)
    lines = k.lines
    i = lines.index("v_and_b32 v10, 11, v7", n0)
    T = g.tmp0
    new = ["v_cmp_eq_u32 s[88:89], 9, v7", f"v_cndmask_b32 v{T+7}, v{T+7}, 0, s[88:89]" if False else f"v_mov_b32 v14, 0", f"v_cndmask_b32 v{T+7}, v{T+7}, v14, s[88:89]", "s_or_b64 vcc, vcc, s[88:89]"]
    k.lines = lines[:i] + new + lines[i:]

def build_all():
    gen1.PROF = False
    gen3.TABLES[2] = ("t14", KO.t14b, 54)
    gen3.TBL_TEXT, gen3.TBL_OFF = gen3.table_text()
    ks = []
    ks.append(gen3.gen_prep())
    segD = lambda xoff, woff, wsize=L.SZ_WDD: dict(xoff=xoff, xsize=L.SZ_XF, nksx=20, woff=woff, wsize=wsize, nksw=20, nks=20)
    ks.append(gen1.gen_gemm("p1q_kernel", 256, 4, 5, 3, [segD(L.XF, L.WQP)], gen1.dec_p1q, gen1.epi_q, kidx=1))
    ks.append(gen1.gen_gemm("p1h_kernel", 256, 4, 5, 3, [segD(L.XF, L.W1P)], gen1.dec_p1h, gen3.epi_h3, kidx=2))
    ks.append(gen1.gen_gemm("p1kv_kernel", 32, 4, 4, 3, [segD(L.XF, L.WKVP, 4*20*1024)], gen1.dec_kv, epi_kv4, swap=[False, False, True, True], kidx=3))
    ks.append(gen_main())
    return ks

if __name__ == "__main__":
    PROF = "--prof" in sys.argv; gen3.PROF = PROF
    FINE = "--fine" in sys.argv
    PFALL = "--pfall" in sys.argv
    for a in sys.argv:
        if a.startswith("--pfs="): PFS = int(a[6:])
    NOB = "--nob" in sys.argv; NOA = "--noa" in sys.argv
    for a in sys.argv:
        if a.startswith("--pa="): PRIO_A = int(a[5:])
        if a.startswith("--pb="): PRIO_B = int(a[5:])
        if a.startswith("--pe="): PRIO_E = int(a[5:])
    ks = build_all()
    out = sys.argv[1]
    open(out, "w").write(gen3.assemble_text(ks))
    for (k, vg, nwg, lds) in ks: print(k.name, "vgpr", vg, "wg", nwg, "lds", lds, "lines", len(k.lines))
```

```python
import sys
sys.path.insert(0, "work")
from asmfw import *
import layout as L
import korder as KO
import gen1, gen3, gen4, gen5
from gen1 import srd, ldptr, f32bits, KA, OOB, LOG2E, GELU_C1, GELU_C2
from gen3 import r4, r2, r16, allreduce16, store_t80
from gen4 import VM, SStamps
from gen5 import TBL_OFF, TBL_TEXT, QSCALE, epi_h5

PROF = False
ABL = ''
INNER = False
PFK1 = 1
CODEPF = True
TLBPF = True
LSTAMP = False
WT = ''
PPC = False
PPSPLIT = True
ROWMAP = False
WTH = None
WTQ = ''
WROW = 320
XB_, WB_, KVB_, GWB_ = 0, 8192, 8192 + 20480, 8192 + 20480 + 3072
SLOT = 32768
NSL = 4
PPB = NSL * SLOT
K1_LDS = PPB + 6 * 4096

def gen_k1():
    k = Kern("front_kernel")
    name = k.name
    st = SStamps(k, PROF, 1, [60, 62, 64, 66, 16, 68, 100], vt=210)
    def istamp(i):
        if not (PROF and INNER): return
        lab = k.label("is"); r = [64, 66, 16, 68, 92, 94][i]
        k.e("s_cmp_lg_u32 s83, 5"); k.e(f"s_cbranch_scc1 {lab}"); k.e(f"s_memtime s[{r}:{r+1}]"); k.e(f"{lab}:")
    k.e("s_cmp_ge_u32 s2, 256"); k.e(f"s_cbranch_scc1 {name}_end")
    st.stamp(); st.stamp(real=True)
    for r, nm in ((6, "x"), (8, "wq"), (10, "w1"), (12, "wk"), (14, "wv"), (18, "gw")): ldptr(k, r, nm)
    ldptr(k, 4, "ws")
    for r, nm in ((20, "w2"), (22, "wo"), (24, "w3"), (26, "w4")): ldptr(k, r, nm)
    k.e("v_lshrrev_b32 v1, 6, v0"); k.e("v_and_b32 v2, 63, v0")
    k.e("v_lshlrev_b32 v3, 4, v2")
    k.e("v_readfirstlane_b32 s3, v1")
    if ROWMAP:
        gen3.decode_gj(k, 0)
    else:
        k.e("s_and_b32 s46, s2, 7"); k.e("s_lshr_b32 s47, s2, 3")
        k.e("s_lshr_b32 s40, s46, 1"); k.e("s_lshl_b32 s40, s40, 3"); k.e("s_lshr_b32 s49, s47, 2"); k.e("s_add_u32 s40, s40, s49")
        k.e("s_and_b32 s41, s46, 1"); k.e("s_lshl_b32 s41, s41, 2"); k.e("s_and_b32 s49, s47, 3"); k.e("s_add_u32 s41, s41, s49")
    k.e("s_lshr_b32 s42, s41, 2"); k.e("s_and_b32 s43, s41, 3")
    k.e("s_cmp_ge_u32 s3, 4"); k.e(f"s_cbranch_scc0 {name}_compute")
    k.e("s_sub_u32 s3, s3, 4")
    k.e("s_mul_i32 s46, s40, 3"); k.e("s_mul_i32 s47, s46, 6554"); k.e("s_lshr_b32 s47, s47, 16"); k.e("s_mul_i32 s47, s47, 10"); k.e("s_sub_u32 s48, s46, s47")
    k.e("v_lshrrev_b32 v4, 3, v2"); k.e("v_and_b32 v5, 7, v2")
    k.e("s_lshl_b32 s46, s3, 3"); k.e("v_add_u32 v6, s46, v4")
    k.e("v_bfe_u32 v7, v6, 1, 3"); k.e("v_xor_b32 v7, v7, v5"); k.e("v_lshlrev_b32 v7, 4, v7")
    k.e("s_lshl_b32 s47, s40, 6"); k.e("v_add_u32 v6, s47, v6"); k.e("v_mul_u32_u24 v6, 1280, v6")
    k.e("v_add_u32 v200, v6, v7"); k.e(f"v_add_u32 v201, {32*1280}, v200")
    k.e(f"s_mov_b32 s50, {(1<<32)//WROW + 1}"); k.e("s_mul_i32 s51, s43, 320")
    for i in range(5):
        k.e(f"s_add_u32 s46, s3, {4*i}"); k.e("s_lshl_b32 s46, s46, 10"); k.e("v_add_u32 v6, s46, v3")
        k.e("v_mul_hi_u32 v7, v6, s50")
        k.e(f"v_mul_u32_u24 v8, {WROW}, v7"); k.e("v_sub_u32 v8, v6, v8")
        k.e("v_bfe_u32 v10, v7, 2, 1")
        k.e("v_and_b32 v9, 0x33, v7"); k.e("v_lshl_or_b32 v9, v10, 3, v9")
        k.e("v_bfe_u32 v11, v7, 3, 1"); k.e("v_lshl_or_b32 v9, v11, 2, v9")
        k.e("v_lshlrev_b32 v10, 5, v10"); k.e("v_xor_b32 v8, v8, v10")
        k.e("v_mul_u32_u24 v9, 1280, v9"); k.e("v_add_u32 v9, v9, v8"); k.e(f"v_add_u32 v{202+i}, s51, v9")
    k.e("s_lshl_b32 s46, s3, 10"); k.e("v_add_u32 v6, s46, v3"); k.e(f"v_mov_b32 v7, {OOB}")
    k.e("v_cmp_gt_u32 vcc, 2560, v6"); k.e("v_cndmask_b32 v6, v7, v6, vcc")
    k.e("v_cmp_gt_u32 vcc, 128, v3"); k.e("v_cndmask_b32 v8, v7, v3, vcc")
    k.e("s_cmp_eq_u32 s3, 3"); k.e("s_cselect_b64 vcc, -1, 0"); k.e("v_cndmask_b32 v207, v6, v8, vcc")
    k.e("s_waitcnt lgkmcnt(0)")
    srd(k, 28, 6, 0, 2048 * 1280)
    k.e("s_cmp_eq_u32 s42, 0")
    k.e("s_cselect_b32 s32, s8, s10"); k.e("s_cselect_b32 s33, s9, s11"); k.e(f"s_mov_b32 s34, {640*1280}"); k.e("s_mov_b32 s35, 0x20000")
    k.e("s_cselect_b32 s52, s12, s14"); k.e("s_cselect_b32 s53, s13, s15"); k.e(f"s_mov_b32 s54, {640*40}"); k.e("s_mov_b32 s55, 0x20000")
    k.e("s_cmp_eq_u32 s3, 3")
    k.e("s_cselect_b32 s52, s18, s52"); k.e("s_cselect_b32 s53, s19, s53"); k.e("s_cselect_b32 s54, 1280, s54")
    k.e("s_mov_b32 s46, 2560"); k.e("s_cselect_b32 s70, 128, s46")
    k.e("s_lshl_b32 s46, s3, 10"); k.e(f"s_add_u32 s71, s46, {KVB_}")
    k.e("s_lshl_b32 s72, s3, 10")
    vm = VM(k)
    def issue_stage(t):
        slot = (t % NSL) * SLOT
        k.e("s_lshl_b32 s74, s48, 7"); k.e(f"s_mul_i32 s75, s48, {64*1280}"); k.e("s_mul_i32 s76, s48, s70")
        if ABL in ("same", "samenoread"):
            k.e("s_mov_b32 s74, 0"); k.e("s_mov_b32 s75, 0"); k.e("s_mov_b32 s76, 0")
        for i in range(2):
            k.e(f"s_add_u32 m0, s72, {slot + XB_ + i*4096}"); k.e("s_nop 0")
            vm.issue(f"buffer_load_dwordx4 v{200+i}, s[28:31], s74 offen lds", ("S", t))
        for i in range(5):
            k.e(f"s_add_u32 m0, s72, {slot + WB_ + i*4096}"); k.e("s_nop 0")
            vm.issue(f"buffer_load_dwordx4 v{202+i}, s[32:35], s75 offen lds", ("S", t))
        k.e(f"s_add_u32 m0, s71, {slot}"); k.e("s_nop 0")
        vm.issue("buffer_load_dwordx4 v207, s[52:55], s76 offen lds", ("S", t))
        k.e("s_add_u32 s48, s48, 1"); k.e("s_cmp_eq_u32 s48, 10"); k.e("s_cselect_b32 s48, 0, s48")
    def do_pf():
            k.e("s_lshr_b32 s46, s2, 3"); k.e("s_mul_i32 s46, s46, 200"); k.e("s_mul_i32 s47, s3, 50"); k.e("s_add_u32 s46, s46, s47"); k.e("s_lshl_b32 s46, s46, 7")
            k.e("v_lshlrev_b32 v6, 7, v2"); k.e(f"v_mov_b32 v7, {OOB}"); k.e("v_cmp_gt_u32 vcc, 50, v2"); k.e("v_cndmask_b32 v6, v7, v6, vcc")
            k.e("buffer_load_dword v20, v6, s[32:35], s46 offen")
            k.e("s_lshl_b32 s46, s40, 6"); k.e("s_lshl_b32 s47, s43, 4"); k.e("s_add_u32 s46, s46, s47"); k.e("s_lshl_b32 s47, s3, 2"); k.e("s_add_u32 s46, s46, s47"); k.e("s_mul_i32 s46, s46, 1280")
            k.e("v_lshlrev_b32 v6, 7, v2"); k.e("v_cmp_gt_u32 vcc, 40, v2"); k.e("v_cndmask_b32 v6, v7, v6, vcc")
            k.e("buffer_load_dword v21, v6, s[28:31], s46 offen")
            vm.q += ["pf", "pf"]
    if PFK1 == 1: do_pf()
    issue_stage(0)
    if PFK1 == 3: do_pf()
    if PFK1 != 4: issue_stage(1)
    st.stamp()
    def prepack_loads():
        k.e("s_getpc_b64 s[80:81]")
        k.e(f"{name}_pc:")
        k.e(f"s_add_u32 s80, s80, korder_table-{name}_pc"); k.e("s_addc_u32 s81, s81, 0")
        k.e("v_lshrrev_b32 v10, 5, v2"); k.e("v_bfe_u32 v11, v2, 3, 2"); k.e("v_and_b32 v12, 7, v2"); k.e("v_lshlrev_b32 v12, 4, v12")
        for pas in range(2):
            P = f"{name}_pp{pas}"
            k.e("s_mul_i32 s46, s2, 6"); k.e("s_add_u32 s46, s46, s3"); k.e("s_mov_b32 s49, 0")
            if pas:
                k.e("s_add_u32 s46, s46, 4"); k.e("s_cmp_lt_u32 s3, 2"); k.e("s_cselect_b32 s46, s46, 9999")
            k.e("s_cmp_lt_u32 s46, 400"); k.e(f"s_cbranch_scc1 {P}_lo")
            k.e("s_cmp_lt_u32 s46, 940"); k.e(f"s_cbranch_scc1 {P}_w3")
            k.e("s_cmp_lt_u32 s46, 1480"); k.e(f"s_cbranch_scc1 {P}_w4")
            k.e("s_mov_b32 s46, 0"); k.e("s_mov_b32 s49, 1"); k.e(f"s_branch {P}_w2")
            k.e(f"{P}_lo:")
            k.e("s_cmp_ge_u32 s46, 200"); k.e(f"s_cbranch_scc1 {P}_wo")
            for nm, ptr, start, dst, ld, ncg, nks, order in (("w2", 20, 0, L.W2P, 1280, 10, 20, "t80"), ("wo", 22, 200, L.WOP, 1280, 10, 20, "oord"),
                                                               ("w3", 24, 400, L.W3P, 3456, 27, 20, "t80"), ("w4", 26, 940, L.W4P, 1280, 10, 54, "t14")):
                k.e(f"{P}_{nm}:")
                if start: k.e(f"s_sub_u32 s46, s46, {start}")
                k.e(f"s_mul_hi_u32 s47, s46, {(1<<32)//ncg + 1}")
                k.e(f"s_mul_i32 s50, s47, {ncg}"); k.e("s_sub_u32 s50, s46, s50")
                k.e(f"s_mov_b32 s84, s{ptr}"); k.e(f"s_mov_b32 s85, s{ptr+1}"); k.e(f"s_mov_b32 s86, {32*nks*ld}")
                k.e(f"s_mov_b32 s51, {ld}")
                k.e(f"s_lshl_b32 s79, s47, 5"); k.e(f"s_add_u32 s79, s79, {TBL_OFF[order]}")
                k.e(f"s_lshl_b32 s82, s50, 2"); k.e(f"s_mul_i32 s82, s82, {nks}"); k.e("s_add_u32 s82, s82, s47"); k.e("s_lshl_b32 s82, s82, 10"); k.e(f"s_add_u32 s82, s82, {dst}")
                k.e(f"s_mov_b32 s83, {nks*1024}")
                k.e(f"s_mov_b32 s{56+pas}, {1 if nm == 'w3' else 0}")
                k.e(f"s_branch {P}_go")
            k.e(f"{P}_go:")
            k.e("s_mov_b32 s87, 0x20000")
            k.e("s_cmp_eq_u32 s49, 0"); k.e(f"s_cselect_b32 s82, s82, {OOB}"); k.e(f"s_cselect_b32 s50, s50, 0x00ffff00")
            k.e(f"s_mov_b32 s{8+4*pas}, s82"); k.e(f"s_mov_b32 s{9+4*pas}, s83"); k.e(f"s_mov_b32 s{10+4*pas}, s47"); k.e(f"s_mov_b32 s{11+4*pas}, s50")
            k.e("s_add_u32 s90, s80, s79"); k.e("s_addc_u32 s91, s81, 0")
            k.e("s_load_dwordx8 s[92:99], s[90:91], 0")
            k.e("s_lshl_b32 s50, s50, 7")
            k.e("s_waitcnt lgkmcnt(0)")
            for i in range(4):
                k.e(f"v_mul_lo_u32 v6, v10, s{96+i}"); k.e("v_add_u32 v6, v6, v11"); k.e(f"v_add_u32 v6, s{92+i}, v6")
                k.e("v_mul_lo_u32 v6, v6, s51"); k.e("v_add_u32 v6, v6, v12")
                k.e("s_lshl_b32 s46, s3, 12"); k.e(f"s_add_u32 m0, s46, {PPB + pas*4*4096 + i*1024}"); k.e("s_nop 0")
                vm.issue("buffer_load_dwordx4 v6, s[84:87], s50 offen lds", "P")
    srd(k, 72 + 0, 4, 0, L.WS_END) if False else None
    k.e("v_lshrrev_b32 v14, 4, v2")
    for q in range(4): k.e(f"v_mov_b32 v{96+q}, 0x3f803f80")
    vm.wait(("S", 0))
    st.stamp()
    k.e("s_barrier")
    if PFK1 == 4: issue_stage(1)
    issue_stage(2); issue_stage(3)
    def prepack_process(which=(0, 1), extras=True):
        ONES = 96
        vm.wait("P")
        k.e("v_lshrrev_b32 v5, 4, v2"); k.e("v_lshlrev_b32 v5, 2, v5"); k.e("v_and_b32 v6, 15, v2"); k.e("v_lshrrev_b32 v7, 2, v6"); k.e("v_add_u32 v5, v5, v7")
        k.e("v_lshlrev_b32 v5, 7, v5"); k.e("v_and_b32 v6, 3, v2"); k.e("v_lshlrev_b32 v6, 3, v6"); k.e("v_add_u32 v5, v5, v6")
        k.e("s_lshl_b32 s46, s3, 12"); k.e(f"s_add_u32 s46, s46, {PPB}"); k.e("v_add_u32 v5, s46, v5")
        for pas in which:
            if pas:
                k.e(f"s_cmp_ge_u32 s3, 2"); k.e(f"s_cbranch_scc1 {name}_ppdone")
                k.e("v_add_u32 v5, 16384, v5")
            for c in range(4):
                k.e(f"ds_read_b64_tr_b16 v[{100+4*c}:{101+4*c}], v5 offset:{c*32}")
                k.e(f"ds_read_b64_tr_b16 v[{102+4*c}:{103+4*c}], v5 offset:{c*32+2048}")
            k.e("s_waitcnt lgkmcnt(0)")
            k.e(f"s_mov_b32 s46, s{8+4*pas}")
            for c in range(4):
                k.e(f"buffer_store_dwordx4 {r4(100+4*c)}, v3, s[96:99], s46 offen{WT}")
                if c < 3: k.e(f"s_add_u32 s46, s46, s{9+4*pas}")
            sk = k.label("nocs")
            k.e(f"s_cmp_eq_u32 s{56+pas}, 0"); k.e(f"s_cbranch_scc1 {sk}")
            for c in range(4):
                k.e(f"v_dot2_f32_bf16 v{120+c}, v{100+4*c}, v{ONES}, 0")
                for q in range(1, 4): k.e(f"v_dot2_f32_bf16 v{120+c}, v{100+4*c+q}, v{ONES}, v{120+c}")
            for c in range(4): allreduce16(k, "v_add_f32", 120 + c, 124)
            k.e("v_cmp_eq_u32 vcc, 1, v14"); k.e("v_cndmask_b32 v120, v120, v121, vcc")
            k.e("v_cmp_eq_u32 vcc, 2, v14"); k.e("v_cndmask_b32 v120, v120, v122, vcc")
            k.e("v_cmp_eq_u32 vcc, 3, v14"); k.e("v_cndmask_b32 v120, v120, v123, vcc")
            k.e(f"s_mul_i32 s46, s{10+4*pas}, {1728*4}"); k.e(f"s_lshl_b32 s47, s{11+4*pas}, 8"); k.e("s_add_u32 s46, s46, s47"); k.e(f"s_add_u32 s46, s46, {L.CS3P}")
            k.e("v_lshlrev_b32 v6, 2, v2")
            k.e("buffer_store_dword v120, v6, s[96:99], s46 offen")
            k.e(f"{sk}:")
        if 1 in which: k.e(f"{name}_ppdone:")
        if not extras: return
        z = k.label("nz")
        k.e("s_cmp_lg_u32 s2, 0"); k.e(f"s_cbranch_scc1 {z}")
        for q in range(4): k.e(f"v_mov_b32 v{100+q}, 0")
        k.e("s_lshl_b32 s46, s3, 10"); k.e(f"s_add_u32 s46, s46, {L.FLAGS}")
        k.e("buffer_store_dwordx4 v[100:103], v3, s[96:99], s46 offen")
        k.e("s_cmp_ge_u32 s3, 2"); k.e(f"s_cbranch_scc1 {z}")
        k.e("s_lshl_b32 s46, s3, 6"); k.e("v_add_u32 v6, s46, v2")
        k.e("v_mul_u32_u24 v7, 205, v6"); k.e("v_lshrrev_b32 v7, 12, v7")
        k.e("v_mul_u32_u24 v8, 20, v7"); k.e("v_sub_u32 v8, v6, v8")
        k.e("v_mov_b32 v9, v7"); k.e("v_cmp_lt_u32 vcc, 2, v7"); k.e("v_subrev_u32 v10, 1, v7"); k.e("v_cndmask_b32 v9, v9, v10, vcc")
        k.e("v_cmp_eq_u32 vcc, 5, v7"); k.e("v_mov_b32 v10, 3"); k.e("v_cndmask_b32 v9, v9, v10, vcc")
        k.e("v_mov_b32 v10, 0")
        for c, row in ((1, 2047), (3, 1), (4, 2046), (5, 2047)):
            k.e(f"v_cmp_eq_u32 vcc, {c}, v7"); k.e(f"v_mov_b32 v11, {row}"); k.e("v_cndmask_b32 v10, v10, v11, vcc")
        k.e("v_lshrrev_b32 v11, 4, v10"); k.e(f"v_mul_u32_u24 v11, {20*1024}, v11")
        k.e("v_mul_u32_u24 v9, 5, v9"); k.e("v_lshrrev_b32 v12, 2, v8"); k.e("v_add_u32 v9, v9, v12"); k.e("v_lshlrev_b32 v9, 10, v9"); k.e("v_add_u32 v11, v11, v9")
        k.e("v_and_b32 v12, 3, v8"); k.e("v_lshlrev_b32 v12, 4, v12"); k.e("v_and_b32 v9, 15, v10"); k.e("v_add_u32 v12, v12, v9"); k.e("v_lshlrev_b32 v12, 4, v12"); k.e("v_add_u32 v11, v11, v12")
        k.e("v_cmp_gt_u32 vcc, 120, v6"); k.e(f"v_mov_b32 v12, {OOB}"); k.e("v_cndmask_b32 v11, v12, v11, vcc")
        k.e(f"s_mov_b32 s46, {L.HS}")
        k.e("buffer_store_dwordx4 v[100:103], v11, s[96:99], s46 offen")
        k.e(f"{z}:")
    for t in range(10):
        if t + 1 < 10 and (ABL != "nodma" or t + 1 < 4): vm.wait(("S", t + 1))
        if PROF and LSTAMP: k.e(f"s_memtime s[{[36,38,58,6,18,16,64,66,68,30][t]}:{[36,38,58,6,18,16,64,66,68,30][t]+1}]") if t not in (3,4) or True else None
        k.e("s_barrier")
        if t + 4 < 10 and ABL != "nodma": issue_stage(t + 4)
        if t == 5 and not PPC: prepack_loads(); srd(k, 96, 4, 0, L.WS_END)
        if PPSPLIT and t == 7: prepack_process((0,), extras=False)
        if PPSPLIT and t == 8: prepack_process((1,), extras=True)
    if not PPC and not PPSPLIT: prepack_process()
    if st.on and LSTAMP:
        sp = st.pairs; st.pairs = [60, 62, 36, 38, 58, 6, 18, 16, 64, 66, 68, 30]; st.n = 12; st.kidx = 2; st.flush(); st.kidx = 1; st.pairs = sp
        st.n = 2
    elif st.on:
        st.stamp(); k.e("s_waitcnt vmcnt(0)"); st.stamp(); st.stamp(real=True); st.kidx = 2; st.flush(); st.kidx = 1
        st.n = 2
    k.e("s_endpgm")
    k.e(f"{name}_compute:")
    if PFK1 == 4:
        k.e("s_waitcnt lgkmcnt(0)")
        k.e("s_cmp_eq_u32 s42, 0"); k.e("s_cselect_b32 s32, s8, s10"); k.e("s_cselect_b32 s33, s9, s11"); k.e(f"s_mov_b32 s34, {640*1280}"); k.e("s_mov_b32 s35, 0x20000")
        srd(k, 28, 6, 0, 2048 * 1280)
        k.e("s_lshr_b32 s46, s2, 3"); k.e("s_mul_i32 s46, s46, 200"); k.e("s_mul_i32 s47, s3, 50"); k.e("s_add_u32 s46, s46, s47"); k.e("s_lshl_b32 s46, s46, 7")
        k.e("v_lshlrev_b32 v6, 7, v2"); k.e(f"v_mov_b32 v7, {OOB}"); k.e("v_cmp_gt_u32 vcc, 50, v2"); k.e("v_cndmask_b32 v8, v7, v6, vcc")
        k.e("buffer_load_dword v223, v8, s[32:35], s46 offen")
        k.e("s_lshl_b32 s46, s40, 6"); k.e("s_lshl_b32 s47, s43, 4"); k.e("s_add_u32 s46, s46, s47"); k.e("s_lshl_b32 s47, s3, 2"); k.e("s_add_u32 s46, s46, s47"); k.e("s_mul_i32 s46, s46, 1280")
        k.e("v_cmp_gt_u32 vcc, 40, v2"); k.e("v_cndmask_b32 v8, v7, v6, vcc")
        k.e("buffer_load_dword v223, v8, s[28:31], s46 offen")
    if TLBPF:
        lab = k.label("tp")
        k.e("s_cmp_lg_u32 s3, 0"); k.e(f"s_cbranch_scc1 {lab}")
        ldptr(k, 30, "out")
        k.e("s_waitcnt lgkmcnt(0)")
        pages = [(6, 0), (6, 2 << 20), (8, 0), (10, 0), (12, 0), (14, 0), (18, 0), (20, 0), (22, 0), (24, 0), (24, 2 << 20), (26, 0), (26, 2 << 20), (30, 0), (30, 2 << 20)]
        pages += [(4, i * (2 << 20)) for i in range((L.WS_END + (2 << 20) - 1) // (2 << 20))]
        k.e("v_mov_b32 v16, s4"); k.e("v_mov_b32 v17, s5")
        for i, (p, off) in enumerate(pages):
            if off:
                k.e(f"s_add_u32 s46, s{p}, {off}"); k.e(f"s_addc_u32 s47, s{p+1}, 0")
                k.e(f"v_writelane_b32 v16, s46, {i}"); k.e(f"v_writelane_b32 v17, s47, {i}")
            else:
                k.e(f"v_writelane_b32 v16, s{p}, {i}"); k.e(f"v_writelane_b32 v17, s{p+1}, {i}")
        k.e("global_load_dword v222, v[16:17], off")
        k.e(f"{lab}:")
    if CODEPF:
        k.e("s_getpc_b64 s[36:37]")
        k.e(f"{name}_cp:")
        k.e(f"s_sub_u32 s36, s36, {name}_cp-{name}"); k.e("s_subb_u32 s37, s37, 0")
        k.e("s_lshl_b32 s46, s3, 14"); k.e("v_lshlrev_b32 v6, 7, v2"); k.e("v_add_u32 v6, s46, v6")
        k.e(f"v_cmp_gt_u32 vcc, code_end-{name}, v6")
        k.e("s_and_saveexec_b64 s[38:39], vcc")
        lab = k.label("cp")
        k.e(f"s_cbranch_execz {lab}")
        k.e("global_load_dword v222, v6, s[36:37]")
        k.e(f"{lab}:")
        k.e("s_mov_b64 exec, s[38:39]")
        k.e("v_add_u32 v6, 8192, v6")
        k.e(f"v_cmp_gt_u32 vcc, code_end-{name}, v6")
        k.e("s_and_saveexec_b64 s[38:39], vcc")
        lab = k.label("cp")
        k.e(f"s_cbranch_execz {lab}")
        k.e("global_load_dword v222, v6, s[36:37]")
        k.e(f"{lab}:")
        k.e("s_mov_b64 exec, s[38:39]")
    if PPC:
        k.e("s_waitcnt lgkmcnt(0)")
        vm = VM(k)
        prepack_loads()
    k.e("s_lshr_b32 s44, s3, 1"); k.e("s_and_b32 s45, s3, 1")
    k.e("v_and_b32 v13, 15, v2"); k.e("v_lshrrev_b32 v14, 4, v2")
    for r in range(2):
        k.e("s_and_b32 s46, s43, 1"); k.e(f"s_xor_b32 s46, s46, {r}"); k.e("s_lshl_b32 s47, s44, 1"); k.e("s_add_u32 s46, s46, s47"); k.e("s_lshl_b32 s46, s46, 4")
        k.e("v_add_u32 v6, s46, v13")
        k.e("v_bfe_u32 v7, v6, 1, 3"); k.e("v_xor_b32 v7, v7, v14"); k.e("v_lshlrev_b32 v7, 4, v7"); k.e("v_lshlrev_b32 v6, 7, v6")
        k.e(f"v_add_u32 v{184+2*r}, v6, v7"); k.e(f"v_xor_b32 v{185+2*r}, 64, v{184+2*r}")
    k.e("v_lshrrev_b32 v6, 1, v14"); k.e("v_lshlrev_b32 v6, 4, v6")
    k.e("v_and_b32 v9, 1, v14"); k.e("v_lshlrev_b32 v7, 2, v9"); k.e("v_add_u32 v6, v6, v7")
    k.e("v_lshrrev_b32 v7, 2, v13"); k.e("v_add_u32 v6, v6, v7"); k.e(f"v_mul_u32_u24 v6, {WROW}, v6")
    k.e("v_and_b32 v7, 3, v2"); k.e("v_lshlrev_b32 v7, 3, v7"); k.e("v_add_u32 v6, v6, v7")
    k.e("v_lshlrev_b32 v8, 5, v9")
    k.e("s_mul_i32 s46, s45, 160"); k.e(f"s_add_u32 s46, s46, {WB_}"); k.e("v_add_u32 v6, s46, v6")
    k.e("v_add_u32 v10, v6, v8"); k.e("v_sub_u32 v11, v6, v8")
    k.e("s_cmp_eq_u32 s45, 0"); k.e("s_cselect_b64 vcc, -1, 0")
    k.e("v_cndmask_b32 v188, v11, v10, vcc"); k.e("v_cndmask_b32 v191, v10, v11, vcc")
    k.e("v_lshlrev_b32 v6, 3, v14"); k.e("v_lshrrev_b32 v8, 2, v13"); k.e("v_add_u32 v6, v6, v8"); k.e("v_mul_u32_u24 v6, 40, v6"); k.e("v_add_u32 v6, v6, v7")
    k.e(f"v_add_u32 v189, {KVB_}, v6")
    k.e("v_lshlrev_b32 v6, 4, v14"); k.e(f"v_add_u32 v190, {GWB_}, v6")
    ONES = 96
    for q in range(4): k.e(f"v_mov_b32 v{ONES+q}, 0x3f803f80")
    for q in range(16, 96): k.e(f"v_mov_b32 v{q}, 0")
    k.e("s_lshr_b32 s46, s43, 1"); k.e("s_cmp_eq_u32 s46, s44"); k.e("s_cselect_b32 s79, 1, 0"); k.e("s_cmp_eq_u32 s45, 0"); k.e("s_cselect_b32 s79, s79, 0")
    k.e("s_mul_i32 s47, s43, 10"); k.e("s_mul_i32 s46, s45, 5"); k.e("s_add_u32 s47, s47, s46")
    for c in range(5):
        k.e(f"s_add_u32 s46, s47, {c}"); k.e("s_lshl_b32 s46, s46, 2"); k.e("v_add_u32 v9, s46, v14")
        k.e("v_mul_u32_u24 v10, 205, v9"); k.e("v_lshrrev_b32 v10, 10, v10")
        k.e("v_mul_u32_u24 v11, 5, v10"); k.e("v_sub_u32 v11, v9, v11")
        k.e(f"v_mul_u32_u24 v12, {64*1280}, v10")
        k.e("v_lshrrev_b32 v9, 1, v11"); k.e("v_lshlrev_b32 v9, 9, v9"); k.e("v_and_b32 v10, 1, v11"); k.e("v_lshl_or_b32 v9, v10, 3, v9")
        k.e(f"v_add_u32 v{212+c}, v12, v9")
        k.e("v_cmp_eq_u32 vcc, 4, v11"); k.e("v_mov_b32 v9, 4"); k.e("v_mov_b32 v10, 3"); k.e(f"v_cndmask_b32 v{217+c}, v9, v10, vcc")
    k.e("s_waitcnt lgkmcnt(0)")
    srd(k, 96, 4, 0, L.WS_END)
    A = lambda r, c: 16 + (r * 5 + c) * 4
    CSa = lambda c: 56 + 4 * c
    SXa = lambda r: 76 + 4 * r
    KVa = lambda c: 84 + 4 * c
    F = lambda b: 100 + 40 * b
    MF = "v_mfma_f32_16x16x32_bf16"
    def reads(step, b, isH):
        f = F(b); out = []
        if ABL in ("noread", "samenoread"): return ["s_nop 0"]
        for r in range(2): out.append(f"ds_read_b128 {r4(f+4*r)}, v{192+2*r+step}")
        for c in range(5):
            va, o = (196 if c % 2 == 0 else 199), step * 32 * WROW + c * 32
            out.append(f"ds_read_b64_tr_b16 {r2(f+8+4*c)}, v{va} offset:{o}")
            out.append(f"ds_read_b64_tr_b16 {r2(f+10+4*c)}, v{va} offset:{o + 8*WROW}")
        if not isH: out.append(f"ds_read_b128 {r4(f+36)}, v198 offset:{64*step}")
        return out
    def kvreads(step, b):
        f = F(b)
        lab = k.label("kr"); k.e("s_cmp_eq_u32 s79, 0"); k.e(f"s_cbranch_scc1 {lab}")
        for c in range(2):
            o = step * 32 * 40 + c * 32
            k.e(f"ds_read_b64_tr_b16 {r2(f+28+4*c)}, v197 offset:{o}"); k.e(f"ds_read_b64_tr_b16 {r2(f+30+4*c)}, v197 offset:{o + 160}")
        k.e(f"{lab}:")
    def slot_addrs(sreg):
        for r in range(2):
            for sp in range(2): k.e(f"v_add_u32 v{192+2*r+sp}, s{sreg}, v{184+2*r+sp}")
        k.e(f"v_add_u32 v196, s{sreg}, v188"); k.e(f"v_add_u32 v199, s{sreg}, v191"); k.e(f"v_add_u32 v197, s{sreg}, v189"); k.e(f"v_add_u32 v198, s{sreg}, v190")
    def compute(b, isH, side):
        f = F(b); side = list(side)
        dots = []
        for r in range(2):
            for q in range(4):
                dots.append(f"v_dot2_f32_bf16 v{92+r}, v{f+4*r+q}, v{f+4*r+q}, v{92+r}" if isH else f"v_dot2_f32_bf16 v{94+r}, v{f+4*r+q}, v{f+36+q}, v{94+r}")
        mf = []
        for c in range(5):
            for r in range(2): mf.append(f"{MF} {r4(A(r,c))}, {r4(f+8+4*c)}, {r4(f+4*r)}, {r4(A(r,c))}")
            if isH: mf.append(f"{MF} {r4(CSa(c))}, {r4(f+8+4*c)}, {r4(ONES)}, {r4(CSa(c))}")
        if isH:
            for r in range(2): mf.append(f"{MF} {r4(SXa(r))}, {r4(ONES)}, {r4(f+4*r)}, {r4(SXa(r))}")
        if ABL in ("noread", "samenoread"): mf = mf[:1]; dots = []
        for m in mf:
            k.e(m)
            if side: k.e(side.pop(0))
            if dots and len(side) <= len(dots): k.e(dots.pop(0))
        for x in side + dots: k.e(x)
        sk = k.label("kv")
        k.e("s_cmp_eq_u32 s79, 0"); k.e(f"s_cbranch_scc1 {sk}")
        for c in range(2):
            if isH: k.e(f"{MF} {r4(KVa(c))}, {r4(f)}, {r4(f+28+4*c)}, {r4(KVa(c))}")
            else: k.e(f"{MF} {r4(KVa(c))}, {r4(f+28+4*c)}, {r4(f)}, {r4(KVa(c))}")
        k.e(f"{sk}:")
    if not INNER: st.stamp()
    if PPC:
        for q in range(4): k.e(f"v_mov_b32 v{96+q}, 0x3f803f80")
        prepack_process()
    if not INNER: st.stamp()
    k.e("s_mov_b32 s78, 0"); k.e("s_mov_b32 s83, 0")
    k.e("s_barrier")
    if not INNER: st.stamp()
    k.e("s_cmp_lg_u32 s42, 0"); k.e(f"s_cbranch_scc1 {name}_H")
    for isH in (0, 1):
        lp = f"{name}_loop{isH}"
        if isH: k.e(f"{name}_H:")
        slot_addrs(78)
        for x in reads(0, 0, isH): k.e(x)
        k.e("s_waitcnt lgkmcnt(8)")
        kvreads(0, 0)
        k.e(f"{lp}:")
        istamp(0)
        k.e("s_waitcnt lgkmcnt(0)")
        istamp(1)
        kvreads(1, 1)
        compute(0, isH, reads(1, 1, isH))
        istamp(2)
        k.e(f"s_add_u32 s78, s78, {SLOT}"); k.e(f"s_cmp_eq_u32 s78, {NSL*SLOT}"); k.e("s_cselect_b32 s78, 0, s78")
        k.e("s_waitcnt lgkmcnt(0)")
        istamp(3)
        k.e("s_barrier")
        istamp(4)
        slot_addrs(78)
        kvreads(0, 0)
        compute(1, isH, reads(0, 0, isH))
        istamp(5)
        k.e("s_add_u32 s83, s83, 1"); k.e("s_cmp_lt_u32 s83, 10"); k.e(f"s_cbranch_scc1 {lp}")
        if INNER: pass
        elif isH == 0: st.stamp()
        elif st.on:
            r = st.pairs[st.n - 1]; k.e(f"s_memtime s[{r}:{r+1}]")
        k.e("s_waitcnt lgkmcnt(0)"); k.e("s_nop 7")
        for r in range(2):
            k.e("s_and_b32 s46, s43, 1"); k.e(f"s_xor_b32 s46, s46, {r}"); k.e("s_lshl_b32 s47, s44, 1"); k.e("s_add_u32 s46, s46, s47")
            k.e("s_lshl_b32 s47, s40, 2"); k.e(f"s_add_u32 s{84+r}, s46, s47")
            k.e(f"s_lshl_b32 s47, s{84+r}, 4"); k.e(f"v_add_u32 v{5+r}, s47, v13")
        if not isH: epi_q6(k, A, KVa)
        else: epi_h5(k, A, CSa, SXa, KVa)
        if not isH: k.e(f"s_branch {name}_fin")
    k.e(f"{name}_fin:")
    if st.on: k.e("s_waitcnt vmcnt(0)")
    if INNER:
        st.pairs = [60, 62, 64, 66, 16, 68, 92, 94, 100]; st.n = 8
    st.stamp(real=True)
    st.flush()
    k.e(f"{name}_end:")
    k.e("s_endpgm")
    return k, 224, 256, K1_LDS, 512

def epi_q6(k, A, KVa):
    T = 100
    k.e(f"s_mov_b32 s70, {f32bits(QSCALE)}"); k.e(f"s_mov_b32 s71, {L.QF}")
    for r in range(2):
        k.e(f"v_lshrrev_b32 v7, 5, v{5+r}"); k.e("v_mul_u32_u24 v7, 1280, v7"); k.e(f"v_and_b32 v8, 31, v{5+r}")
        for c in range(5):
            a = A(r, c)
            for h in (0, 2): k.e(f"v_pk_mul_f32 v[{a+h}:{a+h+1}], v[{a+h}:{a+h+1}], s[70:71] op_sel:[0,0] op_sel_hi:[1,0]") if False else None
            for q in range(4): k.e(f"v_mul_f32 v{a+q}, s70, v{a+q}")
        for c in range(5):
            a = A(r, c); t = T + 2 * (c + 5 * r)
            k.e(f"v_cvt_pk_bf16_f32 v{t}, v{a}, v{a+1}"); k.e(f"v_cvt_pk_bf16_f32 v{t+1}, v{a+2}, v{a+3}")
            k.e(f"v_lshlrev_b32 v9, v{217+c}, v8"); k.e(f"v_add3_u32 v{130+c+5*r}, v9, v7, v{212+c}")
        for c in range(5):
            t = T + 2 * (c + 5 * r)
            k.e(f"buffer_store_dwordx2 v[{t}:{t+1}], v{130+c+5*r}, s[96:99], s71 offen{WTQ}")
    g = k.label("ng")
    k.e("s_or_b32 s46, s43, s45"); k.e("s_cmp_lg_u32 s46, 0"); k.e(f"s_cbranch_scc1 {g}")
    for r in range(2):
        allreduce16(k, "v_add_f32", 94 + r, 7)
        k.e(f"v_mul_f32 v{94+r}, {f32bits(-LOG2E)}, v{94+r}"); k.e(f"v_exp_f32 v{94+r}, v{94+r}"); k.e("s_nop 0")
        k.e(f"v_add_f32 v{94+r}, 1.0, v{94+r}"); k.e(f"v_rcp_f32 v{94+r}, v{94+r}")
        k.e(f"v_lshlrev_b32 v7, 2, v{5+r}"); k.e(f"s_mov_b32 s46, {L.G}")
        k.e(f"buffer_store_dword v{94+r}, v7, s[96:99], s46 offen")
    k.e(f"{g}:")
    e = k.label("nk")
    k.e("s_cmp_eq_u32 s79, 0"); k.e(f"s_cbranch_scc1 {e}")
    T = 150
    k.e("s_lshr_b32 s71, s84, 1"); k.e("s_mul_i32 s71, s71, 3072"); k.e(f"s_add_u32 s71, s71, {L.KVF}")
    k.e("v_and_b32 v8, 31, v5")
    a = KVa(0); k.e(f"v_cvt_pk_bf16_f32 v{T}, v{a}, v{a+1}"); k.e(f"v_cvt_pk_bf16_f32 v{T+1}, v{a+2}, v{a+3}")
    a = KVa(1); k.e(f"v_cvt_pk_bf16_f32 v{T+2}, v{a}, v{a+1}"); k.e(f"v_cvt_pk_bf16_f32 v{T+3}, v{a+2}, v{a+3}")
    k.e("v_lshrrev_b32 v9, 1, v14"); k.e("v_lshlrev_b32 v9, 5, v9"); k.e("v_add_u32 v9, v9, v8"); k.e("v_lshlrev_b32 v9, 4, v9")
    k.e("v_and_b32 v10, 1, v14"); k.e("v_lshlrev_b32 v10, 3, v10"); k.e("v_add_u32 v9, v9, v10")
    k.e(f"buffer_store_dwordx2 v[{T}:{T+1}], v9, s[96:99], s71 offen")
    gen1.k2_addr(k, 8, 12, 9)
    k.e("v_cmp_eq_u32 vcc, 0, v14"); k.e(f"v_mov_b32 v9, {OOB}"); k.e("v_cndmask_b32 v12, v9, v12, vcc")
    k.e(f"buffer_store_dwordx2 v[{T+2}:{T+3}], v12, s[96:99], s71 offen")
    k.e(f"v_dot2_f32_bf16 v11, v{T}, v{T}, 0"); k.e(f"v_dot2_f32_bf16 v11, v{T+1}, v{T+1}, v11")
    k.e(f"v_dot2_f32_bf16 v10, v{T+2}, v{T+2}, 0"); k.e(f"v_dot2_f32_bf16 v10, v{T+3}, v{T+3}, v10")
    k.e("v_cndmask_b32 v10, 0, v10, vcc"); k.e("v_add_f32 v11, v11, v10")
    allreduce16(k, "v_add_f32", 11, 10)
    for ror in (8, 4, 2, 1): k.e(f"v_max_f32_dpp v11, v11, v11 row_ror:{ror} row_mask:0xf bank_mask:0xf")
    k.e("s_lshl_b32 s46, s84, 2"); k.e(f"s_add_u32 s46, s46, {L.KMAX}"); k.e("v_mov_b32 v10, 0")
    k.e("buffer_store_dword v11, v10, s[96:99], s46 offen")
    k.e(f"{e}:")

def epi_q8(k, A, KVa, DQ):
    T = 148
    k.e(f"s_mov_b32 s70, {f32bits(QSCALE)}"); k.e(f"s_mov_b32 s71, {L.QF}")
    for r in range(2):
        k.e(f"v_lshrrev_b32 v7, 5, v{5+r}"); k.e("v_mul_u32_u24 v7, 1280, v7"); k.e(f"v_and_b32 v8, 31, v{5+r}")
        for c in range(5):
            a = A(r, c)
            for h in (0, 2): k.e(f"v_pk_mul_f32 v[{a+h}:{a+h+1}], v[{a+h}:{a+h+1}], s[70:71] op_sel:[0,0] op_sel_hi:[1,0]") if False else None
            for q in range(4): k.e(f"v_mul_f32 v{a+q}, s70, v{a+q}")
        for c in range(5):
            a = A(r, c); t = T + 2 * (c + 5 * r)
            k.e(f"v_cvt_pk_bf16_f32 v{t}, v{a}, v{a+1}"); k.e(f"v_cvt_pk_bf16_f32 v{t+1}, v{a+2}, v{a+3}")
            k.e(f"v_lshlrev_b32 v9, v{249+c}, v8"); k.e(f"v_add3_u32 v{180+c+5*r}, v9, v7, v{244+c}")
        for c in range(5):
            t = T + 2 * (c + 5 * r)
            k.e(f"buffer_store_dwordx2 v[{t}:{t+1}], v{180+c+5*r}, s[96:99], s71 offen")
    g = k.label("ng")
    k.e("s_or_b32 s46, s43, s45"); k.e("s_cmp_lg_u32 s46, 0"); k.e(f"s_cbranch_scc1 {g}")
    for r in range(2):
        allreduce16(k, "v_add_f32", DQ + r, 7)
        k.e(f"v_mul_f32 v{DQ+r}, {f32bits(-LOG2E)}, v{DQ+r}"); k.e(f"v_exp_f32 v{DQ+r}, v{DQ+r}"); k.e("s_nop 0")
        k.e(f"v_add_f32 v{DQ+r}, 1.0, v{DQ+r}"); k.e(f"v_rcp_f32 v{DQ+r}, v{DQ+r}")
        k.e(f"v_lshlrev_b32 v7, 2, v{5+r}"); k.e(f"s_mov_b32 s46, {L.G}")
        k.e(f"buffer_store_dword v{DQ+r}, v7, s[96:99], s46 offen")
    k.e(f"{g}:")
    e = k.label("nk")
    k.e("s_cmp_eq_u32 s79, 0"); k.e(f"s_cbranch_scc1 {e}")
    T = 200
    k.e("s_lshr_b32 s71, s84, 1"); k.e("s_mul_i32 s71, s71, 3072"); k.e(f"s_add_u32 s71, s71, {L.KVF}")
    k.e("v_and_b32 v8, 31, v5")
    a = KVa(0); k.e(f"v_cvt_pk_bf16_f32 v{T}, v{a}, v{a+1}"); k.e(f"v_cvt_pk_bf16_f32 v{T+1}, v{a+2}, v{a+3}")
    a = KVa(1); k.e(f"v_cvt_pk_bf16_f32 v{T+2}, v{a}, v{a+1}"); k.e(f"v_cvt_pk_bf16_f32 v{T+3}, v{a+2}, v{a+3}")
    k.e("v_lshrrev_b32 v9, 1, v14"); k.e("v_lshlrev_b32 v9, 5, v9"); k.e("v_add_u32 v9, v9, v8"); k.e("v_lshlrev_b32 v9, 4, v9")
    k.e("v_and_b32 v10, 1, v14"); k.e("v_lshlrev_b32 v10, 3, v10"); k.e("v_add_u32 v9, v9, v10")
    k.e(f"buffer_store_dwordx2 v[{T}:{T+1}], v9, s[96:99], s71 offen")
    gen1.k2_addr(k, 8, 12, 9)
    k.e("v_cmp_eq_u32 vcc, 0, v14"); k.e(f"v_mov_b32 v9, {OOB}"); k.e("v_cndmask_b32 v12, v9, v12, vcc")
    k.e(f"buffer_store_dwordx2 v[{T+2}:{T+3}], v12, s[96:99], s71 offen")
    k.e(f"v_dot2_f32_bf16 v11, v{T}, v{T}, 0"); k.e(f"v_dot2_f32_bf16 v11, v{T+1}, v{T+1}, v11")
    k.e(f"v_dot2_f32_bf16 v10, v{T+2}, v{T+2}, 0"); k.e(f"v_dot2_f32_bf16 v10, v{T+3}, v{T+3}, v10")
    k.e("v_cndmask_b32 v10, 0, v10, vcc"); k.e("v_add_f32 v11, v11, v10")
    allreduce16(k, "v_add_f32", 11, 10)
    for ror in (8, 4, 2, 1): k.e(f"v_max_f32_dpp v11, v11, v11 row_ror:{ror} row_mask:0xf bank_mask:0xf")
    k.e("s_lshl_b32 s46, s84, 2"); k.e(f"s_add_u32 s46, s46, {L.KMAX}"); k.e("v_mov_b32 v10, 0")
    k.e("buffer_store_dword v11, v10, s[96:99], s46 offen")
    k.e(f"{e}:")

def epi_h8(k, A, CSa, SXa, KVa, DQ):
    T = 148
    p2 = lambda x: f"v[{x}:{x+1}]"
    C1, C2, ONE = 196, 198, 200
    k.e(f"v_mov_b32 v{C1}, {f32bits(GELU_C1)}"); k.e(f"v_mov_b32 v{C1+1}, v{C1}")
    k.e(f"v_mov_b32 v{C2}, {f32bits(GELU_C2)}"); k.e(f"v_mov_b32 v{C2+1}, v{C2}")
    k.e(f"v_mov_b32 v{ONE}, 1.0"); k.e(f"v_mov_b32 v{ONE+1}, 1.0")
    k.e("s_lshr_b32 s85, s43, 1") if False else None
    k.e("s_lshr_b32 s70, s43, 1"); k.e("s_add_u32 s70, s70, 1"); k.e("s_and_b32 s46, s43, 1"); k.e("s_sub_u32 s47, 0, s70"); k.e("s_cmp_eq_u32 s46, 0"); k.e("s_cselect_b32 s70, s70, s47")
    k.e("s_lshl_b32 s88, s43, 1"); k.e("s_add_u32 s88, s88, s45")
    srd(k, 72, 4, L.HS, L.SZ_XF)
    for r in range(2):
        MN, RS = 202, 204
        allreduce16(k, "v_add_f32", DQ + r, 7)
        k.e(f"v_mul_f32 v{MN}, {f32bits(-1/640)}, v{SXa(r)}"); k.e(f"v_mul_f32 v{RS}, {f32bits(1/640)}, v{DQ+r}")
        k.e(f"v_fma_f32 v{RS}, -v{MN}, v{MN}, v{RS}"); k.e(f"v_add_f32 v{RS}, {f32bits(1e-5)}, v{RS}"); k.e(f"v_rsq_f32 v{RS}, v{RS}")
        k.e(f"v_mov_b32 v{MN+1}, v{MN}")
        k.e(f"v_add_u32 v11, s70, v{5+r}")
        k.e("v_lshrrev_b32 v12, 4, v11"); k.e(f"v_mul_u32_u24 v12, {20*1024}, v12")
        k.e("v_and_b32 v9, 15, v11"); k.e("v_lshlrev_b32 v10, 4, v14"); k.e("v_add_u32 v9, v9, v10"); k.e("v_lshlrev_b32 v9, 4, v9")
        k.e("v_add_u32 v12, v12, v9")
        k.e(f"v_mov_b32 v{RS+1}, v{RS}")
        k.e("v_cmp_gt_u32 vcc, 2048, v11"); k.e(f"v_mov_b32 v9, {OOB}"); k.e("v_cndmask_b32 v12, v9, v12, vcc")
        k.e("v_cmp_gt_u32 vcc, 32, v2"); k.e("v_cndmask_b32 v15, v9, v12, vcc")
        regs = [A(r, c) for c in range(5)]
        for c, a in enumerate(regs):
            for h in (0, 2): k.e(f"v_pk_fma_f32 {p2(a+h)}, {p2(MN)}, {p2(CSa(c)+h)}, {p2(a+h)}")
        for a in regs:
            for h in (0, 2): k.e(f"v_pk_mul_f32 {p2(a+h)}, {p2(a+h)}, {p2(RS)}")
        gen3.gelu_multi(k, regs, [206 + 4 * c for c in range(5)], C1, C2, ONE)
        PK = T + 12 * r
        for c, a in enumerate(regs):
            k.e(f"v_cvt_pk_bf16_f32 v{PK+2*c}, v{a}, v{a+1}"); k.e(f"v_cvt_pk_bf16_f32 v{PK+2*c+1}, v{a+2}, v{a+3}")
        store_t80(k, PK, 12, 15, 72, 88, 228 + 4 * r)
    e = k.label("nv")
    k.e("s_cmp_eq_u32 s79, 0"); k.e(f"s_cbranch_scc1 {e}")
    T = 180
    k.e("s_lshr_b32 s71, s84, 1"); k.e("s_mul_i32 s71, s71, 3072"); k.e("s_and_b32 s46, s84, 1"); k.e("s_lshl_b32 s46, s46, 10"); k.e("s_add_u32 s71, s71, s46")
    k.e(f"s_add_u32 s71, s71, {L.KVF + 1024}")
    k.e("v_and_b32 v9, 1, v14"); k.e("v_lshlrev_b32 v9, 5, v9"); k.e("v_add_u32 v9, v9, v13"); k.e("v_lshlrev_b32 v9, 4, v9")
    k.e("v_lshrrev_b32 v10, 1, v14"); k.e("v_lshlrev_b32 v10, 3, v10"); k.e("v_add_u32 v9, v9, v10")
    a = KVa(0); k.e(f"v_cvt_pk_bf16_f32 v{T}, v{a}, v{a+1}"); k.e(f"v_cvt_pk_bf16_f32 v{T+1}, v{a+2}, v{a+3}")
    k.e(f"buffer_store_dwordx2 v[{T}:{T+1}], v9, s[96:99], s71 offen")
    a = KVa(1); k.e(f"v_cvt_pk_bf16_f32 v{T+2}, v{a}, v{a+1}"); k.e(f"v_cvt_pk_bf16_f32 v{T+3}, v{a+2}, v{a+3}")
    k.e("v_cmp_gt_u32 vcc, 4, v13")
    k.e(f"v_cndmask_b32 v{T+2}, 0, v{T+2}, vcc"); k.e(f"v_cndmask_b32 v{T+3}, 0, v{T+3}, vcc")
    k.e("v_mov_b32 v10, 0x3f803f80")
    k.e("v_and_b32 v11, 11, v13"); k.e("v_cmp_eq_u32 vcc, 8, v11")
    k.e(f"v_cndmask_b32 v{T+2}, v{T+2}, v10, vcc"); k.e(f"v_cndmask_b32 v{T+3}, v{T+3}, v10, vcc")
    k.e("v_cmp_eq_u32 vcc, 9, v13"); k.e(f"v_cndmask_b32 v{T+2}, v{T+2}, v10, vcc")
    k.e("v_lshrrev_b32 v11, 2, v13"); k.e("v_cmp_ne_u32 vcc, 1, v11")
    k.e("v_add_u32 v9, 256, v9"); k.e(f"v_mov_b32 v10, {OOB}"); k.e("v_cndmask_b32 v9, v10, v9, vcc")
    k.e(f"buffer_store_dwordx2 v[{T+2}:{T+3}], v9, s[96:99], s71 offen")
    k.e(f"{e}:")


def assemble_text(ks):
    s = ""
    for (k, vg, nwg, lds, *rest) in ks:
        blk = rest[0] if rest else 256
        s += f"; @launch kernel={k.name} grid=({nwg},1,1) block=({blk},1,1) lds={lds}\n"
    s += '.amdgcn_target "amdgcn-amd-amdhsa--gfx950"\n.text\n'
    for (k, vg, nwg, lds, *rest) in ks: s += kernel_text(k, vg)
    s += "code_end:\n"
    s += TBL_TEXT
    s += '.section .rodata,"a"\n'
    for (k, vg, nwg, lds, *rest) in ks: s += descriptor(k.name, (vg + 7) // 8 * 8, 102)
    return s

def build_all():
    gen4.RAWX = True
    return [gen_k1(), gen4.gen_main()]

if __name__ == "__main__":
    PROF = "--prof" in sys.argv; gen3.PROF = PROF; gen4.PROF = PROF
    for a in sys.argv:
        if a.startswith("--abl="): ABL = a[6:]
    gen4.ADIAG = "--adiag" in sys.argv
    INNER = "--inner" in sys.argv
    if "--nopfk1" in sys.argv: PFK1 = 0
    if "--pfk3" in sys.argv: PFK1 = 3
    if "--pfk4" in sys.argv: PFK1 = 4
    if "--nocodepf" in sys.argv: CODEPF = False
    if "--notlbpf" in sys.argv: TLBPF = False
    LSTAMP = "--lstamp" in sys.argv
    for a in sys.argv:
        if a.startswith("--poll="): gen4.POLL = int(a[7:])
    if "--nosent" in sys.argv: gen4.SENT = False
    if "--noearly4" in sys.argv: gen4.EARLY4 = False
    if "--codepf2" in sys.argv: gen4.CODEPF2 = True
    for a in sys.argv:
        if a.startswith("--pace="):
            v = [None if c == "x" else int(c) for c in a[7:]]
            gen4.PACE2, gen4.PACE3, gen4.PACE4 = v
    if "--wt" in sys.argv: WT = " sc1"
    if "--wtq" in sys.argv: WTQ = " sc1"
    ROWMAP = "--rowmap" in sys.argv
    gen5.WT = "" if "--nowth" in sys.argv else WT
    gen4.FINE = "--fine" in sys.argv
    gen4.NOB = "--nob" in sys.argv; gen4.NOA = "--noa" in sys.argv
    for a in sys.argv:
        if a.startswith("--pa="): gen4.PRIO_A = int(a[5:])
        if a.startswith("--pb="): gen4.PRIO_B = int(a[5:])
        if a.startswith("--pe="): gen4.PRIO_E = int(a[5:])
        if a.startswith("--pp="): gen4.PRIO_P2, gen4.PRIO_P3, gen4.PRIO_P4 = [int(c) for c in a[5:]]
    ks = build_all()
    open(sys.argv[1], "w").write(assemble_text(ks))
    for (k, vg, nwg, lds, *rest) in ks: print(k.name, "vgpr", vg, "wg", nwg, "lds", lds, "lines", len(k.lines))
```

```python
import sys
sys.path.insert(0, "work")
from asmfw import *
import layout as L
import korder as KO
import gen1, gen3, gen4, gen5
from gen1 import srd, ldptr, f32bits, KA, OOB, LOG2E, GELU_C1, GELU_C2
from gen3 import r4, r2, r16, allreduce16, store_t80
from gen4 import VM, SStamps
from gen5 import TBL_OFF, TBL_TEXT, QSCALE, epi_h5

PROF = False
ABL = ''
INNER = False
PFK1 = 1
CODEPF = True
TLBPF = True
LSTAMP = False
WT = ''
PPC = False
PPSPLIT = True
ROWMAP = False
WTH = None
WTQ = ''
WROW = 320
XB_, WB_, KVB_, GWB_ = 0, 8192, 8192 + 20480, 8192 + 20480 + 3072
SLOT = 32768
NSL = 4
PPB = NSL * SLOT
K1_LDS = PPB + 6 * 4096

def gen_k1():
    k = Kern("front_kernel")
    name = k.name
    st = SStamps(k, PROF, 1, [60, 62, 64, 66, 16, 68, 100], vt=210)
    def istamp(i):
        if not (PROF and INNER): return
        lab = k.label("is"); r = [64, 66, 16, 68, 92, 94][i]
        k.e("s_cmp_lg_u32 s83, 5"); k.e(f"s_cbranch_scc1 {lab}"); k.e(f"s_memtime s[{r}:{r+1}]"); k.e(f"{lab}:")
    k.e("s_cmp_ge_u32 s2, 256"); k.e(f"s_cbranch_scc1 {name}_end")
    if CODEPF:
        k.e("s_getpc_b64 s[36:37]")
        k.e(f"{name}_cp:")
        k.e(f"s_sub_u32 s36, s36, {name}_cp-{name}"); k.e("s_subb_u32 s37, s37, 0")
        k.e("v_lshlrev_b32 v6, 7, v0")
        k.e(f"v_cmp_gt_u32 vcc, code_end-{name}, v6")
        k.e("s_and_saveexec_b64 s[38:39], vcc")
        lab = k.label("cp")
        k.e(f"s_cbranch_execz {lab}")
        k.e("global_load_dword v222, v6, s[36:37]")
        k.e(f"{lab}:")
        k.e("s_mov_b64 exec, s[38:39]")
    st.stamp(); st.stamp(real=True)
    for r, nm in ((6, "x"), (8, "wq"), (10, "w1"), (12, "wk"), (14, "wv"), (18, "gw")): ldptr(k, r, nm)
    ldptr(k, 4, "ws")
    for r, nm in ((20, "w2"), (22, "wo"), (24, "w3"), (26, "w4")): ldptr(k, r, nm)
    k.e("v_lshrrev_b32 v1, 6, v0"); k.e("v_and_b32 v2, 63, v0")
    k.e("v_lshlrev_b32 v3, 4, v2")
    k.e("v_readfirstlane_b32 s3, v1")
    if ROWMAP:
        gen3.decode_gj(k, 0)
    else:
        k.e("s_and_b32 s46, s2, 7"); k.e("s_lshr_b32 s47, s2, 3")
        k.e("s_lshr_b32 s40, s46, 1"); k.e("s_lshl_b32 s40, s40, 3"); k.e("s_lshr_b32 s49, s47, 2"); k.e("s_add_u32 s40, s40, s49")
        k.e("s_and_b32 s41, s46, 1"); k.e("s_lshl_b32 s41, s41, 2"); k.e("s_and_b32 s49, s47, 3"); k.e("s_add_u32 s41, s41, s49")
    k.e("s_lshr_b32 s42, s41, 2"); k.e("s_and_b32 s43, s41, 3")
    k.e("s_cmp_ge_u32 s3, 4"); k.e(f"s_cbranch_scc0 {name}_compute")
    k.e("s_sub_u32 s3, s3, 4")
    k.e("s_mul_i32 s46, s40, 3"); k.e("s_mul_i32 s47, s46, 6554"); k.e("s_lshr_b32 s47, s47, 16"); k.e("s_mul_i32 s47, s47, 10"); k.e("s_sub_u32 s48, s46, s47")
    k.e("v_lshrrev_b32 v4, 3, v2"); k.e("v_and_b32 v5, 7, v2")
    k.e("s_lshl_b32 s46, s3, 3"); k.e("v_add_u32 v6, s46, v4")
    k.e("v_bfe_u32 v7, v6, 1, 3"); k.e("v_xor_b32 v7, v7, v5"); k.e("v_lshlrev_b32 v7, 4, v7")
    k.e("s_lshl_b32 s47, s40, 6"); k.e("v_add_u32 v6, s47, v6"); k.e("v_mul_u32_u24 v6, 1280, v6")
    k.e("v_add_u32 v200, v6, v7"); k.e(f"v_add_u32 v201, {32*1280}, v200")
    k.e(f"s_mov_b32 s50, {(1<<32)//WROW + 1}"); k.e("s_mul_i32 s51, s43, 320")
    for i in range(5):
        k.e(f"s_add_u32 s46, s3, {4*i}"); k.e("s_lshl_b32 s46, s46, 10"); k.e("v_add_u32 v6, s46, v3")
        k.e("v_mul_hi_u32 v7, v6, s50")
        k.e(f"v_mul_u32_u24 v8, {WROW}, v7"); k.e("v_sub_u32 v8, v6, v8")
        k.e("v_bfe_u32 v10, v7, 2, 1")
        k.e("v_and_b32 v9, 0x33, v7"); k.e("v_lshl_or_b32 v9, v10, 3, v9")
        k.e("v_bfe_u32 v11, v7, 3, 1"); k.e("v_lshl_or_b32 v9, v11, 2, v9")
        k.e("v_lshlrev_b32 v10, 5, v10"); k.e("v_xor_b32 v8, v8, v10")
        k.e("v_mul_u32_u24 v9, 1280, v9"); k.e("v_add_u32 v9, v9, v8"); k.e(f"v_add_u32 v{202+i}, s51, v9")
    k.e("s_lshl_b32 s46, s3, 10"); k.e("v_add_u32 v6, s46, v3"); k.e(f"v_mov_b32 v7, {OOB}")
    k.e("v_cmp_gt_u32 vcc, 2560, v6"); k.e("v_cndmask_b32 v6, v7, v6, vcc")
    k.e("v_cmp_gt_u32 vcc, 128, v3"); k.e("v_cndmask_b32 v8, v7, v3, vcc")
    k.e("s_cmp_eq_u32 s3, 3"); k.e("s_cselect_b64 vcc, -1, 0"); k.e("v_cndmask_b32 v207, v6, v8, vcc")
    k.e("s_waitcnt lgkmcnt(0)")
    srd(k, 28, 6, 0, 2048 * 1280)
    k.e("s_cmp_eq_u32 s42, 0")
    k.e("s_cselect_b32 s32, s8, s10"); k.e("s_cselect_b32 s33, s9, s11"); k.e(f"s_mov_b32 s34, {640*1280}"); k.e("s_mov_b32 s35, 0x20000")
    k.e("s_cselect_b32 s52, s12, s14"); k.e("s_cselect_b32 s53, s13, s15"); k.e(f"s_mov_b32 s54, {640*40}"); k.e("s_mov_b32 s55, 0x20000")
    k.e("s_cmp_eq_u32 s3, 3")
    k.e("s_cselect_b32 s52, s18, s52"); k.e("s_cselect_b32 s53, s19, s53"); k.e("s_cselect_b32 s54, 1280, s54")
    k.e("s_mov_b32 s46, 2560"); k.e("s_cselect_b32 s70, 128, s46")
    k.e("s_lshl_b32 s46, s3, 10"); k.e(f"s_add_u32 s71, s46, {KVB_}")
    k.e("s_lshl_b32 s72, s3, 10")
    vm = VM(k)
    def issue_stage(t):
        slot = (t % NSL) * SLOT
        k.e("s_lshl_b32 s74, s48, 7"); k.e(f"s_mul_i32 s75, s48, {64*1280}"); k.e("s_mul_i32 s76, s48, s70")
        if ABL in ("same", "samenoread"):
            k.e("s_mov_b32 s74, 0"); k.e("s_mov_b32 s75, 0"); k.e("s_mov_b32 s76, 0")
        for i in range(2):
            k.e(f"s_add_u32 m0, s72, {slot + XB_ + i*4096}"); k.e("s_nop 0")
            vm.issue(f"buffer_load_dwordx4 v{200+i}, s[28:31], s74 offen lds", ("S", t))
        for i in range(5):
            k.e(f"s_add_u32 m0, s72, {slot + WB_ + i*4096}"); k.e("s_nop 0")
            vm.issue(f"buffer_load_dwordx4 v{202+i}, s[32:35], s75 offen lds", ("S", t))
        k.e(f"s_add_u32 m0, s71, {slot}"); k.e("s_nop 0")
        vm.issue("buffer_load_dwordx4 v207, s[52:55], s76 offen lds", ("S", t))
        k.e("s_add_u32 s48, s48, 1"); k.e("s_cmp_eq_u32 s48, 10"); k.e("s_cselect_b32 s48, 0, s48")
    def do_pf():
            k.e("s_lshr_b32 s46, s2, 3"); k.e("s_mul_i32 s46, s46, 200"); k.e("s_mul_i32 s47, s3, 50"); k.e("s_add_u32 s46, s46, s47"); k.e("s_lshl_b32 s46, s46, 7")
            k.e("v_lshlrev_b32 v6, 7, v2"); k.e(f"v_mov_b32 v7, {OOB}"); k.e("v_cmp_gt_u32 vcc, 50, v2"); k.e("v_cndmask_b32 v6, v7, v6, vcc")
            k.e("buffer_load_dword v20, v6, s[32:35], s46 offen")
            k.e("s_lshl_b32 s46, s40, 6"); k.e("s_lshl_b32 s47, s43, 4"); k.e("s_add_u32 s46, s46, s47"); k.e("s_lshl_b32 s47, s3, 2"); k.e("s_add_u32 s46, s46, s47"); k.e("s_mul_i32 s46, s46, 1280")
            k.e("v_lshlrev_b32 v6, 7, v2"); k.e("v_cmp_gt_u32 vcc, 40, v2"); k.e("v_cndmask_b32 v6, v7, v6, vcc")
            k.e("buffer_load_dword v21, v6, s[28:31], s46 offen")
            vm.q += ["pf", "pf"]
    if PFK1 == 1: do_pf()
    issue_stage(0)
    if PFK1 == 3: do_pf()
    if PFK1 != 4: issue_stage(1)
    st.stamp()
    def prepack_loads():
        k.e("s_getpc_b64 s[80:81]")
        k.e(f"{name}_pc:")
        k.e(f"s_add_u32 s80, s80, korder_table-{name}_pc"); k.e("s_addc_u32 s81, s81, 0")
        k.e("v_lshrrev_b32 v10, 5, v2"); k.e("v_bfe_u32 v11, v2, 3, 2"); k.e("v_and_b32 v12, 7, v2"); k.e("v_lshlrev_b32 v12, 4, v12")
        for pas in range(2):
            P = f"{name}_pp{pas}"
            k.e("s_mul_i32 s46, s2, 6"); k.e("s_add_u32 s46, s46, s3"); k.e("s_mov_b32 s49, 0")
            if pas:
                k.e("s_add_u32 s46, s46, 4"); k.e("s_cmp_lt_u32 s3, 2"); k.e("s_cselect_b32 s46, s46, 9999")
            k.e("s_cmp_lt_u32 s46, 400"); k.e(f"s_cbranch_scc1 {P}_lo")
            k.e("s_cmp_lt_u32 s46, 940"); k.e(f"s_cbranch_scc1 {P}_w3")
            k.e("s_cmp_lt_u32 s46, 1480"); k.e(f"s_cbranch_scc1 {P}_w4")
            k.e("s_mov_b32 s46, 0"); k.e("s_mov_b32 s49, 1"); k.e(f"s_branch {P}_w2")
            k.e(f"{P}_lo:")
            k.e("s_cmp_ge_u32 s46, 200"); k.e(f"s_cbranch_scc1 {P}_wo")
            for nm, ptr, start, dst, ld, ncg, nks, order in (("w2", 20, 0, L.W2P, 1280, 10, 20, "t80"), ("wo", 22, 200, L.WOP, 1280, 10, 20, "oord"),
                                                               ("w3", 24, 400, L.W3P, 3456, 27, 20, "t80"), ("w4", 26, 940, L.W4P, 1280, 10, 54, "t14")):
                k.e(f"{P}_{nm}:")
                if start: k.e(f"s_sub_u32 s46, s46, {start}")
                k.e(f"s_mul_hi_u32 s47, s46, {(1<<32)//ncg + 1}")
                k.e(f"s_mul_i32 s50, s47, {ncg}"); k.e("s_sub_u32 s50, s46, s50")
                k.e(f"s_mov_b32 s84, s{ptr}"); k.e(f"s_mov_b32 s85, s{ptr+1}"); k.e(f"s_mov_b32 s86, {32*nks*ld}")
                k.e(f"s_mov_b32 s51, {ld}")
                k.e(f"s_lshl_b32 s79, s47, 5"); k.e(f"s_add_u32 s79, s79, {TBL_OFF[order]}")
                k.e(f"s_lshl_b32 s82, s50, 2"); k.e(f"s_mul_i32 s82, s82, {nks}"); k.e("s_add_u32 s82, s82, s47"); k.e("s_lshl_b32 s82, s82, 10"); k.e(f"s_add_u32 s82, s82, {dst}")
                k.e(f"s_mov_b32 s83, {nks*1024}")
                k.e(f"s_mov_b32 s{56+pas}, {1 if nm == 'w3' else 0}")
                k.e(f"s_branch {P}_go")
            k.e(f"{P}_go:")
            k.e("s_mov_b32 s87, 0x20000")
            k.e("s_cmp_eq_u32 s49, 0"); k.e(f"s_cselect_b32 s82, s82, {OOB}"); k.e(f"s_cselect_b32 s50, s50, 0x00ffff00")
            k.e(f"s_mov_b32 s{8+4*pas}, s82"); k.e(f"s_mov_b32 s{9+4*pas}, s83"); k.e(f"s_mov_b32 s{10+4*pas}, s47"); k.e(f"s_mov_b32 s{11+4*pas}, s50")
            k.e("s_add_u32 s90, s80, s79"); k.e("s_addc_u32 s91, s81, 0")
            k.e("s_load_dwordx8 s[92:99], s[90:91], 0")
            k.e("s_lshl_b32 s50, s50, 7")
            k.e("s_waitcnt lgkmcnt(0)")
            for i in range(4):
                k.e(f"v_mul_lo_u32 v6, v10, s{96+i}"); k.e("v_add_u32 v6, v6, v11"); k.e(f"v_add_u32 v6, s{92+i}, v6")
                k.e("v_mul_lo_u32 v6, v6, s51"); k.e("v_add_u32 v6, v6, v12")
                k.e("s_lshl_b32 s46, s3, 12"); k.e(f"s_add_u32 m0, s46, {PPB + pas*4*4096 + i*1024}"); k.e("s_nop 0")
                vm.issue("buffer_load_dwordx4 v6, s[84:87], s50 offen lds", "P")
    srd(k, 72 + 0, 4, 0, L.WS_END) if False else None
    k.e("v_lshrrev_b32 v14, 4, v2")
    for q in range(4): k.e(f"v_mov_b32 v{96+q}, 0x3f803f80")
    vm.wait(("S", 0))
    st.stamp()
    k.e("s_barrier")
    if PFK1 == 4: issue_stage(1)
    issue_stage(2); issue_stage(3)
    def prepack_process(which=(0, 1), extras=True):
        ONES = 96
        vm.wait("P")
        k.e("v_lshrrev_b32 v5, 4, v2"); k.e("v_lshlrev_b32 v5, 2, v5"); k.e("v_and_b32 v6, 15, v2"); k.e("v_lshrrev_b32 v7, 2, v6"); k.e("v_add_u32 v5, v5, v7")
        k.e("v_lshlrev_b32 v5, 7, v5"); k.e("v_and_b32 v6, 3, v2"); k.e("v_lshlrev_b32 v6, 3, v6"); k.e("v_add_u32 v5, v5, v6")
        k.e("s_lshl_b32 s46, s3, 12"); k.e(f"s_add_u32 s46, s46, {PPB}"); k.e("v_add_u32 v5, s46, v5")
        for pas in which:
            if pas:
                k.e(f"s_cmp_ge_u32 s3, 2"); k.e(f"s_cbranch_scc1 {name}_ppdone")
                k.e("v_add_u32 v5, 16384, v5")
            for c in range(4):
                k.e(f"ds_read_b64_tr_b16 v[{100+4*c}:{101+4*c}], v5 offset:{c*32}")
                k.e(f"ds_read_b64_tr_b16 v[{102+4*c}:{103+4*c}], v5 offset:{c*32+2048}")
            k.e("s_waitcnt lgkmcnt(0)")
            k.e(f"s_mov_b32 s46, s{8+4*pas}")
            for c in range(4):
                k.e(f"buffer_store_dwordx4 {r4(100+4*c)}, v3, s[96:99], s46 offen{WT}")
                if c < 3: k.e(f"s_add_u32 s46, s46, s{9+4*pas}")
            sk = k.label("nocs")
            k.e(f"s_cmp_eq_u32 s{56+pas}, 0"); k.e(f"s_cbranch_scc1 {sk}")
            for c in range(4):
                k.e(f"v_dot2_f32_bf16 v{120+c}, v{100+4*c}, v{ONES}, 0")
                for q in range(1, 4): k.e(f"v_dot2_f32_bf16 v{120+c}, v{100+4*c+q}, v{ONES}, v{120+c}")
            for c in range(4): allreduce16(k, "v_add_f32", 120 + c, 124)
            k.e("v_cmp_eq_u32 vcc, 1, v14"); k.e("v_cndmask_b32 v120, v120, v121, vcc")
            k.e("v_cmp_eq_u32 vcc, 2, v14"); k.e("v_cndmask_b32 v120, v120, v122, vcc")
            k.e("v_cmp_eq_u32 vcc, 3, v14"); k.e("v_cndmask_b32 v120, v120, v123, vcc")
            k.e(f"s_mul_i32 s46, s{10+4*pas}, {1728*4}"); k.e(f"s_lshl_b32 s47, s{11+4*pas}, 8"); k.e("s_add_u32 s46, s46, s47"); k.e(f"s_add_u32 s46, s46, {L.CS3P}")
            k.e("v_lshlrev_b32 v6, 2, v2")
            k.e("buffer_store_dword v120, v6, s[96:99], s46 offen")
            k.e(f"{sk}:")
        if 1 in which: k.e(f"{name}_ppdone:")
        if not extras: return
        z = k.label("nz")
        k.e("s_cmp_lg_u32 s2, 0"); k.e(f"s_cbranch_scc1 {z}")
        for q in range(4): k.e(f"v_mov_b32 v{100+q}, 0")
        k.e("s_lshl_b32 s46, s3, 10"); k.e(f"s_add_u32 s46, s46, {L.FLAGS}")
        k.e("buffer_store_dwordx4 v[100:103], v3, s[96:99], s46 offen")
        k.e("s_cmp_ge_u32 s3, 2"); k.e(f"s_cbranch_scc1 {z}")
        k.e("s_lshl_b32 s46, s3, 6"); k.e("v_add_u32 v6, s46, v2")
        k.e("v_mul_u32_u24 v7, 205, v6"); k.e("v_lshrrev_b32 v7, 12, v7")
        k.e("v_mul_u32_u24 v8, 20, v7"); k.e("v_sub_u32 v8, v6, v8")
        k.e("v_mov_b32 v9, v7"); k.e("v_cmp_lt_u32 vcc, 2, v7"); k.e("v_subrev_u32 v10, 1, v7"); k.e("v_cndmask_b32 v9, v9, v10, vcc")
        k.e("v_cmp_eq_u32 vcc, 5, v7"); k.e("v_mov_b32 v10, 3"); k.e("v_cndmask_b32 v9, v9, v10, vcc")
        k.e("v_mov_b32 v10, 0")
        for c, row in ((1, 2047), (3, 1), (4, 2046), (5, 2047)):
            k.e(f"v_cmp_eq_u32 vcc, {c}, v7"); k.e(f"v_mov_b32 v11, {row}"); k.e("v_cndmask_b32 v10, v10, v11, vcc")
        k.e("v_lshrrev_b32 v11, 4, v10"); k.e(f"v_mul_u32_u24 v11, {20*1024}, v11")
        k.e("v_mul_u32_u24 v9, 5, v9"); k.e("v_lshrrev_b32 v12, 2, v8"); k.e("v_add_u32 v9, v9, v12"); k.e("v_lshlrev_b32 v9, 10, v9"); k.e("v_add_u32 v11, v11, v9")
        k.e("v_and_b32 v12, 3, v8"); k.e("v_lshlrev_b32 v12, 4, v12"); k.e("v_and_b32 v9, 15, v10"); k.e("v_add_u32 v12, v12, v9"); k.e("v_lshlrev_b32 v12, 4, v12"); k.e("v_add_u32 v11, v11, v12")
        k.e("v_cmp_gt_u32 vcc, 120, v6"); k.e(f"v_mov_b32 v12, {OOB}"); k.e("v_cndmask_b32 v11, v12, v11, vcc")
        k.e(f"s_mov_b32 s46, {L.HS}")
        k.e("buffer_store_dwordx4 v[100:103], v11, s[96:99], s46 offen")
        k.e(f"{z}:")
    for t in range(10):
        if t + 1 < 10 and (ABL != "nodma" or t + 1 < 4): vm.wait(("S", t + 1))
        if PROF and LSTAMP: k.e(f"s_memtime s[{[36,38,58,6,18,16,64,66,68,30][t]}:{[36,38,58,6,18,16,64,66,68,30][t]+1}]") if t not in (3,4) or True else None
        k.e("s_barrier")
        if t + 4 < 10 and ABL != "nodma": issue_stage(t + 4)
        if t == 5 and not PPC: prepack_loads(); srd(k, 96, 4, 0, L.WS_END)
        if PPSPLIT and t == 7: prepack_process((0,), extras=False)
        if PPSPLIT and t == 8: prepack_process((1,), extras=True)
    if not PPC and not PPSPLIT: prepack_process()
    if st.on and LSTAMP:
        sp = st.pairs; st.pairs = [60, 62, 36, 38, 58, 6, 18, 16, 64, 66, 68, 30]; st.n = 12; st.kidx = 2; st.flush(); st.kidx = 1; st.pairs = sp
        st.n = 2
    elif st.on:
        st.stamp(); k.e("s_waitcnt vmcnt(0)"); st.stamp(); st.stamp(real=True); st.kidx = 2; st.flush(); st.kidx = 1
        st.n = 2
    k.e("s_endpgm")
    k.e(f"{name}_compute:")
    if PFK1 == 4:
        k.e("s_waitcnt lgkmcnt(0)")
        k.e("s_cmp_eq_u32 s42, 0"); k.e("s_cselect_b32 s32, s8, s10"); k.e("s_cselect_b32 s33, s9, s11"); k.e(f"s_mov_b32 s34, {640*1280}"); k.e("s_mov_b32 s35, 0x20000")
        srd(k, 28, 6, 0, 2048 * 1280)
        k.e("s_lshr_b32 s46, s2, 3"); k.e("s_mul_i32 s46, s46, 200"); k.e("s_mul_i32 s47, s3, 50"); k.e("s_add_u32 s46, s46, s47"); k.e("s_lshl_b32 s46, s46, 7")
        k.e("v_lshlrev_b32 v6, 7, v2"); k.e(f"v_mov_b32 v7, {OOB}"); k.e("v_cmp_gt_u32 vcc, 50, v2"); k.e("v_cndmask_b32 v8, v7, v6, vcc")
        k.e("buffer_load_dword v223, v8, s[32:35], s46 offen")
        k.e("s_lshl_b32 s46, s40, 6"); k.e("s_lshl_b32 s47, s43, 4"); k.e("s_add_u32 s46, s46, s47"); k.e("s_lshl_b32 s47, s3, 2"); k.e("s_add_u32 s46, s46, s47"); k.e("s_mul_i32 s46, s46, 1280")
        k.e("v_cmp_gt_u32 vcc, 40, v2"); k.e("v_cndmask_b32 v8, v7, v6, vcc")
        k.e("buffer_load_dword v223, v8, s[28:31], s46 offen")
    if TLBPF:
        lab = k.label("tp")
        k.e("s_cmp_lg_u32 s3, 0"); k.e(f"s_cbranch_scc1 {lab}")
        ldptr(k, 30, "out")
        k.e("s_waitcnt lgkmcnt(0)")
        pages = [(6, 0), (6, 2 << 20), (8, 0), (10, 0), (12, 0), (14, 0), (18, 0), (20, 0), (22, 0), (24, 0), (24, 2 << 20), (26, 0), (26, 2 << 20), (30, 0), (30, 2 << 20)]
        pages += [(4, i * (2 << 20)) for i in range((L.WS_END + (2 << 20) - 1) // (2 << 20))]
        k.e("v_mov_b32 v16, s4"); k.e("v_mov_b32 v17, s5")
        for i, (p, off) in enumerate(pages):
            if off:
                k.e(f"s_add_u32 s46, s{p}, {off}"); k.e(f"s_addc_u32 s47, s{p+1}, 0")
                k.e(f"v_writelane_b32 v16, s46, {i}"); k.e(f"v_writelane_b32 v17, s47, {i}")
            else:
                k.e(f"v_writelane_b32 v16, s{p}, {i}"); k.e(f"v_writelane_b32 v17, s{p+1}, {i}")
        k.e("global_load_dword v222, v[16:17], off")
        k.e(f"{lab}:")
    if PPC:
        k.e("s_waitcnt lgkmcnt(0)")
        vm = VM(k)
        prepack_loads()
    k.e("s_lshr_b32 s44, s3, 1"); k.e("s_and_b32 s45, s3, 1")
    k.e("v_and_b32 v13, 15, v2"); k.e("v_lshrrev_b32 v14, 4, v2")
    for r in range(2):
        k.e("s_and_b32 s46, s43, 1"); k.e(f"s_xor_b32 s46, s46, {r}"); k.e("s_lshl_b32 s47, s44, 1"); k.e("s_add_u32 s46, s46, s47"); k.e("s_lshl_b32 s46, s46, 4")
        k.e("v_add_u32 v6, s46, v13")
        k.e("v_bfe_u32 v7, v6, 1, 3"); k.e("v_xor_b32 v7, v7, v14"); k.e("v_lshlrev_b32 v7, 4, v7"); k.e("v_lshlrev_b32 v6, 7, v6")
        k.e(f"v_add_u32 v{184+2*r}, v6, v7"); k.e(f"v_xor_b32 v{185+2*r}, 64, v{184+2*r}")
    k.e("v_lshrrev_b32 v6, 1, v14"); k.e("v_lshlrev_b32 v6, 4, v6")
    k.e("v_and_b32 v9, 1, v14"); k.e("v_lshlrev_b32 v7, 2, v9"); k.e("v_add_u32 v6, v6, v7")
    k.e("v_lshrrev_b32 v7, 2, v13"); k.e("v_add_u32 v6, v6, v7"); k.e(f"v_mul_u32_u24 v6, {WROW}, v6")
    k.e("v_and_b32 v7, 3, v2"); k.e("v_lshlrev_b32 v7, 3, v7"); k.e("v_add_u32 v6, v6, v7")
    k.e("v_lshlrev_b32 v8, 5, v9")
    k.e("s_mul_i32 s46, s45, 160"); k.e(f"s_add_u32 s46, s46, {WB_}"); k.e("v_add_u32 v6, s46, v6")
    k.e("v_add_u32 v10, v6, v8"); k.e("v_sub_u32 v11, v6, v8")
    k.e("s_cmp_eq_u32 s45, 0"); k.e("s_cselect_b64 vcc, -1, 0")
    k.e("v_cndmask_b32 v188, v11, v10, vcc"); k.e("v_cndmask_b32 v191, v10, v11, vcc")
    k.e("v_lshlrev_b32 v6, 3, v14"); k.e("v_lshrrev_b32 v8, 2, v13"); k.e("v_add_u32 v6, v6, v8"); k.e("v_mul_u32_u24 v6, 40, v6"); k.e("v_add_u32 v6, v6, v7")
    k.e(f"v_add_u32 v189, {KVB_}, v6")
    k.e("v_lshlrev_b32 v6, 4, v14"); k.e(f"v_add_u32 v190, {GWB_}, v6")
    ONES = 96
    for q in range(4): k.e(f"v_mov_b32 v{ONES+q}, 0x3f803f80")
    for q in range(16, 96): k.e(f"v_mov_b32 v{q}, 0")
    k.e("s_lshr_b32 s46, s43, 1"); k.e("s_cmp_eq_u32 s46, s44"); k.e("s_cselect_b32 s79, 1, 0"); k.e("s_cmp_eq_u32 s45, 0"); k.e("s_cselect_b32 s79, s79, 0")
    k.e("s_mul_i32 s47, s43, 10"); k.e("s_mul_i32 s46, s45, 5"); k.e("s_add_u32 s47, s47, s46")
    for c in range(5):
        k.e(f"s_add_u32 s46, s47, {c}"); k.e("s_lshl_b32 s46, s46, 2"); k.e("v_add_u32 v9, s46, v14")
        k.e("v_mul_u32_u24 v10, 205, v9"); k.e("v_lshrrev_b32 v10, 10, v10")
        k.e("v_mul_u32_u24 v11, 5, v10"); k.e("v_sub_u32 v11, v9, v11")
        k.e(f"v_mul_u32_u24 v12, {64*1280}, v10")
        k.e("v_lshrrev_b32 v9, 1, v11"); k.e("v_lshlrev_b32 v9, 9, v9"); k.e("v_and_b32 v10, 1, v11"); k.e("v_lshl_or_b32 v9, v10, 3, v9")
        k.e(f"v_add_u32 v{212+c}, v12, v9")
        k.e("v_cmp_eq_u32 vcc, 4, v11"); k.e("v_mov_b32 v9, 4"); k.e("v_mov_b32 v10, 3"); k.e(f"v_cndmask_b32 v{217+c}, v9, v10, vcc")
    k.e("s_waitcnt lgkmcnt(0)")
    srd(k, 96, 4, 0, L.WS_END)
    A = lambda r, c: 16 + (r * 5 + c) * 4
    CSa = lambda c: 56 + 4 * c
    SXa = lambda r: 76 + 4 * r
    KVa = lambda c: 84 + 4 * c
    F = lambda b: 100 + 40 * b
    MF = "v_mfma_f32_16x16x32_bf16"
    def reads(step, b, isH):
        f = F(b); out = []
        if ABL in ("noread", "samenoread"): return ["s_nop 0"]
        for r in range(2): out.append(f"ds_read_b128 {r4(f+4*r)}, v{192+2*r+step}")
        for c in range(5):
            va, o = (196 if c % 2 == 0 else 199), step * 32 * WROW + c * 32
            out.append(f"ds_read_b64_tr_b16 {r2(f+8+4*c)}, v{va} offset:{o}")
            out.append(f"ds_read_b64_tr_b16 {r2(f+10+4*c)}, v{va} offset:{o + 8*WROW}")
        if not isH: out.append(f"ds_read_b128 {r4(f+36)}, v198 offset:{64*step}")
        return out
    def kvreads(step, b):
        f = F(b)
        lab = k.label("kr"); k.e("s_cmp_eq_u32 s79, 0"); k.e(f"s_cbranch_scc1 {lab}")
        for c in range(2):
            o = step * 32 * 40 + c * 32
            k.e(f"ds_read_b64_tr_b16 {r2(f+28+4*c)}, v197 offset:{o}"); k.e(f"ds_read_b64_tr_b16 {r2(f+30+4*c)}, v197 offset:{o + 160}")
        k.e(f"{lab}:")
    def slot_addrs(sreg):
        for r in range(2):
            for sp in range(2): k.e(f"v_add_u32 v{192+2*r+sp}, s{sreg}, v{184+2*r+sp}")
        k.e(f"v_add_u32 v196, s{sreg}, v188"); k.e(f"v_add_u32 v199, s{sreg}, v191"); k.e(f"v_add_u32 v197, s{sreg}, v189"); k.e(f"v_add_u32 v198, s{sreg}, v190")
    def compute(b, isH, side):
        f = F(b); side = list(side)
        dots = []
        for r in range(2):
            for q in range(4):
                dots.append(f"v_dot2_f32_bf16 v{92+r}, v{f+4*r+q}, v{f+4*r+q}, v{92+r}" if isH else f"v_dot2_f32_bf16 v{94+r}, v{f+4*r+q}, v{f+36+q}, v{94+r}")
        mf = []
        for c in range(5):
            for r in range(2): mf.append(f"{MF} {r4(A(r,c))}, {r4(f+8+4*c)}, {r4(f+4*r)}, {r4(A(r,c))}")
            if isH: mf.append(f"{MF} {r4(CSa(c))}, {r4(f+8+4*c)}, {r4(ONES)}, {r4(CSa(c))}")
        if isH:
            for r in range(2): mf.append(f"{MF} {r4(SXa(r))}, {r4(ONES)}, {r4(f+4*r)}, {r4(SXa(r))}")
        if ABL in ("noread", "samenoread"): mf = mf[:1]; dots = []
        for m in mf:
            k.e(m)
            if side: k.e(side.pop(0))
            if dots and len(side) <= len(dots): k.e(dots.pop(0))
        for x in side + dots: k.e(x)
        sk = k.label("kv")
        k.e("s_cmp_eq_u32 s79, 0"); k.e(f"s_cbranch_scc1 {sk}")
        for c in range(2):
            if isH: k.e(f"{MF} {r4(KVa(c))}, {r4(f)}, {r4(f+28+4*c)}, {r4(KVa(c))}")
            else: k.e(f"{MF} {r4(KVa(c))}, {r4(f+28+4*c)}, {r4(f)}, {r4(KVa(c))}")
        k.e(f"{sk}:")
    if not INNER: st.stamp()
    if PPC:
        for q in range(4): k.e(f"v_mov_b32 v{96+q}, 0x3f803f80")
        prepack_process()
    if not INNER: st.stamp()
    k.e("s_mov_b32 s78, 0"); k.e("s_mov_b32 s83, 0")
    k.e("s_barrier")
    if not INNER: st.stamp()
    k.e("s_cmp_lg_u32 s42, 0"); k.e(f"s_cbranch_scc1 {name}_H")
    for isH in (0, 1):
        lp = f"{name}_loop{isH}"
        if isH: k.e(f"{name}_H:")
        slot_addrs(78)
        for x in reads(0, 0, isH): k.e(x)
        k.e("s_waitcnt lgkmcnt(8)")
        kvreads(0, 0)
        k.e(f"{lp}:")
        istamp(0)
        k.e("s_waitcnt lgkmcnt(0)")
        istamp(1)
        kvreads(1, 1)
        compute(0, isH, reads(1, 1, isH))
        istamp(2)
        k.e(f"s_add_u32 s78, s78, {SLOT}"); k.e(f"s_cmp_eq_u32 s78, {NSL*SLOT}"); k.e("s_cselect_b32 s78, 0, s78")
        k.e("s_waitcnt lgkmcnt(0)")
        istamp(3)
        k.e("s_barrier")
        istamp(4)
        slot_addrs(78)
        kvreads(0, 0)
        compute(1, isH, reads(0, 0, isH))
        istamp(5)
        k.e("s_add_u32 s83, s83, 1"); k.e("s_cmp_lt_u32 s83, 10"); k.e(f"s_cbranch_scc1 {lp}")
        if INNER: pass
        elif isH == 0: st.stamp()
        elif st.on:
            r = st.pairs[st.n - 1]; k.e(f"s_memtime s[{r}:{r+1}]")
        k.e("s_waitcnt lgkmcnt(0)"); k.e("s_nop 7")
        for r in range(2):
            k.e("s_and_b32 s46, s43, 1"); k.e(f"s_xor_b32 s46, s46, {r}"); k.e("s_lshl_b32 s47, s44, 1"); k.e("s_add_u32 s46, s46, s47")
            k.e("s_lshl_b32 s47, s40, 2"); k.e(f"s_add_u32 s{84+r}, s46, s47")
            k.e(f"s_lshl_b32 s47, s{84+r}, 4"); k.e(f"v_add_u32 v{5+r}, s47, v13")
        if not isH: epi_q6(k, A, KVa)
        else: epi_h5(k, A, CSa, SXa, KVa)
        if not isH: k.e(f"s_branch {name}_fin")
    k.e(f"{name}_fin:")
    if st.on: k.e("s_waitcnt vmcnt(0)")
    if INNER:
        st.pairs = [60, 62, 64, 66, 16, 68, 92, 94, 100]; st.n = 8
    st.stamp(real=True)
    st.flush()
    k.e(f"{name}_end:")
    k.e("s_endpgm")
    return k, 224, 256, K1_LDS, 512

def epi_q6(k, A, KVa):
    T = 100
    k.e(f"s_mov_b32 s70, {f32bits(QSCALE)}"); k.e(f"s_mov_b32 s71, {L.QF}")
    for r in range(2):
        k.e(f"v_lshrrev_b32 v7, 5, v{5+r}"); k.e("v_mul_u32_u24 v7, 1280, v7"); k.e(f"v_and_b32 v8, 31, v{5+r}")
        for c in range(5):
            a = A(r, c)
            for h in (0, 2): k.e(f"v_pk_mul_f32 v[{a+h}:{a+h+1}], v[{a+h}:{a+h+1}], s[70:71] op_sel:[0,0] op_sel_hi:[1,0]") if False else None
            for q in range(4): k.e(f"v_mul_f32 v{a+q}, s70, v{a+q}")
        for c in range(5):
            a = A(r, c); t = T + 2 * (c + 5 * r)
            k.e(f"v_cvt_pk_bf16_f32 v{t}, v{a}, v{a+1}"); k.e(f"v_cvt_pk_bf16_f32 v{t+1}, v{a+2}, v{a+3}")
            k.e(f"v_lshlrev_b32 v9, v{217+c}, v8"); k.e(f"v_add3_u32 v{130+c+5*r}, v9, v7, v{212+c}")
        for c in range(5):
            t = T + 2 * (c + 5 * r)
            k.e(f"buffer_store_dwordx2 v[{t}:{t+1}], v{130+c+5*r}, s[96:99], s71 offen{WTQ}")
    g = k.label("ng")
    k.e("s_or_b32 s46, s43, s45"); k.e("s_cmp_lg_u32 s46, 0"); k.e(f"s_cbranch_scc1 {g}")
    for r in range(2):
        allreduce16(k, "v_add_f32", 94 + r, 7)
        k.e(f"v_mul_f32 v{94+r}, {f32bits(-LOG2E)}, v{94+r}"); k.e(f"v_exp_f32 v{94+r}, v{94+r}"); k.e("s_nop 0")
        k.e(f"v_add_f32 v{94+r}, 1.0, v{94+r}"); k.e(f"v_rcp_f32 v{94+r}, v{94+r}")
        k.e(f"v_lshlrev_b32 v7, 2, v{5+r}"); k.e(f"s_mov_b32 s46, {L.G}")
        k.e(f"buffer_store_dword v{94+r}, v7, s[96:99], s46 offen")
    k.e(f"{g}:")
    e = k.label("nk")
    k.e("s_cmp_eq_u32 s79, 0"); k.e(f"s_cbranch_scc1 {e}")
    T = 150
    k.e("s_lshr_b32 s71, s84, 1"); k.e("s_mul_i32 s71, s71, 3072"); k.e(f"s_add_u32 s71, s71, {L.KVF}")
    k.e("v_and_b32 v8, 31, v5")
    a = KVa(0); k.e(f"v_cvt_pk_bf16_f32 v{T}, v{a}, v{a+1}"); k.e(f"v_cvt_pk_bf16_f32 v{T+1}, v{a+2}, v{a+3}")
    a = KVa(1); k.e(f"v_cvt_pk_bf16_f32 v{T+2}, v{a}, v{a+1}"); k.e(f"v_cvt_pk_bf16_f32 v{T+3}, v{a+2}, v{a+3}")
    k.e("v_lshrrev_b32 v9, 1, v14"); k.e("v_lshlrev_b32 v9, 5, v9"); k.e("v_add_u32 v9, v9, v8"); k.e("v_lshlrev_b32 v9, 4, v9")
    k.e("v_and_b32 v10, 1, v14"); k.e("v_lshlrev_b32 v10, 3, v10"); k.e("v_add_u32 v9, v9, v10")
    k.e(f"buffer_store_dwordx2 v[{T}:{T+1}], v9, s[96:99], s71 offen")
    gen1.k2_addr(k, 8, 12, 9)
    k.e("v_cmp_eq_u32 vcc, 0, v14"); k.e(f"v_mov_b32 v9, {OOB}"); k.e("v_cndmask_b32 v12, v9, v12, vcc")
    k.e(f"buffer_store_dwordx2 v[{T+2}:{T+3}], v12, s[96:99], s71 offen")
    k.e(f"v_dot2_f32_bf16 v11, v{T}, v{T}, 0"); k.e(f"v_dot2_f32_bf16 v11, v{T+1}, v{T+1}, v11")
    k.e(f"v_dot2_f32_bf16 v10, v{T+2}, v{T+2}, 0"); k.e(f"v_dot2_f32_bf16 v10, v{T+3}, v{T+3}, v10")
    k.e("v_cndmask_b32 v10, 0, v10, vcc"); k.e("v_add_f32 v11, v11, v10")
    allreduce16(k, "v_add_f32", 11, 10)
    for ror in (8, 4, 2, 1): k.e(f"v_max_f32_dpp v11, v11, v11 row_ror:{ror} row_mask:0xf bank_mask:0xf")
    k.e("s_lshl_b32 s46, s84, 2"); k.e(f"s_add_u32 s46, s46, {L.KMAX}"); k.e("v_mov_b32 v10, 0")
    k.e("buffer_store_dword v11, v10, s[96:99], s46 offen")
    k.e(f"{e}:")

def epi_q8(k, A, KVa, DQ):
    T = 148
    k.e(f"s_mov_b32 s70, {f32bits(QSCALE)}"); k.e(f"s_mov_b32 s71, {L.QF}")
    for r in range(2):
        k.e(f"v_lshrrev_b32 v7, 5, v{5+r}"); k.e("v_mul_u32_u24 v7, 1280, v7"); k.e(f"v_and_b32 v8, 31, v{5+r}")
        for c in range(5):
            a = A(r, c)
            for h in (0, 2): k.e(f"v_pk_mul_f32 v[{a+h}:{a+h+1}], v[{a+h}:{a+h+1}], s[70:71] op_sel:[0,0] op_sel_hi:[1,0]") if False else None
            for q in range(4): k.e(f"v_mul_f32 v{a+q}, s70, v{a+q}")
        for c in range(5):
            a = A(r, c); t = T + 2 * (c + 5 * r)
            k.e(f"v_cvt_pk_bf16_f32 v{t}, v{a}, v{a+1}"); k.e(f"v_cvt_pk_bf16_f32 v{t+1}, v{a+2}, v{a+3}")
            k.e(f"v_lshlrev_b32 v9, v{249+c}, v8"); k.e(f"v_add3_u32 v{180+c+5*r}, v9, v7, v{244+c}")
        for c in range(5):
            t = T + 2 * (c + 5 * r)
            k.e(f"buffer_store_dwordx2 v[{t}:{t+1}], v{180+c+5*r}, s[96:99], s71 offen")
    g = k.label("ng")
    k.e("s_or_b32 s46, s43, s45"); k.e("s_cmp_lg_u32 s46, 0"); k.e(f"s_cbranch_scc1 {g}")
    for r in range(2):
        allreduce16(k, "v_add_f32", DQ + r, 7)
        k.e(f"v_mul_f32 v{DQ+r}, {f32bits(-LOG2E)}, v{DQ+r}"); k.e(f"v_exp_f32 v{DQ+r}, v{DQ+r}"); k.e("s_nop 0")
        k.e(f"v_add_f32 v{DQ+r}, 1.0, v{DQ+r}"); k.e(f"v_rcp_f32 v{DQ+r}, v{DQ+r}")
        k.e(f"v_lshlrev_b32 v7, 2, v{5+r}"); k.e(f"s_mov_b32 s46, {L.G}")
        k.e(f"buffer_store_dword v{DQ+r}, v7, s[96:99], s46 offen")
    k.e(f"{g}:")
    e = k.label("nk")
    k.e("s_cmp_eq_u32 s79, 0"); k.e(f"s_cbranch_scc1 {e}")
    T = 200
    k.e("s_lshr_b32 s71, s84, 1"); k.e("s_mul_i32 s71, s71, 3072"); k.e(f"s_add_u32 s71, s71, {L.KVF}")
    k.e("v_and_b32 v8, 31, v5")
    a = KVa(0); k.e(f"v_cvt_pk_bf16_f32 v{T}, v{a}, v{a+1}"); k.e(f"v_cvt_pk_bf16_f32 v{T+1}, v{a+2}, v{a+3}")
    a = KVa(1); k.e(f"v_cvt_pk_bf16_f32 v{T+2}, v{a}, v{a+1}"); k.e(f"v_cvt_pk_bf16_f32 v{T+3}, v{a+2}, v{a+3}")
    k.e("v_lshrrev_b32 v9, 1, v14"); k.e("v_lshlrev_b32 v9, 5, v9"); k.e("v_add_u32 v9, v9, v8"); k.e("v_lshlrev_b32 v9, 4, v9")
    k.e("v_and_b32 v10, 1, v14"); k.e("v_lshlrev_b32 v10, 3, v10"); k.e("v_add_u32 v9, v9, v10")
    k.e(f"buffer_store_dwordx2 v[{T}:{T+1}], v9, s[96:99], s71 offen")
    gen1.k2_addr(k, 8, 12, 9)
    k.e("v_cmp_eq_u32 vcc, 0, v14"); k.e(f"v_mov_b32 v9, {OOB}"); k.e("v_cndmask_b32 v12, v9, v12, vcc")
    k.e(f"buffer_store_dwordx2 v[{T+2}:{T+3}], v12, s[96:99], s71 offen")
    k.e(f"v_dot2_f32_bf16 v11, v{T}, v{T}, 0"); k.e(f"v_dot2_f32_bf16 v11, v{T+1}, v{T+1}, v11")
    k.e(f"v_dot2_f32_bf16 v10, v{T+2}, v{T+2}, 0"); k.e(f"v_dot2_f32_bf16 v10, v{T+3}, v{T+3}, v10")
    k.e("v_cndmask_b32 v10, 0, v10, vcc"); k.e("v_add_f32 v11, v11, v10")
    allreduce16(k, "v_add_f32", 11, 10)
    for ror in (8, 4, 2, 1): k.e(f"v_max_f32_dpp v11, v11, v11 row_ror:{ror} row_mask:0xf bank_mask:0xf")
    k.e("s_lshl_b32 s46, s84, 2"); k.e(f"s_add_u32 s46, s46, {L.KMAX}"); k.e("v_mov_b32 v10, 0")
    k.e("buffer_store_dword v11, v10, s[96:99], s46 offen")
    k.e(f"{e}:")

def epi_h8(k, A, CSa, SXa, KVa, DQ):
    T = 148
    p2 = lambda x: f"v[{x}:{x+1}]"
    C1, C2, ONE = 196, 198, 200
    k.e(f"v_mov_b32 v{C1}, {f32bits(GELU_C1)}"); k.e(f"v_mov_b32 v{C1+1}, v{C1}")
    k.e(f"v_mov_b32 v{C2}, {f32bits(GELU_C2)}"); k.e(f"v_mov_b32 v{C2+1}, v{C2}")
    k.e(f"v_mov_b32 v{ONE}, 1.0"); k.e(f"v_mov_b32 v{ONE+1}, 1.0")
    k.e("s_lshr_b32 s85, s43, 1") if False else None
    k.e("s_lshr_b32 s70, s43, 1"); k.e("s_add_u32 s70, s70, 1"); k.e("s_and_b32 s46, s43, 1"); k.e("s_sub_u32 s47, 0, s70"); k.e("s_cmp_eq_u32 s46, 0"); k.e("s_cselect_b32 s70, s70, s47")
    k.e("s_lshl_b32 s88, s43, 1"); k.e("s_add_u32 s88, s88, s45")
    srd(k, 72, 4, L.HS, L.SZ_XF)
    for r in range(2):
        MN, RS = 202, 204
        allreduce16(k, "v_add_f32", DQ + r, 7)
        k.e(f"v_mul_f32 v{MN}, {f32bits(-1/640)}, v{SXa(r)}"); k.e(f"v_mul_f32 v{RS}, {f32bits(1/640)}, v{DQ+r}")
        k.e(f"v_fma_f32 v{RS}, -v{MN}, v{MN}, v{RS}"); k.e(f"v_add_f32 v{RS}, {f32bits(1e-5)}, v{RS}"); k.e(f"v_rsq_f32 v{RS}, v{RS}")
        k.e(f"v_mov_b32 v{MN+1}, v{MN}")
        k.e(f"v_add_u32 v11, s70, v{5+r}")
        k.e("v_lshrrev_b32 v12, 4, v11"); k.e(f"v_mul_u32_u24 v12, {20*1024}, v12")
        k.e("v_and_b32 v9, 15, v11"); k.e("v_lshlrev_b32 v10, 4, v14"); k.e("v_add_u32 v9, v9, v10"); k.e("v_lshlrev_b32 v9, 4, v9")
        k.e("v_add_u32 v12, v12, v9")
        k.e(f"v_mov_b32 v{RS+1}, v{RS}")
        k.e("v_cmp_gt_u32 vcc, 2048, v11"); k.e(f"v_mov_b32 v9, {OOB}"); k.e("v_cndmask_b32 v12, v9, v12, vcc")
        k.e("v_cmp_gt_u32 vcc, 32, v2"); k.e("v_cndmask_b32 v15, v9, v12, vcc")
        regs = [A(r, c) for c in range(5)]
        for c, a in enumerate(regs):
            for h in (0, 2): k.e(f"v_pk_fma_f32 {p2(a+h)}, {p2(MN)}, {p2(CSa(c)+h)}, {p2(a+h)}")
        for a in regs:
            for h in (0, 2): k.e(f"v_pk_mul_f32 {p2(a+h)}, {p2(a+h)}, {p2(RS)}")
        gen3.gelu_multi(k, regs, [206 + 4 * c for c in range(5)], C1, C2, ONE)
        PK = T + 12 * r
        for c, a in enumerate(regs):
            k.e(f"v_cvt_pk_bf16_f32 v{PK+2*c}, v{a}, v{a+1}"); k.e(f"v_cvt_pk_bf16_f32 v{PK+2*c+1}, v{a+2}, v{a+3}")
        store_t80(k, PK, 12, 15, 72, 88, 228 + 4 * r)
    e = k.label("nv")
    k.e("s_cmp_eq_u32 s79, 0"); k.e(f"s_cbranch_scc1 {e}")
    T = 180
    k.e("s_lshr_b32 s71, s84, 1"); k.e("s_mul_i32 s71, s71, 3072"); k.e("s_and_b32 s46, s84, 1"); k.e("s_lshl_b32 s46, s46, 10"); k.e("s_add_u32 s71, s71, s46")
    k.e(f"s_add_u32 s71, s71, {L.KVF + 1024}")
    k.e("v_and_b32 v9, 1, v14"); k.e("v_lshlrev_b32 v9, 5, v9"); k.e("v_add_u32 v9, v9, v13"); k.e("v_lshlrev_b32 v9, 4, v9")
    k.e("v_lshrrev_b32 v10, 1, v14"); k.e("v_lshlrev_b32 v10, 3, v10"); k.e("v_add_u32 v9, v9, v10")
    a = KVa(0); k.e(f"v_cvt_pk_bf16_f32 v{T}, v{a}, v{a+1}"); k.e(f"v_cvt_pk_bf16_f32 v{T+1}, v{a+2}, v{a+3}")
    k.e(f"buffer_store_dwordx2 v[{T}:{T+1}], v9, s[96:99], s71 offen")
    a = KVa(1); k.e(f"v_cvt_pk_bf16_f32 v{T+2}, v{a}, v{a+1}"); k.e(f"v_cvt_pk_bf16_f32 v{T+3}, v{a+2}, v{a+3}")
    k.e("v_cmp_gt_u32 vcc, 4, v13")
    k.e(f"v_cndmask_b32 v{T+2}, 0, v{T+2}, vcc"); k.e(f"v_cndmask_b32 v{T+3}, 0, v{T+3}, vcc")
    k.e("v_mov_b32 v10, 0x3f803f80")
    k.e("v_and_b32 v11, 11, v13"); k.e("v_cmp_eq_u32 vcc, 8, v11")
    k.e(f"v_cndmask_b32 v{T+2}, v{T+2}, v10, vcc"); k.e(f"v_cndmask_b32 v{T+3}, v{T+3}, v10, vcc")
    k.e("v_cmp_eq_u32 vcc, 9, v13"); k.e(f"v_cndmask_b32 v{T+2}, v{T+2}, v10, vcc")
    k.e("v_lshrrev_b32 v11, 2, v13"); k.e("v_cmp_ne_u32 vcc, 1, v11")
    k.e("v_add_u32 v9, 256, v9"); k.e(f"v_mov_b32 v10, {OOB}"); k.e("v_cndmask_b32 v9, v10, v9, vcc")
    k.e(f"buffer_store_dwordx2 v[{T+2}:{T+3}], v9, s[96:99], s71 offen")
    k.e(f"{e}:")


def assemble_text(ks):
    s = ""
    for (k, vg, nwg, lds, *rest) in ks:
        blk = rest[0] if rest else 256
        s += f"; @launch kernel={k.name} grid=({nwg},1,1) block=({blk},1,1) lds={lds}\n"
    s += '.amdgcn_target "amdgcn-amd-amdhsa--gfx950"\n.text\n'
    for (k, vg, nwg, lds, *rest) in ks: s += kernel_text(k, vg)
    s += "code_end:\n"
    s += TBL_TEXT
    s += '.section .rodata,"a"\n'
    for (k, vg, nwg, lds, *rest) in ks: s += descriptor(k.name, (vg + 7) // 8 * 8, 102)
    return s

def build_all():
    gen4.RAWX = True
    return [gen_k1(), gen4.gen_main()]

if __name__ == "__main__":
    PROF = "--prof" in sys.argv; gen3.PROF = PROF; gen4.PROF = PROF
    for a in sys.argv:
        if a.startswith("--abl="): ABL = a[6:]
    gen4.ADIAG = "--adiag" in sys.argv
    INNER = "--inner" in sys.argv
    if "--nopfk1" in sys.argv: PFK1 = 0
    if "--pfk3" in sys.argv: PFK1 = 3
    if "--pfk4" in sys.argv: PFK1 = 4
    if "--nocodepf" in sys.argv: CODEPF = False
    if "--notlbpf" in sys.argv: TLBPF = False
    LSTAMP = "--lstamp" in sys.argv
    for a in sys.argv:
        if a.startswith("--poll="): gen4.POLL = int(a[7:])
    if "--nosent" in sys.argv: gen4.SENT = False
    if "--noearly4" in sys.argv: gen4.EARLY4 = False
    if "--codepf2" in sys.argv: gen4.CODEPF2 = True
    for a in sys.argv:
        if a.startswith("--pace="):
            v = [None if c == "x" else int(c) for c in a[7:]]
            gen4.PACE2, gen4.PACE3, gen4.PACE4 = v
    if "--wt" in sys.argv: WT = " sc1"
    if "--wtq" in sys.argv: WTQ = " sc1"
    ROWMAP = "--rowmap" in sys.argv
    gen5.WT = "" if "--nowth" in sys.argv else WT
    gen4.FINE = "--fine" in sys.argv
    gen4.NOB = "--nob" in sys.argv; gen4.NOA = "--noa" in sys.argv
    for a in sys.argv:
        if a.startswith("--pa="): gen4.PRIO_A = int(a[5:])
        if a.startswith("--pb="): gen4.PRIO_B = int(a[5:])
        if a.startswith("--pe="): gen4.PRIO_E = int(a[5:])
        if a.startswith("--pp="): gen4.PRIO_P2, gen4.PRIO_P3, gen4.PRIO_P4 = [int(c) for c in a[5:]]
    ks = build_all()
    open(sys.argv[1], "w").write(assemble_text(ks))
    for (k, vg, nwg, lds, *rest) in ks: print(k.name, "vgpr", vg, "wg", nwg, "lds", lds, "lines", len(k.lines))
```

```python
import sys
sys.path.insert(0, "work")
from asmfw import *
import layout as L
import korder as KO
import gen1, gen3
from gen1 import srd, ldptr, f32bits, KA, OOB, LOG2E, GELU_C1, GELU_C2
from gen3 import r4, r2, r16, allreduce16, decode_gj, store_t80, VStamps

ADIAG = False; RAWX = False; PROF = False; NOA = False; NOB = False; FINE = False; PFS = 0; PFALL = False
PRIO_A, PRIO_B, PRIO_E = 0, 0, 0
PRIO_P2, PRIO_P3, PRIO_P4 = 0, 0, 0
FL_X1, FL_H, FL_O, FL_CL = 0, 1024, 2048, 3072
SENT = True
POLL = 0
EARLY4 = True
WOLDS = False
PFK2 = False
ROWP2 = False
ROWP4 = False
NSET2 = 3
CODEPF2 = False
PACE2 = PACE3 = PACE4 = None
CH, NB = 4, 4
CHB = CH * 3072
NCH = 64 // CH
SPIN_MAX = 400000

class VM:
    def __init__(self, k): self.k = k; self.q = []
    def issue(self, instr, tag): self.k.e(instr); self.q.append(tag)
    def wait(self, tag):
        idx = [i for i, t in enumerate(self.q) if t == tag]
        if not idx: return
        n = len(self.q) - 1 - idx[-1]
        self.k.e(f"s_waitcnt vmcnt({min(n, 63)})"); self.q = self.q[idx[-1] + 1:]
    def drained(self): self.q = []

def emit_publish(k, fl_base, fl2=None):
    lab = k.label("pub")
    k.e("s_waitcnt vmcnt(0)"); k.e("s_barrier")
    k.e("s_cmp_lg_u32 s3, 0"); k.e(f"s_cbranch_scc1 {lab}")
    k.e("s_lshl_b32 s46, s40, 3"); k.e("s_add_u32 s46, s46, s41"); k.e("s_lshl_b32 s46, s46, 2"); k.e(f"s_add_u32 s46, s46, {fl_base}")
    k.e("v_mov_b32 v252, 0"); k.e("v_mov_b32 v253, 1")
    k.e("s_mov_b64 s[34:35], exec"); k.e("s_mov_b64 exec, 1")
    k.e("buffer_store_dword v253, v252, s[28:31], s46 offen sc1")
    if fl2 is not None: k.e(f"buffer_store_dword v253, v252, s[28:31], s46 offen offset:{fl2 - fl_base} sc1")
    k.e("s_mov_b64 exec, s[34:35]")
    k.e(f"{lab}:")

def emit_wait_sent(k, TB=204):
    lab = k.label("poll"); done = k.label("pdone")
    srd(k, 64, 4, L.OF, L.SZ_XF)
    k.e("v_lshrrev_b32 v4, 2, v2"); k.e("v_lshrrev_b32 v5, 1, v4"); k.e("v_add_u32 v5, 16, v5")
    k.e(f"v_bfe_u32 v{TB}, v2, 1, 1"); k.e(f"v_mul_u32_u24 v{TB}, 40, v{TB}"); k.e(f"v_add_u32 v5, v5, v{TB}"); k.e("v_lshlrev_b32 v5, 10, v5")
    k.e("v_and_b32 v4, 1, v4"); k.e("v_lshlrev_b32 v4, 1, v4"); k.e(f"v_and_b32 v{TB}, 1, v2"); k.e(f"v_add_u32 v4, v4, v{TB}"); k.e("v_lshlrev_b32 v4, 8, v4")
    k.e("v_add_u32 v5, v5, v4")
    k.e(f"v_mov_b32 v4, {OOB}"); k.e("v_cndmask_b32 v5, v4, v5, s[38:39]")
    k.e(f"s_mul_i32 s46, s40, {4*20*1024}")
    k.e(f"s_mov_b32 s47, {SPIN_MAX}")
    k.e(f"{lab}:")
    k.e(f"buffer_load_dwordx4 v[{TB}:{TB+3}], v5, s[64:67], s46 offen sc1")
    k.e("s_waitcnt vmcnt(0)")
    k.e(f"v_max3_u32 v{TB}, v{TB}, v{TB+1}, v{TB+2}"); k.e(f"v_max_u32 v{TB}, v{TB}, v{TB+3}")
    k.e(f"v_cmp_eq_u32 vcc, -1, v{TB}")
    k.e("s_cmp_eq_u64 vcc, 0")
    k.e(f"s_cbranch_scc1 {done}")
    k.e("s_sleep 1")
    k.e("s_sub_u32 s47, s47, 1"); k.e("s_cmp_lg_u32 s47, 0"); k.e(f"s_cbranch_scc1 {lab}")
    k.e(f"{done}:")

def emit_wait(k, fl_base):
    lab = k.label("poll"); done = k.label("pdone")
    k.e("s_lshl_b32 s46, s40, 5"); k.e(f"s_add_u32 s46, s46, {fl_base}")
    k.e("v_and_b32 v4, 7, v2"); k.e("v_lshlrev_b32 v4, 2, v4")
    k.e(f"s_mov_b32 s47, {SPIN_MAX}")
    if POLL == 0:
        k.e(f"{lab}:")
        k.e("buffer_load_dword v253, v4, s[28:31], s46 offen sc1")
        k.e("s_waitcnt vmcnt(0)")
        k.e("v_cmp_ne_u32 vcc, 1, v253"); k.e("s_cmp_eq_u64 vcc, 0"); k.e(f"s_cbranch_scc1 {done}")
        k.e("s_sub_u32 s47, s47, 1"); k.e("s_cmp_lg_u32 s47, 0"); k.e(f"s_cbranch_scc1 {lab}")
        k.e(f"{done}:")
        return
    k.e("buffer_load_dword v253, v4, s[28:31], s46 offen sc1")
    k.e(f"{lab}:")
    k.e(f"s_sleep {POLL}")
    k.e("buffer_load_dword v252, v4, s[28:31], s46 offen sc1")
    k.e("s_waitcnt vmcnt(1)")
    k.e("v_cmp_ne_u32 vcc, 1, v253"); k.e("s_cmp_eq_u64 vcc, 0"); k.e(f"s_cbranch_scc1 {done}")
    k.e(f"s_sleep {POLL}")
    k.e("buffer_load_dword v253, v4, s[28:31], s46 offen sc1")
    k.e("s_waitcnt vmcnt(1)")
    k.e("v_cmp_ne_u32 vcc, 1, v252"); k.e("s_cmp_eq_u64 vcc, 0"); k.e(f"s_cbranch_scc1 {done}")
    k.e("s_sub_u32 s47, s47, 1"); k.e("s_cmp_lg_u32 s47, 0"); k.e(f"s_cbranch_scc1 {lab}")
    k.e(f"{done}:")
    return ["poll"]

def emit_attn(k, st):
    name = k.name
    Q1 = [16, 24]; Q2 = [20, 28]; O = [32, 48]; Sx = [64, 80]; P = [96, 104]
    K1 = [112, 120]; K2r = [116, 124]; V0 = [128, 136]; V1 = [132, 140]
    vKa, vK2a = 5, 6
    MF = "v_mfma_f32_32x32x16_bf16"; MF8 = "v_mfma_f32_32x32x8_bf16"
    decode_gj(k, 0)
    if PRIO_A: k.e(f"s_setprio {PRIO_A}")
    k.e("s_and_b32 s42, s3, 1"); k.e("s_lshr_b32 s43, s3, 1")
    k.e("v_and_b32 v7, 31, v2"); k.e("v_lshlrev_b32 v8, 3, v7")
    k.e("s_lshl_b32 s46, s40, 6"); k.e("s_lshl_b32 s47, s43, 5"); k.e("s_add_u32 s46, s46, s47")
    k.e("v_add_u32 v9, s46, v7"); k.e("v_lshlrev_b32 v10, 2, v9")
    k.e("v_lshlrev_b32 v11, 3, v2")
    k.e("s_mul_i32 s44, s3, 3072")
    k.e("s_waitcnt lgkmcnt(0)")
    srd(k, 12, 4, L.QF, L.SZ_QF); srd(k, 8, 4, L.KVF, L.SZ_KVF); srd(k, 16, 4, L.KMAX, 512)
    srd(k, 20, 4, L.G, 8192); srd(k, 24, 4, L.OF, L.SZ_XF); srd(k, 28, 4, L.FLAGS, 4096)
    k.e("s_lshl_b32 s46, s41, 2"); k.e("s_lshl_b32 s47, s42, 1"); k.e("s_add_u32 s46, s46, s47"); k.e("s_lshl_b32 s46, s46, 6")
    k.e("s_lshl_b32 s47, s40, 1"); k.e("s_add_u32 s46, s46, s47"); k.e("s_add_u32 s46, s46, s43"); k.e("s_mul_i32 s46, s46, 1280")
    for qb in range(2):
        k.e(f"buffer_load_dwordx4 {r4(Q1[qb])}, v3, s[12:15], s46 offen")
        k.e(f"buffer_load_dwordx2 {r2(Q2[qb])}, v8, s[12:15], s46 offen offset:1024")
        if qb == 0: k.e(f"s_add_u32 s46, s46, {64*1280}")
    k.e("buffer_load_dwordx2 v[64:65], v11, s[16:19], 0 offen")
    k.e("buffer_load_dword v12, v10, s[20:23], 0 offen")
    def dma_all(chunk):
        k.e(f"s_add_u32 s45, s44, {chunk*CHB}"); k.e(f"s_add_u32 m0, s44, {chunk*CHB}"); k.e("s_nop 0")
        for i in range(3): k.e(f"buffer_load_dwordx4 v3, s[8:11], s45 offen offset:{i*1024} lds")
    for c in range(NB - 1): dma_all(c)
    st.stamp()
    for qb in range(2):
        for i in range(16): k.e(f"v_mov_b32 v{O[qb]+i}, 0")
    k.e("v_lshrrev_b32 v14, 3, v7"); k.e("v_lshlrev_b32 v15, 9, v14"); k.e("v_add_u32 v15, 1344, v15")
    k.e("v_and_b32 v14, 7, v7"); k.e("v_lshlrev_b32 v14, 3, v14"); k.e("v_add_u32 v15, v15, v14")
    k.e("v_cmp_gt_u32 vcc, 32, v2"); k.e("v_mov_b32 v14, 1424"); k.e("v_cndmask_b32 v15, v14, v15, vcc")
    k.e(f"v_mov_b32 v{vKa}, v3"); k.e(f"v_mov_b32 v{vK2a}, v15")
    for j in range(4, 8): k.e(f"v_mov_b32 v{P[1]+j}, 0")
    for j in range(12, 16): k.e(f"v_mov_b32 v{Sx[1]+j}, 0")
    for j in range(4): k.e(f"v_mov_b32 v{V1[1]+j}, 0")
    k.e(f"s_waitcnt vmcnt({3*(NB-1)})")
    st.stamp()
    k.e("v_max_f32 v64, v64, v65")
    for ror in (8, 4, 2, 1):
        k.e(f"v_max_f32_dpp v64, v64, v64 row_ror:{ror} row_mask:0xf bank_mask:0xf")
    allreduce16(k, "v_max_f32", 64, 65)
    for qb in range(2):
        t = 66 + 4 * qb
        k.e(f"v_cndmask_b32 v{t+2}, 0, v{Q2[qb]}, vcc"); k.e(f"v_cndmask_b32 v{t+3}, 0, v{Q2[qb]+1}, vcc")
        k.e(f"v_dot2_f32_bf16 v{t}, v{Q1[qb]}, v{Q1[qb]}, 0")
        for j in (1, 2, 3): k.e(f"v_dot2_f32_bf16 v{t}, v{Q1[qb]+j}, v{Q1[qb]+j}, v{t}")
        for j in (2, 3): k.e(f"v_dot2_f32_bf16 v{t}, v{t+j}, v{t+j}, v{t}")
    for qb in range(2):
        t = 66 + 4 * qb
        k.e(f"v_mov_b32 v{t+1}, v{t}"); k.e(f"v_permlane32_swap_b32 v{t}, v{t+1}"); k.e(f"v_add_f32 v{t}, v{t}, v{t+1}")
        k.e(f"v_mul_f32 v{t}, v{t}, v64"); k.e(f"v_sqrt_f32 v{t}, v{t}")
    for qb in range(2):
        t = 66 + 4 * qb
        k.e(f"v_mul_f32 v{t}, {f32bits(-1.01)}, v{t}")
        k.e(f"v_and_b32 v{t+1}, 0xffff0000, v{t}"); k.e(f"v_sub_f32 v{t+2}, v{t}, v{t+1}")
        k.e(f"v_cvt_pk_bf16_f32 v{t+2}, v{t+1}, v{t+2}")
        k.e(f"v_cndmask_b32 v{Q2[qb]}, v{t+2}, v{Q2[qb]}, vcc"); k.e(f"v_cndmask_b32 v{Q2[qb]+1}, 0, v{Q2[qb]+1}, vcc")
    k.e(f"s_waitcnt vmcnt({3*(NB-2)})"); k.e("s_barrier")
    def rd(kind, tile, b):
        o = tile * 3072
        if kind == 0: return f"ds_read_b128 {r4(K1[b])}, v{vKa} offset:{o}"
        if kind == 1: return f"ds_read_b64 {r2(K2r[b])}, v{vK2a} offset:{o}"
        if kind == 2: return f"ds_read_b128 {r4(V0[b])}, v{vKa} offset:{o+1024}"
        return f"ds_read_b128 {r4(V1[b])}, v{vKa} offset:{o+2048}"
    for kind in range(4): k.e(rd(kind, 0, 0))
    k.e("s_waitcnt lgkmcnt(2)")
    k.e(f"{MF} {r16(Sx[0])}, {r4(K1[0])}, {r4(Q1[0])}, 0")
    k.e(f"{MF8} {r16(Sx[0])}, {r2(K2r[0])}, {r2(Q2[0])}, {r16(Sx[0])}")
    k.e("s_mov_b32 s52, 0"); k.e("s_mov_b32 s53, 0")
    k.e(f"s_add_u32 s54, s44, {(NB-1)*CHB}"); k.e(f"s_add_u32 s56, s44, {(NB-1)*CHB}")
    k.e("s_nop 7"); k.e("s_nop 3")
    st.stamp()
    if ADIAG:
        for r in (70, 71, 72): k.e(f"s_mov_b32 s{r}, 0")
    if SENT:
        k.e("v_mov_b32 v154, 0"); k.e("v_mov_b32 v155, 0")
        k.e("s_lshl_b32 s62, s40, 3"); k.e("s_add_u32 s62, s62, s41"); k.e("s_lshl_b32 s62, s62, 2"); k.e(f"s_add_u32 s62, s62, {FL_CL}")
    loop = f"{name}_aloop"
    k.e(f"{loop}:")
    def E(i, S): return f"v_exp_f32 v{S+i}, v{S+i}"
    def C(j, S, Pq): return f"v_cvt_pk_bf16_f32 v{Pq+j}, v{S+2*j}, v{S+2*j+1}"
    for T in range(CH):
        b = T % 2; nb = 1 - b
        for qb in range(2):
            S = Sx[qb]; N = Sx[1 - qb]; Pq = P[qb]
            pq_prev = P[1 - qb]; o_prev = O[1 - qb]
            v1_prev = V1[b] if qb == 1 else V1[nb]
            kb = b if qb == 0 else nb
            nq = 1 - qb
            Cp = lambda j: C(j, N, pq_prev)
            seq = [E(0, S), E(1, S), Cp(6), E(2, S), E(3, S), Cp(7),
                   f"{MF} {r16(N)}, {r4(K1[kb])}, {r4(Q1[nq])}, 0",
                   E(4, S), E(5, S), C(0, S, Pq), E(6, S), E(7, S), C(1, S, Pq),
                   f"{MF8} {r16(N)}, {r2(K2r[kb])}, {r2(Q2[nq])}, {r16(N)}",
                   E(8, S), E(9, S), C(2, S, Pq), E(10, S), E(11, S), C(3, S, Pq),
                   f"{MF} {r16(o_prev)}, {r4(v1_prev)}, {r4(pq_prev+4)}, {r16(o_prev)}",
                   E(12, S), E(13, S), C(4, S, Pq), E(14, S), E(15, S), C(5, S, Pq),
                   f"{MF} {r16(O[qb])}, {r4(V0[b])}, {r4(Pq)}, {r16(O[qb])}"]
            side = {}
            def add(i, s): side.setdefault(i, []).append(s)
            if qb == 0:
                nt = T + 1
                if T == CH - 1:
                    add(4, f"s_add_u32 s53, s53, {CHB}"); add(4, f"s_cmp_eq_u32 s53, {NB*CHB}"); add(4, "s_cselect_b32 s53, 0, s53")
                    add(5, f"v_add_u32 v{vKa}, s53, v3"); add(5, f"v_add_u32 v{vK2a}, s53, v15")
                    if ADIAG: add(5, "s_memtime s[60:61]")
                    add(5, f"s_waitcnt vmcnt({3*(NB-2)}) lgkmcnt(0)")
                    if ADIAG: add(5, "s_memtime s[62:63]")
                    add(5, "s_barrier")
                    if ADIAG:
                        for x in ("s_memtime s[64:65]", "s_waitcnt lgkmcnt(0)", "s_sub_u32 s62, s62, s60", "s_add_u32 s70, s70, s62", "s_sub_u32 s64, s64, s60", "s_add_u32 s71, s71, s64"): add(5, x)
                    nt = 0
                else:
                    add(5, "s_waitcnt lgkmcnt(0)")
                add(6, rd(0, nt, nb)); add(13, rd(1, nt, nb)); add(20, rd(3, nt, nb)); add(27, rd(2, nt, nb))
            else:
                add(5, "s_waitcnt lgkmcnt(2)")
                if T < 3:
                    if T == 0:
                        add(6, f"s_cmp_lt_u32 s54, {NCH*CHB}"); add(6, f"s_cselect_b32 s55, s54, {OOB}"); add(6, "s_mov_b32 m0, s56")
                    if ADIAG: add(13, "s_memtime s[66:67]")
                    add(13, f"buffer_load_dwordx4 v3, s[8:11], s55 offen offset:{T*1024} lds")
                    if ADIAG:
                        for x in ("s_memtime s[68:69]", "s_waitcnt lgkmcnt(0)", "s_sub_u32 s68, s68, s66", "s_add_u32 s72, s72, s68"): add(13, x)
                    if T == 2:
                        add(20, f"s_add_u32 s54, s54, {CHB}"); add(20, f"s_add_u32 s56, s56, {CHB}")
                        add(27, f"s_sub_u32 s57, s56, s44"); add(27, f"s_cmp_eq_u32 s57, {NB*CHB}"); add(27, "s_cselect_b32 s56, s44, s56")
            if SENT and T == 3 and qb == 1:
                lab = k.label("clf")
                add(6, f"s_cmp_lg_u32 s52, {NCH-4}"); add(6, f"s_cbranch_scc1 {lab}")
                add(6, "buffer_load_dword v154, v155, s[28:31], s62 offen sc1"); add(6, f"{lab}:")
            for i, ins in enumerate(seq):
                k.e(ins)
                for s in side.get(i, []): k.e(s)
    k.e("s_add_u32 s52, s52, 1"); k.e(f"s_cmp_lt_u32 s52, {NCH}")
    k.e(f"s_cbranch_scc1 {loop}")
    st.stamp()
    k.e(C(6, Sx[1], P[1])); k.e(C(7, Sx[1], P[1]))
    k.e("s_nop 1")
    k.e(f"{MF} {r16(O[1])}, {r4(V1[(CH-1)%2])}, {r4(P[1]+4)}, {r16(O[1])}")
    k.e("s_nop 7"); k.e("s_nop 3")
    k.e(f"s_mov_b32 s58, {f32bits(2.0 ** -80)}")
    k.e(f"v_cmp_nle_f32 vcc, s58, v{O[0]+12}"); k.e(f"v_cmp_nle_f32 s[60:61], s58, v{O[1]+12}")
    k.e("s_or_b64 vcc, vcc, s[60:61]"); k.e("s_cmp_eq_u64 vcc, 0")
    k.e(f"s_cbranch_scc1 {name}_fast")
    emit_attn_slow(k, Q1, Q2, O, Sx, P, K1, K2r, V0, V1)
    k.e(f"{name}_fast:")
    k.e("v_lshrrev_b32 v18, 4, v9"); k.e(f"v_mul_u32_u24 v18, {20*1024}, v18")
    k.e("v_and_b32 v19, 15, v9"); k.e("v_lshlrev_b32 v19, 4, v19"); k.e("v_add_u32 v18, v18, v19")
    k.e("v_lshrrev_b32 v14, 5, v2"); k.e("v_lshlrev_b32 v19, 8, v14"); k.e("v_add_u32 v19, v18, v19")
    k.e("s_lshl_b32 s46, s41, 1"); k.e("s_add_u32 s46, s46, s42"); k.e("s_lshl_b32 s46, s46, 10")
    k.e("s_lshr_b32 s47, s41, 1"); k.e("s_add_u32 s47, s47, 16"); k.e("s_lshl_b32 s47, s47, 10")
    k.e("s_and_b32 s48, s41, 1"); k.e("s_lshl_b32 s48, s48, 1"); k.e("s_add_u32 s48, s48, s42"); k.e("s_lshl_b32 s48, s48, 8"); k.e("s_add_u32 s47, s47, s48")
    k.e("v_cmp_eq_u32 vcc, 0, v14"); k.e(f"v_mov_b32 v20, {OOB}"); k.e("v_cndmask_b32 v18, v20, v18, vcc")
    k.e("s_nop 4")
    for qb in range(2): k.e(f"v_rcp_f32 v{16+qb}, v{O[qb]+12}")
    for qb in range(2): k.e(f"v_mul_f32 v{16+qb}, v{16+qb}, v12")
    for qb in range(2):
        o = O[qb]
        for q in range(12): k.e(f"v_mul_f32 v{o+q}, v{16+qb}, v{o+q}")
        for q in range(4): k.e(f"v_cvt_pk_bf16_f32 v{64+4*qb+q}, v{o+2*q}, v{o+2*q+1}")
        for q in range(2): k.e(f"v_cvt_pk_bf16_f32 v{72+2*qb+q}, v{o+8+2*q}, v{o+9+2*q}")
        if not SENT: k.e(f"buffer_store_dwordx4 {r4(64+4*qb)}, v19, s[24:27], s46 offen offset:{qb*512} sc1")
    if SENT:
        ok = k.label("clok"); sp = k.label("clsp")
        k.e("s_waitcnt vmcnt(0)")
        k.e(f"s_mov_b32 s63, {SPIN_MAX}")
        k.e(f"{sp}:")
        k.e("v_cmp_eq_u32 vcc, 1, v154"); k.e("s_cmp_lg_u64 vcc, 0"); k.e(f"s_cbranch_scc1 {ok}")
        k.e("buffer_load_dword v154, v155, s[28:31], s62 offen sc1"); k.e("s_waitcnt vmcnt(0)")
        k.e("s_sub_u32 s63, s63, 1"); k.e("s_cmp_lg_u32 s63, 0"); k.e(f"s_cbranch_scc1 {sp}")
        k.e(f"{ok}:")
        for qb in range(2): k.e(f"buffer_store_dwordx4 {r4(64+4*qb)}, v19, s[24:27], s46 offen offset:{qb*512} sc1")
    k.e(f"buffer_store_dwordx4 {r4(72)}, v18, s[24:27], s47 offen sc1")
    if not SENT: emit_publish(k, FL_O)
    st.stamp(); st.stamp(real=True)
    if ADIAG:
        for i, r in enumerate((70, 71, 72)):
            k.e(f"v_mov_b32 v255, s{r}"); k.e(f"global_store_dword v254, v255, s[96:97] offset:{4*(10+i)}")

def emit_attn_slow(k, Q1, Q2, O, Sx, P, K1, K2r, V0, V1):
    name = k.name
    MF = "v_mfma_f32_32x32x16_bf16"; MF8 = "v_mfma_f32_32x32x8_bf16"
    k.e("s_waitcnt vmcnt(0) lgkmcnt(0)")
    k.e("v_cmp_gt_u32 vcc, 32, v2")
    Z = [144, 146]; M = [148, 149]
    for qb in range(2):
        k.e(f"v_cndmask_b32 v{Z[qb]}, 0, v{Q2[qb]}, vcc"); k.e(f"v_cndmask_b32 v{Z[qb]+1}, 0, v{Q2[qb]+1}, vcc")
        k.e(f"v_mov_b32 v{M[qb]}, 0xff800000")
    def loads(with_v):
        k.e(f"buffer_load_dwordx4 {r4(K1[0])}, v3, s[8:11], s59 offen")
        k.e(f"buffer_load_dwordx2 {r2(K2r[0])}, v15, s[8:11], s59 offen")
        if with_v:
            k.e(f"buffer_load_dwordx4 {r4(V0[0])}, v3, s[8:11], s59 offen offset:1024")
            k.e(f"buffer_load_dwordx4 {r4(V1[0])}, v3, s[8:11], s59 offen offset:2048")
        k.e("s_waitcnt vmcnt(0)")
    k.e("s_mov_b32 s59, 0")
    l1 = f"{name}_slow1"
    k.e(f"{l1}:")
    loads(False)
    for qb in range(2):
        k.e(f"{MF} {r16(Sx[qb])}, {r4(K1[0])}, {r4(Q1[qb])}, 0")
        k.e(f"{MF8} {r16(Sx[qb])}, {r2(K2r[0])}, {r2(Z[qb])}, {r16(Sx[qb])}")
    k.e("s_nop 7"); k.e("s_nop 7")
    for qb in range(2):
        for i in range(0, 16, 2): k.e(f"v_max3_f32 v{M[qb]}, v{M[qb]}, v{Sx[qb]+i}, v{Sx[qb]+i+1}")
    k.e("s_add_u32 s59, s59, 3072"); k.e(f"s_cmp_lt_u32 s59, {64*3072}"); k.e(f"s_cbranch_scc1 {l1}")
    for qb in range(2):
        t = 150
        k.e(f"v_mov_b32 v{t}, v{M[qb]}"); k.e(f"v_permlane32_swap_b32 v{M[qb]}, v{t}"); k.e(f"v_max_f32 v{M[qb]}, v{M[qb]}, v{t}")
        k.e(f"v_sub_f32 v{t}, 0, v{M[qb]}")
        k.e(f"v_and_b32 v{t+1}, 0xffff0000, v{t}"); k.e(f"v_sub_f32 v{t+2}, v{t}, v{t+1}")
        k.e(f"v_cvt_pk_bf16_f32 v{t+2}, v{t+1}, v{t+2}")
        k.e(f"v_cndmask_b32 v{Q2[qb]}, v{t+2}, v{Q2[qb]}, vcc")
        for i in range(16): k.e(f"v_mov_b32 v{O[qb]+i}, 0")
    k.e("s_mov_b32 s59, 0")
    l2 = f"{name}_slow2"
    k.e(f"{l2}:")
    loads(True)
    for qb in range(2):
        k.e(f"{MF} {r16(Sx[qb])}, {r4(K1[0])}, {r4(Q1[qb])}, 0")
        k.e(f"{MF8} {r16(Sx[qb])}, {r2(K2r[0])}, {r2(Q2[qb])}, {r16(Sx[qb])}")
    k.e("s_nop 7"); k.e("s_nop 7")
    for qb in range(2):
        for i in range(16): k.e(f"v_exp_f32 v{Sx[qb]+i}, v{Sx[qb]+i}")
        k.e("s_nop 1")
        for j in range(8): k.e(f"v_cvt_pk_bf16_f32 v{P[qb]+j}, v{Sx[qb]+2*j}, v{Sx[qb]+2*j+1}")
    k.e("s_nop 1")
    for qb in range(2):
        k.e(f"{MF} {r16(O[qb])}, {r4(V0[0])}, {r4(P[qb])}, {r16(O[qb])}")
        k.e(f"{MF} {r16(O[qb])}, {r4(V1[0])}, {r4(P[qb]+4)}, {r16(O[qb])}")
    k.e("s_nop 7"); k.e("s_nop 7")
    k.e("s_add_u32 s59, s59, 3072"); k.e(f"s_cmp_lt_u32 s59, {64*3072}"); k.e(f"s_cbranch_scc1 {l2}")

ACC, SET0, XK, OMG = 16, 96, 240, 250
A5 = lambda r, c: ACC + (r * 5 + c) * 4

def ksplit_phase(k, vm, xoff, xsize, nksx, woff, wsize, nks, sc1, wait, first_zero, extra_after_issue=None, NSET=4, prio=None, verify=False,
                 XS=None, WS=None, VW=None, VX=None, w_preissued=False, only_w_prefetch=False, pace=None):
    PRIO_B = globals()['PRIO_B'] if prio is None else prio
    XS = XS or (lambda s, r: SET0 + s * 36 + r * 4)
    WS = WS or (lambda s, c: SET0 + s * 36 + 16 + c * 4)
    VW = VW or [10, 11, 12, 13, 14]
    VX = VX or [6, 7, 8, 9]
    T = (nks + 3) // 4
    def soff(i, sreg):
        if 4 * i + 3 >= nks:
            k.e(f"s_add_u32 s{sreg}, s3, {4*i}")
            k.e(f"s_lshl_b32 s47, s{sreg}, 10"); k.e(f"s_cmp_lt_u32 s{sreg}, {nks}"); k.e(f"s_cselect_b32 s{sreg}, s47, {OOB}")
        else:
            k.e(f"s_add_u32 s{sreg}, s58, {4*i*1024}")
    ldW = lambda i, c: vm.issue(f"buffer_load_dwordx4 {r4(WS(i%NSET,c))}, v{VW[c]}, s[52:55], s59 offen", ("W", i))
    sc = " sc1" if sc1 else ""
    ldX = lambda i, r: vm.issue(f"buffer_load_dwordx4 {r4(XS(i%NSET,r))}, v{VX[r]}, s[48:51], s59 offen{sc}", ("X", i))
    npre = min(NSET, T)
    if not w_preissued:
        srd(k, 52, 4, woff, wsize)
        k.e(f"s_mul_i32 s46, s45, {nks*1024}"); k.e(f"v_add_u32 v{VW[0]}, s46, v3")
        for c in range(1, 5): k.e(f"v_add_u32 v{VW[c]}, {c*nks*1024}, v{VW[0]}")
        k.e("s_lshl_b32 s58, s3, 10")
    if only_w_prefetch:
        for i in range(npre):
            soff(i, 59)
            for c in range(5): ldW(i, c)
        return
    srd(k, 48, 4, xoff, xsize)
    for r in range(4):
        k.e(f"s_add_u32 s46, s3, {r}"); k.e("s_and_b32 s46, s46, 3"); k.e("s_lshl_b32 s47, s40, 2"); k.e("s_add_u32 s46, s46, s47")
        k.e(f"s_mul_i32 s46, s46, {nksx*1024}"); k.e(f"v_add_u32 v{VX[r]}, s46, v3")
    if wait:
        if not w_preissued:
            for i in range(npre):
                soff(i, 59)
                for c in range(5): ldW(i, c)
        wait(k); vm.drained()
        for i in range(npre):
            soff(i, 59)
            for r in range(4): ldX(i, r)
    else:
        for i in range(npre):
            soff(i, 59)
            for c in range(5): ldW(i, c)
            for r in range(4): ldX(i, r)
    if extra_after_issue: extra_after_issue()
    if PRIO_B: k.e(f"s_setprio {PRIO_B}")
    for i in range(T):
        vm.wait(("X", i))
        s = i % NSET; n = i + NSET
        if verify:
            chk = k.label("vchk"); okl = k.label("vok")
            k.e(f"s_mov_b32 s60, {SPIN_MAX}")
            k.e(f"{chk}:")
            xr = [XS(s, r) + q for r in range(4) for q in range(4)]
            k.e(f"v_max3_u32 v4, v{xr[0]}, v{xr[1]}, v{xr[2]}")
            for q in range(3, 15, 2): k.e(f"v_max3_u32 v4, v4, v{xr[q]}, v{xr[q+1]}")
            k.e(f"v_max_u32 v4, v4, v{xr[15]}")
            k.e("v_cmp_eq_u32 vcc, -1, v4"); k.e("s_cmp_eq_u64 vcc, 0"); k.e(f"s_cbranch_scc1 {okl}")
            soff(i, 61)
            for r in range(4): k.e(f"buffer_load_dwordx4 {r4(XS(s,r))}, v{VX[r]}, s[48:51], s61 offen sc1")
            k.e("s_waitcnt vmcnt(0)")
            k.e("s_sub_u32 s60, s60, 1"); k.e("s_cmp_lg_u32 s60, 0"); k.e(f"s_cbranch_scc1 {chk}")
            k.e(f"{okl}:")
        if n < T: soff(n, 59)
        for c in range(5):
            for r in range(4):
                cc = "0" if (i == 0 and first_zero) else r4(A5(r, c))
                k.e(f"v_mfma_f32_16x16x32_bf16 {r4(A5(r,c))}, {r4(WS(s,c))}, {r4(XS(s,r))}, {cc}")
                if pace is not None: k.e(f"s_nop {pace}")
            if n < T: ldW(n, c)
        if n < T:
            for r in range(4): ldX(n, r)
    k.e(f"s_setprio {PRIO_E}")

XR = lambda ks: 36 + 4 * ks
WR = lambda c, kk: 116 + (c * 4 + kk) * 4
WBUF = lambda b, c: 196 + b * 20 + c * 4
def rowgemm_w(k, vm, woff, wsize):
    srd(k, 52, 4, woff, wsize)
    k.e(f"s_mul_i32 s46, s45, {20*1024}"); k.e("v_add_u32 v10, s46, v3")
    for c in range(1, 5): k.e(f"v_add_u32 v{10+c}, {c*20*1024}, v10")
    k.e(f"s_mov_b32 s59, {16*1024}")
    for c in range(5):
        for kk in range(4): vm.issue(f"buffer_load_dwordx4 {r4(WR(c,kk))}, v{10+c}, s[52:55], s59 offen offset:{kk*1024}", "wr")
    k.e("s_lshl_b32 s59, s3, 12")
    for c in range(5):
        k.e(f"s_add_u32 m0, s59, {c*16*1024}"); k.e("s_nop 0")
        for kk in range(4): vm.issue(f"buffer_load_dwordx4 v{10+c}, s[52:55], s59 offen offset:{kk*1024} lds", "wl")
def rowgemm_x(k, vm, xoff, xsize, sc1):
    srd(k, 48, 4, xoff, xsize)
    sc = " sc1" if sc1 else ""
    k.e(f"s_mul_i32 s61, s70, {20*1024}")
    for grp in (4, 0, 1, 2, 3):
        k.e(f"s_add_u32 s59, s61, {grp*4096}")
        for kk in range(4): vm.issue(f"buffer_load_dwordx4 {r4(XR(grp*4+kk))}, v3, s[48:51], s59 offen offset:{kk*1024}{sc}", ("x", grp))
def rowgemm_main(k, vm, first_zero, verify=False, prio=0, lds_barrier=True):
    MF = "v_mfma_f32_16x16x32_bf16"
    def check(grp):
        if not verify: return
        chk = k.label("vchk"); okl = k.label("vok")
        k.e(f"s_mov_b32 s60, {SPIN_MAX}")
        k.e(f"{chk}:")
        x0 = XR(grp * 4)
        k.e(f"v_max3_u32 v4, v{x0}, v{x0+1}, v{x0+2}")
        for q in range(3, 15, 2): k.e(f"v_max3_u32 v4, v4, v{x0+q}, v{x0+q+1}")
        k.e(f"v_max_u32 v4, v4, v{x0+15}")
        k.e("v_cmp_eq_u32 vcc, -1, v4"); k.e("s_cmp_eq_u64 vcc, 0"); k.e(f"s_cbranch_scc1 {okl}")
        k.e(f"s_add_u32 s59, s61, {grp*4096}")
        for kk in range(4): k.e(f"buffer_load_dwordx4 {r4(XR(grp*4+kk))}, v3, s[48:51], s59 offen offset:{kk*1024} sc1")
        k.e("s_waitcnt vmcnt(0)")
        k.e("s_sub_u32 s60, s60, 1"); k.e("s_cmp_lg_u32 s60, 0"); k.e(f"s_cbranch_scc1 {chk}")
        k.e(f"{okl}:")
    if lds_barrier:
        vm.wait("wl"); k.e("s_barrier")
    vm.wait("wr")
    if prio: k.e(f"s_setprio {prio}")
    rd = lambda ks: [f"ds_read_b128 {r4(WBUF(ks%2,c))}, v{15 if c == 4 else 3} offset:{(c*16+ks)*1024 - (65536 if c == 4 else 0)}" for c in range(5)]
    k.e("v_add_u32 v15, 65536, v3")
    for x in rd(0): k.e(x)
    vm.wait(("x", 4)); check(4)
    first = first_zero
    for kk in range(4):
        for c in range(5):
            k.e(f"{MF} {r4(A5(0,c))}, {r4(WR(c,kk))}, {r4(XR(16+kk))}, {'0' if first else r4(A5(0,c))}")
        first = False
    for ks in range(16):
        if ks % 4 == 0:
            vm.wait(("x", ks // 4)); check(ks // 4)
        k.e("s_waitcnt lgkmcnt(0)")
        nxt = rd(ks + 1) if ks + 1 < 16 else []
        for c in range(5):
            k.e(f"{MF} {r4(A5(0,c))}, {r4(WBUF(ks%2,c))}, {r4(XR(ks))}, {r4(A5(0,c))}")
            if nxt: k.e(nxt[c])

def wo_lds_prefetch(k, vm):
    srd(k, 64, 4, L.WOP, L.SZ_WDD)
    k.e(f"s_mul_i32 s46, s45, {20*1024}"); k.e("v_add_u32 v204, s46, v3")
    for c in range(1, 5): k.e(f"v_add_u32 v{204+c}, {c*20*1024}, v204")
    k.e(f"s_mul_i32 s61, s3, {20*1024}"); k.e("s_lshl_b32 s60, s3, 10")
    for t in range(4):
        for c in range(5):
            k.e(f"s_add_u32 m0, s61, {(t*5+c)*1024}"); k.e("s_nop 0")
            vm.issue(f"buffer_load_dwordx4 v{204+c}, s[64:67], s60 offen lds", "wo")
        k.e("s_add_u32 s60, s60, 4096")
def p4b_lds(k, vm, st):
    X = lambda t, r: 96 + t * 16 + r * 4
    W4_ = lambda c: 176 + 4 * c
    WB = lambda b, c: 196 + b * 20 + 4 * c
    MF = "v_mfma_f32_16x16x32_bf16"
    srd(k, 52, 4, L.WOP, L.SZ_WDD)
    k.e(f"s_mul_i32 s46, s45, {20*1024}"); k.e("v_add_u32 v10, s46, v3")
    k.e("s_add_u32 s59, s3, 16"); k.e("s_lshl_b32 s59, s59, 10")
    for c in range(5):
        if c: k.e(f"v_add_u32 v10, {20*1024}, v10")
        vm.issue(f"buffer_load_dwordx4 {r4(W4_(c))}, v10, s[52:55], s59 offen", "w4")
    srd(k, 48, 4, L.OF, L.SZ_XF)
    for r in range(4):
        k.e(f"s_add_u32 s46, s3, {r}"); k.e("s_and_b32 s46, s46, 3"); k.e("s_lshl_b32 s47, s40, 2"); k.e("s_add_u32 s46, s46, s47")
        k.e(f"s_mul_i32 s46, s46, {20*1024}"); k.e(f"v_add_u32 v{6+r}, s46, v3")
    k.e(f"s_mul_i32 s46, s3, {20*1024}"); k.e("v_add_u32 v14, s46, v3")
    rd = lambda t: [f"ds_read_b128 {r4(WB(t%2,c))}, v14 offset:{(t*5+c)*1024}" for c in range(5)]
    for x in rd(0): k.e(x)
    if SENT: emit_wait_sent(k, 236)
    else: emit_wait(k, FL_O)
    vm.drained()
    st.stamp()
    k.e(f"s_setprio {PRIO_E}")
    order = (4, 0, 1, 2, 3)
    for t in order:
        k.e("s_add_u32 s59, s3, %d" % (4 * t)); k.e("s_lshl_b32 s59, s59, 10")
        for r in range(4): vm.issue(f"buffer_load_dwordx4 {r4(X(t,r))}, v{6+r}, s[48:51], s59 offen sc1", ("X", t))
    for t in order:
        vm.wait(("X", t))
        if SENT:
            chk = k.label("vchk"); okl = k.label("vok")
            k.e(f"s_mov_b32 s60, {SPIN_MAX}")
            k.e(f"{chk}:")
            x0 = X(t, 0)
            k.e(f"v_max3_u32 v4, v{x0}, v{x0+1}, v{x0+2}")
            for q in range(3, 15, 2): k.e(f"v_max3_u32 v4, v4, v{x0+q}, v{x0+q+1}")
            k.e(f"v_max_u32 v4, v4, v{x0+15}")
            k.e("v_cmp_eq_u32 vcc, -1, v4"); k.e("s_cmp_eq_u64 vcc, 0"); k.e(f"s_cbranch_scc1 {okl}")
            k.e("s_add_u32 s59, s3, %d" % (4 * t)); k.e("s_lshl_b32 s59, s59, 10")
            for r in range(4): k.e(f"buffer_load_dwordx4 {r4(X(t,r))}, v{6+r}, s[48:51], s59 offen sc1")
            k.e("s_waitcnt vmcnt(0)")
            k.e("s_sub_u32 s60, s60, 1"); k.e("s_cmp_lg_u32 s60, 0"); k.e(f"s_cbranch_scc1 {chk}")
            k.e(f"{okl}:")
        if t < 4: k.e("s_waitcnt lgkmcnt(0)")
        nxt = rd(t + 1) if t < 3 else []
        for c in range(5):
            wreg = W4_(c) if t == 4 else WB(t % 2, c)
            for r in range(4): k.e(f"{MF} {r4(A5(r,c))}, {r4(wreg)}, {r4(X(t,r))}, {r4(A5(r,c))}")
            if nxt: k.e(nxt[c])
    k.e("s_barrier")

def l2_prefetch(k, vm, poff, psize, stride):
    n = psize // stride; per_wg = (n + 31) // 32; per_wave = (per_wg + 3) // 4; n_i = (per_wave + 63) // 64
    srd(k, 88, 4, poff, psize)
    k.e("s_sub_u32 s46, s2, 256"); k.e("s_lshr_b32 s46, s46, 3"); k.e("s_lshl_b32 s46, s46, 2"); k.e("s_add_u32 s46, s46, s3")
    k.e(f"s_mul_i32 s46, s46, {per_wave*stride}")
    k.e(f"v_mul_u32_u24 v4, {stride}, v2")
    for i in range(n_i):
        if (i + 1) * 64 > per_wave:
            k.e(f"v_cmp_gt_u32 vcc, {per_wave - i*64}, v2"); k.e(f"v_mov_b32 v5, {OOB}"); k.e("v_cndmask_b32 v4, v5, v4, vcc")
        vm.issue(f"buffer_load_dword v251, v4, s[88:91], s46 offen", "pf")
        if i + 1 < n_i: k.e(f"s_add_u32 s46, s46, {64*stride}")

def reduce4(k, pre=None):
    blk = 5 * 1024
    for j in range(1, 4):
        k.e(f"s_add_u32 s46, s3, {j}"); k.e("s_and_b32 s46, s46, 3")
        k.e(f"s_mul_i32 s46, s46, {3*blk}"); k.e(f"s_add_u32 s46, s46, {(j-1)*blk}")
        k.e("v_add_u32 v4, s46, v3")
        for c in range(5): k.e(f"ds_write_b128 v4, {r4(A5(j,c))} offset:{c*1024}")
    if pre: pre()
    k.e(f"s_mul_i32 s46, s3, {3*blk}"); k.e("v_add_u32 v5, s46, v3")
    k.e("s_waitcnt lgkmcnt(0)"); k.e("s_barrier")
    for j in range(1, 4):
        for c in range(5): k.e(f"ds_read_b128 {r4(A5(j,c))}, v5 offset:{((j-1)*5 + c)*1024}")
    for j in range(1, 4):
        k.e(f"s_waitcnt lgkmcnt({(3-j)*5})")
        for c in range(5):
            a, t = A5(0, c), A5(j, c)
            k.e(f"v_pk_add_f32 v[{a}:{a+1}], v[{a}:{a+1}], v[{t}:{t+1}]"); k.e(f"v_pk_add_f32 v[{a+2}:{a+3}], v[{a+2}:{a+3}], v[{t+2}:{t+3}]")

def p3_params(k):
    k.e("s_sub_u32 s46, s41, 6"); k.e("s_max_i32 s95, s46, 0")
    k.e("s_mul_i32 s92, s41, 14"); k.e("s_lshl_b32 s46, s95, 1"); k.e("s_sub_u32 s92, s92, s46")
    k.e("s_lshl_b32 s46, s3, 2"); k.e("s_cmp_eq_u32 s3, 3"); k.e("s_cselect_b32 s46, 11, s46")
    k.e("s_mul_i32 s47, s3, 3"); k.e("s_cmp_ge_u32 s41, 6"); k.e("s_cselect_b32 s46, s47, s46")
    k.e("s_add_u32 s45, s92, s46")
    k.e("s_cmp_lt_u32 s3, 2"); k.e("s_cselect_b32 s93, 4, 3"); k.e("s_cmp_ge_u32 s41, 6"); k.e("s_cselect_b32 s93, 3, s93")

def emit_bchain(k, st):
    decode_gj(k, 256)
    k.e("s_waitcnt lgkmcnt(0)")
    srd(k, 28, 4, L.FLAGS, 4096)
    k.e("v_cmp_gt_u32 s[38:39], 32, v2")
    vm = VM(k)
    if PFK2:
        srd(k, 64, 4, L.W2P, L.SZ_WDD); srd(k, 72, 4, L.HS, L.SZ_XF)
        k.e("s_sub_u32 s46, s2, 256"); k.e("s_lshr_b32 s46, s46, 3"); k.e("s_mul_i32 s46, s46, 200"); k.e("s_mul_i32 s47, s3, 50"); k.e("s_add_u32 s46, s46, s47"); k.e("s_lshl_b32 s46, s46, 7")
        k.e("v_lshlrev_b32 v4, 7, v2"); k.e(f"v_mov_b32 v5, {OOB}"); k.e("v_cmp_gt_u32 vcc, 50, v2"); k.e("v_cndmask_b32 v6, v5, v4, vcc")
        k.e("buffer_load_dword v252, v6, s[64:67], s46 offen")
        k.e(f"s_mul_i32 s46, s40, {80*1024}"); k.e("s_lshl_b32 s47, s41, 2"); k.e("s_add_u32 s47, s47, s3"); k.e("s_mul_i32 s47, s47, 2560"); k.e("s_add_u32 s46, s46, s47")
        k.e("v_cmp_gt_u32 vcc, 20, v2"); k.e("v_cndmask_b32 v6, v5, v4, vcc")
        k.e("buffer_load_dword v252, v6, s[72:75], s46 offen")
    k.e("s_mul_i32 s45, s41, 5")
    k.e("s_lshl_b32 s70, s40, 2"); k.e("s_add_u32 s70, s70, s3")
    def extra2():
        srd(k, 84, 4, L.G, 8192)
        k.e("s_lshl_b32 s47, s70, 4"); k.e("v_and_b32 v5, 15, v2"); k.e("v_add_u32 v5, s47, v5"); k.e("v_lshlrev_b32 v4, 2, v5")
        if RAWX:
            srd(k, 76, 32, 0, 2048 * 1280)
            k.e("v_mul_u32_u24 v5, 1280, v5"); k.e("v_lshrrev_b32 v15, 4, v2"); k.e("v_lshlrev_b32 v15, 3, v15"); k.e("v_add_u32 v5, v5, v15")
            k.e("s_mul_i32 s89, s41, 160")
            for c in range(5): vm.issue(f"buffer_load_dwordx2 v[{XK+2*c}:{XK+2*c+1}], v5, s[76:79], s89 offen offset:{c*32}", "xr")
        else:
            srd(k, 76, 4, L.XF, L.SZ_XF)
            for c in range(5):
                k.e(f"s_add_u32 s88, s45, {c}"); gen1.f16_soff(k, 89, 70, 88, 20)
                vm.issue(f"buffer_load_dwordx2 v[{XK+2*c}:{XK+2*c+1}], v3, s[76:79], s89 offen", "xr")
        vm.issue(f"buffer_load_dword v{OMG}, v4, s[84:87], 0 offen", "xr")
        if SENT:
            srd(k, 64, 4, L.OF, L.SZ_XF)
            for q in range(4): k.e(f"v_mov_b32 v{204+q}, -1")
            k.e("s_lshl_b32 s46, s40, 2"); k.e("s_add_u32 s46, s46, s3"); k.e("s_mul_i32 s46, s46, 20")
            k.e("s_lshl_b32 s47, s41, 1"); k.e("s_add_u32 s47, s47, s46"); k.e("s_lshl_b32 s47, s47, 10")
            vm.issue("buffer_store_dwordx4 v[204:207], v3, s[64:67], s47 offen sc1", "se")
            vm.issue("buffer_store_dwordx4 v[204:207], v3, s[64:67], s47 offen offset:1024 sc1", "se")
            k.e("s_lshr_b32 s47, s41, 1"); k.e("s_add_u32 s47, s47, 16"); k.e("s_add_u32 s47, s47, s46"); k.e("s_lshl_b32 s47, s47, 10")
            k.e("s_and_b32 s46, s41, 1"); k.e("s_lshl_b32 s46, s46, 9"); k.e("s_add_u32 s47, s47, s46")
            k.e(f"v_mov_b32 v4, {OOB}"); k.e("v_cndmask_b32 v4, v4, v3, s[38:39]")
            vm.issue("buffer_store_dwordx4 v[204:207], v4, s[64:67], s47 offen sc1", "se")
            k.e("s_nop 1")
        if PFS:
            l2_prefetch(k, vm, L.W3P, L.SZ_W3, PFS)
            if PFALL: l2_prefetch(k, vm, L.W4P, L.SZ_W4, PFS)
    if ROWP2:
        rowgemm_x(k, vm, L.HS, L.SZ_XF, False)
        rowgemm_w(k, vm, L.W2P, L.SZ_WDD)
        extra2()
        rowgemm_main(k, vm, True, prio=PRIO_P2)
        k.e(f"s_setprio {PRIO_E}")
    else:
        ksplit_phase(k, vm, L.HS, L.SZ_XF, 20, L.W2P, L.SZ_WDD, 20, False, None, True, extra2, NSET=NSET2, prio=PRIO_P2, pace=PACE2)
    st.stamp()
    k.e("s_setprio 0")
    WS3 = lambda s, c: 96 + s * 16 + c * 4
    NS3 = 6
    p3_params(k)
    srd(k, 52, 4, L.W3P, L.SZ_W3)
    k.e(f"s_mul_i32 s46, s45, {20*1024}"); k.e("v_add_u32 v10, s46, v3")
    for c in range(1, 4): k.e(f"v_add_u32 v{10+c}, {c*20*1024}, v10")
    k.e("s_cmp_eq_u32 s93, 4"); k.e("s_cselect_b64 vcc, -1, 0")
    k.e(f"v_mov_b32 v9, {OOB}"); k.e("v_cndmask_b32 v13, v9, v13, vcc")
    ldW3 = lambda i, c: vm.issue(f"buffer_load_dwordx4 {r4(WS3(i%NS3,c))}, v{10+c}, s[52:55], s59 offen", ("W3", i))
    k.e(f"s_setprio {PRIO_E}")
    T = 168
    def pre2():
        srd(k, 72, 4, L.X1F, L.SZ_XF); srd(k, 80, 4, L.X1ST, 2048 * 64)
        k.e(f"s_mul_i32 s71, s70, {20*1024}"); k.e(f"v_add_u32 v6, s71, v3")
        k.e(f"v_mov_b32 v7, {OOB}"); k.e("v_cndmask_b32 v7, v7, v6, s[38:39]")
        vm.wait("xr")
        k.e(f"v_sub_f32 v{OMG}, 1.0, v{OMG}")
        for c in range(5):
            xr = XK + 2 * c; u = T + 24 + 4 * c
            k.e(f"v_lshlrev_b32 v{u}, 16, v{xr}"); k.e(f"v_and_b32 v{u+1}, 0xffff0000, v{xr}")
            k.e(f"v_lshlrev_b32 v{u+2}, 16, v{xr+1}"); k.e(f"v_and_b32 v{u+3}, 0xffff0000, v{xr+1}")
        k.e("s_lshl_b32 s47, s70, 4"); k.e("v_and_b32 v14, 15, v2"); k.e("v_add_u32 v14, s47, v14")
        k.e("v_lshlrev_b32 v14, 6, v14"); k.e("s_lshl_b32 s89, s41, 3")
        k.e("v_cmp_gt_u32 vcc, 16, v2"); k.e(f"v_mov_b32 v9, {OOB}"); k.e("v_cndmask_b32 v14, v9, v14, vcc")
    if ROWP2:
        pre2(); k.e("s_nop 4")
    else: reduce4(k, pre2)
    if FINE: st.stamp()
    for c in range(5):
        a = A5(0, c); u = T + 24 + 4 * c
        k.e(f"v_pk_add_f32 v[{a}:{a+1}], v[{a}:{a+1}], v[{u}:{u+1}]"); k.e(f"v_pk_add_f32 v[{a+2}:{a+3}], v[{a+2}:{a+3}], v[{u+2}:{u+3}]")
    for c in range(5):
        a = A5(0, c)
        k.e(f"v_cvt_pk_bf16_f32 v{XK+2*c}, v{a}, v{a+1}"); k.e(f"v_cvt_pk_bf16_f32 v{XK+2*c+1}, v{a+2}, v{a+3}")
    store_t80(k, XK, 6, 7, 72, 41, 212, " sc1")
    k.e("s_mov_b32 s71, 0x3f803f80")
    k.e(f"v_dot2_f32_bf16 v216, v{XK}, s71, 0"); k.e(f"v_dot2_f32_bf16 v217, v{XK}, v{XK}, 0")
    for q in range(1, 10):
        k.e(f"v_dot2_f32_bf16 v216, v{XK+q}, s71, v216"); k.e(f"v_dot2_f32_bf16 v217, v{XK+q}, v{XK+q}, v217")
    allreduce16(k, "v_add_f32", 216, 218); allreduce16(k, "v_add_f32", 217, 219)
    k.e("buffer_store_dwordx2 v[216:217], v14, s[80:83], s89 offen sc1")
    k.e("s_setprio 0")
    XB = lambda s, r: 192 + s * 16 + r * 4
    CN = lambda r: 224 + 4 * r
    A3 = lambda r, c: ACC + (r * 4 + c) * 4
    if FINE: st.stamp()
    emit_publish(k, FL_X1, FL_CL if SENT else None)
    if FINE: st.stamp()
    vm.drained()
    srd(k, 80, 4, L.CS3P, 20 * 1728 * 4)
    k.e("v_lshlrev_b32 v4, 2, v2"); k.e("s_lshl_b32 s89, s45, 6")
    for ks in range(20):
        vm.issue(f"buffer_load_dword v{220+ks}, v4, s[80:83], s89 offen", "cp")
        k.e(f"s_add_u32 s89, s89, {1728*4}")
    for i in range(NS3):
        k.e(f"s_mov_b32 s59, {i*1024}")
        for c in range(4): ldW3(i, c)
    if not FINE: st.stamp()
    emit_wait(k, FL_X1); vm.drained()
    st.stamp()
    srd(k, 48, 4, L.X1F, L.SZ_XF); srd(k, 76, 4, L.X1ST, 2048 * 64); srd(k, 84, 4, L.G, 8192)
    k.e(f"s_mul_i32 s59, s70, {20*1024}")
    for ks in range(20):
        if ks % 4 == 0 and ks: k.e(f"s_add_u32 s59, s59, 4096")
        vm.issue(f"buffer_load_dwordx4 {r4(ACC+4*ks)}, v3, s[48:51], s59 offen offset:{(ks%4)*1024} sc1", "xs")
    k.e("v_lshrrev_b32 v9, 4, v2"); k.e("v_lshlrev_b32 v8, 4, v9")
    for r in range(4):
        k.e("s_lshl_b32 s46, s40, 6"); k.e(f"s_add_u32 s46, s46, {16*r}"); k.e("v_and_b32 v5, 15, v2"); k.e("v_add_u32 v5, s46, v5")
        k.e("v_lshlrev_b32 v6, 6, v5"); k.e("v_add_u32 v6, v6, v8")
        vm.issue(f"buffer_load_dwordx4 {r4(192+4*r)}, v6, s[76:79], 0 offen sc1", "st")
        k.e("v_lshlrev_b32 v6, 2, v5")
        vm.issue(f"buffer_load_dword v{208+r}, v6, s[84:87], 0 offen", "st")
    k.e(f"s_mul_i32 s46, s3, {20*1024}"); k.e("v_add_u32 v4, s46, v3")
    vm.wait("xs")
    k.e(f"s_setprio {PRIO_E}")
    for ks in range(20): k.e(f"ds_write_b128 v4, {r4(ACC+4*ks)} offset:{ks*1024}")
    vm.wait("st")
    for q in range(1, 10): k.e(f"v_add_f32 v220, v220, v{220+q}"); k.e(f"v_add_f32 v230, v230, v{230+q}")
    k.e("v_add_f32 v251, v220, v230")
    for r in range(4):
        s_ = 192 + 4 * r; c_ = CN(r)
        k.e(f"v_add_f32 v{s_}, v{s_}, v{s_+2}"); k.e(f"v_add_f32 v{s_+1}, v{s_+1}, v{s_+3}")
        allreduce16(k, "v_add_f32", s_, s_ + 2); allreduce16(k, "v_add_f32", s_ + 1, s_ + 3)
        k.e(f"v_mul_f32 v{c_}, {f32bits(-1/640)}, v{s_}"); k.e(f"v_mul_f32 v{s_+1}, {f32bits(1/640)}, v{s_+1}")
        k.e(f"v_fma_f32 v{s_+1}, -v{c_}, v{c_}, v{s_+1}"); k.e(f"v_add_f32 v{s_+1}, {f32bits(1e-5)}, v{s_+1}"); k.e(f"v_rsq_f32 v{s_+1}, v{s_+1}")
        k.e(f"v_sub_f32 v{s_+2}, 1.0, v{208+r}")
        k.e(f"v_mul_f32 v{s_+3}, v{s_+1}, v{s_+1}")
        k.e(f"v_mul_f32 v{c_+2}, {f32bits(GELU_C2)}, v{s_+1}")
        k.e(f"v_mul_f32 v{c_+3}, v{s_+1}, v{s_+2}")
        k.e(f"v_mul_f32 v{s_+3}, v{s_+3}, v{s_+1}")
        k.e(f"v_mul_f32 v{c_+1}, {f32bits(GELU_C1)}, v{s_+3}")
    k.e("v_mov_b32 v14, v3"); k.e(f"v_add_u32 v15, {60*1024}, v3")
    k.e("s_waitcnt lgkmcnt(0)"); k.e("s_barrier")
    def rdX(i, r):
        o = (r * 20 + i) * 1024
        return f"ds_read_b128 {r4(XB(i%2,r))}, v14 offset:{o}" if r < 3 else f"ds_read_b128 {r4(XB(i%2,r))}, v15 offset:{o-60*1024}"
    if FINE: st.stamp()
    k.e(f"s_setprio {PRIO_P3}")
    for r in range(4): k.e(rdX(0, r))
    k.e("s_cmp_eq_u32 s93, 4"); k.e("s_cselect_b64 vcc, -1, 0")
    CSR = None
    for i in range(20):
        vm.wait(("W3", i))
        k.e("s_waitcnt lgkmcnt(0)")
        n = i + NS3
        if n < 20: k.e(f"s_mov_b32 s59, {n*1024}")
        for c in range(4):
            if c == 3:
                lab = k.label("sk"); k.e(f"s_cbranch_vccz {lab}")
            for r in range(4):
                cc = "0" if i == 0 else r4(A3(r, c))
                k.e(f"v_mfma_f32_16x16x32_bf16 {r4(A3(r,c))}, {r4(WS3(i%NS3,c))}, {r4(XB(i%2,r))}, {cc}")
                if PACE3 is not None: k.e(f"s_nop {PACE3}")
                if c == 0 and i + 1 < 20: k.e(rdX(i + 1, r))
            if c == 3: k.e(f"{lab}:")
            if n < 20: ldW3(n, c)
        if RAWX and i in (14, 15):
            CSR = WS3(14 % NS3, 0)
            for c in (0, 1) if i == 14 else (2, 3):
                for q in range(4): k.e(f"ds_bpermute_b32 v{CSR+4*c+q}, v8, v251 offset:{(16*c+q)*4}")
        if i == 14:
            CSR = WS3(14 % NS3, 0)
            if RAWX:
                pass
            else:
                srd(k, 80, 4, L.CS3, 1728 * 4)
                k.e("s_lshl_b32 s71, s45, 6")
                for c in range(4): vm.issue(f"buffer_load_dwordx4 {r4(CSR+4*c)}, v8, s[80:83], s71 offen offset:{c*64}", "cs")
    st.stamp()
    k.e("s_setprio 0")
    k.e("s_mov_b32 s91, s45")
    k.e("s_mul_i32 s45, s41, 5")
    WS4 = lambda s, c: (96 + 4 * (s * 5 + c)) if (s * 5 + c) < 8 else (144 + 4 * (s * 5 + c - 8))
    XS4 = lambda s, r: (192 + 16 * s + 4 * r) if s < 3 else (128 + 4 * r)
    VW4 = [5, 6, 7, 9, 14]
    if EARLY4: ksplit_phase(k, vm, L.HF, L.SZ_HF, 54, L.W4P, L.SZ_W4, 54, True, None, True, WS=WS4, XS=XS4, VW=VW4, VX=[10, 11, 12, 13], only_w_prefetch=True)
    k.e(f"s_setprio {PRIO_E}")
    srd(k, 72, 4, L.HF, L.SZ_HF)
    k.e("s_mul_i32 s88, s41, 7"); k.e("s_sub_u32 s88, s88, s95")
    k.e("s_lshl_b32 s46, s3, 1"); k.e("s_cmp_eq_u32 s3, 3"); k.e("s_cselect_b32 s46, 5, s46")
    k.e("s_cmp_ge_u32 s41, 6"); k.e("s_cselect_b32 s46, s3, s46")
    k.e("s_add_u32 s89, s88, s46"); k.e("s_lshl_b32 s89, s89, 10")
    k.e("s_lshr_b32 s46, s3, 1"); k.e("s_add_u32 s46, s46, 4"); k.e("s_cmp_ge_u32 s41, 6"); k.e("s_cselect_b32 s46, s46, 6")
    k.e("s_add_u32 s90, s88, s46"); k.e("s_lshl_b32 s90, s90, 10"); k.e("s_and_b32 s46, s3, 1"); k.e("s_lshl_b32 s46, s46, 9"); k.e("s_add_u32 s90, s90, s46")
    TT = 192; ONE = 208; PK = 212
    k.e(f"v_mov_b32 v{ONE}, 1.0"); k.e(f"v_mov_b32 v{ONE+1}, 1.0")
    k.e("s_waitcnt lgkmcnt(0)")
    p2 = lambda x: f"v[{x}:{x+1}]"
    for r in range(4):
        c_ = CN(r)
        regs = [A3(r, c) for c in range(4)]
        bc = lambda x: p2(x & ~1)
        sel = lambda x: (x & 1)
        def bsel(x, pos, n=3):
            lo = [0] * n; hi = [1] * n
            lo[pos] = x & 1; hi[pos] = x & 1
            return f"op_sel:[{','.join(map(str,lo))}] op_sel_hi:[{','.join(map(str,hi))}]"
        for c, a in enumerate(regs):
            for h in (0, 2): k.e(f"v_pk_fma_f32 {p2(a+h)}, {bc(c_)}, {p2(CSR+4*c+h)}, {p2(a+h)} {bsel(c_,0)}")
        for c, a in enumerate(regs):
            for h in (0, 2): k.e(f"v_pk_mul_f32 {p2(TT+4*c+h)}, {p2(a+h)}, {p2(a+h)}")
        for c, a in enumerate(regs):
            for h in (0, 2):
                k.e(f"v_pk_fma_f32 {p2(TT+4*c+h)}, {p2(TT+4*c+h)}, {bc(c_+1)}, {bc(c_+2)} op_sel:[0,{(c_+1)&1},{(c_+2)&1}] op_sel_hi:[1,{(c_+1)&1},{(c_+2)&1}]")
        for c, a in enumerate(regs):
            for h in (0, 2): k.e(f"v_pk_mul_f32 {p2(TT+4*c+h)}, {p2(TT+4*c+h)}, {p2(a+h)}")
        for c in range(4):
            for q in range(4): k.e(f"v_exp_f32 v{TT+4*c+q}, v{TT+4*c+q}")
        for c, a in enumerate(regs):
            for h in (0, 2): k.e(f"v_pk_mul_f32 {p2(a+h)}, {p2(a+h)}, {bc(c_+3)} {bsel(c_+3,1,2)}")
        for c in range(4):
            for h in (0, 2): k.e(f"v_pk_add_f32 {p2(TT+4*c+h)}, {p2(TT+4*c+h)}, {p2(ONE)}")
        for c in range(4):
            for q in range(4): k.e(f"v_rcp_f32 v{TT+4*c+q}, v{TT+4*c+q}")
        for c, a in enumerate(regs):
            for h in (0, 2): k.e(f"v_pk_mul_f32 {p2(a+h)}, {p2(a+h)}, {p2(TT+4*c+h)}")
        pk = PK + 8 * (r % 2)
        for c, a in enumerate(regs):
            k.e(f"v_cvt_pk_bf16_f32 v{pk+2*c}, v{a}, v{a+1}"); k.e(f"v_cvt_pk_bf16_f32 v{pk+2*c+1}, v{a+2}, v{a+3}")
        k.e("s_lshl_b32 s46, s40, 2"); k.e(f"s_add_u32 s46, s46, {r}"); k.e(f"s_mul_i32 s46, s46, {54*1024}"); k.e("v_add_u32 v12, s46, v3")
        k.e(f"buffer_store_dwordx4 {r4(pk)}, v12, s[72:75], s89 offen sc1")
        l3 = k.label("c3"); le = k.label("ce")
        k.e(f"s_cbranch_vccz {l3}")
        k.e(f"buffer_store_dwordx4 {r4(pk+4)}, v12, s[72:75], s89 offen offset:1024 sc1")
        k.e(f"s_branch {le}")
        k.e(f"{l3}:")
        k.e(f"v_mov_b32 v{pk+6}, v{pk+4}"); k.e(f"v_mov_b32 v{pk+7}, v{pk+5}")
        k.e(f"v_mov_b32 v13, {OOB}"); k.e("v_cndmask_b32 v13, v13, v12, s[38:39]")
        k.e(f"v_permlane32_swap_b32 v{pk+4}, v{pk+6}"); k.e(f"v_permlane32_swap_b32 v{pk+5}, v{pk+7}")
        k.e(f"buffer_store_dwordx4 {r4(pk+4)}, v13, s[72:75], s90 offen sc1")
        k.e(f"{le}:")
        k.e("s_nop 1")
    k.e("s_setprio 0")
    if FINE: st.stamp()
    emit_publish(k, FL_H); vm.drained()
    st.stamp()
    def waitH(kk):
        if WOLDS: wo_lds_prefetch(kk, vm)
        emit_wait(kk, FL_H)
    ksplit_phase(k, vm, L.HF, L.SZ_HF, 54, L.W4P, L.SZ_W4, 54, True, waitH, True, prio=PRIO_P4, WS=WS4, XS=XS4, VW=VW4, VX=[10, 11, 12, 13], w_preissued=EARLY4, pace=PACE4)
    k.e("s_setprio 0")
    st.stamp()
    if ROWP4:
        T = 196
        def pre4():
            srd(k, 72, 6, 0, 2048 * 1280)
            k.e("s_lshl_b32 s47, s70, 4"); k.e("v_and_b32 v14, 15, v2"); k.e("v_add_u32 v14, s47, v14")
            k.e("v_mul_u32_u24 v8, 1280, v14"); k.e("v_lshrrev_b32 v9, 4, v2"); k.e("v_lshlrev_b32 v9, 3, v9"); k.e("v_add_u32 v8, v8, v9")
            k.e("s_lshl_b32 s71, s45, 5")
            for c in range(5):
                xr = XK + 2 * c; u = T + 4 * c
                k.e(f"v_lshlrev_b32 v{u}, 16, v{xr}"); k.e(f"v_and_b32 v{u+1}, 0xffff0000, v{xr}")
                k.e(f"v_lshlrev_b32 v{u+2}, 16, v{xr+1}"); k.e(f"v_and_b32 v{u+3}, 0xffff0000, v{xr+1}")
        k.e(f"s_setprio {PRIO_E}")
        reduce4(k, pre4)
        for c in range(5):
            a = A5(0, c); u = T + 4 * c
            for h in (0, 2):
                k.e(f"v_pk_fma_f32 v[{a+h}:{a+h+1}], v[{OMG}:{OMG+1}], v[{u+h}:{u+h+1}], v[{a+h}:{a+h+1}] op_sel:[0,0,0] op_sel_hi:[0,1,1]")
        k.e("s_setprio 0")
        k.e("s_barrier")
        rowgemm_w(k, vm, L.WOP, L.SZ_WDD)
        vm.wait("wl"); k.e("s_barrier")
        if SENT: emit_wait_sent(k)
        else: emit_wait(k, FL_O)
        vm.drained()
        st.stamp()
        rowgemm_x(k, vm, L.OF, L.SZ_XF, True)
        rowgemm_main(k, vm, False, verify=SENT, prio=PRIO_E, lds_barrier=False)
        T = 116
        k.e("s_nop 4")
        for c in range(5):
            a = A5(0, c)
            k.e(f"v_cvt_pk_bf16_f32 v{T+2*c}, v{a}, v{a+1}"); k.e(f"v_cvt_pk_bf16_f32 v{T+2*c+1}, v{a+2}, v{a+3}")
            k.e(f"buffer_store_dwordx2 v[{T+2*c}:{T+2*c+1}], v8, s[72:75], s71 offen offset:{c*32}")
    else:
        def waitO(kk):
            if SENT: emit_wait_sent(kk)
            else: emit_wait(kk, FL_O)
            st.stamp()
        if WOLDS: p4b_lds(k, vm, st)
        else: ksplit_phase(k, vm, L.OF, L.SZ_XF, 20, L.WOP, L.SZ_WDD, 20, True, waitO, False, prio=PRIO_E, verify=SENT, NSET=3 if SENT else 4)
        T = SET0
        def pre4():
            srd(k, 72, 6, 0, 2048 * 1280)
            k.e("s_lshl_b32 s47, s70, 4"); k.e("v_and_b32 v14, 15, v2"); k.e("v_add_u32 v14, s47, v14")
            k.e("v_mul_u32_u24 v12, 1280, v14"); k.e("v_lshrrev_b32 v13, 4, v2"); k.e("v_lshlrev_b32 v13, 3, v13"); k.e("v_add_u32 v12, v12, v13")
            k.e("s_lshl_b32 s71, s45, 5")
            for c in range(5):
                xr = XK + 2 * c; u = T + 24 + 4 * c
                k.e(f"v_lshlrev_b32 v{u}, 16, v{xr}"); k.e(f"v_and_b32 v{u+1}, 0xffff0000, v{xr}")
                k.e(f"v_lshlrev_b32 v{u+2}, 16, v{xr+1}"); k.e(f"v_and_b32 v{u+3}, 0xffff0000, v{xr+1}")
        reduce4(k, pre4)
        for c in range(5):
            a = A5(0, c); u = T + 24 + 4 * c
            for h in (0, 2):
                k.e(f"v_pk_fma_f32 v[{a+h}:{a+h+1}], v[{OMG}:{OMG+1}], v[{u+h}:{u+h+1}], v[{a+h}:{a+h+1}] op_sel:[0,0,0] op_sel_hi:[0,1,1]")
        for c in range(5):
            a = A5(0, c)
            k.e(f"v_cvt_pk_bf16_f32 v{T+2*c}, v{a}, v{a+1}"); k.e(f"v_cvt_pk_bf16_f32 v{T+2*c+1}, v{a+2}, v{a+3}")
            k.e(f"buffer_store_dwordx2 v[{T+2*c}:{T+2*c+1}], v12, s[72:75], s71 offen offset:{c*32}")
    st.stamp()
    if st.on: k.e("s_waitcnt vmcnt(0)")
    st.stamp(); st.stamp(real=True)

class SStamps:
    def __init__(self, k, on, kidx, pairs, vt=254):
        self.k = k; self.on = on; self.n = 0; self.kidx = kidx; self.pairs = pairs; self.real = []; self.vt = vt
    def stamp(self, real=False):
        if not self.on: return
        r = self.pairs[self.n]; self.n += 1
        self.k.e(f"s_memtime s[{r}:{r+1}]" if not real else f"s_memrealtime s[{r}:{r+1}]")
    def flush(self):
        if not self.on: return
        k = self.k
        k.e("s_waitcnt vmcnt(0) lgkmcnt(0)")
        k.e(f"s_add_u32 s96, s4, {L.STAMP + self.kidx*512*4*64}"); k.e("s_addc_u32 s97, s5, 0")
        k.e("s_lshl_b32 s98, s2, 2"); k.e("s_add_u32 s98, s98, s3"); k.e("s_lshl_b32 s98, s98, 6")
        k.e(f"v_mov_b32 v{self.vt}, s98")
        for i in range(self.n):
            k.e(f"v_mov_b32 v{self.vt+1}, s{self.pairs[i]}")
            k.e(f"global_store_dword v{self.vt}, v{self.vt+1}, s[96:97] offset:{4*i}")
            k.e("s_nop 1")
        k.e("s_waitcnt vmcnt(0)")

def gen_main():
    k = Kern("main_kernel")
    name = k.name
    k.e("s_cmp_ge_u32 s2, 512"); k.e(f"s_cbranch_scc1 {name}_end")
    ldptr(k, 4, "ws"); ldptr(k, 6, "out"); ldptr(k, 32, "x")
    k.e("v_lshrrev_b32 v1, 6, v0"); k.e("v_and_b32 v2, 63, v0")
    k.e("v_readfirstlane_b32 s3, v1")
    k.e("v_lshlrev_b32 v3, 4, v2")
    if CODEPF2:
        lab0 = k.label("cq")
        k.e("s_cmp_lg_u32 s3, 3"); k.e(f"s_cbranch_scc1 {lab0}")
        k.e("s_cmp_ge_u32 s2, 32"); k.e(f"s_cbranch_scc1 {lab0}")
        k.e("s_getpc_b64 s[36:37]")
        k.e(f"{name}_cp:")
        k.e(f"s_sub_u32 s36, s36, {name}_cp-{name}"); k.e("s_subb_u32 s37, s37, 0")
        k.e("v_lshlrev_b32 v6, 7, v2")
        for i in range(4):
            k.e(f"v_cmp_gt_u32 vcc, code_end-{name}, v6")
            k.e("s_and_saveexec_b64 s[38:39], vcc")
            lab = k.label("cp")
            k.e(f"s_cbranch_execz {lab}")
            k.e("global_load_dword v253, v6, s[36:37]")
            k.e(f"{lab}:")
            k.e("s_mov_b64 exec, s[38:39]")
            if i < 3: k.e("v_add_u32 v6, 8192, v6")
        k.e(f"{lab0}:")
    k.e("s_cmp_ge_u32 s2, 256"); k.e(f"s_cbranch_scc1 {name}_B")
    stA = VStamps(k, PROF, 8); stA.stamp(); stA.stamp(real=True)
    if NOA:
        decode_gj(k, 0); k.e("s_waitcnt lgkmcnt(0)"); srd(k, 28, 4, L.FLAGS, 4096); emit_publish(k, FL_O)
        for _ in range(5): stA.stamp()
        stA.stamp(real=True)
    else:
        emit_attn(k, stA)
    stA.flush()
    k.e("s_endpgm")
    k.e(f"{name}_B:")
    stB = SStamps(k, PROF, 8, list(range(8, 28, 2)) + [60, 62, 64, 66, 68, 98]); stB.stamp(); stB.stamp(real=True)
    if NOB: k.e("s_endpgm")
    emit_bchain(k, stB)
    stB.flush()
    k.e(f"{name}_end:")
    k.e("s_endpgm")
    return k, 256, 512, 81920

def epi_kv4(g):
    k = g.k
    n0 = len(k.lines)
    gen1.epi_kv(g)
    lines = k.lines
    i = lines.index("v_and_b32 v10, 11, v7", n0)
    T = g.tmp0
    new = ["v_cmp_eq_u32 s[88:89], 9, v7", f"v_cndmask_b32 v{T+7}, v{T+7}, 0, s[88:89]" if False else f"v_mov_b32 v14, 0", f"v_cndmask_b32 v{T+7}, v{T+7}, v14, s[88:89]", "s_or_b64 vcc, vcc, s[88:89]"]
    k.lines = lines[:i] + new + lines[i:]

def build_all():
    gen1.PROF = False
    gen3.TABLES[2] = ("t14", KO.t14b, 54)
    gen3.TBL_TEXT, gen3.TBL_OFF = gen3.table_text()
    ks = []
    ks.append(gen3.gen_prep())
    segD = lambda xoff, woff, wsize=L.SZ_WDD: dict(xoff=xoff, xsize=L.SZ_XF, nksx=20, woff=woff, wsize=wsize, nksw=20, nks=20)
    ks.append(gen1.gen_gemm("p1q_kernel", 256, 4, 5, 3, [segD(L.XF, L.WQP)], gen1.dec_p1q, gen1.epi_q, kidx=1))
    ks.append(gen1.gen_gemm("p1h_kernel", 256, 4, 5, 3, [segD(L.XF, L.W1P)], gen1.dec_p1h, gen3.epi_h3, kidx=2))
    ks.append(gen1.gen_gemm("p1kv_kernel", 32, 4, 4, 3, [segD(L.XF, L.WKVP, 4*20*1024)], gen1.dec_kv, epi_kv4, swap=[False, False, True, True], kidx=3))
    ks.append(gen_main())
    return ks

if __name__ == "__main__":
    PROF = "--prof" in sys.argv; gen3.PROF = PROF
    FINE = "--fine" in sys.argv
    PFALL = "--pfall" in sys.argv
    for a in sys.argv:
        if a.startswith("--pfs="): PFS = int(a[6:])
    NOB = "--nob" in sys.argv; NOA = "--noa" in sys.argv
    for a in sys.argv:
        if a.startswith("--pa="): PRIO_A = int(a[5:])
        if a.startswith("--pb="): PRIO_B = int(a[5:])
        if a.startswith("--pe="): PRIO_E = int(a[5:])
    ks = build_all()
    out = sys.argv[1]
    open(out, "w").write(gen3.assemble_text(ks))
    for (k, vg, nwg, lds) in ks: print(k.name, "vgpr", vg, "wg", nwg, "lds", lds, "lines", len(k.lines))
```

```python
import sys
sys.path.insert(0, "work")
from asmfw import *
import layout as L
import korder as KO
import gen1, gen3, gen4, gen5
from gen1 import srd, ldptr, f32bits, KA, OOB, LOG2E, GELU_C1, GELU_C2
from gen3 import r4, r2, r16, allreduce16, store_t80
from gen4 import VM, SStamps
from gen5 import TBL_OFF, TBL_TEXT, QSCALE, epi_h5

PROF = False
ABL = ''
INNER = False
PFK1 = 1
CODEPF = True
TLBPF = True
LSTAMP = False
WT = ''
PPC = False
PPSPLIT = True
ROWMAP = False
WTH = None
WTQ = ''
WROW = 320
XB_, WB_, KVB_, GWB_ = 0, 8192, 8192 + 20480, 8192 + 20480 + 3072
SLOT = 32768
NSL = 4
PPB = NSL * SLOT
K1_LDS = PPB + 6 * 4096

def gen_k1():
    k = Kern("front_kernel")
    name = k.name
    st = SStamps(k, PROF, 1, [60, 62, 64, 66, 16, 68, 100], vt=210)
    def istamp(i):
        if not (PROF and INNER): return
        lab = k.label("is"); r = [64, 66, 16, 68, 92, 94][i]
        k.e("s_cmp_lg_u32 s83, 5"); k.e(f"s_cbranch_scc1 {lab}"); k.e(f"s_memtime s[{r}:{r+1}]"); k.e(f"{lab}:")
    k.e("s_cmp_ge_u32 s2, 256"); k.e(f"s_cbranch_scc1 {name}_end")
    if CODEPF:
        k.e("s_getpc_b64 s[36:37]")
        k.e(f"{name}_cp:")
        k.e(f"s_sub_u32 s36, s36, {name}_cp-{name}"); k.e("s_subb_u32 s37, s37, 0")
        k.e("v_lshlrev_b32 v6, 7, v0")
        k.e(f"v_cmp_gt_u32 vcc, code_end-{name}, v6")
        k.e("s_and_saveexec_b64 s[38:39], vcc")
        lab = k.label("cp")
        k.e(f"s_cbranch_execz {lab}")
        k.e("global_load_dword v222, v6, s[36:37]")
        k.e(f"{lab}:")
        k.e("s_mov_b64 exec, s[38:39]")
    st.stamp(); st.stamp(real=True)
    for r, nm in ((6, "x"), (8, "wq"), (10, "w1"), (12, "wk"), (14, "wv"), (18, "gw")): ldptr(k, r, nm)
    ldptr(k, 4, "ws")
    for r, nm in ((20, "w2"), (22, "wo"), (24, "w3"), (26, "w4")): ldptr(k, r, nm)
    k.e("v_lshrrev_b32 v1, 6, v0"); k.e("v_and_b32 v2, 63, v0")
    k.e("v_lshlrev_b32 v3, 4, v2")
    k.e("v_readfirstlane_b32 s3, v1")
    if ROWMAP:
        gen3.decode_gj(k, 0)
    else:
        k.e("s_and_b32 s46, s2, 7"); k.e("s_lshr_b32 s47, s2, 3")
        k.e("s_lshr_b32 s40, s46, 1"); k.e("s_lshl_b32 s40, s40, 3"); k.e("s_lshr_b32 s49, s47, 2"); k.e("s_add_u32 s40, s40, s49")
        k.e("s_and_b32 s41, s46, 1"); k.e("s_lshl_b32 s41, s41, 2"); k.e("s_and_b32 s49, s47, 3"); k.e("s_add_u32 s41, s41, s49")
    k.e("s_lshr_b32 s42, s41, 2"); k.e("s_and_b32 s43, s41, 3")
    k.e("s_cmp_ge_u32 s3, 4"); k.e(f"s_cbranch_scc0 {name}_compute")
    k.e("s_sub_u32 s3, s3, 4")
    k.e("s_mul_i32 s46, s40, 3"); k.e("s_mul_i32 s47, s46, 6554"); k.e("s_lshr_b32 s47, s47, 16"); k.e("s_mul_i32 s47, s47, 10"); k.e("s_sub_u32 s48, s46, s47")
    k.e("v_lshrrev_b32 v4, 3, v2"); k.e("v_and_b32 v5, 7, v2")
    k.e("s_lshl_b32 s46, s3, 3"); k.e("v_add_u32 v6, s46, v4")
    k.e("v_bfe_u32 v7, v6, 1, 3"); k.e("v_xor_b32 v7, v7, v5"); k.e("v_lshlrev_b32 v7, 4, v7")
    k.e("s_lshl_b32 s47, s40, 6"); k.e("v_add_u32 v6, s47, v6"); k.e("v_mul_u32_u24 v6, 1280, v6")
    k.e("v_add_u32 v200, v6, v7"); k.e(f"v_add_u32 v201, {32*1280}, v200")
    k.e(f"s_mov_b32 s50, {(1<<32)//WROW + 1}"); k.e("s_mul_i32 s51, s43, 320")
    for i in range(5):
        k.e(f"s_add_u32 s46, s3, {4*i}"); k.e("s_lshl_b32 s46, s46, 10"); k.e("v_add_u32 v6, s46, v3")
        k.e("v_mul_hi_u32 v7, v6, s50")
        k.e(f"v_mul_u32_u24 v8, {WROW}, v7"); k.e("v_sub_u32 v8, v6, v8")
        k.e("v_bfe_u32 v10, v7, 2, 1")
        k.e("v_and_b32 v9, 0x33, v7"); k.e("v_lshl_or_b32 v9, v10, 3, v9")
        k.e("v_bfe_u32 v11, v7, 3, 1"); k.e("v_lshl_or_b32 v9, v11, 2, v9")
        k.e("v_lshlrev_b32 v10, 5, v10"); k.e("v_xor_b32 v8, v8, v10")
        k.e("v_mul_u32_u24 v9, 1280, v9"); k.e("v_add_u32 v9, v9, v8"); k.e(f"v_add_u32 v{202+i}, s51, v9")
    k.e("s_lshl_b32 s46, s3, 10"); k.e("v_add_u32 v6, s46, v3"); k.e(f"v_mov_b32 v7, {OOB}")
    k.e("v_cmp_gt_u32 vcc, 2560, v6"); k.e("v_cndmask_b32 v6, v7, v6, vcc")
    k.e("v_cmp_gt_u32 vcc, 128, v3"); k.e("v_cndmask_b32 v8, v7, v3, vcc")
    k.e("s_cmp_eq_u32 s3, 3"); k.e("s_cselect_b64 vcc, -1, 0"); k.e("v_cndmask_b32 v207, v6, v8, vcc")
    k.e("s_waitcnt lgkmcnt(0)")
    srd(k, 28, 6, 0, 2048 * 1280)
    k.e("s_cmp_eq_u32 s42, 0")
    k.e("s_cselect_b32 s32, s8, s10"); k.e("s_cselect_b32 s33, s9, s11"); k.e(f"s_mov_b32 s34, {640*1280}"); k.e("s_mov_b32 s35, 0x20000")
    k.e("s_cselect_b32 s52, s12, s14"); k.e("s_cselect_b32 s53, s13, s15"); k.e(f"s_mov_b32 s54, {640*40}"); k.e("s_mov_b32 s55, 0x20000")
    k.e("s_cmp_eq_u32 s3, 3")
    k.e("s_cselect_b32 s52, s18, s52"); k.e("s_cselect_b32 s53, s19, s53"); k.e("s_cselect_b32 s54, 1280, s54")
    k.e("s_mov_b32 s46, 2560"); k.e("s_cselect_b32 s70, 128, s46")
    k.e("s_lshl_b32 s46, s3, 10"); k.e(f"s_add_u32 s71, s46, {KVB_}")
    k.e("s_lshl_b32 s72, s3, 10")
    vm = VM(k)
    def issue_stage(t):
        slot = (t % NSL) * SLOT
        k.e("s_lshl_b32 s74, s48, 7"); k.e(f"s_mul_i32 s75, s48, {64*1280}"); k.e("s_mul_i32 s76, s48, s70")
        if ABL in ("same", "samenoread"):
            k.e("s_mov_b32 s74, 0"); k.e("s_mov_b32 s75, 0"); k.e("s_mov_b32 s76, 0")
        for i in range(2):
            k.e(f"s_add_u32 m0, s72, {slot + XB_ + i*4096}"); k.e("s_nop 0")
            vm.issue(f"buffer_load_dwordx4 v{200+i}, s[28:31], s74 offen lds", ("S", t))
        for i in range(5):
            k.e(f"s_add_u32 m0, s72, {slot + WB_ + i*4096}"); k.e("s_nop 0")
            vm.issue(f"buffer_load_dwordx4 v{202+i}, s[32:35], s75 offen lds", ("S", t))
        k.e(f"s_add_u32 m0, s71, {slot}"); k.e("s_nop 0")
        vm.issue("buffer_load_dwordx4 v207, s[52:55], s76 offen lds", ("S", t))
        k.e("s_add_u32 s48, s48, 1"); k.e("s_cmp_eq_u32 s48, 10"); k.e("s_cselect_b32 s48, 0, s48")
    def do_pf():
            k.e("s_lshr_b32 s46, s2, 3"); k.e("s_mul_i32 s46, s46, 200"); k.e("s_mul_i32 s47, s3, 50"); k.e("s_add_u32 s46, s46, s47"); k.e("s_lshl_b32 s46, s46, 7")
            k.e("v_lshlrev_b32 v6, 7, v2"); k.e(f"v_mov_b32 v7, {OOB}"); k.e("v_cmp_gt_u32 vcc, 50, v2"); k.e("v_cndmask_b32 v6, v7, v6, vcc")
            k.e("buffer_load_dword v20, v6, s[32:35], s46 offen")
            k.e("s_lshl_b32 s46, s40, 6"); k.e("s_lshl_b32 s47, s43, 4"); k.e("s_add_u32 s46, s46, s47"); k.e("s_lshl_b32 s47, s3, 2"); k.e("s_add_u32 s46, s46, s47"); k.e("s_mul_i32 s46, s46, 1280")
            k.e("v_lshlrev_b32 v6, 7, v2"); k.e("v_cmp_gt_u32 vcc, 40, v2"); k.e("v_cndmask_b32 v6, v7, v6, vcc")
            k.e("buffer_load_dword v21, v6, s[28:31], s46 offen")
            vm.q += ["pf", "pf"]
    if PFK1 == 1: do_pf()
    issue_stage(0)
    if PFK1 == 3: do_pf()
    if PFK1 != 4: issue_stage(1)
    st.stamp()
    def prepack_loads():
        k.e("s_getpc_b64 s[80:81]")
        k.e(f"{name}_pc:")
        k.e(f"s_add_u32 s80, s80, korder_table-{name}_pc"); k.e("s_addc_u32 s81, s81, 0")
        k.e("v_lshrrev_b32 v10, 5, v2"); k.e("v_bfe_u32 v11, v2, 3, 2"); k.e("v_and_b32 v12, 7, v2"); k.e("v_lshlrev_b32 v12, 4, v12")
        for pas in range(2):
            P = f"{name}_pp{pas}"
            k.e("s_mul_i32 s46, s2, 6"); k.e("s_add_u32 s46, s46, s3"); k.e("s_mov_b32 s49, 0")
            if pas:
                k.e("s_add_u32 s46, s46, 4"); k.e("s_cmp_lt_u32 s3, 2"); k.e("s_cselect_b32 s46, s46, 9999")
            k.e("s_cmp_lt_u32 s46, 400"); k.e(f"s_cbranch_scc1 {P}_lo")
            k.e("s_cmp_lt_u32 s46, 940"); k.e(f"s_cbranch_scc1 {P}_w3")
            k.e("s_cmp_lt_u32 s46, 1480"); k.e(f"s_cbranch_scc1 {P}_w4")
            k.e("s_mov_b32 s46, 0"); k.e("s_mov_b32 s49, 1"); k.e(f"s_branch {P}_w2")
            k.e(f"{P}_lo:")
            k.e("s_cmp_ge_u32 s46, 200"); k.e(f"s_cbranch_scc1 {P}_wo")
            for nm, ptr, start, dst, ld, ncg, nks, order in (("w2", 20, 0, L.W2P, 1280, 10, 20, "t80"), ("wo", 22, 200, L.WOP, 1280, 10, 20, "oord"),
                                                               ("w3", 24, 400, L.W3P, 3456, 27, 20, "t80"), ("w4", 26, 940, L.W4P, 1280, 10, 54, "t14")):
                k.e(f"{P}_{nm}:")
                if start: k.e(f"s_sub_u32 s46, s46, {start}")
                k.e(f"s_mul_hi_u32 s47, s46, {(1<<32)//ncg + 1}")
                k.e(f"s_mul_i32 s50, s47, {ncg}"); k.e("s_sub_u32 s50, s46, s50")
                k.e(f"s_mov_b32 s84, s{ptr}"); k.e(f"s_mov_b32 s85, s{ptr+1}"); k.e(f"s_mov_b32 s86, {32*nks*ld}")
                k.e(f"s_mov_b32 s51, {ld}")
                k.e(f"s_lshl_b32 s79, s47, 5"); k.e(f"s_add_u32 s79, s79, {TBL_OFF[order]}")
                k.e(f"s_lshl_b32 s82, s50, 2"); k.e(f"s_mul_i32 s82, s82, {nks}"); k.e("s_add_u32 s82, s82, s47"); k.e("s_lshl_b32 s82, s82, 10"); k.e(f"s_add_u32 s82, s82, {dst}")
                k.e(f"s_mov_b32 s83, {nks*1024}")
                k.e(f"s_mov_b32 s{56+pas}, {1 if nm == 'w3' else 0}")
                k.e(f"s_branch {P}_go")
            k.e(f"{P}_go:")
            k.e("s_mov_b32 s87, 0x20000")
            k.e("s_cmp_eq_u32 s49, 0"); k.e(f"s_cselect_b32 s82, s82, {OOB}"); k.e(f"s_cselect_b32 s50, s50, 0x00ffff00")
            k.e(f"s_mov_b32 s{8+4*pas}, s82"); k.e(f"s_mov_b32 s{9+4*pas}, s83"); k.e(f"s_mov_b32 s{10+4*pas}, s47"); k.e(f"s_mov_b32 s{11+4*pas}, s50")
            k.e("s_add_u32 s90, s80, s79"); k.e("s_addc_u32 s91, s81, 0")
            k.e("s_load_dwordx8 s[92:99], s[90:91], 0")
            k.e("s_lshl_b32 s50, s50, 7")
            k.e("s_waitcnt lgkmcnt(0)")
            for i in range(4):
                k.e(f"v_mul_lo_u32 v6, v10, s{96+i}"); k.e("v_add_u32 v6, v6, v11"); k.e(f"v_add_u32 v6, s{92+i}, v6")
                k.e("v_mul_lo_u32 v6, v6, s51"); k.e("v_add_u32 v6, v6, v12")
                k.e("s_lshl_b32 s46, s3, 12"); k.e(f"s_add_u32 m0, s46, {PPB + pas*4*4096 + i*1024}"); k.e("s_nop 0")
                vm.issue("buffer_load_dwordx4 v6, s[84:87], s50 offen lds", "P")
    srd(k, 72 + 0, 4, 0, L.WS_END) if False else None
    k.e("v_lshrrev_b32 v14, 4, v2")
    for q in range(4): k.e(f"v_mov_b32 v{96+q}, 0x3f803f80")
    vm.wait(("S", 0))
    st.stamp()
    k.e("s_barrier")
    if PFK1 == 4: issue_stage(1)
    issue_stage(2); issue_stage(3)
    def prepack_process(which=(0, 1), extras=True):
        ONES = 96
        vm.wait("P")
        k.e("v_lshrrev_b32 v5, 4, v2"); k.e("v_lshlrev_b32 v5, 2, v5"); k.e("v_and_b32 v6, 15, v2"); k.e("v_lshrrev_b32 v7, 2, v6"); k.e("v_add_u32 v5, v5, v7")
        k.e("v_lshlrev_b32 v5, 7, v5"); k.e("v_and_b32 v6, 3, v2"); k.e("v_lshlrev_b32 v6, 3, v6"); k.e("v_add_u32 v5, v5, v6")
        k.e("s_lshl_b32 s46, s3, 12"); k.e(f"s_add_u32 s46, s46, {PPB}"); k.e("v_add_u32 v5, s46, v5")
        for pas in which:
            if pas:
                k.e(f"s_cmp_ge_u32 s3, 2"); k.e(f"s_cbranch_scc1 {name}_ppdone")
                k.e("v_add_u32 v5, 16384, v5")
            for c in range(4):
                k.e(f"ds_read_b64_tr_b16 v[{100+4*c}:{101+4*c}], v5 offset:{c*32}")
                k.e(f"ds_read_b64_tr_b16 v[{102+4*c}:{103+4*c}], v5 offset:{c*32+2048}")
            k.e("s_waitcnt lgkmcnt(0)")
            k.e(f"s_mov_b32 s46, s{8+4*pas}")
            for c in range(4):
                k.e(f"buffer_store_dwordx4 {r4(100+4*c)}, v3, s[96:99], s46 offen{WT}")
                if c < 3: k.e(f"s_add_u32 s46, s46, s{9+4*pas}")
            sk = k.label("nocs")
            k.e(f"s_cmp_eq_u32 s{56+pas}, 0"); k.e(f"s_cbranch_scc1 {sk}")
            for c in range(4):
                k.e(f"v_dot2_f32_bf16 v{120+c}, v{100+4*c}, v{ONES}, 0")
                for q in range(1, 4): k.e(f"v_dot2_f32_bf16 v{120+c}, v{100+4*c+q}, v{ONES}, v{120+c}")
            for c in range(4): allreduce16(k, "v_add_f32", 120 + c, 124)
            k.e("v_cmp_eq_u32 vcc, 1, v14"); k.e("v_cndmask_b32 v120, v120, v121, vcc")
            k.e("v_cmp_eq_u32 vcc, 2, v14"); k.e("v_cndmask_b32 v120, v120, v122, vcc")
            k.e("v_cmp_eq_u32 vcc, 3, v14"); k.e("v_cndmask_b32 v120, v120, v123, vcc")
            k.e(f"s_mul_i32 s46, s{10+4*pas}, {1728*4}"); k.e(f"s_lshl_b32 s47, s{11+4*pas}, 8"); k.e("s_add_u32 s46, s46, s47"); k.e(f"s_add_u32 s46, s46, {L.CS3P}")
            k.e("v_lshlrev_b32 v6, 2, v2")
            k.e("buffer_store_dword v120, v6, s[96:99], s46 offen")
            k.e(f"{sk}:")
        if 1 in which: k.e(f"{name}_ppdone:")
        if not extras: return
        z = k.label("nz")
        k.e("s_cmp_lg_u32 s2, 0"); k.e(f"s_cbranch_scc1 {z}")
        for q in range(4): k.e(f"v_mov_b32 v{100+q}, 0")
        k.e("s_lshl_b32 s46, s3, 10"); k.e(f"s_add_u32 s46, s46, {L.FLAGS}")
        k.e("buffer_store_dwordx4 v[100:103], v3, s[96:99], s46 offen")
        k.e("s_cmp_ge_u32 s3, 2"); k.e(f"s_cbranch_scc1 {z}")
        k.e("s_lshl_b32 s46, s3, 6"); k.e("v_add_u32 v6, s46, v2")
        k.e("v_mul_u32_u24 v7, 205, v6"); k.e("v_lshrrev_b32 v7, 12, v7")
        k.e("v_mul_u32_u24 v8, 20, v7"); k.e("v_sub_u32 v8, v6, v8")
        k.e("v_mov_b32 v9, v7"); k.e("v_cmp_lt_u32 vcc, 2, v7"); k.e("v_subrev_u32 v10, 1, v7"); k.e("v_cndmask_b32 v9, v9, v10, vcc")
        k.e("v_cmp_eq_u32 vcc, 5, v7"); k.e("v_mov_b32 v10, 3"); k.e("v_cndmask_b32 v9, v9, v10, vcc")
        k.e("v_mov_b32 v10, 0")
        for c, row in ((1, 2047), (3, 1), (4, 2046), (5, 2047)):
            k.e(f"v_cmp_eq_u32 vcc, {c}, v7"); k.e(f"v_mov_b32 v11, {row}"); k.e("v_cndmask_b32 v10, v10, v11, vcc")
        k.e("v_lshrrev_b32 v11, 4, v10"); k.e(f"v_mul_u32_u24 v11, {20*1024}, v11")
        k.e("v_mul_u32_u24 v9, 5, v9"); k.e("v_lshrrev_b32 v12, 2, v8"); k.e("v_add_u32 v9, v9, v12"); k.e("v_lshlrev_b32 v9, 10, v9"); k.e("v_add_u32 v11, v11, v9")
        k.e("v_and_b32 v12, 3, v8"); k.e("v_lshlrev_b32 v12, 4, v12"); k.e("v_and_b32 v9, 15, v10"); k.e("v_add_u32 v12, v12, v9"); k.e("v_lshlrev_b32 v12, 4, v12"); k.e("v_add_u32 v11, v11, v12")
        k.e("v_cmp_gt_u32 vcc, 120, v6"); k.e(f"v_mov_b32 v12, {OOB}"); k.e("v_cndmask_b32 v11, v12, v11, vcc")
        k.e(f"s_mov_b32 s46, {L.HS}")
        k.e("buffer_store_dwordx4 v[100:103], v11, s[96:99], s46 offen")
        k.e(f"{z}:")
    for t in range(10):
        if t + 1 < 10 and (ABL != "nodma" or t + 1 < 4): vm.wait(("S", t + 1))
        if PROF and LSTAMP: k.e(f"s_memtime s[{[36,38,58,6,18,16,64,66,68,30][t]}:{[36,38,58,6,18,16,64,66,68,30][t]+1}]") if t not in (3,4) or True else None
        k.e("s_barrier")
        if t + 4 < 10 and ABL != "nodma": issue_stage(t + 4)
        if t == 5 and not PPC: prepack_loads(); srd(k, 96, 4, 0, L.WS_END)
        if PPSPLIT and t == 7: prepack_process((0,), extras=False)
        if PPSPLIT and t == 8: prepack_process((1,), extras=True)
    if not PPC and not PPSPLIT: prepack_process()
    if st.on and LSTAMP:
        sp = st.pairs; st.pairs = [60, 62, 36, 38, 58, 6, 18, 16, 64, 66, 68, 30]; st.n = 12; st.kidx = 2; st.flush(); st.kidx = 1; st.pairs = sp
        st.n = 2
    elif st.on:
        st.stamp(); k.e("s_waitcnt vmcnt(0)"); st.stamp(); st.stamp(real=True); st.kidx = 2; st.flush(); st.kidx = 1
        st.n = 2
    k.e("s_endpgm")
    k.e(f"{name}_compute:")
    if PFK1 == 4:
        k.e("s_waitcnt lgkmcnt(0)")
        k.e("s_cmp_eq_u32 s42, 0"); k.e("s_cselect_b32 s32, s8, s10"); k.e("s_cselect_b32 s33, s9, s11"); k.e(f"s_mov_b32 s34, {640*1280}"); k.e("s_mov_b32 s35, 0x20000")
        srd(k, 28, 6, 0, 2048 * 1280)
        k.e("s_lshr_b32 s46, s2, 3"); k.e("s_mul_i32 s46, s46, 200"); k.e("s_mul_i32 s47, s3, 50"); k.e("s_add_u32 s46, s46, s47"); k.e("s_lshl_b32 s46, s46, 7")
        k.e("v_lshlrev_b32 v6, 7, v2"); k.e(f"v_mov_b32 v7, {OOB}"); k.e("v_cmp_gt_u32 vcc, 50, v2"); k.e("v_cndmask_b32 v8, v7, v6, vcc")
        k.e("buffer_load_dword v223, v8, s[32:35], s46 offen")
        k.e("s_lshl_b32 s46, s40, 6"); k.e("s_lshl_b32 s47, s43, 4"); k.e("s_add_u32 s46, s46, s47"); k.e("s_lshl_b32 s47, s3, 2"); k.e("s_add_u32 s46, s46, s47"); k.e("s_mul_i32 s46, s46, 1280")
        k.e("v_cmp_gt_u32 vcc, 40, v2"); k.e("v_cndmask_b32 v8, v7, v6, vcc")
        k.e("buffer_load_dword v223, v8, s[28:31], s46 offen")
    if TLBPF:
        lab = k.label("tp")
        k.e("s_cmp_lg_u32 s3, 0"); k.e(f"s_cbranch_scc1 {lab}")
        ldptr(k, 30, "out")
        k.e("s_waitcnt lgkmcnt(0)")
        pages = [(6, 0), (6, 2 << 20), (8, 0), (10, 0), (12, 0), (14, 0), (18, 0), (20, 0), (22, 0), (24, 0), (24, 2 << 20), (26, 0), (26, 2 << 20), (30, 0), (30, 2 << 20)]
        pages += [(4, i * (2 << 20)) for i in range((L.WS_END + (2 << 20) - 1) // (2 << 20))]
        k.e("v_mov_b32 v16, s4"); k.e("v_mov_b32 v17, s5")
        for i, (p, off) in enumerate(pages):
            if off:
                k.e(f"s_add_u32 s46, s{p}, {off}"); k.e(f"s_addc_u32 s47, s{p+1}, 0")
                k.e(f"v_writelane_b32 v16, s46, {i}"); k.e(f"v_writelane_b32 v17, s47, {i}")
            else:
                k.e(f"v_writelane_b32 v16, s{p}, {i}"); k.e(f"v_writelane_b32 v17, s{p+1}, {i}")
        k.e("global_load_dword v222, v[16:17], off")
        k.e(f"{lab}:")
    if PPC:
        k.e("s_waitcnt lgkmcnt(0)")
        vm = VM(k)
        prepack_loads()
    k.e("s_lshr_b32 s44, s3, 1"); k.e("s_and_b32 s45, s3, 1")
    k.e("v_and_b32 v13, 15, v2"); k.e("v_lshrrev_b32 v14, 4, v2")
    for r in range(2):
        k.e("s_and_b32 s46, s43, 1"); k.e(f"s_xor_b32 s46, s46, {r}"); k.e("s_lshl_b32 s47, s44, 1"); k.e("s_add_u32 s46, s46, s47"); k.e("s_lshl_b32 s46, s46, 4")
        k.e("v_add_u32 v6, s46, v13")
        k.e("v_bfe_u32 v7, v6, 1, 3"); k.e("v_xor_b32 v7, v7, v14"); k.e("v_lshlrev_b32 v7, 4, v7"); k.e("v_lshlrev_b32 v6, 7, v6")
        k.e(f"v_add_u32 v{184+2*r}, v6, v7"); k.e(f"v_xor_b32 v{185+2*r}, 64, v{184+2*r}")
    k.e("v_lshrrev_b32 v6, 1, v14"); k.e("v_lshlrev_b32 v6, 4, v6")
    k.e("v_and_b32 v9, 1, v14"); k.e("v_lshlrev_b32 v7, 2, v9"); k.e("v_add_u32 v6, v6, v7")
    k.e("v_lshrrev_b32 v7, 2, v13"); k.e("v_add_u32 v6, v6, v7"); k.e(f"v_mul_u32_u24 v6, {WROW}, v6")
    k.e("v_and_b32 v7, 3, v2"); k.e("v_lshlrev_b32 v7, 3, v7"); k.e("v_add_u32 v6, v6, v7")
    k.e("v_lshlrev_b32 v8, 5, v9")
    k.e("s_mul_i32 s46, s45, 160"); k.e(f"s_add_u32 s46, s46, {WB_}"); k.e("v_add_u32 v6, s46, v6")
    k.e("v_add_u32 v10, v6, v8"); k.e("v_sub_u32 v11, v6, v8")
    k.e("s_cmp_eq_u32 s45, 0"); k.e("s_cselect_b64 vcc, -1, 0")
    k.e("v_cndmask_b32 v188, v11, v10, vcc"); k.e("v_cndmask_b32 v191, v10, v11, vcc")
    k.e("v_lshlrev_b32 v6, 3, v14"); k.e("v_lshrrev_b32 v8, 2, v13"); k.e("v_add_u32 v6, v6, v8"); k.e("v_mul_u32_u24 v6, 40, v6"); k.e("v_add_u32 v6, v6, v7")
    k.e(f"v_add_u32 v189, {KVB_}, v6")
    k.e("v_lshlrev_b32 v6, 4, v14"); k.e(f"v_add_u32 v190, {GWB_}, v6")
    ONES = 96
    for q in range(4): k.e(f"v_mov_b32 v{ONES+q}, 0x3f803f80")
    for q in range(16, 96): k.e(f"v_mov_b32 v{q}, 0")
    k.e("s_lshr_b32 s46, s43, 1"); k.e("s_cmp_eq_u32 s46, s44"); k.e("s_cselect_b32 s79, 1, 0"); k.e("s_cmp_eq_u32 s45, 0"); k.e("s_cselect_b32 s79, s79, 0")
    k.e("s_mul_i32 s47, s43, 10"); k.e("s_mul_i32 s46, s45, 5"); k.e("s_add_u32 s47, s47, s46")
    for c in range(5):
        k.e(f"s_add_u32 s46, s47, {c}"); k.e("s_lshl_b32 s46, s46, 2"); k.e("v_add_u32 v9, s46, v14")
        k.e("v_mul_u32_u24 v10, 205, v9"); k.e("v_lshrrev_b32 v10, 10, v10")
        k.e("v_mul_u32_u24 v11, 5, v10"); k.e("v_sub_u32 v11, v9, v11")
        k.e(f"v_mul_u32_u24 v12, {64*1280}, v10")
        k.e("v_lshrrev_b32 v9, 1, v11"); k.e("v_lshlrev_b32 v9, 9, v9"); k.e("v_and_b32 v10, 1, v11"); k.e("v_lshl_or_b32 v9, v10, 3, v9")
        k.e(f"v_add_u32 v{212+c}, v12, v9")
        k.e("v_cmp_eq_u32 vcc, 4, v11"); k.e("v_mov_b32 v9, 4"); k.e("v_mov_b32 v10, 3"); k.e(f"v_cndmask_b32 v{217+c}, v9, v10, vcc")
    k.e("s_waitcnt lgkmcnt(0)")
    srd(k, 96, 4, 0, L.WS_END)
    A = lambda r, c: 16 + (r * 5 + c) * 4
    CSa = lambda c: 56 + 4 * c
    SXa = lambda r: 76 + 4 * r
    KVa = lambda c: 84 + 4 * c
    F = lambda b: 100 + 40 * b
    MF = "v_mfma_f32_16x16x32_bf16"
    def reads(step, b, isH):
        f = F(b); out = []
        if ABL in ("noread", "samenoread"): return ["s_nop 0"]
        for r in range(2): out.append(f"ds_read_b128 {r4(f+4*r)}, v{192+2*r+step}")
        for c in range(5):
            va, o = (196 if c % 2 == 0 else 199), step * 32 * WROW + c * 32
            out.append(f"ds_read_b64_tr_b16 {r2(f+8+4*c)}, v{va} offset:{o}")
            out.append(f"ds_read_b64_tr_b16 {r2(f+10+4*c)}, v{va} offset:{o + 8*WROW}")
        if not isH: out.append(f"ds_read_b128 {r4(f+36)}, v198 offset:{64*step}")
        return out
    def kvreads(step, b):
        f = F(b)
        lab = k.label("kr"); k.e("s_cmp_eq_u32 s79, 0"); k.e(f"s_cbranch_scc1 {lab}")
        for c in range(2):
            o = step * 32 * 40 + c * 32
            k.e(f"ds_read_b64_tr_b16 {r2(f+28+4*c)}, v197 offset:{o}"); k.e(f"ds_read_b64_tr_b16 {r2(f+30+4*c)}, v197 offset:{o + 160}")
        k.e(f"{lab}:")
    def slot_addrs(sreg):
        for r in range(2):
            for sp in range(2): k.e(f"v_add_u32 v{192+2*r+sp}, s{sreg}, v{184+2*r+sp}")
        k.e(f"v_add_u32 v196, s{sreg}, v188"); k.e(f"v_add_u32 v199, s{sreg}, v191"); k.e(f"v_add_u32 v197, s{sreg}, v189"); k.e(f"v_add_u32 v198, s{sreg}, v190")
    def compute(b, isH, side):
        f = F(b); side = list(side)
        dots = []
        for r in range(2):
            for q in range(4):
                dots.append(f"v_dot2_f32_bf16 v{92+r}, v{f+4*r+q}, v{f+4*r+q}, v{92+r}" if isH else f"v_dot2_f32_bf16 v{94+r}, v{f+4*r+q}, v{f+36+q}, v{94+r}")
        mf = []
        for c in range(5):
            for r in range(2): mf.append(f"{MF} {r4(A(r,c))}, {r4(f+8+4*c)}, {r4(f+4*r)}, {r4(A(r,c))}")
            if isH: mf.append(f"{MF} {r4(CSa(c))}, {r4(f+8+4*c)}, {r4(ONES)}, {r4(CSa(c))}")
        if isH:
            for r in range(2): mf.append(f"{MF} {r4(SXa(r))}, {r4(ONES)}, {r4(f+4*r)}, {r4(SXa(r))}")
        if ABL in ("noread", "samenoread"): mf = mf[:1]; dots = []
        for m in mf:
            k.e(m)
            if side: k.e(side.pop(0))
            if dots and len(side) <= len(dots): k.e(dots.pop(0))
        for x in side + dots: k.e(x)
        sk = k.label("kv")
        k.e("s_cmp_eq_u32 s79, 0"); k.e(f"s_cbranch_scc1 {sk}")
        for c in range(2):
            if isH: k.e(f"{MF} {r4(KVa(c))}, {r4(f)}, {r4(f+28+4*c)}, {r4(KVa(c))}")
            else: k.e(f"{MF} {r4(KVa(c))}, {r4(f+28+4*c)}, {r4(f)}, {r4(KVa(c))}")
        k.e(f"{sk}:")
    if not INNER: st.stamp()
    if PPC:
        for q in range(4): k.e(f"v_mov_b32 v{96+q}, 0x3f803f80")
        prepack_process()
    if not INNER: st.stamp()
    k.e("s_mov_b32 s78, 0"); k.e("s_mov_b32 s83, 0")
    k.e("s_barrier")
    if not INNER: st.stamp()
    k.e("s_cmp_lg_u32 s42, 0"); k.e(f"s_cbranch_scc1 {name}_H")
    for isH in (0, 1):
        lp = f"{name}_loop{isH}"
        if isH: k.e(f"{name}_H:")
        slot_addrs(78)
        for x in reads(0, 0, isH): k.e(x)
        k.e("s_waitcnt lgkmcnt(8)")
        kvreads(0, 0)
        k.e(f"{lp}:")
        istamp(0)
        k.e("s_waitcnt lgkmcnt(0)")
        istamp(1)
        kvreads(1, 1)
        compute(0, isH, reads(1, 1, isH))
        istamp(2)
        k.e(f"s_add_u32 s78, s78, {SLOT}"); k.e(f"s_cmp_eq_u32 s78, {NSL*SLOT}"); k.e("s_cselect_b32 s78, 0, s78")
        k.e("s_waitcnt lgkmcnt(0)")
        istamp(3)
        k.e("s_barrier")
        istamp(4)
        slot_addrs(78)
        kvreads(0, 0)
        compute(1, isH, reads(0, 0, isH))
        istamp(5)
        k.e("s_add_u32 s83, s83, 1"); k.e("s_cmp_lt_u32 s83, 10"); k.e(f"s_cbranch_scc1 {lp}")
        if INNER: pass
        elif isH == 0: st.stamp()
        elif st.on:
            r = st.pairs[st.n - 1]; k.e(f"s_memtime s[{r}:{r+1}]")
        k.e("s_waitcnt lgkmcnt(0)"); k.e("s_nop 7")
        for r in range(2):
            k.e("s_and_b32 s46, s43, 1"); k.e(f"s_xor_b32 s46, s46, {r}"); k.e("s_lshl_b32 s47, s44, 1"); k.e("s_add_u32 s46, s46, s47")
            k.e("s_lshl_b32 s47, s40, 2"); k.e(f"s_add_u32 s{84+r}, s46, s47")
            k.e(f"s_lshl_b32 s47, s{84+r}, 4"); k.e(f"v_add_u32 v{5+r}, s47, v13")
        if not isH: epi_q6(k, A, KVa)
        else: epi_h5(k, A, CSa, SXa, KVa)
        if not isH: k.e(f"s_branch {name}_fin")
    k.e(f"{name}_fin:")
    if st.on: k.e("s_waitcnt vmcnt(0)")
    if INNER:
        st.pairs = [60, 62, 64, 66, 16, 68, 92, 94, 100]; st.n = 8
    st.stamp(real=True)
    st.flush()
    k.e(f"{name}_end:")
    k.e("s_endpgm")
    return k, 224, 256, K1_LDS, 512

def epi_q6(k, A, KVa):
    T = 100
    k.e(f"s_mov_b32 s70, {f32bits(QSCALE)}"); k.e(f"s_mov_b32 s71, {L.QF}")
    for r in range(2):
        k.e(f"v_lshrrev_b32 v7, 5, v{5+r}"); k.e("v_mul_u32_u24 v7, 1280, v7"); k.e(f"v_and_b32 v8, 31, v{5+r}")
        for c in range(5):
            a = A(r, c)
            for h in (0, 2): k.e(f"v_pk_mul_f32 v[{a+h}:{a+h+1}], v[{a+h}:{a+h+1}], s[70:71] op_sel:[0,0] op_sel_hi:[1,0]") if False else None
            for q in range(4): k.e(f"v_mul_f32 v{a+q}, s70, v{a+q}")
        for c in range(5):
            a = A(r, c); t = T + 2 * (c + 5 * r)
            k.e(f"v_cvt_pk_bf16_f32 v{t}, v{a}, v{a+1}"); k.e(f"v_cvt_pk_bf16_f32 v{t+1}, v{a+2}, v{a+3}")
            k.e(f"v_lshlrev_b32 v9, v{217+c}, v8"); k.e(f"v_add3_u32 v{130+c+5*r}, v9, v7, v{212+c}")
        for c in range(5):
            t = T + 2 * (c + 5 * r)
            k.e(f"buffer_store_dwordx2 v[{t}:{t+1}], v{130+c+5*r}, s[96:99], s71 offen{WTQ}")
    g = k.label("ng")
    k.e("s_or_b32 s46, s43, s45"); k.e("s_cmp_lg_u32 s46, 0"); k.e(f"s_cbranch_scc1 {g}")
    for r in range(2):
        allreduce16(k, "v_add_f32", 94 + r, 7)
        k.e(f"v_mul_f32 v{94+r}, {f32bits(-LOG2E)}, v{94+r}"); k.e(f"v_exp_f32 v{94+r}, v{94+r}"); k.e("s_nop 0")
        k.e(f"v_add_f32 v{94+r}, 1.0, v{94+r}"); k.e(f"v_rcp_f32 v{94+r}, v{94+r}")
        k.e(f"v_lshlrev_b32 v7, 2, v{5+r}"); k.e(f"s_mov_b32 s46, {L.G}")
        k.e(f"buffer_store_dword v{94+r}, v7, s[96:99], s46 offen")
    k.e(f"{g}:")
    e = k.label("nk")
    k.e("s_cmp_eq_u32 s79, 0"); k.e(f"s_cbranch_scc1 {e}")
    T = 150
    k.e("s_lshr_b32 s71, s84, 1"); k.e("s_mul_i32 s71, s71, 3072"); k.e(f"s_add_u32 s71, s71, {L.KVF}")
    k.e("v_and_b32 v8, 31, v5")
    a = KVa(0); k.e(f"v_cvt_pk_bf16_f32 v{T}, v{a}, v{a+1}"); k.e(f"v_cvt_pk_bf16_f32 v{T+1}, v{a+2}, v{a+3}")
    a = KVa(1); k.e(f"v_cvt_pk_bf16_f32 v{T+2}, v{a}, v{a+1}"); k.e(f"v_cvt_pk_bf16_f32 v{T+3}, v{a+2}, v{a+3}")
    k.e("v_lshrrev_b32 v9, 1, v14"); k.e("v_lshlrev_b32 v9, 5, v9"); k.e("v_add_u32 v9, v9, v8"); k.e("v_lshlrev_b32 v9, 4, v9")
    k.e("v_and_b32 v10, 1, v14"); k.e("v_lshlrev_b32 v10, 3, v10"); k.e("v_add_u32 v9, v9, v10")
    k.e(f"buffer_store_dwordx2 v[{T}:{T+1}], v9, s[96:99], s71 offen")
    gen1.k2_addr(k, 8, 12, 9)
    k.e("v_cmp_eq_u32 vcc, 0, v14"); k.e(f"v_mov_b32 v9, {OOB}"); k.e("v_cndmask_b32 v12, v9, v12, vcc")
    k.e(f"buffer_store_dwordx2 v[{T+2}:{T+3}], v12, s[96:99], s71 offen")
    k.e(f"v_dot2_f32_bf16 v11, v{T}, v{T}, 0"); k.e(f"v_dot2_f32_bf16 v11, v{T+1}, v{T+1}, v11")
    k.e(f"v_dot2_f32_bf16 v10, v{T+2}, v{T+2}, 0"); k.e(f"v_dot2_f32_bf16 v10, v{T+3}, v{T+3}, v10")
    k.e("v_cndmask_b32 v10, 0, v10, vcc"); k.e("v_add_f32 v11, v11, v10")
    allreduce16(k, "v_add_f32", 11, 10)
    for ror in (8, 4, 2, 1): k.e(f"v_max_f32_dpp v11, v11, v11 row_ror:{ror} row_mask:0xf bank_mask:0xf")
    k.e("s_lshl_b32 s46, s84, 2"); k.e(f"s_add_u32 s46, s46, {L.KMAX}"); k.e("v_mov_b32 v10, 0")
    k.e("buffer_store_dword v11, v10, s[96:99], s46 offen")
    k.e(f"{e}:")

def epi_q8(k, A, KVa, DQ):
    T = 148
    k.e(f"s_mov_b32 s70, {f32bits(QSCALE)}"); k.e(f"s_mov_b32 s71, {L.QF}")
    for r in range(2):
        k.e(f"v_lshrrev_b32 v7, 5, v{5+r}"); k.e("v_mul_u32_u24 v7, 1280, v7"); k.e(f"v_and_b32 v8, 31, v{5+r}")
        for c in range(5):
            a = A(r, c)
            for h in (0, 2): k.e(f"v_pk_mul_f32 v[{a+h}:{a+h+1}], v[{a+h}:{a+h+1}], s[70:71] op_sel:[0,0] op_sel_hi:[1,0]") if False else None
            for q in range(4): k.e(f"v_mul_f32 v{a+q}, s70, v{a+q}")
        for c in range(5):
            a = A(r, c); t = T + 2 * (c + 5 * r)
            k.e(f"v_cvt_pk_bf16_f32 v{t}, v{a}, v{a+1}"); k.e(f"v_cvt_pk_bf16_f32 v{t+1}, v{a+2}, v{a+3}")
            k.e(f"v_lshlrev_b32 v9, v{249+c}, v8"); k.e(f"v_add3_u32 v{180+c+5*r}, v9, v7, v{244+c}")
        for c in range(5):
            t = T + 2 * (c + 5 * r)
            k.e(f"buffer_store_dwordx2 v[{t}:{t+1}], v{180+c+5*r}, s[96:99], s71 offen")
    g = k.label("ng")
    k.e("s_or_b32 s46, s43, s45"); k.e("s_cmp_lg_u32 s46, 0"); k.e(f"s_cbranch_scc1 {g}")
    for r in range(2):
        allreduce16(k, "v_add_f32", DQ + r, 7)
        k.e(f"v_mul_f32 v{DQ+r}, {f32bits(-LOG2E)}, v{DQ+r}"); k.e(f"v_exp_f32 v{DQ+r}, v{DQ+r}"); k.e("s_nop 0")
        k.e(f"v_add_f32 v{DQ+r}, 1.0, v{DQ+r}"); k.e(f"v_rcp_f32 v{DQ+r}, v{DQ+r}")
        k.e(f"v_lshlrev_b32 v7, 2, v{5+r}"); k.e(f"s_mov_b32 s46, {L.G}")
        k.e(f"buffer_store_dword v{DQ+r}, v7, s[96:99], s46 offen")
    k.e(f"{g}:")
    e = k.label("nk")
    k.e("s_cmp_eq_u32 s79, 0"); k.e(f"s_cbranch_scc1 {e}")
    T = 200
    k.e("s_lshr_b32 s71, s84, 1"); k.e("s_mul_i32 s71, s71, 3072"); k.e(f"s_add_u32 s71, s71, {L.KVF}")
    k.e("v_and_b32 v8, 31, v5")
    a = KVa(0); k.e(f"v_cvt_pk_bf16_f32 v{T}, v{a}, v{a+1}"); k.e(f"v_cvt_pk_bf16_f32 v{T+1}, v{a+2}, v{a+3}")
    a = KVa(1); k.e(f"v_cvt_pk_bf16_f32 v{T+2}, v{a}, v{a+1}"); k.e(f"v_cvt_pk_bf16_f32 v{T+3}, v{a+2}, v{a+3}")
    k.e("v_lshrrev_b32 v9, 1, v14"); k.e("v_lshlrev_b32 v9, 5, v9"); k.e("v_add_u32 v9, v9, v8"); k.e("v_lshlrev_b32 v9, 4, v9")
    k.e("v_and_b32 v10, 1, v14"); k.e("v_lshlrev_b32 v10, 3, v10"); k.e("v_add_u32 v9, v9, v10")
    k.e(f"buffer_store_dwordx2 v[{T}:{T+1}], v9, s[96:99], s71 offen")
    gen1.k2_addr(k, 8, 12, 9)
    k.e("v_cmp_eq_u32 vcc, 0, v14"); k.e(f"v_mov_b32 v9, {OOB}"); k.e("v_cndmask_b32 v12, v9, v12, vcc")
    k.e(f"buffer_store_dwordx2 v[{T+2}:{T+3}], v12, s[96:99], s71 offen")
    k.e(f"v_dot2_f32_bf16 v11, v{T}, v{T}, 0"); k.e(f"v_dot2_f32_bf16 v11, v{T+1}, v{T+1}, v11")
    k.e(f"v_dot2_f32_bf16 v10, v{T+2}, v{T+2}, 0"); k.e(f"v_dot2_f32_bf16 v10, v{T+3}, v{T+3}, v10")
    k.e("v_cndmask_b32 v10, 0, v10, vcc"); k.e("v_add_f32 v11, v11, v10")
    allreduce16(k, "v_add_f32", 11, 10)
    for ror in (8, 4, 2, 1): k.e(f"v_max_f32_dpp v11, v11, v11 row_ror:{ror} row_mask:0xf bank_mask:0xf")
    k.e("s_lshl_b32 s46, s84, 2"); k.e(f"s_add_u32 s46, s46, {L.KMAX}"); k.e("v_mov_b32 v10, 0")
    k.e("buffer_store_dword v11, v10, s[96:99], s46 offen")
    k.e(f"{e}:")

def epi_h8(k, A, CSa, SXa, KVa, DQ):
    T = 148
    p2 = lambda x: f"v[{x}:{x+1}]"
    C1, C2, ONE = 196, 198, 200
    k.e(f"v_mov_b32 v{C1}, {f32bits(GELU_C1)}"); k.e(f"v_mov_b32 v{C1+1}, v{C1}")
    k.e(f"v_mov_b32 v{C2}, {f32bits(GELU_C2)}"); k.e(f"v_mov_b32 v{C2+1}, v{C2}")
    k.e(f"v_mov_b32 v{ONE}, 1.0"); k.e(f"v_mov_b32 v{ONE+1}, 1.0")
    k.e("s_lshr_b32 s85, s43, 1") if False else None
    k.e("s_lshr_b32 s70, s43, 1"); k.e("s_add_u32 s70, s70, 1"); k.e("s_and_b32 s46, s43, 1"); k.e("s_sub_u32 s47, 0, s70"); k.e("s_cmp_eq_u32 s46, 0"); k.e("s_cselect_b32 s70, s70, s47")
    k.e("s_lshl_b32 s88, s43, 1"); k.e("s_add_u32 s88, s88, s45")
    srd(k, 72, 4, L.HS, L.SZ_XF)
    for r in range(2):
        MN, RS = 202, 204
        allreduce16(k, "v_add_f32", DQ + r, 7)
        k.e(f"v_mul_f32 v{MN}, {f32bits(-1/640)}, v{SXa(r)}"); k.e(f"v_mul_f32 v{RS}, {f32bits(1/640)}, v{DQ+r}")
        k.e(f"v_fma_f32 v{RS}, -v{MN}, v{MN}, v{RS}"); k.e(f"v_add_f32 v{RS}, {f32bits(1e-5)}, v{RS}"); k.e(f"v_rsq_f32 v{RS}, v{RS}")
        k.e(f"v_mov_b32 v{MN+1}, v{MN}")
        k.e(f"v_add_u32 v11, s70, v{5+r}")
        k.e("v_lshrrev_b32 v12, 4, v11"); k.e(f"v_mul_u32_u24 v12, {20*1024}, v12")
        k.e("v_and_b32 v9, 15, v11"); k.e("v_lshlrev_b32 v10, 4, v14"); k.e("v_add_u32 v9, v9, v10"); k.e("v_lshlrev_b32 v9, 4, v9")
        k.e("v_add_u32 v12, v12, v9")
        k.e(f"v_mov_b32 v{RS+1}, v{RS}")
        k.e("v_cmp_gt_u32 vcc, 2048, v11"); k.e(f"v_mov_b32 v9, {OOB}"); k.e("v_cndmask_b32 v12, v9, v12, vcc")
        k.e("v_cmp_gt_u32 vcc, 32, v2"); k.e("v_cndmask_b32 v15, v9, v12, vcc")
        regs = [A(r, c) for c in range(5)]
        for c, a in enumerate(regs):
            for h in (0, 2): k.e(f"v_pk_fma_f32 {p2(a+h)}, {p2(MN)}, {p2(CSa(c)+h)}, {p2(a+h)}")
        for a in regs:
            for h in (0, 2): k.e(f"v_pk_mul_f32 {p2(a+h)}, {p2(a+h)}, {p2(RS)}")
        gen3.gelu_multi(k, regs, [206 + 4 * c for c in range(5)], C1, C2, ONE)
        PK = T + 12 * r
        for c, a in enumerate(regs):
            k.e(f"v_cvt_pk_bf16_f32 v{PK+2*c}, v{a}, v{a+1}"); k.e(f"v_cvt_pk_bf16_f32 v{PK+2*c+1}, v{a+2}, v{a+3}")
        store_t80(k, PK, 12, 15, 72, 88, 228 + 4 * r)
    e = k.label("nv")
    k.e("s_cmp_eq_u32 s79, 0"); k.e(f"s_cbranch_scc1 {e}")
    T = 180
    k.e("s_lshr_b32 s71, s84, 1"); k.e("s_mul_i32 s71, s71, 3072"); k.e("s_and_b32 s46, s84, 1"); k.e("s_lshl_b32 s46, s46, 10"); k.e("s_add_u32 s71, s71, s46")
    k.e(f"s_add_u32 s71, s71, {L.KVF + 1024}")
    k.e("v_and_b32 v9, 1, v14"); k.e("v_lshlrev_b32 v9, 5, v9"); k.e("v_add_u32 v9, v9, v13"); k.e("v_lshlrev_b32 v9, 4, v9")
    k.e("v_lshrrev_b32 v10, 1, v14"); k.e("v_lshlrev_b32 v10, 3, v10"); k.e("v_add_u32 v9, v9, v10")
    a = KVa(0); k.e(f"v_cvt_pk_bf16_f32 v{T}, v{a}, v{a+1}"); k.e(f"v_cvt_pk_bf16_f32 v{T+1}, v{a+2}, v{a+3}")
    k.e(f"buffer_store_dwordx2 v[{T}:{T+1}], v9, s[96:99], s71 offen")
    a = KVa(1); k.e(f"v_cvt_pk_bf16_f32 v{T+2}, v{a}, v{a+1}"); k.e(f"v_cvt_pk_bf16_f32 v{T+3}, v{a+2}, v{a+3}")
    k.e("v_cmp_gt_u32 vcc, 4, v13")
    k.e(f"v_cndmask_b32 v{T+2}, 0, v{T+2}, vcc"); k.e(f"v_cndmask_b32 v{T+3}, 0, v{T+3}, vcc")
    k.e("v_mov_b32 v10, 0x3f803f80")
    k.e("v_and_b32 v11, 11, v13"); k.e("v_cmp_eq_u32 vcc, 8, v11")
    k.e(f"v_cndmask_b32 v{T+2}, v{T+2}, v10, vcc"); k.e(f"v_cndmask_b32 v{T+3}, v{T+3}, v10, vcc")
    k.e("v_cmp_eq_u32 vcc, 9, v13"); k.e(f"v_cndmask_b32 v{T+2}, v{T+2}, v10, vcc")
    k.e("v_lshrrev_b32 v11, 2, v13"); k.e("v_cmp_ne_u32 vcc, 1, v11")
    k.e("v_add_u32 v9, 256, v9"); k.e(f"v_mov_b32 v10, {OOB}"); k.e("v_cndmask_b32 v9, v10, v9, vcc")
    k.e(f"buffer_store_dwordx2 v[{T+2}:{T+3}], v9, s[96:99], s71 offen")
    k.e(f"{e}:")


def assemble_text(ks):
    s = ""
    for (k, vg, nwg, lds, *rest) in ks:
        blk = rest[0] if rest else 256
        s += f"; @launch kernel={k.name} grid=({nwg},1,1) block=({blk},1,1) lds={lds}\n"
    s += '.amdgcn_target "amdgcn-amd-amdhsa--gfx950"\n.text\n'
    for (k, vg, nwg, lds, *rest) in ks: s += kernel_text(k, vg)
    s += "code_end:\n"
    s += TBL_TEXT
    s += '.section .rodata,"a"\n'
    for (k, vg, nwg, lds, *rest) in ks: s += descriptor(k.name, (vg + 7) // 8 * 8, 102)
    return s

def build_all():
    gen4.RAWX = True
    return [gen_k1(), gen4.gen_main()]

if __name__ == "__main__":
    PROF = "--prof" in sys.argv; gen3.PROF = PROF; gen4.PROF = PROF
    for a in sys.argv:
        if a.startswith("--abl="): ABL = a[6:]
    gen4.ADIAG = "--adiag" in sys.argv
    INNER = "--inner" in sys.argv
    if "--nopfk1" in sys.argv: PFK1 = 0
    if "--pfk3" in sys.argv: PFK1 = 3
    if "--pfk4" in sys.argv: PFK1 = 4
    if "--nocodepf" in sys.argv: CODEPF = False
    if "--notlbpf" in sys.argv: TLBPF = False
    LSTAMP = "--lstamp" in sys.argv
    for a in sys.argv:
        if a.startswith("--poll="): gen4.POLL = int(a[7:])
    if "--nosent" in sys.argv: gen4.SENT = False
    if "--noearly4" in sys.argv: gen4.EARLY4 = False
    if "--wolds" in sys.argv: gen4.WOLDS = True
    if "--pfk2" in sys.argv: gen4.PFK2 = True
    if "--rowp2" in sys.argv: gen4.ROWP2 = True
    if "--rowp4" in sys.argv: gen4.ROWP4 = True
    if "--nset2=4" in sys.argv: gen4.NSET2 = 4
    if "--codepf2" in sys.argv: gen4.CODEPF2 = True
    for a in sys.argv:
        if a.startswith("--pace="):
            v = [None if c == "x" else int(c) for c in a[7:]]
            gen4.PACE2, gen4.PACE3, gen4.PACE4 = v
    if "--wt" in sys.argv: WT = " sc1"
    if "--wtq" in sys.argv: WTQ = " sc1"
    ROWMAP = "--rowmap" in sys.argv
    gen5.WT = "" if "--nowth" in sys.argv else WT
    gen4.FINE = "--fine" in sys.argv
    gen4.NOB = "--nob" in sys.argv; gen4.NOA = "--noa" in sys.argv
    for a in sys.argv:
        if a.startswith("--pa="): gen4.PRIO_A = int(a[5:])
        if a.startswith("--pb="): gen4.PRIO_B = int(a[5:])
        if a.startswith("--pe="): gen4.PRIO_E = int(a[5:])
        if a.startswith("--pp="): gen4.PRIO_P2, gen4.PRIO_P3, gen4.PRIO_P4 = [int(c) for c in a[5:]]
    ks = build_all()
    open(sys.argv[1], "w").write(assemble_text(ks))
    for (k, vg, nwg, lds, *rest) in ks: print(k.name, "vgpr", vg, "wg", nwg, "lds", lds, "lines", len(k.lines))
```

```python
import sys
sys.path.insert(0, "work")
from asmfw import *
import layout as L
import korder as KO
import gen1, gen3
from gen1 import srd, ldptr, f32bits, KA, OOB, LOG2E, GELU_C1, GELU_C2
from gen3 import r4, r2, r16, allreduce16, decode_gj, store_t80, VStamps

ADIAG = False; RAWX = False; PROF = False; NOA = False; NOB = False; FINE = False; PFS = 0; PFALL = False
PRIO_A, PRIO_B, PRIO_E = 0, 0, 0
PRIO_P2, PRIO_P3, PRIO_P4 = 0, 0, 0
FL_X1, FL_H, FL_O, FL_CL = 0, 1024, 2048, 3072
SENT = True
POLL = 0
EARLY4 = True
OVL = False
NSET4 = 4
NS3_ = 6
X1S = False
OUT16 = False
OUTSC = ''
SC = ' sc1'
APF = None
STEP4 = False
ROT = False
EXP_A = 0
EXP_NOMF = False
SPLITST = False
WOLDS = 0
PFK2 = False
ROWP2 = False
ROWP4 = False
NSET2 = 3
CODEPF2 = False
PACE2 = PACE3 = PACE4 = None
CH, NB = 4, 4
CHB = CH * 3072
NCH = 64 // CH
SPIN_MAX = 400000

class VM:
    def __init__(self, k): self.k = k; self.q = []
    def issue(self, instr, tag): self.k.e(instr); self.q.append(tag)
    def wait(self, tag):
        idx = [i for i, t in enumerate(self.q) if t == tag]
        if not idx: return
        n = len(self.q) - 1 - idx[-1]
        self.k.e(f"s_waitcnt vmcnt({min(n, 63)})"); self.q = self.q[idx[-1] + 1:]
    def drained(self): self.q = []

def emit_publish(k, fl_base, fl2=None, allow=0):
    lab = k.label("pub")
    k.e(f"s_waitcnt vmcnt({allow})"); k.e("s_barrier")
    k.e("s_cmp_lg_u32 s3, 0"); k.e(f"s_cbranch_scc1 {lab}")
    k.e("s_lshl_b32 s46, s40, 3"); k.e("s_add_u32 s46, s46, s41"); k.e("s_lshl_b32 s46, s46, 2"); k.e(f"s_add_u32 s46, s46, {fl_base}")
    k.e("v_mov_b32 v252, 0"); k.e("v_mov_b32 v253, 1")
    k.e("s_mov_b64 s[34:35], exec"); k.e("s_mov_b64 exec, 1")
    k.e(f"buffer_store_dword v253, v252, s[28:31], s46 offen{SC}")
    if fl2 is not None: k.e(f"buffer_store_dword v253, v252, s[28:31], s46 offen offset:{fl2 - fl_base}{SC}")
    k.e("s_mov_b64 exec, s[34:35]")
    k.e(f"{lab}:")

def emit_wait_sent(k, TB=204):
    lab = k.label("poll"); done = k.label("pdone")
    srd(k, 64, 4, L.OF, L.SZ_XF)
    k.e("v_lshrrev_b32 v4, 2, v2"); k.e("v_lshrrev_b32 v5, 1, v4"); k.e("v_add_u32 v5, 16, v5")
    k.e(f"v_bfe_u32 v{TB}, v2, 1, 1"); k.e(f"v_mul_u32_u24 v{TB}, 40, v{TB}"); k.e(f"v_add_u32 v5, v5, v{TB}"); k.e("v_lshlrev_b32 v5, 10, v5")
    k.e("v_and_b32 v4, 1, v4"); k.e("v_lshlrev_b32 v4, 1, v4"); k.e(f"v_and_b32 v{TB}, 1, v2"); k.e(f"v_add_u32 v4, v4, v{TB}"); k.e("v_lshlrev_b32 v4, 8, v4")
    k.e("v_add_u32 v5, v5, v4")
    k.e(f"v_mov_b32 v4, {OOB}"); k.e("v_cndmask_b32 v5, v4, v5, s[38:39]")
    k.e(f"s_mul_i32 s46, s40, {4*20*1024}")
    k.e(f"s_mov_b32 s47, {SPIN_MAX}")
    k.e(f"{lab}:")
    k.e(f"buffer_load_dwordx4 v[{TB}:{TB+3}], v5, s[64:67], s46 offen sc1")
    k.e("s_waitcnt vmcnt(0)")
    k.e(f"v_max3_u32 v{TB}, v{TB}, v{TB+1}, v{TB+2}"); k.e(f"v_max_u32 v{TB}, v{TB}, v{TB+3}")
    k.e(f"v_cmp_eq_u32 vcc, -1, v{TB}")
    k.e("s_cmp_eq_u64 vcc, 0")
    k.e(f"s_cbranch_scc1 {done}")
    k.e("s_sleep 1")
    k.e("s_sub_u32 s47, s47, 1"); k.e("s_cmp_lg_u32 s47, 0"); k.e(f"s_cbranch_scc1 {lab}")
    k.e(f"{done}:")

def emit_wait(k, fl_base):
    lab = k.label("poll"); done = k.label("pdone")
    k.e("s_lshl_b32 s46, s40, 5"); k.e(f"s_add_u32 s46, s46, {fl_base}")
    k.e("v_and_b32 v4, 7, v2"); k.e("v_lshlrev_b32 v4, 2, v4")
    k.e(f"s_mov_b32 s47, {SPIN_MAX}")
    if POLL == 0:
        k.e(f"{lab}:")
        k.e("buffer_load_dword v253, v4, s[28:31], s46 offen sc1")
        k.e("s_waitcnt vmcnt(0)")
        k.e("v_cmp_ne_u32 vcc, 1, v253"); k.e("s_cmp_eq_u64 vcc, 0"); k.e(f"s_cbranch_scc1 {done}")
        k.e("s_sub_u32 s47, s47, 1"); k.e("s_cmp_lg_u32 s47, 0"); k.e(f"s_cbranch_scc1 {lab}")
        k.e(f"{done}:")
        return
    k.e("buffer_load_dword v253, v4, s[28:31], s46 offen sc1")
    k.e(f"{lab}:")
    k.e(f"s_sleep {POLL}")
    k.e("buffer_load_dword v252, v4, s[28:31], s46 offen sc1")
    k.e("s_waitcnt vmcnt(1)")
    k.e("v_cmp_ne_u32 vcc, 1, v253"); k.e("s_cmp_eq_u64 vcc, 0"); k.e(f"s_cbranch_scc1 {done}")
    k.e(f"s_sleep {POLL}")
    k.e("buffer_load_dword v253, v4, s[28:31], s46 offen sc1")
    k.e("s_waitcnt vmcnt(1)")
    k.e("v_cmp_ne_u32 vcc, 1, v252"); k.e("s_cmp_eq_u64 vcc, 0"); k.e(f"s_cbranch_scc1 {done}")
    k.e("s_sub_u32 s47, s47, 1"); k.e("s_cmp_lg_u32 s47, 0"); k.e(f"s_cbranch_scc1 {lab}")
    k.e(f"{done}:")
    return ["poll"]

def emit_attn(k, st):
    name = k.name
    Q1 = [16, 24]; Q2 = [20, 28]; O = [32, 48]; Sx = [64, 80]; P = [96, 104]
    K1 = [112, 120]; K2r = [116, 124]; V0 = [128, 136]; V1 = [132, 140]
    vKa, vK2a = 5, 6
    MF = "v_mfma_f32_32x32x16_bf16"; MF8 = "v_mfma_f32_32x32x8_bf16"
    decode_gj(k, 0)
    if PRIO_A: k.e(f"s_setprio {PRIO_A}")
    k.e("s_and_b32 s42, s3, 1"); k.e("s_lshr_b32 s43, s3, 1")
    k.e("v_and_b32 v7, 31, v2"); k.e("v_lshlrev_b32 v8, 3, v7")
    k.e("s_lshl_b32 s46, s40, 6"); k.e("s_lshl_b32 s47, s43, 5"); k.e("s_add_u32 s46, s46, s47")
    k.e("v_add_u32 v9, s46, v7"); k.e("v_lshlrev_b32 v10, 2, v9")
    k.e("v_lshlrev_b32 v11, 3, v2")
    k.e("s_mul_i32 s44, s3, 3072")
    k.e("s_waitcnt lgkmcnt(0)")
    srd(k, 12, 4, L.QF, L.SZ_QF); srd(k, 8, 4, L.KVF, L.SZ_KVF); srd(k, 16, 4, L.KMAX, 512)
    srd(k, 20, 4, L.G, 8192); srd(k, 24, 4, L.OF, L.SZ_XF); srd(k, 28, 4, L.FLAGS, 4096)
    k.e("s_lshl_b32 s46, s41, 2"); k.e("s_lshl_b32 s47, s42, 1"); k.e("s_add_u32 s46, s46, s47"); k.e("s_lshl_b32 s46, s46, 6")
    k.e("s_lshl_b32 s47, s40, 1"); k.e("s_add_u32 s46, s46, s47"); k.e("s_add_u32 s46, s46, s43"); k.e("s_mul_i32 s46, s46, 1280")
    for qb in range(2):
        k.e(f"buffer_load_dwordx4 {r4(Q1[qb])}, v3, s[12:15], s46 offen")
        k.e(f"buffer_load_dwordx2 {r2(Q2[qb])}, v8, s[12:15], s46 offen offset:1024")
        if qb == 0: k.e(f"s_add_u32 s46, s46, {64*1280}")
    k.e("buffer_load_dwordx2 v[64:65], v11, s[16:19], 0 offen")
    k.e("buffer_load_dword v12, v10, s[20:23], 0 offen")
    def dma_all(chunk):
        k.e(f"s_add_u32 s45, s44, {chunk*CHB}"); k.e(f"s_add_u32 m0, s44, {chunk*CHB}"); k.e("s_nop 0")
        for i in range(3): k.e(f"buffer_load_dwordx4 v3, s[8:11], s45 offen offset:{i*1024} lds")
    for c in range(NB - 1): dma_all(c)
    st.stamp()
    for qb in range(2):
        for i in range(16): k.e(f"v_mov_b32 v{O[qb]+i}, 0")
    k.e("v_lshrrev_b32 v14, 3, v7"); k.e("v_lshlrev_b32 v15, 9, v14"); k.e("v_add_u32 v15, 1344, v15")
    k.e("v_and_b32 v14, 7, v7"); k.e("v_lshlrev_b32 v14, 3, v14"); k.e("v_add_u32 v15, v15, v14")
    k.e("v_cmp_gt_u32 vcc, 32, v2"); k.e("v_mov_b32 v14, 1424"); k.e("v_cndmask_b32 v15, v14, v15, vcc")
    k.e(f"v_mov_b32 v{vKa}, v3"); k.e(f"v_mov_b32 v{vK2a}, v15")
    for j in range(4, 8): k.e(f"v_mov_b32 v{P[1]+j}, 0")
    for j in range(12, 16): k.e(f"v_mov_b32 v{Sx[1]+j}, 0")
    for j in range(4): k.e(f"v_mov_b32 v{V1[1]+j}, 0")
    k.e(f"s_waitcnt vmcnt({3*(NB-1)})")
    st.stamp()
    k.e("v_max_f32 v64, v64, v65")
    for ror in (8, 4, 2, 1):
        k.e(f"v_max_f32_dpp v64, v64, v64 row_ror:{ror} row_mask:0xf bank_mask:0xf")
    allreduce16(k, "v_max_f32", 64, 65)
    for qb in range(2):
        t = 66 + 4 * qb
        k.e(f"v_cndmask_b32 v{t+2}, 0, v{Q2[qb]}, vcc"); k.e(f"v_cndmask_b32 v{t+3}, 0, v{Q2[qb]+1}, vcc")
        k.e(f"v_dot2_f32_bf16 v{t}, v{Q1[qb]}, v{Q1[qb]}, 0")
        for j in (1, 2, 3): k.e(f"v_dot2_f32_bf16 v{t}, v{Q1[qb]+j}, v{Q1[qb]+j}, v{t}")
        for j in (2, 3): k.e(f"v_dot2_f32_bf16 v{t}, v{t+j}, v{t+j}, v{t}")
    for qb in range(2):
        t = 66 + 4 * qb
        k.e(f"v_mov_b32 v{t+1}, v{t}"); k.e(f"v_permlane32_swap_b32 v{t}, v{t+1}"); k.e(f"v_add_f32 v{t}, v{t}, v{t+1}")
        k.e(f"v_mul_f32 v{t}, v{t}, v64"); k.e(f"v_sqrt_f32 v{t}, v{t}")
    for qb in range(2):
        t = 66 + 4 * qb
        k.e(f"v_mul_f32 v{t}, {f32bits(-1.01)}, v{t}")
        k.e(f"v_and_b32 v{t+1}, 0xffff0000, v{t}"); k.e(f"v_sub_f32 v{t+2}, v{t}, v{t+1}")
        k.e(f"v_cvt_pk_bf16_f32 v{t+2}, v{t+1}, v{t+2}")
        k.e(f"v_cndmask_b32 v{Q2[qb]}, v{t+2}, v{Q2[qb]}, vcc"); k.e(f"v_cndmask_b32 v{Q2[qb]+1}, 0, v{Q2[qb]+1}, vcc")
    k.e(f"s_waitcnt vmcnt({3*(NB-2)})"); k.e("s_barrier")
    def rd(kind, tile, b):
        o = tile * 3072
        if kind == 0: return f"ds_read_b128 {r4(K1[b])}, v{vKa} offset:{o}"
        if kind == 1: return f"ds_read_b64 {r2(K2r[b])}, v{vK2a} offset:{o}"
        if kind == 2: return f"ds_read_b128 {r4(V0[b])}, v{vKa} offset:{o+1024}"
        return f"ds_read_b128 {r4(V1[b])}, v{vKa} offset:{o+2048}"
    for kind in range(4): k.e(rd(kind, 0, 0))
    k.e("s_waitcnt lgkmcnt(2)")
    k.e(f"{MF} {r16(Sx[0])}, {r4(K1[0])}, {r4(Q1[0])}, 0")
    k.e(f"{MF8} {r16(Sx[0])}, {r2(K2r[0])}, {r2(Q2[0])}, {r16(Sx[0])}")
    k.e("s_mov_b32 s52, 0"); k.e("s_mov_b32 s53, 0")
    k.e(f"s_add_u32 s54, s44, {(NB-1)*CHB}"); k.e(f"s_add_u32 s56, s44, {(NB-1)*CHB}")
    k.e("s_nop 7"); k.e("s_nop 3")
    st.stamp()
    if ADIAG:
        for r in (70, 71, 72): k.e(f"s_mov_b32 s{r}, 0")
    if APF:
        srd(k, 68, 4, L.WOP, L.W4P + L.SZ_W4 - L.WOP)
        k.e("s_lshr_b32 s66, s2, 3"); k.e("s_mul_i32 s64, s66, 540"); k.e("s_mul_i32 s67, s3, 135"); k.e("s_add_u32 s64, s64, s67"); k.e("s_lshl_b32 s64, s64, 7")
        k.e("s_mul_i32 s65, s66, 200"); k.e("s_mul_i32 s67, s3, 50"); k.e("s_add_u32 s65, s65, s67"); k.e("s_lshl_b32 s65, s65, 7")
        k.e("v_lshlrev_b32 v156, 7, v2"); k.e(f"v_mov_b32 v157, {OOB}"); k.e("v_cmp_gt_u32 vcc, 50, v2"); k.e("v_cndmask_b32 v156, v157, v156, vcc")
    if SENT:
        k.e("v_mov_b32 v154, 0"); k.e("v_mov_b32 v155, 0")
        k.e("s_lshl_b32 s62, s40, 3"); k.e("s_add_u32 s62, s62, s41"); k.e("s_lshl_b32 s62, s62, 2"); k.e(f"s_add_u32 s62, s62, {FL_CL}")
    loop = f"{name}_aloop"
    k.e(f"{loop}:")
    def E(i, S): return f"v_exp_f32 v{S+i}, v{S+i}"
    def C(j, S, Pq): return f"v_cvt_pk_bf16_f32 v{Pq+j}, v{S+2*j}, v{S+2*j+1}"
    for T in range(CH):
        b = T % 2; nb = 1 - b
        for qb in range(2):
            S = Sx[qb]; N = Sx[1 - qb]; Pq = P[qb]
            pq_prev = P[1 - qb]; o_prev = O[1 - qb]
            v1_prev = V1[b] if qb == 1 else V1[nb]
            kb = b if qb == 0 else nb
            nq = 1 - qb
            Cp = lambda j: C(j, N, pq_prev)
            seq = [E(0, S), E(1, S), Cp(6), E(2, S), E(3, S), Cp(7),
                   f"{MF} {r16(N)}, {r4(K1[kb])}, {r4(Q1[nq])}, 0",
                   E(4, S), E(5, S), C(0, S, Pq), E(6, S), E(7, S), C(1, S, Pq),
                   f"{MF8} {r16(N)}, {r2(K2r[kb])}, {r2(Q2[nq])}, {r16(N)}",
                   E(8, S), E(9, S), C(2, S, Pq), E(10, S), E(11, S), C(3, S, Pq),
                   f"{MF} {r16(o_prev)}, {r4(v1_prev)}, {r4(pq_prev+4)}, {r16(o_prev)}",
                   E(12, S), E(13, S), C(4, S, Pq), E(14, S), E(15, S), C(5, S, Pq),
                   f"{MF} {r16(O[qb])}, {r4(V0[b])}, {r4(Pq)}, {r16(O[qb])}"]
            side = {}
            def add(i, s): side.setdefault(i, []).append(s)
            if qb == 0:
                nt = T + 1
                if T == CH - 1:
                    add(4, f"s_add_u32 s53, s53, {CHB}"); add(4, f"s_cmp_eq_u32 s53, {NB*CHB}"); add(4, "s_cselect_b32 s53, 0, s53")
                    add(5, f"v_add_u32 v{vKa}, s53, v3"); add(5, f"v_add_u32 v{vK2a}, s53, v15")
                    if ADIAG: add(5, "s_memtime s[60:61]")
                    add(5, f"s_waitcnt vmcnt({(4*(NB-2)-1 if APF else 3*(NB-2))}) lgkmcnt(0)")
                    if ADIAG: add(5, "s_memtime s[62:63]")
                    add(5, "s_barrier")
                    if ADIAG:
                        for x in ("s_memtime s[64:65]", "s_waitcnt lgkmcnt(0)", "s_sub_u32 s62, s62, s60", "s_add_u32 s70, s70, s62", "s_sub_u32 s64, s64, s60", "s_add_u32 s71, s71, s64"): add(5, x)
                    nt = 0
                else:
                    add(5, "s_waitcnt lgkmcnt(0)")
                add(6, rd(0, nt, nb)); add(13, rd(1, nt, nb)); add(20, rd(3, nt, nb)); add(27, rd(2, nt, nb))
            else:
                add(5, "s_waitcnt lgkmcnt(2)")
                if T < 3:
                    if T == 0:
                        add(6, f"s_cmp_lt_u32 s54, {NCH*CHB}"); add(6, f"s_cselect_b32 s55, s54, {OOB}"); add(6, "s_mov_b32 m0, s56")
                    if ADIAG: add(13, "s_memtime s[66:67]")
                    add(13, f"buffer_load_dwordx4 v3, s[8:11], s55 offen offset:{T*1024} lds")
                    if ADIAG:
                        for x in ("s_memtime s[68:69]", "s_waitcnt lgkmcnt(0)", "s_sub_u32 s68, s68, s66", "s_add_u32 s72, s72, s68"): add(13, x)
                    if T == 2:
                        add(20, f"s_add_u32 s54, s54, {CHB}"); add(20, f"s_add_u32 s56, s56, {CHB}")
                        add(27, f"s_sub_u32 s57, s56, s44"); add(27, f"s_cmp_eq_u32 s57, {NB*CHB}"); add(27, "s_cselect_b32 s56, s44, s56")
            if APF and T == 1 and qb == 0:
                c3, c4, co = APF
                for x in (f"s_mov_b32 s67, {OOB}",
                          f"s_sub_u32 s66, s52, {c3}", f"s_mul_i32 s72, s66, {45*128}", "s_add_u32 s72, s72, s64", f"s_add_u32 s72, s72, {L.W3P - L.WOP}", "s_cmp_lt_u32 s66, 3", "s_cselect_b32 s67, s72, s67"): add(13, x)
                for x in (f"s_sub_u32 s66, s52, {c4}", f"s_mul_i32 s72, s66, {45*128}", "s_add_u32 s72, s72, s64", f"s_add_u32 s72, s72, {L.W4P - L.WOP}", "s_cmp_lt_u32 s66, 3", "s_cselect_b32 s67, s72, s67"): add(20, x)
                for x in (f"s_cmp_eq_u32 s52, {co}", "s_cselect_b32 s67, s65, s67", "buffer_load_dword v157, v156, s[68:71], s67 offen"): add(27, x)
            if SENT and T == 3 and qb == 1:
                lab = k.label("clf")
                add(6, f"s_cmp_lg_u32 s52, {NCH-4}"); add(6, f"s_cbranch_scc1 {lab}")
                add(6, "buffer_load_dword v154, v155, s[28:31], s62 offen sc1"); add(6, f"{lab}:")
            for i, ins in enumerate(seq):
                k.e(ins)
                for s in side.get(i, []): k.e(s)
    k.e("s_add_u32 s52, s52, 1"); k.e(f"s_cmp_lt_u32 s52, {EXP_A or NCH}")
    k.e(f"s_cbranch_scc1 {loop}")
    st.stamp()
    k.e(C(6, Sx[1], P[1])); k.e(C(7, Sx[1], P[1]))
    k.e("s_nop 1")
    k.e(f"{MF} {r16(O[1])}, {r4(V1[(CH-1)%2])}, {r4(P[1]+4)}, {r16(O[1])}")
    k.e("s_nop 7"); k.e("s_nop 3")
    k.e(f"s_mov_b32 s58, {f32bits(2.0 ** -80)}")
    k.e(f"v_cmp_nle_f32 vcc, s58, v{O[0]+12}"); k.e(f"v_cmp_nle_f32 s[60:61], s58, v{O[1]+12}")
    k.e("s_or_b64 vcc, vcc, s[60:61]"); k.e("s_cmp_eq_u64 vcc, 0")
    k.e(f"s_cbranch_scc1 {name}_fast")
    emit_attn_slow(k, Q1, Q2, O, Sx, P, K1, K2r, V0, V1)
    k.e(f"{name}_fast:")
    k.e("v_lshrrev_b32 v18, 4, v9"); k.e(f"v_mul_u32_u24 v18, {20*1024}, v18")
    k.e("v_and_b32 v19, 15, v9"); k.e("v_lshlrev_b32 v19, 4, v19"); k.e("v_add_u32 v18, v18, v19")
    k.e("v_lshrrev_b32 v14, 5, v2"); k.e("v_lshlrev_b32 v19, 8, v14"); k.e("v_add_u32 v19, v18, v19")
    k.e("s_lshl_b32 s46, s41, 1"); k.e("s_add_u32 s46, s46, s42"); k.e("s_lshl_b32 s46, s46, 10")
    k.e("s_lshr_b32 s47, s41, 1"); k.e("s_add_u32 s47, s47, 16"); k.e("s_lshl_b32 s47, s47, 10")
    k.e("s_and_b32 s48, s41, 1"); k.e("s_lshl_b32 s48, s48, 1"); k.e("s_add_u32 s48, s48, s42"); k.e("s_lshl_b32 s48, s48, 8"); k.e("s_add_u32 s47, s47, s48")
    k.e("v_cmp_eq_u32 vcc, 0, v14"); k.e(f"v_mov_b32 v20, {OOB}"); k.e("v_cndmask_b32 v18, v20, v18, vcc")
    k.e("s_nop 4")
    for qb in range(2): k.e(f"v_rcp_f32 v{16+qb}, v{O[qb]+12}")
    for qb in range(2): k.e(f"v_mul_f32 v{16+qb}, v{16+qb}, v12")
    for qb in range(2):
        o = O[qb]
        for q in range(12): k.e(f"v_mul_f32 v{o+q}, v{16+qb}, v{o+q}")
        for q in range(4): k.e(f"v_cvt_pk_bf16_f32 v{64+4*qb+q}, v{o+2*q}, v{o+2*q+1}")
        for q in range(2): k.e(f"v_cvt_pk_bf16_f32 v{72+2*qb+q}, v{o+8+2*q}, v{o+9+2*q}")
        if not SENT: k.e(f"buffer_store_dwordx4 {r4(64+4*qb)}, v19, s[24:27], s46 offen offset:{qb*512}{SC}")
    if SENT:
        ok = k.label("clok"); sp = k.label("clsp")
        k.e("s_waitcnt vmcnt(0)")
        k.e(f"s_mov_b32 s63, {SPIN_MAX}")
        k.e(f"{sp}:")
        k.e("v_cmp_eq_u32 vcc, 1, v154"); k.e("s_cmp_lg_u64 vcc, 0"); k.e(f"s_cbranch_scc1 {ok}")
        k.e("buffer_load_dword v154, v155, s[28:31], s62 offen sc1"); k.e("s_waitcnt vmcnt(0)")
        k.e("s_sub_u32 s63, s63, 1"); k.e("s_cmp_lg_u32 s63, 0"); k.e(f"s_cbranch_scc1 {sp}")
        k.e(f"{ok}:")
        for qb in range(2): k.e(f"buffer_store_dwordx4 {r4(64+4*qb)}, v19, s[24:27], s46 offen offset:{qb*512}{SC}")
    k.e(f"buffer_store_dwordx4 {r4(72)}, v18, s[24:27], s47 offen{SC}")
    if not SENT: emit_publish(k, FL_O)
    st.stamp(); st.stamp(real=True)
    if ADIAG:
        for i, r in enumerate((70, 71, 72)):
            k.e(f"v_mov_b32 v255, s{r}"); k.e(f"global_store_dword v254, v255, s[96:97] offset:{4*(10+i)}")

def emit_attn_slow(k, Q1, Q2, O, Sx, P, K1, K2r, V0, V1):
    name = k.name
    MF = "v_mfma_f32_32x32x16_bf16"; MF8 = "v_mfma_f32_32x32x8_bf16"
    k.e("s_waitcnt vmcnt(0) lgkmcnt(0)")
    k.e("v_cmp_gt_u32 vcc, 32, v2")
    Z = [144, 146]; M = [148, 149]
    for qb in range(2):
        k.e(f"v_cndmask_b32 v{Z[qb]}, 0, v{Q2[qb]}, vcc"); k.e(f"v_cndmask_b32 v{Z[qb]+1}, 0, v{Q2[qb]+1}, vcc")
        k.e(f"v_mov_b32 v{M[qb]}, 0xff800000")
    def loads(with_v):
        k.e(f"buffer_load_dwordx4 {r4(K1[0])}, v3, s[8:11], s59 offen")
        k.e(f"buffer_load_dwordx2 {r2(K2r[0])}, v15, s[8:11], s59 offen")
        if with_v:
            k.e(f"buffer_load_dwordx4 {r4(V0[0])}, v3, s[8:11], s59 offen offset:1024")
            k.e(f"buffer_load_dwordx4 {r4(V1[0])}, v3, s[8:11], s59 offen offset:2048")
        k.e("s_waitcnt vmcnt(0)")
    k.e("s_mov_b32 s59, 0")
    l1 = f"{name}_slow1"
    k.e(f"{l1}:")
    loads(False)
    for qb in range(2):
        k.e(f"{MF} {r16(Sx[qb])}, {r4(K1[0])}, {r4(Q1[qb])}, 0")
        k.e(f"{MF8} {r16(Sx[qb])}, {r2(K2r[0])}, {r2(Z[qb])}, {r16(Sx[qb])}")
    k.e("s_nop 7"); k.e("s_nop 7")
    for qb in range(2):
        for i in range(0, 16, 2): k.e(f"v_max3_f32 v{M[qb]}, v{M[qb]}, v{Sx[qb]+i}, v{Sx[qb]+i+1}")
    k.e("s_add_u32 s59, s59, 3072"); k.e(f"s_cmp_lt_u32 s59, {64*3072}"); k.e(f"s_cbranch_scc1 {l1}")
    for qb in range(2):
        t = 150
        k.e(f"v_mov_b32 v{t}, v{M[qb]}"); k.e(f"v_permlane32_swap_b32 v{M[qb]}, v{t}"); k.e(f"v_max_f32 v{M[qb]}, v{M[qb]}, v{t}")
        k.e(f"v_sub_f32 v{t}, 0, v{M[qb]}")
        k.e(f"v_and_b32 v{t+1}, 0xffff0000, v{t}"); k.e(f"v_sub_f32 v{t+2}, v{t}, v{t+1}")
        k.e(f"v_cvt_pk_bf16_f32 v{t+2}, v{t+1}, v{t+2}")
        k.e(f"v_cndmask_b32 v{Q2[qb]}, v{t+2}, v{Q2[qb]}, vcc")
        for i in range(16): k.e(f"v_mov_b32 v{O[qb]+i}, 0")
    k.e("s_mov_b32 s59, 0")
    l2 = f"{name}_slow2"
    k.e(f"{l2}:")
    loads(True)
    for qb in range(2):
        k.e(f"{MF} {r16(Sx[qb])}, {r4(K1[0])}, {r4(Q1[qb])}, 0")
        k.e(f"{MF8} {r16(Sx[qb])}, {r2(K2r[0])}, {r2(Q2[qb])}, {r16(Sx[qb])}")
    k.e("s_nop 7"); k.e("s_nop 7")
    for qb in range(2):
        for i in range(16): k.e(f"v_exp_f32 v{Sx[qb]+i}, v{Sx[qb]+i}")
        k.e("s_nop 1")
        for j in range(8): k.e(f"v_cvt_pk_bf16_f32 v{P[qb]+j}, v{Sx[qb]+2*j}, v{Sx[qb]+2*j+1}")
    k.e("s_nop 1")
    for qb in range(2):
        k.e(f"{MF} {r16(O[qb])}, {r4(V0[0])}, {r4(P[qb])}, {r16(O[qb])}")
        k.e(f"{MF} {r16(O[qb])}, {r4(V1[0])}, {r4(P[qb]+4)}, {r16(O[qb])}")
    k.e("s_nop 7"); k.e("s_nop 7")
    k.e("s_add_u32 s59, s59, 3072"); k.e(f"s_cmp_lt_u32 s59, {64*3072}"); k.e(f"s_cbranch_scc1 {l2}")

ACC, SET0, XK, OMG = 16, 96, 240, 250
A5 = lambda r, c: ACC + (r * 5 + c) * 4

def ksplit_phase(k, vm, xoff, xsize, nksx, woff, wsize, nks, sc1, wait, first_zero, extra_after_issue=None, NSET=4, prio=None, verify=False,
                 XS=None, WS=None, VW=None, VX=None, w_preissued=False, only_w_prefetch=False, pace=None, rot=None, stepst=None):
    PRIO_B = globals()['PRIO_B'] if prio is None else prio
    XS = XS or (lambda s, r: SET0 + s * 36 + r * 4)
    WS = WS or (lambda s, c: SET0 + s * 36 + 16 + c * 4)
    VW = VW or [10, 11, 12, 13, 14]
    VX = VX or [6, 7, 8, 9]
    T = (nks + 3) // 4
    def soff(i, sreg):
        if rot is not None:
            k.e(f"s_add_u32 s{sreg}, s{rot}, {i}"); k.e(f"s_sub_u32 s47, s{sreg}, {T}"); k.e(f"s_cmp_ge_u32 s{sreg}, {T}"); k.e(f"s_cselect_b32 s{sreg}, s47, s{sreg}")
            k.e(f"s_lshl_b32 s{sreg}, s{sreg}, 2"); k.e(f"s_add_u32 s{sreg}, s{sreg}, s3")
            if 4 * T > nks:
                k.e(f"s_lshl_b32 s47, s{sreg}, 10"); k.e(f"s_cmp_lt_u32 s{sreg}, {nks}"); k.e(f"s_cselect_b32 s{sreg}, s47, {OOB}")
            else:
                k.e(f"s_lshl_b32 s{sreg}, s{sreg}, 10")
            return
        if 4 * i + 3 >= nks:
            k.e(f"s_add_u32 s{sreg}, s3, {4*i}")
            k.e(f"s_lshl_b32 s47, s{sreg}, 10"); k.e(f"s_cmp_lt_u32 s{sreg}, {nks}"); k.e(f"s_cselect_b32 s{sreg}, s47, {OOB}")
        else:
            k.e(f"s_add_u32 s{sreg}, s58, {4*i*1024}")
    ldW = lambda i, c: vm.issue(f"buffer_load_dwordx4 {r4(WS(i%NSET,c))}, v{VW[c]}, s[52:55], s59 offen", ("W", i))
    sc = " sc1" if sc1 else ""
    ldX = lambda i, r: vm.issue(f"buffer_load_dwordx4 {r4(XS(i%NSET,r))}, v{VX[r]}, s[48:51], s59 offen{sc}", ("X", i))
    npre = min(NSET, T)
    if not w_preissued:
        srd(k, 52, 4, woff, wsize)
        k.e(f"s_mul_i32 s46, s45, {nks*1024}"); k.e(f"v_add_u32 v{VW[0]}, s46, v3")
        for c in range(1, 5): k.e(f"v_add_u32 v{VW[c]}, {c*nks*1024}, v{VW[0]}")
        k.e("s_lshl_b32 s58, s3, 10")
    if only_w_prefetch:
        for i in range(npre):
            soff(i, 59)
            for c in range(5): ldW(i, c)
        return
    srd(k, 48, 4, xoff, xsize)
    for r in range(4):
        k.e(f"s_add_u32 s46, s3, {r}"); k.e("s_and_b32 s46, s46, 3"); k.e("s_lshl_b32 s47, s40, 2"); k.e("s_add_u32 s46, s46, s47")
        k.e(f"s_mul_i32 s46, s46, {nksx*1024}"); k.e(f"v_add_u32 v{VX[r]}, s46, v3")
    if wait:
        if not w_preissued:
            for i in range(npre):
                soff(i, 59)
                for c in range(5): ldW(i, c)
        wait(k); vm.drained()
        for i in range(npre):
            soff(i, 59)
            for r in range(4): ldX(i, r)
    else:
        for i in range(npre):
            soff(i, 59)
            for c in range(5): ldW(i, c)
            for r in range(4): ldX(i, r)
    if extra_after_issue: extra_after_issue()
    if PRIO_B: k.e(f"s_setprio {PRIO_B}")
    for i in range(T):
        vm.wait(("X", i))
        if stepst is not None: stepst.stamp(force=True)
        s = i % NSET; n = i + NSET
        if verify:
            chk = k.label("vchk"); okl = k.label("vok")
            k.e(f"s_mov_b32 s60, {SPIN_MAX}")
            k.e(f"{chk}:")
            xr = [XS(s, r) + q for r in range(4) for q in range(4)]
            k.e(f"v_max3_u32 v4, v{xr[0]}, v{xr[1]}, v{xr[2]}")
            for q in range(3, 15, 2): k.e(f"v_max3_u32 v4, v4, v{xr[q]}, v{xr[q+1]}")
            k.e(f"v_max_u32 v4, v4, v{xr[15]}")
            k.e("v_cmp_eq_u32 vcc, -1, v4"); k.e("s_cmp_eq_u64 vcc, 0"); k.e(f"s_cbranch_scc1 {okl}")
            soff(i, 61)
            for r in range(4): k.e(f"buffer_load_dwordx4 {r4(XS(s,r))}, v{VX[r]}, s[48:51], s61 offen sc1")
            k.e("s_waitcnt vmcnt(0)")
            k.e("s_sub_u32 s60, s60, 1"); k.e("s_cmp_lg_u32 s60, 0"); k.e(f"s_cbranch_scc1 {chk}")
            k.e(f"{okl}:")
        if n < T: soff(n, 59)
        for c in range(5):
            for r in range(4):
                cc = "0" if (i == 0 and first_zero) else r4(A5(r, c))
                if not (EXP_NOMF and i > 0): k.e(f"v_mfma_f32_16x16x32_bf16 {r4(A5(r,c))}, {r4(WS(s,c))}, {r4(XS(s,r))}, {cc}")
                if pace is not None: k.e(f"s_nop {pace}")
            if n < T: ldW(n, c)
        if n < T:
            for r in range(4): ldX(n, r)
    k.e(f"s_setprio {PRIO_E}")

XR = lambda ks: 36 + 4 * ks
WR = lambda c, kk: 116 + (c * 4 + kk) * 4
WBUF = lambda b, c: 196 + b * 20 + c * 4
def rowgemm_w(k, vm, woff, wsize):
    srd(k, 52, 4, woff, wsize)
    k.e(f"s_mul_i32 s46, s45, {20*1024}"); k.e("v_add_u32 v10, s46, v3")
    for c in range(1, 5): k.e(f"v_add_u32 v{10+c}, {c*20*1024}, v10")
    k.e(f"s_mov_b32 s59, {16*1024}")
    for c in range(5):
        for kk in range(4): vm.issue(f"buffer_load_dwordx4 {r4(WR(c,kk))}, v{10+c}, s[52:55], s59 offen offset:{kk*1024}", "wr")
    k.e("s_lshl_b32 s59, s3, 12")
    for c in range(5):
        k.e(f"s_add_u32 m0, s59, {c*16*1024}"); k.e("s_nop 0")
        for kk in range(4): vm.issue(f"buffer_load_dwordx4 v{10+c}, s[52:55], s59 offen offset:{kk*1024} lds", "wl")
def rowgemm_x(k, vm, xoff, xsize, sc1):
    srd(k, 48, 4, xoff, xsize)
    sc = " sc1" if sc1 else ""
    k.e(f"s_mul_i32 s61, s70, {20*1024}")
    for grp in (4, 0, 1, 2, 3):
        k.e(f"s_add_u32 s59, s61, {grp*4096}")
        for kk in range(4): vm.issue(f"buffer_load_dwordx4 {r4(XR(grp*4+kk))}, v3, s[48:51], s59 offen offset:{kk*1024}{sc}", ("x", grp))
def rowgemm_main(k, vm, first_zero, verify=False, prio=0, lds_barrier=True):
    MF = "v_mfma_f32_16x16x32_bf16"
    def check(grp):
        if not verify: return
        chk = k.label("vchk"); okl = k.label("vok")
        k.e(f"s_mov_b32 s60, {SPIN_MAX}")
        k.e(f"{chk}:")
        x0 = XR(grp * 4)
        k.e(f"v_max3_u32 v4, v{x0}, v{x0+1}, v{x0+2}")
        for q in range(3, 15, 2): k.e(f"v_max3_u32 v4, v4, v{x0+q}, v{x0+q+1}")
        k.e(f"v_max_u32 v4, v4, v{x0+15}")
        k.e("v_cmp_eq_u32 vcc, -1, v4"); k.e("s_cmp_eq_u64 vcc, 0"); k.e(f"s_cbranch_scc1 {okl}")
        k.e(f"s_add_u32 s59, s61, {grp*4096}")
        for kk in range(4): k.e(f"buffer_load_dwordx4 {r4(XR(grp*4+kk))}, v3, s[48:51], s59 offen offset:{kk*1024} sc1")
        k.e("s_waitcnt vmcnt(0)")
        k.e("s_sub_u32 s60, s60, 1"); k.e("s_cmp_lg_u32 s60, 0"); k.e(f"s_cbranch_scc1 {chk}")
        k.e(f"{okl}:")
    if lds_barrier:
        vm.wait("wl"); k.e("s_barrier")
    vm.wait("wr")
    if prio: k.e(f"s_setprio {prio}")
    rd = lambda ks: [f"ds_read_b128 {r4(WBUF(ks%2,c))}, v{15 if c == 4 else 3} offset:{(c*16+ks)*1024 - (65536 if c == 4 else 0)}" for c in range(5)]
    k.e("v_add_u32 v15, 65536, v3")
    for x in rd(0): k.e(x)
    vm.wait(("x", 4)); check(4)
    first = first_zero
    for kk in range(4):
        for c in range(5):
            k.e(f"{MF} {r4(A5(0,c))}, {r4(WR(c,kk))}, {r4(XR(16+kk))}, {'0' if first else r4(A5(0,c))}")
        first = False
    for ks in range(16):
        if ks % 4 == 0:
            vm.wait(("x", ks // 4)); check(ks // 4)
        k.e("s_waitcnt lgkmcnt(0)")
        nxt = rd(ks + 1) if ks + 1 < 16 else []
        for c in range(5):
            k.e(f"{MF} {r4(A5(0,c))}, {r4(WBUF(ks%2,c))}, {r4(XR(ks))}, {r4(A5(0,c))}")
            if nxt: k.e(nxt[c])

def wo_lds_prefetch(k, vm, VB=204):
    srd(k, 64, 4, L.WOP, L.SZ_WDD)
    if VB == 4:
        regs = [4, 8, 15, 252, 253]
    else: regs = [VB + c for c in range(5)]
    k.e(f"s_mul_i32 s46, s45, {20*1024}"); k.e(f"v_add_u32 v{regs[0]}, s46, v3")
    for c in range(1, 5): k.e(f"v_add_u32 v{regs[c]}, {c*20*1024}, v{regs[0]}")
    k.e(f"s_mul_i32 s63, s3, {20*1024}"); k.e("s_lshl_b32 s33, s3, 10")
    for t in range(4):
        for c in range(5):
            k.e(f"s_add_u32 m0, s63, {(t*5+c)*1024}"); k.e("s_nop 0")
            vm.issue(f"buffer_load_dwordx4 v{regs[c]}, s[64:67], s33 offen lds", "wo")
        k.e("s_add_u32 s33, s33, 4096")
def p4b_lds(k, vm, st):
    X = lambda t, r: 96 + t * 16 + r * 4
    W4_ = lambda c: 176 + 4 * c
    WB = lambda b, c: 196 + b * 20 + 4 * c
    MF = "v_mfma_f32_16x16x32_bf16"
    srd(k, 52, 4, L.WOP, L.SZ_WDD)
    k.e(f"s_mul_i32 s46, s45, {20*1024}"); k.e("v_add_u32 v10, s46, v3")
    k.e("s_add_u32 s59, s3, 16"); k.e("s_lshl_b32 s59, s59, 10")
    for c in range(5):
        if c: k.e(f"v_add_u32 v10, {20*1024}, v10")
        vm.issue(f"buffer_load_dwordx4 {r4(W4_(c))}, v10, s[52:55], s59 offen", "w4")
    srd(k, 48, 4, L.OF, L.SZ_XF)
    for r in range(4):
        k.e(f"s_add_u32 s46, s3, {r}"); k.e("s_and_b32 s46, s46, 3"); k.e("s_lshl_b32 s47, s40, 2"); k.e("s_add_u32 s46, s46, s47")
        k.e(f"s_mul_i32 s46, s46, {20*1024}"); k.e(f"v_add_u32 v{6+r}, s46, v3")
    k.e(f"s_mul_i32 s46, s3, {20*1024}"); k.e("v_add_u32 v14, s46, v3")
    rd = lambda t: [f"ds_read_b128 {r4(WB(t%2,c))}, v14 offset:{(t*5+c)*1024}" for c in range(5)]
    for x in rd(0): k.e(x)
    if SENT: emit_wait_sent(k, 236)
    else: emit_wait(k, FL_O)
    vm.drained()
    st.stamp()
    k.e(f"s_setprio {PRIO_E}")
    order = (4, 0, 1, 2, 3)
    for t in order:
        k.e("s_add_u32 s59, s3, %d" % (4 * t)); k.e("s_lshl_b32 s59, s59, 10")
        for r in range(4): vm.issue(f"buffer_load_dwordx4 {r4(X(t,r))}, v{6+r}, s[48:51], s59 offen sc1", ("X", t))
    for t in order:
        vm.wait(("X", t))
        if SENT:
            chk = k.label("vchk"); okl = k.label("vok")
            k.e(f"s_mov_b32 s60, {SPIN_MAX}")
            k.e(f"{chk}:")
            x0 = X(t, 0)
            k.e(f"v_max3_u32 v4, v{x0}, v{x0+1}, v{x0+2}")
            for q in range(3, 15, 2): k.e(f"v_max3_u32 v4, v4, v{x0+q}, v{x0+q+1}")
            k.e(f"v_max_u32 v4, v4, v{x0+15}")
            k.e("v_cmp_eq_u32 vcc, -1, v4"); k.e("s_cmp_eq_u64 vcc, 0"); k.e(f"s_cbranch_scc1 {okl}")
            k.e("s_add_u32 s59, s3, %d" % (4 * t)); k.e("s_lshl_b32 s59, s59, 10")
            for r in range(4): k.e(f"buffer_load_dwordx4 {r4(X(t,r))}, v{6+r}, s[48:51], s59 offen sc1")
            k.e("s_waitcnt vmcnt(0)")
            k.e("s_sub_u32 s60, s60, 1"); k.e("s_cmp_lg_u32 s60, 0"); k.e(f"s_cbranch_scc1 {chk}")
            k.e(f"{okl}:")
        if t < 4: k.e("s_waitcnt lgkmcnt(0)")
        nxt = rd(t + 1) if t < 3 else []
        for c in range(5):
            wreg = W4_(c) if t == 4 else WB(t % 2, c)
            for r in range(4): k.e(f"{MF} {r4(A5(r,c))}, {r4(wreg)}, {r4(X(t,r))}, {r4(A5(r,c))}")
            if nxt: k.e(nxt[c])
    k.e("s_barrier")

def l2_prefetch(k, vm, poff, psize, stride):
    n = psize // stride; per_wg = (n + 31) // 32; per_wave = (per_wg + 3) // 4; n_i = (per_wave + 63) // 64
    srd(k, 88, 4, poff, psize)
    k.e("s_sub_u32 s46, s2, 256"); k.e("s_lshr_b32 s46, s46, 3"); k.e("s_lshl_b32 s46, s46, 2"); k.e("s_add_u32 s46, s46, s3")
    k.e(f"s_mul_i32 s46, s46, {per_wave*stride}")
    k.e(f"v_mul_u32_u24 v4, {stride}, v2")
    for i in range(n_i):
        if (i + 1) * 64 > per_wave:
            k.e(f"v_cmp_gt_u32 vcc, {per_wave - i*64}, v2"); k.e(f"v_mov_b32 v5, {OOB}"); k.e("v_cndmask_b32 v4, v5, v4, vcc")
        vm.issue(f"buffer_load_dword v251, v4, s[88:91], s46 offen", "pf")
        if i + 1 < n_i: k.e(f"s_add_u32 s46, s46, {64*stride}")

def reduce4(k, pre=None):
    blk = 5 * 1024
    for j in range(1, 4):
        k.e(f"s_add_u32 s46, s3, {j}"); k.e("s_and_b32 s46, s46, 3")
        k.e(f"s_mul_i32 s46, s46, {3*blk}"); k.e(f"s_add_u32 s46, s46, {(j-1)*blk}")
        k.e("v_add_u32 v4, s46, v3")
        for c in range(5): k.e(f"ds_write_b128 v4, {r4(A5(j,c))} offset:{c*1024}")
    if pre: pre()
    k.e(f"s_mul_i32 s46, s3, {3*blk}"); k.e("v_add_u32 v5, s46, v3")
    k.e("s_waitcnt lgkmcnt(0)"); k.e("s_barrier")
    for j in range(1, 4):
        for c in range(5): k.e(f"ds_read_b128 {r4(A5(j,c))}, v5 offset:{((j-1)*5 + c)*1024}")
    for j in range(1, 4):
        k.e(f"s_waitcnt lgkmcnt({(3-j)*5})")
        for c in range(5):
            a, t = A5(0, c), A5(j, c)
            k.e(f"v_pk_add_f32 v[{a}:{a+1}], v[{a}:{a+1}], v[{t}:{t+1}]"); k.e(f"v_pk_add_f32 v[{a+2}:{a+3}], v[{a+2}:{a+3}], v[{t+2}:{t+3}]")

def p3_params(k):
    k.e("s_sub_u32 s46, s41, 6"); k.e("s_max_i32 s95, s46, 0")
    k.e("s_mul_i32 s92, s41, 14"); k.e("s_lshl_b32 s46, s95, 1"); k.e("s_sub_u32 s92, s92, s46")
    k.e("s_lshl_b32 s46, s3, 2"); k.e("s_cmp_eq_u32 s3, 3"); k.e("s_cselect_b32 s46, 11, s46")
    k.e("s_mul_i32 s47, s3, 3"); k.e("s_cmp_ge_u32 s41, 6"); k.e("s_cselect_b32 s46, s47, s46")
    k.e("s_add_u32 s45, s92, s46")
    k.e("s_cmp_lt_u32 s3, 2"); k.e("s_cselect_b32 s93, 4, 3"); k.e("s_cmp_ge_u32 s41, 6"); k.e("s_cselect_b32 s93, 3, s93")

def emit_bchain(k, st):
    decode_gj(k, 256)
    k.e("s_waitcnt lgkmcnt(0)")
    srd(k, 28, 4, L.FLAGS, 4096)
    k.e("v_cmp_gt_u32 s[38:39], 32, v2")
    vm = VM(k)
    if ROT:
        k.e("s_and_b32 s46, s40, 3")
        k.e("s_add_u32 s30, s46, s41") if False else None
        k.e("s_add_u32 s47, s46, s41"); k.e("s_mul_i32 s36, s47, 52"); k.e("s_lshr_b32 s36, s36, 8"); k.e("s_mul_i32 s36, s36, 5"); k.e("s_sub_u32 s100, s47, s36")
        k.e("s_mul_i32 s47, s46, 14"); k.e("s_mul_i32 s36, s41, 7"); k.e("s_add_u32 s47, s47, s36"); k.e("s_lshr_b32 s47, s47, 2")
        k.e("s_sub_u32 s36, s47, 14"); k.e("s_cmp_ge_u32 s47, 14"); k.e("s_cselect_b32 s101, s36, s47")
    if PFK2:
        srd(k, 64, 4, L.W2P, L.SZ_WDD); srd(k, 72, 4, L.HS, L.SZ_XF)
        k.e("s_sub_u32 s46, s2, 256"); k.e("s_lshr_b32 s46, s46, 3"); k.e("s_mul_i32 s46, s46, 200"); k.e("s_mul_i32 s47, s3, 50"); k.e("s_add_u32 s46, s46, s47"); k.e("s_lshl_b32 s46, s46, 7")
        k.e("v_lshlrev_b32 v4, 7, v2"); k.e(f"v_mov_b32 v5, {OOB}"); k.e("v_cmp_gt_u32 vcc, 50, v2"); k.e("v_cndmask_b32 v6, v5, v4, vcc")
        k.e("buffer_load_dword v252, v6, s[64:67], s46 offen")
        k.e(f"s_mul_i32 s46, s40, {80*1024}"); k.e("s_lshl_b32 s47, s41, 2"); k.e("s_add_u32 s47, s47, s3"); k.e("s_mul_i32 s47, s47, 2560"); k.e("s_add_u32 s46, s46, s47")
        k.e("v_cmp_gt_u32 vcc, 20, v2"); k.e("v_cndmask_b32 v6, v5, v4, vcc")
        k.e("buffer_load_dword v252, v6, s[72:75], s46 offen")
    k.e("s_mul_i32 s45, s41, 5")
    k.e("s_lshl_b32 s70, s40, 2"); k.e("s_add_u32 s70, s70, s3")
    def extra2():
        srd(k, 84, 4, L.G, 8192)
        k.e("s_lshl_b32 s47, s70, 4"); k.e("v_and_b32 v5, 15, v2"); k.e("v_add_u32 v5, s47, v5"); k.e("v_lshlrev_b32 v4, 2, v5")
        if RAWX:
            srd(k, 76, 32, 0, 2048 * 1280)
            k.e("v_mul_u32_u24 v5, 1280, v5"); k.e("v_lshrrev_b32 v15, 4, v2"); k.e("v_lshlrev_b32 v15, 3, v15"); k.e("v_add_u32 v5, v5, v15")
            k.e("s_mul_i32 s89, s41, 160")
            for c in range(5): vm.issue(f"buffer_load_dwordx2 v[{XK+2*c}:{XK+2*c+1}], v5, s[76:79], s89 offen offset:{c*32}", "xr")
        else:
            srd(k, 76, 4, L.XF, L.SZ_XF)
            for c in range(5):
                k.e(f"s_add_u32 s88, s45, {c}"); gen1.f16_soff(k, 89, 70, 88, 20)
                vm.issue(f"buffer_load_dwordx2 v[{XK+2*c}:{XK+2*c+1}], v3, s[76:79], s89 offen", "xr")
        vm.issue(f"buffer_load_dword v{OMG}, v4, s[84:87], 0 offen", "xr")
        if SENT:
            srd(k, 64, 4, L.OF, L.SZ_XF)
            for q in range(4): k.e(f"v_mov_b32 v{204+q}, -1")
            k.e("s_lshl_b32 s46, s40, 2"); k.e("s_add_u32 s46, s46, s3"); k.e("s_mul_i32 s46, s46, 20")
            k.e("s_lshl_b32 s47, s41, 1"); k.e("s_add_u32 s47, s47, s46"); k.e("s_lshl_b32 s47, s47, 10")
            vm.issue("buffer_store_dwordx4 v[204:207], v3, s[64:67], s47 offen sc1", "se")
            vm.issue("buffer_store_dwordx4 v[204:207], v3, s[64:67], s47 offen offset:1024 sc1", "se")
            k.e("s_lshr_b32 s47, s41, 1"); k.e("s_add_u32 s47, s47, 16"); k.e("s_add_u32 s47, s47, s46"); k.e("s_lshl_b32 s47, s47, 10")
            k.e("s_and_b32 s46, s41, 1"); k.e("s_lshl_b32 s46, s46, 9"); k.e("s_add_u32 s47, s47, s46")
            k.e(f"v_mov_b32 v4, {OOB}"); k.e("v_cndmask_b32 v4, v4, v3, s[38:39]")
            vm.issue("buffer_store_dwordx4 v[204:207], v4, s[64:67], s47 offen sc1", "se")
            k.e("s_nop 1")
        if PFS:
            l2_prefetch(k, vm, L.W3P, L.SZ_W3, PFS)
            if PFALL: l2_prefetch(k, vm, L.W4P, L.SZ_W4, PFS)
    if ROWP2:
        rowgemm_x(k, vm, L.HS, L.SZ_XF, False)
        rowgemm_w(k, vm, L.W2P, L.SZ_WDD)
        extra2()
        rowgemm_main(k, vm, True, prio=PRIO_P2)
        k.e(f"s_setprio {PRIO_E}")
    else:
        ksplit_phase(k, vm, L.HS, L.SZ_XF, 20, L.W2P, L.SZ_WDD, 20, False, None, True, extra2, NSET=NSET2, prio=PRIO_P2, pace=PACE2, rot=100 if ROT == 2 else None)
    st.stamp()
    k.e("s_setprio 0")
    WS3 = lambda s, c: 96 + s * 16 + c * 4
    NS3 = 4 if SPLITST else NS3_
    p3_params(k)
    srd(k, 52, 4, L.W3P, L.SZ_W3)
    k.e(f"s_mul_i32 s46, s45, {20*1024}"); k.e("v_add_u32 v10, s46, v3")
    for c in range(1, 4): k.e(f"v_add_u32 v{10+c}, {c*20*1024}, v10")
    k.e("s_cmp_eq_u32 s93, 4"); k.e("s_cselect_b64 vcc, -1, 0")
    k.e(f"v_mov_b32 v9, {OOB}"); k.e("v_cndmask_b32 v13, v9, v13, vcc")
    ldW3 = lambda i, c: vm.issue(f"buffer_load_dwordx4 {r4(WS3(i%NS3,c))}, v{10+c}, s[52:55], s59 offen", ("W3", i))
    k.e(f"s_setprio {PRIO_E}")
    T = 168
    def pre2():
        srd(k, 72, 4, L.X1F, L.SZ_XF); srd(k, 80, 4, L.X1ST, 2048 * 64)
        k.e(f"s_mul_i32 s71, s70, {20*1024}"); k.e(f"v_add_u32 v6, s71, v3")
        k.e(f"v_mov_b32 v7, {OOB}"); k.e("v_cndmask_b32 v7, v7, v6, s[38:39]")
        vm.wait("xr")
        k.e(f"v_sub_f32 v{OMG}, 1.0, v{OMG}")
        for c in range(5):
            xr = XK + 2 * c; u = T + 24 + 4 * c
            k.e(f"v_lshlrev_b32 v{u}, 16, v{xr}"); k.e(f"v_and_b32 v{u+1}, 0xffff0000, v{xr}")
            k.e(f"v_lshlrev_b32 v{u+2}, 16, v{xr+1}"); k.e(f"v_and_b32 v{u+3}, 0xffff0000, v{xr+1}")
        k.e("s_lshl_b32 s47, s70, 4"); k.e("v_and_b32 v14, 15, v2"); k.e("v_add_u32 v14, s47, v14")
        k.e("v_lshlrev_b32 v14, 6, v14"); k.e("s_lshl_b32 s89, s41, 3")
        k.e("v_cmp_gt_u32 vcc, 16, v2"); k.e(f"v_mov_b32 v9, {OOB}"); k.e("v_cndmask_b32 v14, v9, v14, vcc")
    if ROWP2:
        pre2(); k.e("s_nop 4")
    else: reduce4(k, pre2)
    if FINE: st.stamp()
    for c in range(5):
        a = A5(0, c); u = T + 24 + 4 * c
        k.e(f"v_pk_add_f32 v[{a}:{a+1}], v[{a}:{a+1}], v[{u}:{u+1}]"); k.e(f"v_pk_add_f32 v[{a+2}:{a+3}], v[{a+2}:{a+3}], v[{u+2}:{u+3}]")
    for c in range(5):
        a = A5(0, c)
        k.e(f"v_cvt_pk_bf16_f32 v{XK+2*c}, v{a}, v{a+1}"); k.e(f"v_cvt_pk_bf16_f32 v{XK+2*c+1}, v{a+2}, v{a+3}")
    store_t80(k, XK, 6, 7, 72, 41, 212, SC)
    k.e("s_mov_b32 s71, 0x3f803f80")
    k.e(f"v_dot2_f32_bf16 v216, v{XK}, s71, 0"); k.e(f"v_dot2_f32_bf16 v217, v{XK}, v{XK}, 0")
    for q in range(1, 10):
        k.e(f"v_dot2_f32_bf16 v216, v{XK+q}, s71, v216"); k.e(f"v_dot2_f32_bf16 v217, v{XK+q}, v{XK+q}, v217")
    allreduce16(k, "v_add_f32", 216, 218); allreduce16(k, "v_add_f32", 217, 219)
    k.e(f"buffer_store_dwordx2 v[216:217], v14, s[80:83], s89 offen{SC}")
    k.e("s_setprio 0")
    XB = lambda s, r: 192 + s * 16 + r * 4
    CN = lambda r: 224 + 4 * r
    A3 = lambda r, c: ACC + (r * 4 + c) * 4
    if FINE: st.stamp()
    def w3pf():
        srd(k, 80, 4, L.CS3P, 20 * 1728 * 4)
        k.e("v_lshlrev_b32 v4, 2, v2"); k.e("s_lshl_b32 s89, s45, 6")
        for ks in range(20):
            vm.issue(f"buffer_load_dword v{220+ks}, v4, s[80:83], s89 offen", "cp")
            k.e(f"s_add_u32 s89, s89, {1728*4}")
        for i in range(NS3):
            k.e(f"s_mov_b32 s59, {i*1024}")
            for c in range(4): ldW3(i, c)
    if OVL:
        vm.drained()
        w3pf()
        emit_publish(k, FL_X1, FL_CL if SENT else None, allow=len(vm.q))
        if FINE: st.stamp()
    else:
        if X1S: k.e("s_barrier")
        else: emit_publish(k, FL_X1, FL_CL if SENT else None)
        if FINE: st.stamp()
        vm.drained()
        w3pf()
    if not FINE: st.stamp()
    srd(k, 48, 4, L.X1F, L.SZ_XF); srd(k, 76, 4, L.X1ST, 2048 * 64); srd(k, 84, 4, L.G, 8192)
    if X1S:
        k.e("v_lshrrev_b32 v9, 4, v2"); k.e("v_lshlrev_b32 v8, 4, v9")
        k.e("s_lshl_b32 s46, s40, 6"); k.e("v_and_b32 v5, 15, v2"); k.e("v_add_u32 v5, s46, v5"); k.e("v_lshlrev_b32 v6, 6, v5"); k.e("v_add_u32 v6, v6, v8")
        lab = k.label("xp"); done = k.label("xd")
        k.e(f"s_mov_b32 s47, {SPIN_MAX}")
        k.e(f"{lab}:")
        for r in range(4): k.e(f"buffer_load_dwordx4 {r4(192+4*r)}, v6, s[76:79], 0 offen offset:{r*1024} sc1")
        k.e("s_waitcnt vmcnt(0)")
        k.e("v_max3_u32 v4, v192, v193, v194")
        for q in range(195, 207, 2): k.e(f"v_max3_u32 v4, v4, v{q}, v{q+1}")
        k.e("v_max_u32 v4, v4, v207")
        k.e("v_cmp_eq_u32 vcc, -1, v4"); k.e("s_cmp_eq_u64 vcc, 0"); k.e(f"s_cbranch_scc1 {done}")
        k.e("s_sub_u32 s47, s47, 1"); k.e("s_cmp_lg_u32 s47, 0"); k.e(f"s_cbranch_scc1 {lab}")
        k.e(f"{done}:")
        vm.drained()
    else:
        emit_wait(k, FL_X1); vm.drained()
    st.stamp()
    SR = lambda ks: (ACC + 4 * ks) if (ks < 10 or not SPLITST) else ((80 + 4 * (ks - 10)) if ks < 14 else (160 + 4 * (ks - 14)))
    def xload(ks):
        k.e(f"s_mul_i32 s59, s70, {20*1024}") if ks % 4 == 0 or ks == 10 else None
        if (ks % 4 == 0 or ks == 10) and ks >= 4: k.e(f"s_add_u32 s59, s59, {(ks//4)*4096}")
        vm.issue(f"buffer_load_dwordx4 {r4(SR(ks))}, v3, s[48:51], s59 offen offset:{(ks%4)*1024} sc1", "xs" if (ks < 10 or not SPLITST) else "xs2")
    for ks in range(10 if SPLITST else 20): xload(ks)
    k.e("v_lshrrev_b32 v9, 4, v2"); k.e("v_lshlrev_b32 v8, 4, v9")
    for r in range(4):
        k.e("s_lshl_b32 s46, s40, 6"); k.e(f"s_add_u32 s46, s46, {16*r}"); k.e("v_and_b32 v5, 15, v2"); k.e("v_add_u32 v5, s46, v5")
        k.e("v_lshlrev_b32 v6, 6, v5"); k.e("v_add_u32 v6, v6, v8")
        if not X1S: vm.issue(f"buffer_load_dwordx4 {r4(192+4*r)}, v6, s[76:79], 0 offen sc1", "st")
        k.e("v_lshlrev_b32 v6, 2, v5")
        vm.issue(f"buffer_load_dword v{208+r}, v6, s[84:87], 0 offen", "st")
    if SPLITST:
        for ks in range(10, 20): xload(ks)
    k.e(f"s_mul_i32 s46, s3, {20*1024}"); k.e("v_add_u32 v4, s46, v3")
    vm.wait("xs")
    k.e(f"s_setprio {PRIO_E}")
    if X1S:
        chk = k.label("xv"); okl = k.label("xo")
        k.e(f"s_mov_b32 s47, {SPIN_MAX}")
        k.e(f"{chk}:")
        k.e(f"v_max3_u32 v5, v{ACC}, v{ACC+1}, v{ACC+2}"); k.e(f"v_max3_u32 v6, v{ACC+3}, v{ACC+4}, v{ACC+5}")
        for q in range(6, 78, 4):
            k.e(f"v_max3_u32 v5, v5, v{ACC+q}, v{ACC+q+1}"); k.e(f"v_max3_u32 v6, v6, v{ACC+q+2}, v{ACC+q+3}")
        k.e(f"v_max3_u32 v5, v5, v{ACC+78}, v{ACC+79}"); k.e("v_max_u32 v5, v5, v6")
        k.e("v_cmp_eq_u32 vcc, -1, v5"); k.e("s_cmp_eq_u64 vcc, 0"); k.e(f"s_cbranch_scc1 {okl}")
        for ks in range(20):
            if ks % 4 == 0:
                k.e(f"s_mul_i32 s59, s70, {20*1024}")
                if ks: k.e(f"s_add_u32 s59, s59, {(ks//4)*4096}")
            k.e(f"buffer_load_dwordx4 {r4(ACC+4*ks)}, v3, s[48:51], s59 offen offset:{(ks%4)*1024} sc1")
        k.e("s_waitcnt vmcnt(0)")
        k.e("s_sub_u32 s47, s47, 1"); k.e("s_cmp_lg_u32 s47, 0"); k.e(f"s_cbranch_scc1 {chk}")
        k.e(f"{okl}:")
    for ks in range(10 if SPLITST else 20): k.e(f"ds_write_b128 v4, {r4(SR(ks))} offset:{ks*1024}")
    vm.wait("st")
    for q in range(1, 10): k.e(f"v_add_f32 v220, v220, v{220+q}"); k.e(f"v_add_f32 v230, v230, v{230+q}")
    k.e("v_add_f32 v251, v220, v230")
    for r in range(4):
        s_ = 192 + 4 * r; c_ = CN(r)
        k.e(f"v_add_f32 v{s_}, v{s_}, v{s_+2}"); k.e(f"v_add_f32 v{s_+1}, v{s_+1}, v{s_+3}")
        allreduce16(k, "v_add_f32", s_, s_ + 2); allreduce16(k, "v_add_f32", s_ + 1, s_ + 3)
        k.e(f"v_mul_f32 v{c_}, {f32bits(-1/640)}, v{s_}"); k.e(f"v_mul_f32 v{s_+1}, {f32bits(1/640)}, v{s_+1}")
        k.e(f"v_fma_f32 v{s_+1}, -v{c_}, v{c_}, v{s_+1}"); k.e(f"v_add_f32 v{s_+1}, {f32bits(1e-5)}, v{s_+1}"); k.e(f"v_rsq_f32 v{s_+1}, v{s_+1}")
        k.e(f"v_sub_f32 v{s_+2}, 1.0, v{208+r}")
        k.e(f"v_mul_f32 v{s_+3}, v{s_+1}, v{s_+1}")
        k.e(f"v_mul_f32 v{c_+2}, {f32bits(GELU_C2)}, v{s_+1}")
        k.e(f"v_mul_f32 v{c_+3}, v{s_+1}, v{s_+2}")
        k.e(f"v_mul_f32 v{s_+3}, v{s_+3}, v{s_+1}")
        k.e(f"v_mul_f32 v{c_+1}, {f32bits(GELU_C1)}, v{s_+3}")
    k.e("v_mov_b32 v7, v4")
    k.e("v_mov_b32 v14, v3"); k.e(f"v_add_u32 v15, {60*1024}, v3")
    k.e("s_waitcnt lgkmcnt(0)"); k.e("s_barrier")
    def rdX(i, r):
        o = (r * 20 + i) * 1024
        return f"ds_read_b128 {r4(XB(i%2,r))}, v14 offset:{o}" if r < 3 else f"ds_read_b128 {r4(XB(i%2,r))}, v15 offset:{o-60*1024}"
    if FINE: st.stamp()
    k.e(f"s_setprio {PRIO_P3}")
    for r in range(4): k.e(rdX(0, r))
    k.e("s_cmp_eq_u32 s93, 4"); k.e("s_cselect_b64 vcc, -1, 0")
    CSR = None
    for i in range(20):
        if SPLITST and i == 4:
            vm.wait("xs2")
            k.e("v_mov_b32 v6, v4") if False else None
            for ks in range(10, 20): k.e(f"ds_write_b128 v7, {r4(SR(ks))} offset:{ks*1024}")
        vm.wait(("W3", i))
        k.e("s_waitcnt lgkmcnt(0)")
        if SPLITST and i == 9: k.e("s_barrier")
        n = i + NS3
        if n < 20: k.e(f"s_mov_b32 s59, {n*1024}")
        for c in range(4):
            if c == 3:
                lab = k.label("sk"); k.e(f"s_cbranch_vccz {lab}")
            for r in range(4):
                cc = "0" if i == 0 else r4(A3(r, c))
                if not (EXP_NOMF and i > 0): k.e(f"v_mfma_f32_16x16x32_bf16 {r4(A3(r,c))}, {r4(WS3(i%NS3,c))}, {r4(XB(i%2,r))}, {cc}")
                if PACE3 is not None: k.e(f"s_nop {PACE3}")
                if c == 0 and i + 1 < 20: k.e(rdX(i + 1, r))
            if c == 3: k.e(f"{lab}:")
            if n < 20: ldW3(n, c)
        if RAWX and i in (14, 15):
            CSR = 160 if (SPLITST or NS3 != 6) else WS3(14 % NS3, 0)
            for c in (0, 1) if i == 14 else (2, 3):
                for q in range(4): k.e(f"ds_bpermute_b32 v{CSR+4*c+q}, v8, v251 offset:{(16*c+q)*4}")
        if i == 14:
            CSR = 160 if (SPLITST or NS3 != 6) else WS3(14 % NS3, 0)
            if RAWX:
                pass
            else:
                srd(k, 80, 4, L.CS3, 1728 * 4)
                k.e("s_lshl_b32 s71, s45, 6")
                for c in range(4): vm.issue(f"buffer_load_dwordx4 {r4(CSR+4*c)}, v8, s[80:83], s71 offen offset:{c*64}", "cs")
    st.stamp()
    if OVL: k.e("s_barrier")
    k.e("s_setprio 0")
    k.e("s_mov_b32 s91, s45")
    k.e("s_mul_i32 s45, s41, 5")
    WS4 = lambda s, c: (96 + 4 * (s * 5 + c)) if (s * 5 + c) < 8 else (144 + 4 * (s * 5 + c - 8))
    XS4 = lambda s, r: (192 + 16 * s + 4 * r) if s < 3 else (128 + 4 * r)
    VW4 = [5, 6, 7, 9, 14]
    if EARLY4: ksplit_phase(k, vm, L.HF, L.SZ_HF, 54, L.W4P, L.SZ_W4, 54, True, None, True, WS=WS4, XS=XS4, VW=VW4, VX=[10, 11, 12, 13], only_w_prefetch=True)
    k.e(f"s_setprio {PRIO_E}")
    srd(k, 72, 4, L.HF, L.SZ_HF)
    k.e("s_mul_i32 s88, s41, 7"); k.e("s_sub_u32 s88, s88, s95")
    k.e("s_lshl_b32 s46, s3, 1"); k.e("s_cmp_eq_u32 s3, 3"); k.e("s_cselect_b32 s46, 5, s46")
    k.e("s_cmp_ge_u32 s41, 6"); k.e("s_cselect_b32 s46, s3, s46")
    k.e("s_add_u32 s89, s88, s46"); k.e("s_lshl_b32 s89, s89, 10")
    k.e("s_lshr_b32 s46, s3, 1"); k.e("s_add_u32 s46, s46, 4"); k.e("s_cmp_ge_u32 s41, 6"); k.e("s_cselect_b32 s46, s46, 6")
    k.e("s_add_u32 s90, s88, s46"); k.e("s_lshl_b32 s90, s90, 10"); k.e("s_and_b32 s46, s3, 1"); k.e("s_lshl_b32 s46, s46, 9"); k.e("s_add_u32 s90, s90, s46")
    TT = 192; ONE = 208; PK = 212
    k.e(f"v_mov_b32 v{ONE}, 1.0"); k.e(f"v_mov_b32 v{ONE+1}, 1.0")
    k.e("s_waitcnt lgkmcnt(0)")
    p2 = lambda x: f"v[{x}:{x+1}]"
    for r in range(4):
        c_ = CN(r)
        regs = [A3(r, c) for c in range(4)]
        bc = lambda x: p2(x & ~1)
        sel = lambda x: (x & 1)
        def bsel(x, pos, n=3):
            lo = [0] * n; hi = [1] * n
            lo[pos] = x & 1; hi[pos] = x & 1
            return f"op_sel:[{','.join(map(str,lo))}] op_sel_hi:[{','.join(map(str,hi))}]"
        for c, a in enumerate(regs):
            for h in (0, 2): k.e(f"v_pk_fma_f32 {p2(a+h)}, {bc(c_)}, {p2(CSR+4*c+h)}, {p2(a+h)} {bsel(c_,0)}")
        for c, a in enumerate(regs):
            for h in (0, 2): k.e(f"v_pk_mul_f32 {p2(TT+4*c+h)}, {p2(a+h)}, {p2(a+h)}")
        for c, a in enumerate(regs):
            for h in (0, 2):
                k.e(f"v_pk_fma_f32 {p2(TT+4*c+h)}, {p2(TT+4*c+h)}, {bc(c_+1)}, {bc(c_+2)} op_sel:[0,{(c_+1)&1},{(c_+2)&1}] op_sel_hi:[1,{(c_+1)&1},{(c_+2)&1}]")
        for c, a in enumerate(regs):
            for h in (0, 2): k.e(f"v_pk_mul_f32 {p2(TT+4*c+h)}, {p2(TT+4*c+h)}, {p2(a+h)}")
        for c in range(4):
            for q in range(4): k.e(f"v_exp_f32 v{TT+4*c+q}, v{TT+4*c+q}")
        for c, a in enumerate(regs):
            for h in (0, 2): k.e(f"v_pk_mul_f32 {p2(a+h)}, {p2(a+h)}, {bc(c_+3)} {bsel(c_+3,1,2)}")
        for c in range(4):
            for h in (0, 2): k.e(f"v_pk_add_f32 {p2(TT+4*c+h)}, {p2(TT+4*c+h)}, {p2(ONE)}")
        for c in range(4):
            for q in range(4): k.e(f"v_rcp_f32 v{TT+4*c+q}, v{TT+4*c+q}")
        for c, a in enumerate(regs):
            for h in (0, 2): k.e(f"v_pk_mul_f32 {p2(a+h)}, {p2(a+h)}, {p2(TT+4*c+h)}")
        pk = PK + 8 * (r % 2)
        for c, a in enumerate(regs):
            k.e(f"v_cvt_pk_bf16_f32 v{pk+2*c}, v{a}, v{a+1}"); k.e(f"v_cvt_pk_bf16_f32 v{pk+2*c+1}, v{a+2}, v{a+3}")
        k.e("s_lshl_b32 s46, s40, 2"); k.e(f"s_add_u32 s46, s46, {r}"); k.e(f"s_mul_i32 s46, s46, {54*1024}"); k.e("v_add_u32 v12, s46, v3")
        k.e(f"buffer_store_dwordx4 {r4(pk)}, v12, s[72:75], s89 offen{SC}")
        l3 = k.label("c3"); le = k.label("ce")
        k.e(f"s_cbranch_vccz {l3}")
        k.e(f"buffer_store_dwordx4 {r4(pk+4)}, v12, s[72:75], s89 offen offset:1024{SC}")
        k.e(f"s_branch {le}")
        k.e(f"{l3}:")
        k.e(f"v_mov_b32 v{pk+6}, v{pk+4}"); k.e(f"v_mov_b32 v{pk+7}, v{pk+5}")
        k.e(f"v_mov_b32 v13, {OOB}"); k.e("v_cndmask_b32 v13, v13, v12, s[38:39]")
        k.e(f"v_permlane32_swap_b32 v{pk+4}, v{pk+6}"); k.e(f"v_permlane32_swap_b32 v{pk+5}, v{pk+7}")
        k.e(f"buffer_store_dwordx4 {r4(pk+4)}, v13, s[72:75], s90 offen{SC}")
        k.e(f"{le}:")
        k.e("s_nop 1")
    k.e("s_setprio 0")
    if FINE: st.stamp()
    if OVL:
        vm.drained()
        ksplit_phase(k, vm, L.HF, L.SZ_HF, 54, L.W4P, L.SZ_W4, 54, True, None, True, NSET=NSET4, WS=WS4, XS=XS4, VW=VW4, VX=[10, 11, 12, 13], only_w_prefetch=True, rot=101 if ROT else None)
        if WOLDS == 1: wo_lds_prefetch(k, vm)
        emit_publish(k, FL_H, allow=len(vm.q))
    else:
        emit_publish(k, FL_H); vm.drained()
    st.stamp()
    def waitH(kk):
        if WOLDS == 1 and not OVL: wo_lds_prefetch(kk, vm)
        emit_wait(kk, FL_H)
    def extra4():
        if WOLDS == 2: wo_lds_prefetch(k, vm, 4)
    ksplit_phase(k, vm, L.HF, L.SZ_HF, 54, L.W4P, L.SZ_W4, 54, True, waitH, True, extra_after_issue=extra4, NSET=NSET4, prio=PRIO_P4, WS=WS4, XS=XS4, VW=VW4, VX=[10, 11, 12, 13], w_preissued=(EARLY4 or OVL), pace=PACE4, rot=101 if ROT else None, stepst=st if STEP4 else None)
    k.e("s_setprio 0")
    st.stamp()
    if ROWP4:
        T = 196
        def pre4():
            srd(k, 72, 6, 0, 2048 * 1280)
            k.e("s_lshl_b32 s47, s70, 4"); k.e("v_and_b32 v14, 15, v2"); k.e("v_add_u32 v14, s47, v14")
            k.e("v_mul_u32_u24 v8, 1280, v14"); k.e("v_lshrrev_b32 v9, 4, v2"); k.e("v_lshlrev_b32 v9, 3, v9"); k.e("v_add_u32 v8, v8, v9")
            k.e("s_lshl_b32 s71, s45, 5")
            for c in range(5):
                xr = XK + 2 * c; u = T + 4 * c
                k.e(f"v_lshlrev_b32 v{u}, 16, v{xr}"); k.e(f"v_and_b32 v{u+1}, 0xffff0000, v{xr}")
                k.e(f"v_lshlrev_b32 v{u+2}, 16, v{xr+1}"); k.e(f"v_and_b32 v{u+3}, 0xffff0000, v{xr+1}")
        k.e(f"s_setprio {PRIO_E}")
        reduce4(k, pre4)
        for c in range(5):
            a = A5(0, c); u = T + 4 * c
            for h in (0, 2):
                k.e(f"v_pk_fma_f32 v[{a+h}:{a+h+1}], v[{OMG}:{OMG+1}], v[{u+h}:{u+h+1}], v[{a+h}:{a+h+1}] op_sel:[0,0,0] op_sel_hi:[0,1,1]")
        k.e("s_setprio 0")
        k.e("s_barrier")
        rowgemm_w(k, vm, L.WOP, L.SZ_WDD)
        vm.wait("wl"); k.e("s_barrier")
        if SENT: emit_wait_sent(k)
        else: emit_wait(k, FL_O)
        vm.drained()
        st.stamp()
        rowgemm_x(k, vm, L.OF, L.SZ_XF, True)
        rowgemm_main(k, vm, False, verify=SENT, prio=PRIO_E, lds_barrier=False)
        T = 116
        k.e("s_nop 4")
        for c in range(5):
            a = A5(0, c)
            k.e(f"v_cvt_pk_bf16_f32 v{T+2*c}, v{a}, v{a+1}"); k.e(f"v_cvt_pk_bf16_f32 v{T+2*c+1}, v{a+2}, v{a+3}")
            k.e(f"buffer_store_dwordx2 v[{T+2*c}:{T+2*c+1}], v8, s[72:75], s71 offen offset:{c*32}")
    else:
        def waitO(kk):
            if SENT: emit_wait_sent(kk)
            else: emit_wait(kk, FL_O)
            st.stamp()
        if WOLDS: p4b_lds(k, vm, st)
        else: ksplit_phase(k, vm, L.OF, L.SZ_XF, 20, L.WOP, L.SZ_WDD, 20, True, waitO, False, prio=PRIO_E, verify=SENT, NSET=3 if SENT else 4)
        T = SET0
        def pre4():
            srd(k, 72, 6, 0, 2048 * 1280)
            k.e("s_lshl_b32 s47, s70, 4"); k.e("v_and_b32 v14, 15, v2"); k.e("v_add_u32 v14, s47, v14")
            k.e("v_mul_u32_u24 v12, 1280, v14"); k.e("v_lshrrev_b32 v13, 4, v2"); k.e("v_lshlrev_b32 v13, 3, v13"); k.e("v_add_u32 v12, v12, v13")
            k.e("s_lshl_b32 s71, s45, 5")
            for c in range(5):
                xr = XK + 2 * c; u = T + 24 + 4 * c
                k.e(f"v_lshlrev_b32 v{u}, 16, v{xr}"); k.e(f"v_and_b32 v{u+1}, 0xffff0000, v{xr}")
                k.e(f"v_lshlrev_b32 v{u+2}, 16, v{xr+1}"); k.e(f"v_and_b32 v{u+3}, 0xffff0000, v{xr+1}")
        reduce4(k, pre4)
        for c in range(5):
            a = A5(0, c); u = T + 24 + 4 * c
            for h in (0, 2):
                k.e(f"v_pk_fma_f32 v[{a+h}:{a+h+1}], v[{OMG}:{OMG+1}], v[{u+h}:{u+h+1}], v[{a+h}:{a+h+1}] op_sel:[0,0,0] op_sel_hi:[0,1,1]")
        for c in range(5):
            a = A5(0, c)
            k.e(f"v_cvt_pk_bf16_f32 v{T+2*c}, v{a}, v{a+1}"); k.e(f"v_cvt_pk_bf16_f32 v{T+2*c+1}, v{a+2}, v{a+3}")
            if not OUT16: k.e(f"buffer_store_dwordx2 v[{T+2*c}:{T+2*c+1}], v12, s[72:75], s71 offen offset:{c*32}")
        if OUT16:
            k.e("v_lshrrev_b32 v13, 4, v2"); k.e("v_and_b32 v9, 1, v13"); k.e("v_lshlrev_b32 v9, 5, v9"); k.e("v_lshrrev_b32 v13, 1, v13"); k.e("v_lshlrev_b32 v13, 4, v13")
            k.e("v_mul_u32_u24 v10, 1280, v14"); k.e("v_add3_u32 v10, v10, v9, v13")
            for p in range(2):
                b = T + 4 * p
                k.e(f"v_permlane16_swap_b32 v{b}, v{b+2}"); k.e(f"v_permlane16_swap_b32 v{b+1}, v{b+3}")
                k.e(f"buffer_store_dwordx4 {r4(b)}, v10, s[72:75], s71 offen offset:{p*64}{OUTSC}")
            k.e(f"buffer_store_dwordx2 v[{T+8}:{T+9}], v12, s[72:75], s71 offen offset:128{OUTSC}")
    st.stamp()
    if st.on: k.e("s_waitcnt vmcnt(0)")
    st.stamp(); st.stamp(real=True)

class SStamps:
    def __init__(self, k, on, kidx, pairs, vt=254):
        self.k = k; self.on = on; self.n = 0; self.kidx = kidx; self.pairs = pairs; self.real = []; self.vt = vt
    def stamp(self, real=False, force=False):
        if not self.on: return
        if STEP4 and self.kidx == 8 and self.n >= 2 and not force: return
        if self.n >= len(self.pairs): return
        r = self.pairs[self.n]; self.n += 1
        self.k.e(f"s_memtime s[{r}:{r+1}]" if not real else f"s_memrealtime s[{r}:{r+1}]")
    def flush(self):
        if not self.on: return
        k = self.k
        k.e("s_waitcnt vmcnt(0) lgkmcnt(0)")
        k.e(f"s_add_u32 s96, s4, {L.STAMP + self.kidx*512*4*64}"); k.e("s_addc_u32 s97, s5, 0")
        k.e("s_lshl_b32 s98, s2, 2"); k.e("s_add_u32 s98, s98, s3"); k.e("s_lshl_b32 s98, s98, 6")
        k.e(f"v_mov_b32 v{self.vt}, s98")
        for i in range(self.n):
            k.e(f"v_mov_b32 v{self.vt+1}, s{self.pairs[i]}")
            k.e(f"global_store_dword v{self.vt}, v{self.vt+1}, s[96:97] offset:{4*i}")
            k.e("s_nop 1")
        k.e("s_waitcnt vmcnt(0)")

def gen_main():
    k = Kern("main_kernel")
    name = k.name
    k.e("s_cmp_ge_u32 s2, 512"); k.e(f"s_cbranch_scc1 {name}_end")
    ldptr(k, 4, "ws"); ldptr(k, 6, "out"); ldptr(k, 32, "x")
    k.e("v_lshrrev_b32 v1, 6, v0"); k.e("v_and_b32 v2, 63, v0")
    k.e("v_readfirstlane_b32 s3, v1")
    k.e("v_lshlrev_b32 v3, 4, v2")
    if CODEPF2:
        lab0 = k.label("cq")
        k.e("s_cmp_lg_u32 s3, 3"); k.e(f"s_cbranch_scc1 {lab0}")
        k.e("s_cmp_ge_u32 s2, 32"); k.e(f"s_cbranch_scc1 {lab0}")
        k.e("s_getpc_b64 s[36:37]")
        k.e(f"{name}_cp:")
        k.e(f"s_sub_u32 s36, s36, {name}_cp-{name}"); k.e("s_subb_u32 s37, s37, 0")
        k.e("v_lshlrev_b32 v6, 7, v2")
        for i in range(4):
            k.e(f"v_cmp_gt_u32 vcc, code_end-{name}, v6")
            k.e("s_and_saveexec_b64 s[38:39], vcc")
            lab = k.label("cp")
            k.e(f"s_cbranch_execz {lab}")
            k.e("global_load_dword v253, v6, s[36:37]")
            k.e(f"{lab}:")
            k.e("s_mov_b64 exec, s[38:39]")
            if i < 3: k.e("v_add_u32 v6, 8192, v6")
        k.e(f"{lab0}:")
    k.e("s_cmp_ge_u32 s2, 256"); k.e(f"s_cbranch_scc1 {name}_B")
    stA = VStamps(k, PROF, 8); stA.stamp(); stA.stamp(real=True)
    if NOA:
        decode_gj(k, 0); k.e("s_waitcnt lgkmcnt(0)"); srd(k, 28, 4, L.FLAGS, 4096); emit_publish(k, FL_O)
        for _ in range(5): stA.stamp()
        stA.stamp(real=True)
    else:
        emit_attn(k, stA)
    stA.flush()
    k.e("s_endpgm")
    k.e(f"{name}_B:")
    stB = SStamps(k, PROF, 8, list(range(8, 28, 2)) + [60, 62, 64, 66, 68, 98]); stB.stamp(); stB.stamp(real=True)
    if NOB: k.e("s_endpgm")
    emit_bchain(k, stB)
    stB.flush()
    k.e(f"{name}_end:")
    k.e("s_endpgm")
    return k, 256, 512, 81920

def epi_kv4(g):
    k = g.k
    n0 = len(k.lines)
    gen1.epi_kv(g)
    lines = k.lines
    i = lines.index("v_and_b32 v10, 11, v7", n0)
    T = g.tmp0
    new = ["v_cmp_eq_u32 s[88:89], 9, v7", f"v_cndmask_b32 v{T+7}, v{T+7}, 0, s[88:89]" if False else f"v_mov_b32 v14, 0", f"v_cndmask_b32 v{T+7}, v{T+7}, v14, s[88:89]", "s_or_b64 vcc, vcc, s[88:89]"]
    k.lines = lines[:i] + new + lines[i:]

def build_all():
    gen1.PROF = False
    gen3.TABLES[2] = ("t14", KO.t14b, 54)
    gen3.TBL_TEXT, gen3.TBL_OFF = gen3.table_text()
    ks = []
    ks.append(gen3.gen_prep())
    segD = lambda xoff, woff, wsize=L.SZ_WDD: dict(xoff=xoff, xsize=L.SZ_XF, nksx=20, woff=woff, wsize=wsize, nksw=20, nks=20)
    ks.append(gen1.gen_gemm("p1q_kernel", 256, 4, 5, 3, [segD(L.XF, L.WQP)], gen1.dec_p1q, gen1.epi_q, kidx=1))
    ks.append(gen1.gen_gemm("p1h_kernel", 256, 4, 5, 3, [segD(L.XF, L.W1P)], gen1.dec_p1h, gen3.epi_h3, kidx=2))
    ks.append(gen1.gen_gemm("p1kv_kernel", 32, 4, 4, 3, [segD(L.XF, L.WKVP, 4*20*1024)], gen1.dec_kv, epi_kv4, swap=[False, False, True, True], kidx=3))
    ks.append(gen_main())
    return ks

if __name__ == "__main__":
    PROF = "--prof" in sys.argv; gen3.PROF = PROF
    FINE = "--fine" in sys.argv
    PFALL = "--pfall" in sys.argv
    for a in sys.argv:
        if a.startswith("--pfs="): PFS = int(a[6:])
    NOB = "--nob" in sys.argv; NOA = "--noa" in sys.argv
    for a in sys.argv:
        if a.startswith("--pa="): PRIO_A = int(a[5:])
        if a.startswith("--pb="): PRIO_B = int(a[5:])
        if a.startswith("--pe="): PRIO_E = int(a[5:])
    ks = build_all()
    out = sys.argv[1]
    open(out, "w").write(gen3.assemble_text(ks))
    for (k, vg, nwg, lds) in ks: print(k.name, "vgpr", vg, "wg", nwg, "lds", lds, "lines", len(k.lines))
```

```python
import sys
sys.path.insert(0, "work")
from asmfw import *
import layout as L
import korder as KO
import gen1, gen3, gen4, gen5
from gen1 import srd, ldptr, f32bits, KA, OOB, LOG2E, GELU_C1, GELU_C2
from gen3 import r4, r2, r16, allreduce16, store_t80
from gen4 import VM, SStamps
from gen5 import TBL_OFF, TBL_TEXT, QSCALE, epi_h5

PROF = False
ABL = ''
INNER = False
PFK1 = 1
CODEPF = True
TLBPF = True
LSTAMP = False
WT = ''
PPC = False
PPSPLIT = True
K1SCHED = 0
ROWMAP = False
WTH = None
WTQ = ''
WROW = 320
XB_, WB_, KVB_, GWB_ = 0, 8192, 8192 + 20480, 8192 + 20480 + 3072
SLOT = 32768
NSL = 4
PPB = NSL * SLOT
K1_LDS = PPB + 6 * 4096

def gen_k1():
    k = Kern("front_kernel")
    name = k.name
    st = SStamps(k, PROF, 1, [60, 62, 64, 66, 16, 68, 100], vt=210)
    def istamp(i):
        if not (PROF and INNER): return
        lab = k.label("is"); r = [64, 66, 16, 68, 92, 94][i]
        k.e("s_cmp_lg_u32 s83, 5"); k.e(f"s_cbranch_scc1 {lab}"); k.e(f"s_memtime s[{r}:{r+1}]"); k.e(f"{lab}:")
    k.e("s_cmp_ge_u32 s2, 256"); k.e(f"s_cbranch_scc1 {name}_end")
    if CODEPF:
        k.e("s_getpc_b64 s[36:37]")
        k.e(f"{name}_cp:")
        k.e(f"s_sub_u32 s36, s36, {name}_cp-{name}"); k.e("s_subb_u32 s37, s37, 0")
        k.e("v_lshlrev_b32 v6, 7, v0")
        k.e(f"v_cmp_gt_u32 vcc, code_end-{name}, v6")
        k.e("s_and_saveexec_b64 s[38:39], vcc")
        lab = k.label("cp")
        k.e(f"s_cbranch_execz {lab}")
        k.e("global_load_dword v222, v6, s[36:37]")
        k.e(f"{lab}:")
        k.e("s_mov_b64 exec, s[38:39]")
    st.stamp(); st.stamp(real=True)
    for r, nm in ((6, "x"), (8, "wq"), (10, "w1"), (12, "wk"), (14, "wv"), (18, "gw")): ldptr(k, r, nm)
    ldptr(k, 4, "ws")
    for r, nm in ((20, "w2"), (22, "wo"), (24, "w3"), (26, "w4")): ldptr(k, r, nm)
    k.e("v_lshrrev_b32 v1, 6, v0"); k.e("v_and_b32 v2, 63, v0")
    k.e("v_lshlrev_b32 v3, 4, v2")
    k.e("v_readfirstlane_b32 s3, v1")
    if ROWMAP:
        gen3.decode_gj(k, 0)
    else:
        k.e("s_and_b32 s46, s2, 7"); k.e("s_lshr_b32 s47, s2, 3")
        k.e("s_lshr_b32 s40, s46, 1"); k.e("s_lshl_b32 s40, s40, 3"); k.e("s_lshr_b32 s49, s47, 2"); k.e("s_add_u32 s40, s40, s49")
        k.e("s_and_b32 s41, s46, 1"); k.e("s_lshl_b32 s41, s41, 2"); k.e("s_and_b32 s49, s47, 3"); k.e("s_add_u32 s41, s41, s49")
    k.e("s_lshr_b32 s42, s41, 2"); k.e("s_and_b32 s43, s41, 3")
    k.e("s_cmp_ge_u32 s3, 4"); k.e(f"s_cbranch_scc0 {name}_compute")
    k.e("s_sub_u32 s3, s3, 4")
    k.e("s_mul_i32 s46, s40, 3"); k.e("s_mul_i32 s47, s46, 6554"); k.e("s_lshr_b32 s47, s47, 16"); k.e("s_mul_i32 s47, s47, 10"); k.e("s_sub_u32 s48, s46, s47")
    k.e("v_lshrrev_b32 v4, 3, v2"); k.e("v_and_b32 v5, 7, v2")
    k.e("s_lshl_b32 s46, s3, 3"); k.e("v_add_u32 v6, s46, v4")
    k.e("v_bfe_u32 v7, v6, 1, 3"); k.e("v_xor_b32 v7, v7, v5"); k.e("v_lshlrev_b32 v7, 4, v7")
    k.e("s_lshl_b32 s47, s40, 6"); k.e("v_add_u32 v6, s47, v6"); k.e("v_mul_u32_u24 v6, 1280, v6")
    k.e("v_add_u32 v200, v6, v7"); k.e(f"v_add_u32 v201, {32*1280}, v200")
    k.e(f"s_mov_b32 s50, {(1<<32)//WROW + 1}"); k.e("s_mul_i32 s51, s43, 320")
    for i in range(5):
        k.e(f"s_add_u32 s46, s3, {4*i}"); k.e("s_lshl_b32 s46, s46, 10"); k.e("v_add_u32 v6, s46, v3")
        k.e("v_mul_hi_u32 v7, v6, s50")
        k.e(f"v_mul_u32_u24 v8, {WROW}, v7"); k.e("v_sub_u32 v8, v6, v8")
        k.e("v_bfe_u32 v10, v7, 2, 1")
        k.e("v_and_b32 v9, 0x33, v7"); k.e("v_lshl_or_b32 v9, v10, 3, v9")
        k.e("v_bfe_u32 v11, v7, 3, 1"); k.e("v_lshl_or_b32 v9, v11, 2, v9")
        k.e("v_lshlrev_b32 v10, 5, v10"); k.e("v_xor_b32 v8, v8, v10")
        k.e("v_mul_u32_u24 v9, 1280, v9"); k.e("v_add_u32 v9, v9, v8"); k.e(f"v_add_u32 v{202+i}, s51, v9")
    k.e("s_lshl_b32 s46, s3, 10"); k.e("v_add_u32 v6, s46, v3"); k.e(f"v_mov_b32 v7, {OOB}")
    k.e("v_cmp_gt_u32 vcc, 2560, v6"); k.e("v_cndmask_b32 v6, v7, v6, vcc")
    k.e("v_cmp_gt_u32 vcc, 128, v3"); k.e("v_cndmask_b32 v8, v7, v3, vcc")
    k.e("s_cmp_eq_u32 s3, 3"); k.e("s_cselect_b64 vcc, -1, 0"); k.e("v_cndmask_b32 v207, v6, v8, vcc")
    k.e("s_waitcnt lgkmcnt(0)")
    srd(k, 28, 6, 0, 2048 * 1280)
    k.e("s_cmp_eq_u32 s42, 0")
    k.e("s_cselect_b32 s32, s8, s10"); k.e("s_cselect_b32 s33, s9, s11"); k.e(f"s_mov_b32 s34, {640*1280}"); k.e("s_mov_b32 s35, 0x20000")
    k.e("s_cselect_b32 s52, s12, s14"); k.e("s_cselect_b32 s53, s13, s15"); k.e(f"s_mov_b32 s54, {640*40}"); k.e("s_mov_b32 s55, 0x20000")
    k.e("s_cmp_eq_u32 s3, 3")
    k.e("s_cselect_b32 s52, s18, s52"); k.e("s_cselect_b32 s53, s19, s53"); k.e("s_cselect_b32 s54, 1280, s54")
    k.e("s_mov_b32 s46, 2560"); k.e("s_cselect_b32 s70, 128, s46")
    k.e("s_lshl_b32 s46, s3, 10"); k.e(f"s_add_u32 s71, s46, {KVB_}")
    k.e("s_lshl_b32 s72, s3, 10")
    vm = VM(k)
    def issue_stage(t):
        slot = (t % NSL) * SLOT
        k.e("s_lshl_b32 s74, s48, 7"); k.e(f"s_mul_i32 s75, s48, {64*1280}"); k.e("s_mul_i32 s76, s48, s70")
        if ABL in ("same", "samenoread"):
            k.e("s_mov_b32 s74, 0"); k.e("s_mov_b32 s75, 0"); k.e("s_mov_b32 s76, 0")
        for i in range(2):
            k.e(f"s_add_u32 m0, s72, {slot + XB_ + i*4096}"); k.e("s_nop 0")
            vm.issue(f"buffer_load_dwordx4 v{200+i}, s[28:31], s74 offen lds", ("S", t))
        for i in range(5):
            k.e(f"s_add_u32 m0, s72, {slot + WB_ + i*4096}"); k.e("s_nop 0")
            vm.issue(f"buffer_load_dwordx4 v{202+i}, s[32:35], s75 offen lds", ("S", t))
        k.e(f"s_add_u32 m0, s71, {slot}"); k.e("s_nop 0")
        vm.issue("buffer_load_dwordx4 v207, s[52:55], s76 offen lds", ("S", t))
        k.e("s_add_u32 s48, s48, 1"); k.e("s_cmp_eq_u32 s48, 10"); k.e("s_cselect_b32 s48, 0, s48")
    def do_pf():
            k.e("s_lshr_b32 s46, s2, 3"); k.e("s_mul_i32 s46, s46, 200"); k.e("s_mul_i32 s47, s3, 50"); k.e("s_add_u32 s46, s46, s47"); k.e("s_lshl_b32 s46, s46, 7")
            k.e("v_lshlrev_b32 v6, 7, v2"); k.e(f"v_mov_b32 v7, {OOB}"); k.e("v_cmp_gt_u32 vcc, 50, v2"); k.e("v_cndmask_b32 v6, v7, v6, vcc")
            k.e("buffer_load_dword v20, v6, s[32:35], s46 offen")
            k.e("s_lshl_b32 s46, s40, 6"); k.e("s_lshl_b32 s47, s43, 4"); k.e("s_add_u32 s46, s46, s47"); k.e("s_lshl_b32 s47, s3, 2"); k.e("s_add_u32 s46, s46, s47"); k.e("s_mul_i32 s46, s46, 1280")
            k.e("v_lshlrev_b32 v6, 7, v2"); k.e("v_cmp_gt_u32 vcc, 40, v2"); k.e("v_cndmask_b32 v6, v7, v6, vcc")
            k.e("buffer_load_dword v21, v6, s[28:31], s46 offen")
            vm.q += ["pf", "pf"]
    if PFK1 == 1: do_pf()
    issue_stage(0)
    if PFK1 == 3: do_pf()
    if PFK1 != 4: issue_stage(1)
    st.stamp()
    def prepack_loads():
        k.e("s_getpc_b64 s[80:81]")
        k.e(f"{name}_pc:")
        k.e(f"s_add_u32 s80, s80, korder_table-{name}_pc"); k.e("s_addc_u32 s81, s81, 0")
        k.e("v_lshrrev_b32 v10, 5, v2"); k.e("v_bfe_u32 v11, v2, 3, 2"); k.e("v_and_b32 v12, 7, v2"); k.e("v_lshlrev_b32 v12, 4, v12")
        for pas in range(2):
            P = f"{name}_pp{pas}"
            k.e("s_mul_i32 s46, s2, 6"); k.e("s_add_u32 s46, s46, s3"); k.e("s_mov_b32 s49, 0")
            if pas:
                k.e("s_add_u32 s46, s46, 4"); k.e("s_cmp_lt_u32 s3, 2"); k.e("s_cselect_b32 s46, s46, 9999")
            k.e("s_cmp_lt_u32 s46, 400"); k.e(f"s_cbranch_scc1 {P}_lo")
            k.e("s_cmp_lt_u32 s46, 940"); k.e(f"s_cbranch_scc1 {P}_w3")
            k.e("s_cmp_lt_u32 s46, 1480"); k.e(f"s_cbranch_scc1 {P}_w4")
            k.e("s_mov_b32 s46, 0"); k.e("s_mov_b32 s49, 1"); k.e(f"s_branch {P}_w2")
            k.e(f"{P}_lo:")
            k.e("s_cmp_ge_u32 s46, 200"); k.e(f"s_cbranch_scc1 {P}_wo")
            for nm, ptr, start, dst, ld, ncg, nks, order in (("w2", 20, 0, L.W2P, 1280, 10, 20, "t80"), ("wo", 22, 200, L.WOP, 1280, 10, 20, "oord"),
                                                               ("w3", 24, 400, L.W3P, 3456, 27, 20, "t80"), ("w4", 26, 940, L.W4P, 1280, 10, 54, "t14")):
                k.e(f"{P}_{nm}:")
                if start: k.e(f"s_sub_u32 s46, s46, {start}")
                k.e(f"s_mul_hi_u32 s47, s46, {(1<<32)//ncg + 1}")
                k.e(f"s_mul_i32 s50, s47, {ncg}"); k.e("s_sub_u32 s50, s46, s50")
                k.e(f"s_mov_b32 s84, s{ptr}"); k.e(f"s_mov_b32 s85, s{ptr+1}"); k.e(f"s_mov_b32 s86, {32*nks*ld}")
                k.e(f"s_mov_b32 s51, {ld}")
                k.e(f"s_lshl_b32 s79, s47, 5"); k.e(f"s_add_u32 s79, s79, {TBL_OFF[order]}")
                k.e(f"s_lshl_b32 s82, s50, 2"); k.e(f"s_mul_i32 s82, s82, {nks}"); k.e("s_add_u32 s82, s82, s47"); k.e("s_lshl_b32 s82, s82, 10"); k.e(f"s_add_u32 s82, s82, {dst}")
                k.e(f"s_mov_b32 s83, {nks*1024}")
                k.e(f"s_mov_b32 s{56+pas}, {1 if nm == 'w3' else 0}")
                k.e(f"s_branch {P}_go")
            k.e(f"{P}_go:")
            k.e("s_mov_b32 s87, 0x20000")
            k.e("s_cmp_eq_u32 s49, 0"); k.e(f"s_cselect_b32 s82, s82, {OOB}"); k.e(f"s_cselect_b32 s50, s50, 0x00ffff00")
            k.e(f"s_mov_b32 s{8+4*pas}, s82"); k.e(f"s_mov_b32 s{9+4*pas}, s83"); k.e(f"s_mov_b32 s{10+4*pas}, s47"); k.e(f"s_mov_b32 s{11+4*pas}, s50")
            k.e("s_add_u32 s90, s80, s79"); k.e("s_addc_u32 s91, s81, 0")
            k.e("s_load_dwordx8 s[92:99], s[90:91], 0")
            k.e("s_lshl_b32 s50, s50, 7")
            k.e("s_waitcnt lgkmcnt(0)")
            for i in range(4):
                k.e(f"v_mul_lo_u32 v6, v10, s{96+i}"); k.e("v_add_u32 v6, v6, v11"); k.e(f"v_add_u32 v6, s{92+i}, v6")
                k.e("v_mul_lo_u32 v6, v6, s51"); k.e("v_add_u32 v6, v6, v12")
                k.e("s_lshl_b32 s46, s3, 12"); k.e(f"s_add_u32 m0, s46, {PPB + pas*4*4096 + i*1024}"); k.e("s_nop 0")
                vm.issue("buffer_load_dwordx4 v6, s[84:87], s50 offen lds", "P")
    srd(k, 72 + 0, 4, 0, L.WS_END) if False else None
    k.e("v_lshrrev_b32 v14, 4, v2")
    for q in range(4): k.e(f"v_mov_b32 v{96+q}, 0x3f803f80")
    vm.wait(("S", 0))
    st.stamp()
    k.e("s_barrier")
    if PFK1 == 4: issue_stage(1)
    issue_stage(2); issue_stage(3)
    def prepack_process(which=(0, 1), extras=True):
        ONES = 96
        vm.wait("P")
        k.e("v_lshrrev_b32 v5, 4, v2"); k.e("v_lshlrev_b32 v5, 2, v5"); k.e("v_and_b32 v6, 15, v2"); k.e("v_lshrrev_b32 v7, 2, v6"); k.e("v_add_u32 v5, v5, v7")
        k.e("v_lshlrev_b32 v5, 7, v5"); k.e("v_and_b32 v6, 3, v2"); k.e("v_lshlrev_b32 v6, 3, v6"); k.e("v_add_u32 v5, v5, v6")
        k.e("s_lshl_b32 s46, s3, 12"); k.e(f"s_add_u32 s46, s46, {PPB}"); k.e("v_add_u32 v5, s46, v5")
        for pas in which:
            if pas:
                k.e(f"s_cmp_ge_u32 s3, 2"); k.e(f"s_cbranch_scc1 {name}_ppdone")
                k.e("v_add_u32 v5, 16384, v5")
            for c in range(4):
                k.e(f"ds_read_b64_tr_b16 v[{100+4*c}:{101+4*c}], v5 offset:{c*32}")
                k.e(f"ds_read_b64_tr_b16 v[{102+4*c}:{103+4*c}], v5 offset:{c*32+2048}")
            k.e("s_waitcnt lgkmcnt(0)")
            k.e(f"s_mov_b32 s46, s{8+4*pas}")
            for c in range(4):
                k.e(f"buffer_store_dwordx4 {r4(100+4*c)}, v3, s[96:99], s46 offen{WT}")
                if c < 3: k.e(f"s_add_u32 s46, s46, s{9+4*pas}")
            sk = k.label("nocs")
            k.e(f"s_cmp_eq_u32 s{56+pas}, 0"); k.e(f"s_cbranch_scc1 {sk}")
            for c in range(4):
                k.e(f"v_dot2_f32_bf16 v{120+c}, v{100+4*c}, v{ONES}, 0")
                for q in range(1, 4): k.e(f"v_dot2_f32_bf16 v{120+c}, v{100+4*c+q}, v{ONES}, v{120+c}")
            for c in range(4): allreduce16(k, "v_add_f32", 120 + c, 124)
            k.e("v_cmp_eq_u32 vcc, 1, v14"); k.e("v_cndmask_b32 v120, v120, v121, vcc")
            k.e("v_cmp_eq_u32 vcc, 2, v14"); k.e("v_cndmask_b32 v120, v120, v122, vcc")
            k.e("v_cmp_eq_u32 vcc, 3, v14"); k.e("v_cndmask_b32 v120, v120, v123, vcc")
            k.e(f"s_mul_i32 s46, s{10+4*pas}, {1728*4}"); k.e(f"s_lshl_b32 s47, s{11+4*pas}, 8"); k.e("s_add_u32 s46, s46, s47"); k.e(f"s_add_u32 s46, s46, {L.CS3P}")
            k.e("v_lshlrev_b32 v6, 2, v2")
            k.e("buffer_store_dword v120, v6, s[96:99], s46 offen")
            k.e(f"{sk}:")
        if 1 in which: k.e(f"{name}_ppdone:")
        if not extras: return
        z = k.label("nz")
        k.e("s_cmp_lg_u32 s2, 0"); k.e(f"s_cbranch_scc1 {z}")
        for q in range(4): k.e(f"v_mov_b32 v{100+q}, 0")
        k.e("s_lshl_b32 s46, s3, 10"); k.e(f"s_add_u32 s46, s46, {L.FLAGS}")
        k.e("buffer_store_dwordx4 v[100:103], v3, s[96:99], s46 offen")
        k.e("s_cmp_ge_u32 s3, 2"); k.e(f"s_cbranch_scc1 {z}")
        k.e("s_lshl_b32 s46, s3, 6"); k.e("v_add_u32 v6, s46, v2")
        k.e("v_mul_u32_u24 v7, 205, v6"); k.e("v_lshrrev_b32 v7, 12, v7")
        k.e("v_mul_u32_u24 v8, 20, v7"); k.e("v_sub_u32 v8, v6, v8")
        k.e("v_mov_b32 v9, v7"); k.e("v_cmp_lt_u32 vcc, 2, v7"); k.e("v_subrev_u32 v10, 1, v7"); k.e("v_cndmask_b32 v9, v9, v10, vcc")
        k.e("v_cmp_eq_u32 vcc, 5, v7"); k.e("v_mov_b32 v10, 3"); k.e("v_cndmask_b32 v9, v9, v10, vcc")
        k.e("v_mov_b32 v10, 0")
        for c, row in ((1, 2047), (3, 1), (4, 2046), (5, 2047)):
            k.e(f"v_cmp_eq_u32 vcc, {c}, v7"); k.e(f"v_mov_b32 v11, {row}"); k.e("v_cndmask_b32 v10, v10, v11, vcc")
        k.e("v_lshrrev_b32 v11, 4, v10"); k.e(f"v_mul_u32_u24 v11, {20*1024}, v11")
        k.e("v_mul_u32_u24 v9, 5, v9"); k.e("v_lshrrev_b32 v12, 2, v8"); k.e("v_add_u32 v9, v9, v12"); k.e("v_lshlrev_b32 v9, 10, v9"); k.e("v_add_u32 v11, v11, v9")
        k.e("v_and_b32 v12, 3, v8"); k.e("v_lshlrev_b32 v12, 4, v12"); k.e("v_and_b32 v9, 15, v10"); k.e("v_add_u32 v12, v12, v9"); k.e("v_lshlrev_b32 v12, 4, v12"); k.e("v_add_u32 v11, v11, v12")
        k.e("v_cmp_gt_u32 vcc, 120, v6"); k.e(f"v_mov_b32 v12, {OOB}"); k.e("v_cndmask_b32 v11, v12, v11, vcc")
        k.e(f"s_mov_b32 s46, {L.HS}")
        k.e("buffer_store_dwordx4 v[100:103], v11, s[96:99], s46 offen")
        k.e(f"{z}:")
    for t in range(10):
        if t + 1 < 10 and (ABL != "nodma" or t + 1 < 4): vm.wait(("S", t + 1))
        if PROF and LSTAMP: k.e(f"s_memtime s[{[36,38,58,6,18,16,64,66,68,30][t]}:{[36,38,58,6,18,16,64,66,68,30][t]+1}]") if t not in (3,4) or True else None
        k.e("s_barrier")
        if t + 4 < 10 and ABL != "nodma": issue_stage(t + 4)
        if t == 5 and not PPC: prepack_loads(); srd(k, 96, 4, 0, L.WS_END)
        if PPSPLIT and t == 7: prepack_process((0,), extras=False)
        if PPSPLIT and t == 8: prepack_process((1,), extras=True)
    if not PPC and not PPSPLIT: prepack_process()
    if st.on and LSTAMP:
        sp = st.pairs; st.pairs = [60, 62, 36, 38, 58, 6, 18, 16, 64, 66, 68, 30]; st.n = 12; st.kidx = 2; st.flush(); st.kidx = 1; st.pairs = sp
        st.n = 2
    elif st.on:
        st.stamp(); k.e("s_waitcnt vmcnt(0)"); st.stamp(); st.stamp(real=True); st.kidx = 2; st.flush(); st.kidx = 1
        st.n = 2
    k.e("s_endpgm")
    k.e(f"{name}_compute:")
    if PFK1 == 4:
        k.e("s_waitcnt lgkmcnt(0)")
        k.e("s_cmp_eq_u32 s42, 0"); k.e("s_cselect_b32 s32, s8, s10"); k.e("s_cselect_b32 s33, s9, s11"); k.e(f"s_mov_b32 s34, {640*1280}"); k.e("s_mov_b32 s35, 0x20000")
        srd(k, 28, 6, 0, 2048 * 1280)
        k.e("s_lshr_b32 s46, s2, 3"); k.e("s_mul_i32 s46, s46, 200"); k.e("s_mul_i32 s47, s3, 50"); k.e("s_add_u32 s46, s46, s47"); k.e("s_lshl_b32 s46, s46, 7")
        k.e("v_lshlrev_b32 v6, 7, v2"); k.e(f"v_mov_b32 v7, {OOB}"); k.e("v_cmp_gt_u32 vcc, 50, v2"); k.e("v_cndmask_b32 v8, v7, v6, vcc")
        k.e("buffer_load_dword v223, v8, s[32:35], s46 offen")
        k.e("s_lshl_b32 s46, s40, 6"); k.e("s_lshl_b32 s47, s43, 4"); k.e("s_add_u32 s46, s46, s47"); k.e("s_lshl_b32 s47, s3, 2"); k.e("s_add_u32 s46, s46, s47"); k.e("s_mul_i32 s46, s46, 1280")
        k.e("v_cmp_gt_u32 vcc, 40, v2"); k.e("v_cndmask_b32 v8, v7, v6, vcc")
        k.e("buffer_load_dword v223, v8, s[28:31], s46 offen")
    if TLBPF:
        lab = k.label("tp")
        k.e("s_cmp_lg_u32 s3, 0"); k.e(f"s_cbranch_scc1 {lab}")
        ldptr(k, 30, "out")
        k.e("s_waitcnt lgkmcnt(0)")
        pages = [(6, 0), (6, 2 << 20), (8, 0), (10, 0), (12, 0), (14, 0), (18, 0), (20, 0), (22, 0), (24, 0), (24, 2 << 20), (26, 0), (26, 2 << 20), (30, 0), (30, 2 << 20)]
        pages += [(4, i * (2 << 20)) for i in range((L.WS_END + (2 << 20) - 1) // (2 << 20))]
        k.e("v_mov_b32 v16, s4"); k.e("v_mov_b32 v17, s5")
        for i, (p, off) in enumerate(pages):
            if off:
                k.e(f"s_add_u32 s46, s{p}, {off}"); k.e(f"s_addc_u32 s47, s{p+1}, 0")
                k.e(f"v_writelane_b32 v16, s46, {i}"); k.e(f"v_writelane_b32 v17, s47, {i}")
            else:
                k.e(f"v_writelane_b32 v16, s{p}, {i}"); k.e(f"v_writelane_b32 v17, s{p+1}, {i}")
        k.e("global_load_dword v222, v[16:17], off")
        k.e(f"{lab}:")
    if PPC:
        k.e("s_waitcnt lgkmcnt(0)")
        vm = VM(k)
        prepack_loads()
    k.e("s_lshr_b32 s44, s3, 1"); k.e("s_and_b32 s45, s3, 1")
    k.e("v_and_b32 v13, 15, v2"); k.e("v_lshrrev_b32 v14, 4, v2")
    for r in range(2):
        k.e("s_and_b32 s46, s43, 1"); k.e(f"s_xor_b32 s46, s46, {r}"); k.e("s_lshl_b32 s47, s44, 1"); k.e("s_add_u32 s46, s46, s47"); k.e("s_lshl_b32 s46, s46, 4")
        k.e("v_add_u32 v6, s46, v13")
        k.e("v_bfe_u32 v7, v6, 1, 3"); k.e("v_xor_b32 v7, v7, v14"); k.e("v_lshlrev_b32 v7, 4, v7"); k.e("v_lshlrev_b32 v6, 7, v6")
        k.e(f"v_add_u32 v{184+2*r}, v6, v7"); k.e(f"v_xor_b32 v{185+2*r}, 64, v{184+2*r}")
    k.e("v_lshrrev_b32 v6, 1, v14"); k.e("v_lshlrev_b32 v6, 4, v6")
    k.e("v_and_b32 v9, 1, v14"); k.e("v_lshlrev_b32 v7, 2, v9"); k.e("v_add_u32 v6, v6, v7")
    k.e("v_lshrrev_b32 v7, 2, v13"); k.e("v_add_u32 v6, v6, v7"); k.e(f"v_mul_u32_u24 v6, {WROW}, v6")
    k.e("v_and_b32 v7, 3, v2"); k.e("v_lshlrev_b32 v7, 3, v7"); k.e("v_add_u32 v6, v6, v7")
    k.e("v_lshlrev_b32 v8, 5, v9")
    k.e("s_mul_i32 s46, s45, 160"); k.e(f"s_add_u32 s46, s46, {WB_}"); k.e("v_add_u32 v6, s46, v6")
    k.e("v_add_u32 v10, v6, v8"); k.e("v_sub_u32 v11, v6, v8")
    k.e("s_cmp_eq_u32 s45, 0"); k.e("s_cselect_b64 vcc, -1, 0")
    k.e("v_cndmask_b32 v188, v11, v10, vcc"); k.e("v_cndmask_b32 v191, v10, v11, vcc")
    k.e("v_lshlrev_b32 v6, 3, v14"); k.e("v_lshrrev_b32 v8, 2, v13"); k.e("v_add_u32 v6, v6, v8"); k.e("v_mul_u32_u24 v6, 40, v6"); k.e("v_add_u32 v6, v6, v7")
    k.e(f"v_add_u32 v189, {KVB_}, v6")
    k.e("v_lshlrev_b32 v6, 4, v14"); k.e(f"v_add_u32 v190, {GWB_}, v6")
    ONES = 96
    for q in range(4): k.e(f"v_mov_b32 v{ONES+q}, 0x3f803f80")
    for q in range(16, 96): k.e(f"v_mov_b32 v{q}, 0")
    k.e("s_lshr_b32 s46, s43, 1"); k.e("s_cmp_eq_u32 s46, s44"); k.e("s_cselect_b32 s79, 1, 0"); k.e("s_cmp_eq_u32 s45, 0"); k.e("s_cselect_b32 s79, s79, 0")
    k.e("s_mul_i32 s47, s43, 10"); k.e("s_mul_i32 s46, s45, 5"); k.e("s_add_u32 s47, s47, s46")
    for c in range(5):
        k.e(f"s_add_u32 s46, s47, {c}"); k.e("s_lshl_b32 s46, s46, 2"); k.e("v_add_u32 v9, s46, v14")
        k.e("v_mul_u32_u24 v10, 205, v9"); k.e("v_lshrrev_b32 v10, 10, v10")
        k.e("v_mul_u32_u24 v11, 5, v10"); k.e("v_sub_u32 v11, v9, v11")
        k.e(f"v_mul_u32_u24 v12, {64*1280}, v10")
        k.e("v_lshrrev_b32 v9, 1, v11"); k.e("v_lshlrev_b32 v9, 9, v9"); k.e("v_and_b32 v10, 1, v11"); k.e("v_lshl_or_b32 v9, v10, 3, v9")
        k.e(f"v_add_u32 v{212+c}, v12, v9")
        k.e("v_cmp_eq_u32 vcc, 4, v11"); k.e("v_mov_b32 v9, 4"); k.e("v_mov_b32 v10, 3"); k.e(f"v_cndmask_b32 v{217+c}, v9, v10, vcc")
    k.e("s_waitcnt lgkmcnt(0)")
    srd(k, 96, 4, 0, L.WS_END)
    if gen4.X1S:
        for q in range(4): k.e(f"v_mov_b32 v{100+q}, -1")
        k.e("s_mul_i32 s46, s2, 10240"); k.e("s_lshl_b32 s47, s3, 10"); k.e("s_add_u32 s46, s46, s47"); k.e(f"s_add_u32 s46, s46, {L.X1F}")
        k.e("buffer_store_dwordx4 v[100:103], v3, s[96:99], s46 offen sc1")
        k.e("s_add_u32 s46, s46, 4096")
        k.e("buffer_store_dwordx4 v[100:103], v3, s[96:99], s46 offen sc1")
        k.e("s_add_u32 s46, s46, 4096"); k.e("s_cmp_lt_u32 s3, 2"); k.e(f"s_cselect_b32 s46, s46, {OOB}")
        k.e("buffer_store_dwordx4 v[100:103], v3, s[96:99], s46 offen sc1")
        k.e("s_lshl_b32 s46, s2, 9"); k.e(f"s_add_u32 s46, s46, {L.X1ST}"); k.e("s_cmp_eq_u32 s3, 3"); k.e(f"s_cselect_b32 s46, s46, {OOB}")
        k.e(f"v_mov_b32 v104, {OOB}"); k.e("v_cmp_gt_u32 vcc, 32, v2"); k.e("v_cndmask_b32 v104, v104, v3, vcc")
        k.e("buffer_store_dwordx4 v[100:103], v104, s[96:99], s46 offen sc1")
        k.e("s_nop 1")
    A = lambda r, c: 16 + (r * 5 + c) * 4
    CSa = lambda c: 56 + 4 * c
    SXa = lambda r: 76 + 4 * r
    KVa = lambda c: 84 + 4 * c
    F = lambda b: 100 + 40 * b
    MF = "v_mfma_f32_16x16x32_bf16"
    def reads(step, b, isH):
        f = F(b); out = []
        if ABL in ("noread", "samenoread"): return ["s_nop 0"]
        for r in range(2): out.append(f"ds_read_b128 {r4(f+4*r)}, v{192+2*r+step}")
        for c in range(5):
            va, o = (196 if c % 2 == 0 else 199), step * 32 * WROW + c * 32
            out.append(f"ds_read_b64_tr_b16 {r2(f+8+4*c)}, v{va} offset:{o}")
            out.append(f"ds_read_b64_tr_b16 {r2(f+10+4*c)}, v{va} offset:{o + 8*WROW}")
        if not isH: out.append(f"ds_read_b128 {r4(f+36)}, v198 offset:{64*step}")
        return out
    def kvreads(step, b):
        f = F(b)
        lab = k.label("kr"); k.e("s_cmp_eq_u32 s79, 0"); k.e(f"s_cbranch_scc1 {lab}")
        for c in range(2):
            o = step * 32 * 40 + c * 32
            k.e(f"ds_read_b64_tr_b16 {r2(f+28+4*c)}, v197 offset:{o}"); k.e(f"ds_read_b64_tr_b16 {r2(f+30+4*c)}, v197 offset:{o + 160}")
        k.e(f"{lab}:")
    def slot_addrs(sreg):
        for r in range(2):
            for sp in range(2): k.e(f"v_add_u32 v{192+2*r+sp}, s{sreg}, v{184+2*r+sp}")
        k.e(f"v_add_u32 v196, s{sreg}, v188"); k.e(f"v_add_u32 v199, s{sreg}, v191"); k.e(f"v_add_u32 v197, s{sreg}, v189"); k.e(f"v_add_u32 v198, s{sreg}, v190")
    def compute(b, isH, side):
        f = F(b); side = list(side)
        dots = []
        for r in range(2):
            for q in range(4):
                dots.append(f"v_dot2_f32_bf16 v{92+r}, v{f+4*r+q}, v{f+4*r+q}, v{92+r}" if isH else f"v_dot2_f32_bf16 v{94+r}, v{f+4*r+q}, v{f+36+q}, v{94+r}")
        mf = []
        for c in range(5):
            for r in range(2): mf.append(f"{MF} {r4(A(r,c))}, {r4(f+8+4*c)}, {r4(f+4*r)}, {r4(A(r,c))}")
            if isH: mf.append(f"{MF} {r4(CSa(c))}, {r4(f+8+4*c)}, {r4(ONES)}, {r4(CSa(c))}")
        if isH:
            for r in range(2): mf.append(f"{MF} {r4(SXa(r))}, {r4(ONES)}, {r4(f+4*r)}, {r4(SXa(r))}")
        if ABL in ("noread", "samenoread"): mf = mf[:1]; dots = []
        if ABL in ("nodots", "nodotcs"): dots = []
        if ABL in ("nocs", "nodotcs"): mf = [m for m in mf if r4(ONES) not in m]
        if K1SCHED == 0:
            for m in mf:
                k.e(m)
                if side: k.e(side.pop(0))
                if dots and len(side) <= len(dots): k.e(dots.pop(0))
        else:
            for m in mf:
                k.e(m)
                for _ in range(K1SCHED):
                    if side: k.e(side.pop(0))
                if not side and dots: k.e(dots.pop(0))
        for x in side + dots: k.e(x)
        sk = k.label("kv")
        k.e("s_cmp_eq_u32 s79, 0"); k.e(f"s_cbranch_scc1 {sk}")
        for c in range(2):
            if isH: k.e(f"{MF} {r4(KVa(c))}, {r4(f)}, {r4(f+28+4*c)}, {r4(KVa(c))}")
            else: k.e(f"{MF} {r4(KVa(c))}, {r4(f+28+4*c)}, {r4(f)}, {r4(KVa(c))}")
        k.e(f"{sk}:")
    if not INNER: st.stamp()
    if PPC:
        for q in range(4): k.e(f"v_mov_b32 v{96+q}, 0x3f803f80")
        prepack_process()
    if not INNER: st.stamp()
    k.e("s_mov_b32 s78, 0"); k.e("s_mov_b32 s83, 0")
    k.e("s_barrier")
    if not INNER: st.stamp()
    k.e("s_cmp_lg_u32 s42, 0"); k.e(f"s_cbranch_scc1 {name}_H")
    for isH in (0, 1):
        lp = f"{name}_loop{isH}"
        if isH: k.e(f"{name}_H:")
        slot_addrs(78)
        for x in reads(0, 0, isH): k.e(x)
        k.e("s_waitcnt lgkmcnt(8)")
        kvreads(0, 0)
        k.e(f"{lp}:")
        istamp(0)
        k.e("s_waitcnt lgkmcnt(0)")
        istamp(1)
        kvreads(1, 1)
        compute(0, isH, reads(1, 1, isH))
        istamp(2)
        k.e(f"s_add_u32 s78, s78, {SLOT}"); k.e(f"s_cmp_eq_u32 s78, {NSL*SLOT}"); k.e("s_cselect_b32 s78, 0, s78")
        k.e("s_waitcnt lgkmcnt(0)")
        istamp(3)
        k.e("s_barrier")
        istamp(4)
        slot_addrs(78)
        kvreads(0, 0)
        compute(1, isH, reads(0, 0, isH))
        istamp(5)
        k.e("s_add_u32 s83, s83, 1"); k.e("s_cmp_lt_u32 s83, 10"); k.e(f"s_cbranch_scc1 {lp}")
        if INNER: pass
        elif isH == 0: st.stamp()
        elif st.on:
            r = st.pairs[st.n - 1]; k.e(f"s_memtime s[{r}:{r+1}]")
        k.e("s_waitcnt lgkmcnt(0)"); k.e("s_nop 7")
        for r in range(2):
            k.e("s_and_b32 s46, s43, 1"); k.e(f"s_xor_b32 s46, s46, {r}"); k.e("s_lshl_b32 s47, s44, 1"); k.e("s_add_u32 s46, s46, s47")
            k.e("s_lshl_b32 s47, s40, 2"); k.e(f"s_add_u32 s{84+r}, s46, s47")
            k.e(f"s_lshl_b32 s47, s{84+r}, 4"); k.e(f"v_add_u32 v{5+r}, s47, v13")
        if not isH: epi_q6(k, A, KVa)
        else: epi_h5(k, A, CSa, SXa, KVa)
        if not isH: k.e(f"s_branch {name}_fin")
    k.e(f"{name}_fin:")
    if st.on: k.e("s_waitcnt vmcnt(0)")
    if INNER:
        st.pairs = [60, 62, 64, 66, 16, 68, 92, 94, 100]; st.n = 8
    st.stamp(real=True)
    st.flush()
    k.e(f"{name}_end:")
    k.e("s_endpgm")
    return k, 224, 256, K1_LDS, 512

def epi_q6(k, A, KVa):
    T = 100
    k.e(f"s_mov_b32 s70, {f32bits(QSCALE)}"); k.e(f"s_mov_b32 s71, {L.QF}")
    for r in range(2):
        k.e(f"v_lshrrev_b32 v7, 5, v{5+r}"); k.e("v_mul_u32_u24 v7, 1280, v7"); k.e(f"v_and_b32 v8, 31, v{5+r}")
        for c in range(5):
            a = A(r, c)
            for h in (0, 2): k.e(f"v_pk_mul_f32 v[{a+h}:{a+h+1}], v[{a+h}:{a+h+1}], s[70:71] op_sel:[0,0] op_sel_hi:[1,0]") if False else None
            for q in range(4): k.e(f"v_mul_f32 v{a+q}, s70, v{a+q}")
        for c in range(5):
            a = A(r, c); t = T + 2 * (c + 5 * r)
            k.e(f"v_cvt_pk_bf16_f32 v{t}, v{a}, v{a+1}"); k.e(f"v_cvt_pk_bf16_f32 v{t+1}, v{a+2}, v{a+3}")
            k.e(f"v_lshlrev_b32 v9, v{217+c}, v8"); k.e(f"v_add3_u32 v{130+c+5*r}, v9, v7, v{212+c}")
        for c in range(5):
            t = T + 2 * (c + 5 * r)
            k.e(f"buffer_store_dwordx2 v[{t}:{t+1}], v{130+c+5*r}, s[96:99], s71 offen{WTQ}")
    g = k.label("ng")
    k.e("s_or_b32 s46, s43, s45"); k.e("s_cmp_lg_u32 s46, 0"); k.e(f"s_cbranch_scc1 {g}")
    for r in range(2):
        allreduce16(k, "v_add_f32", 94 + r, 7)
        k.e(f"v_mul_f32 v{94+r}, {f32bits(-LOG2E)}, v{94+r}"); k.e(f"v_exp_f32 v{94+r}, v{94+r}"); k.e("s_nop 0")
        k.e(f"v_add_f32 v{94+r}, 1.0, v{94+r}"); k.e(f"v_rcp_f32 v{94+r}, v{94+r}")
        k.e(f"v_lshlrev_b32 v7, 2, v{5+r}"); k.e(f"s_mov_b32 s46, {L.G}")
        k.e(f"buffer_store_dword v{94+r}, v7, s[96:99], s46 offen")
    k.e(f"{g}:")
    e = k.label("nk")
    k.e("s_cmp_eq_u32 s79, 0"); k.e(f"s_cbranch_scc1 {e}")
    T = 150
    k.e("s_lshr_b32 s71, s84, 1"); k.e("s_mul_i32 s71, s71, 3072"); k.e(f"s_add_u32 s71, s71, {L.KVF}")
    k.e("v_and_b32 v8, 31, v5")
    a = KVa(0); k.e(f"v_cvt_pk_bf16_f32 v{T}, v{a}, v{a+1}"); k.e(f"v_cvt_pk_bf16_f32 v{T+1}, v{a+2}, v{a+3}")
    a = KVa(1); k.e(f"v_cvt_pk_bf16_f32 v{T+2}, v{a}, v{a+1}"); k.e(f"v_cvt_pk_bf16_f32 v{T+3}, v{a+2}, v{a+3}")
    k.e("v_lshrrev_b32 v9, 1, v14"); k.e("v_lshlrev_b32 v9, 5, v9"); k.e("v_add_u32 v9, v9, v8"); k.e("v_lshlrev_b32 v9, 4, v9")
    k.e("v_and_b32 v10, 1, v14"); k.e("v_lshlrev_b32 v10, 3, v10"); k.e("v_add_u32 v9, v9, v10")
    k.e(f"buffer_store_dwordx2 v[{T}:{T+1}], v9, s[96:99], s71 offen")
    gen1.k2_addr(k, 8, 12, 9)
    k.e("v_cmp_eq_u32 vcc, 0, v14"); k.e(f"v_mov_b32 v9, {OOB}"); k.e("v_cndmask_b32 v12, v9, v12, vcc")
    k.e(f"buffer_store_dwordx2 v[{T+2}:{T+3}], v12, s[96:99], s71 offen")
    k.e(f"v_dot2_f32_bf16 v11, v{T}, v{T}, 0"); k.e(f"v_dot2_f32_bf16 v11, v{T+1}, v{T+1}, v11")
    k.e(f"v_dot2_f32_bf16 v10, v{T+2}, v{T+2}, 0"); k.e(f"v_dot2_f32_bf16 v10, v{T+3}, v{T+3}, v10")
    k.e("v_cndmask_b32 v10, 0, v10, vcc"); k.e("v_add_f32 v11, v11, v10")
    allreduce16(k, "v_add_f32", 11, 10)
    for ror in (8, 4, 2, 1): k.e(f"v_max_f32_dpp v11, v11, v11 row_ror:{ror} row_mask:0xf bank_mask:0xf")
    k.e("s_lshl_b32 s46, s84, 2"); k.e(f"s_add_u32 s46, s46, {L.KMAX}"); k.e("v_mov_b32 v10, 0")
    k.e("buffer_store_dword v11, v10, s[96:99], s46 offen")
    k.e(f"{e}:")

def epi_q8(k, A, KVa, DQ):
    T = 148
    k.e(f"s_mov_b32 s70, {f32bits(QSCALE)}"); k.e(f"s_mov_b32 s71, {L.QF}")
    for r in range(2):
        k.e(f"v_lshrrev_b32 v7, 5, v{5+r}"); k.e("v_mul_u32_u24 v7, 1280, v7"); k.e(f"v_and_b32 v8, 31, v{5+r}")
        for c in range(5):
            a = A(r, c)
            for h in (0, 2): k.e(f"v_pk_mul_f32 v[{a+h}:{a+h+1}], v[{a+h}:{a+h+1}], s[70:71] op_sel:[0,0] op_sel_hi:[1,0]") if False else None
            for q in range(4): k.e(f"v_mul_f32 v{a+q}, s70, v{a+q}")
        for c in range(5):
            a = A(r, c); t = T + 2 * (c + 5 * r)
            k.e(f"v_cvt_pk_bf16_f32 v{t}, v{a}, v{a+1}"); k.e(f"v_cvt_pk_bf16_f32 v{t+1}, v{a+2}, v{a+3}")
            k.e(f"v_lshlrev_b32 v9, v{249+c}, v8"); k.e(f"v_add3_u32 v{180+c+5*r}, v9, v7, v{244+c}")
        for c in range(5):
            t = T + 2 * (c + 5 * r)
            k.e(f"buffer_store_dwordx2 v[{t}:{t+1}], v{180+c+5*r}, s[96:99], s71 offen")
    g = k.label("ng")
    k.e("s_or_b32 s46, s43, s45"); k.e("s_cmp_lg_u32 s46, 0"); k.e(f"s_cbranch_scc1 {g}")
    for r in range(2):
        allreduce16(k, "v_add_f32", DQ + r, 7)
        k.e(f"v_mul_f32 v{DQ+r}, {f32bits(-LOG2E)}, v{DQ+r}"); k.e(f"v_exp_f32 v{DQ+r}, v{DQ+r}"); k.e("s_nop 0")
        k.e(f"v_add_f32 v{DQ+r}, 1.0, v{DQ+r}"); k.e(f"v_rcp_f32 v{DQ+r}, v{DQ+r}")
        k.e(f"v_lshlrev_b32 v7, 2, v{5+r}"); k.e(f"s_mov_b32 s46, {L.G}")
        k.e(f"buffer_store_dword v{DQ+r}, v7, s[96:99], s46 offen")
    k.e(f"{g}:")
    e = k.label("nk")
    k.e("s_cmp_eq_u32 s79, 0"); k.e(f"s_cbranch_scc1 {e}")
    T = 200
    k.e("s_lshr_b32 s71, s84, 1"); k.e("s_mul_i32 s71, s71, 3072"); k.e(f"s_add_u32 s71, s71, {L.KVF}")
    k.e("v_and_b32 v8, 31, v5")
    a = KVa(0); k.e(f"v_cvt_pk_bf16_f32 v{T}, v{a}, v{a+1}"); k.e(f"v_cvt_pk_bf16_f32 v{T+1}, v{a+2}, v{a+3}")
    a = KVa(1); k.e(f"v_cvt_pk_bf16_f32 v{T+2}, v{a}, v{a+1}"); k.e(f"v_cvt_pk_bf16_f32 v{T+3}, v{a+2}, v{a+3}")
    k.e("v_lshrrev_b32 v9, 1, v14"); k.e("v_lshlrev_b32 v9, 5, v9"); k.e("v_add_u32 v9, v9, v8"); k.e("v_lshlrev_b32 v9, 4, v9")
    k.e("v_and_b32 v10, 1, v14"); k.e("v_lshlrev_b32 v10, 3, v10"); k.e("v_add_u32 v9, v9, v10")
    k.e(f"buffer_store_dwordx2 v[{T}:{T+1}], v9, s[96:99], s71 offen")
    gen1.k2_addr(k, 8, 12, 9)
    k.e("v_cmp_eq_u32 vcc, 0, v14"); k.e(f"v_mov_b32 v9, {OOB}"); k.e("v_cndmask_b32 v12, v9, v12, vcc")
    k.e(f"buffer_store_dwordx2 v[{T+2}:{T+3}], v12, s[96:99], s71 offen")
    k.e(f"v_dot2_f32_bf16 v11, v{T}, v{T}, 0"); k.e(f"v_dot2_f32_bf16 v11, v{T+1}, v{T+1}, v11")
    k.e(f"v_dot2_f32_bf16 v10, v{T+2}, v{T+2}, 0"); k.e(f"v_dot2_f32_bf16 v10, v{T+3}, v{T+3}, v10")
    k.e("v_cndmask_b32 v10, 0, v10, vcc"); k.e("v_add_f32 v11, v11, v10")
    allreduce16(k, "v_add_f32", 11, 10)
    for ror in (8, 4, 2, 1): k.e(f"v_max_f32_dpp v11, v11, v11 row_ror:{ror} row_mask:0xf bank_mask:0xf")
    k.e("s_lshl_b32 s46, s84, 2"); k.e(f"s_add_u32 s46, s46, {L.KMAX}"); k.e("v_mov_b32 v10, 0")
    k.e("buffer_store_dword v11, v10, s[96:99], s46 offen")
    k.e(f"{e}:")

def epi_h8(k, A, CSa, SXa, KVa, DQ):
    T = 148
    p2 = lambda x: f"v[{x}:{x+1}]"
    C1, C2, ONE = 196, 198, 200
    k.e(f"v_mov_b32 v{C1}, {f32bits(GELU_C1)}"); k.e(f"v_mov_b32 v{C1+1}, v{C1}")
    k.e(f"v_mov_b32 v{C2}, {f32bits(GELU_C2)}"); k.e(f"v_mov_b32 v{C2+1}, v{C2}")
    k.e(f"v_mov_b32 v{ONE}, 1.0"); k.e(f"v_mov_b32 v{ONE+1}, 1.0")
    k.e("s_lshr_b32 s85, s43, 1") if False else None
    k.e("s_lshr_b32 s70, s43, 1"); k.e("s_add_u32 s70, s70, 1"); k.e("s_and_b32 s46, s43, 1"); k.e("s_sub_u32 s47, 0, s70"); k.e("s_cmp_eq_u32 s46, 0"); k.e("s_cselect_b32 s70, s70, s47")
    k.e("s_lshl_b32 s88, s43, 1"); k.e("s_add_u32 s88, s88, s45")
    srd(k, 72, 4, L.HS, L.SZ_XF)
    for r in range(2):
        MN, RS = 202, 204
        allreduce16(k, "v_add_f32", DQ + r, 7)
        k.e(f"v_mul_f32 v{MN}, {f32bits(-1/640)}, v{SXa(r)}"); k.e(f"v_mul_f32 v{RS}, {f32bits(1/640)}, v{DQ+r}")
        k.e(f"v_fma_f32 v{RS}, -v{MN}, v{MN}, v{RS}"); k.e(f"v_add_f32 v{RS}, {f32bits(1e-5)}, v{RS}"); k.e(f"v_rsq_f32 v{RS}, v{RS}")
        k.e(f"v_mov_b32 v{MN+1}, v{MN}")
        k.e(f"v_add_u32 v11, s70, v{5+r}")
        k.e("v_lshrrev_b32 v12, 4, v11"); k.e(f"v_mul_u32_u24 v12, {20*1024}, v12")
        k.e("v_and_b32 v9, 15, v11"); k.e("v_lshlrev_b32 v10, 4, v14"); k.e("v_add_u32 v9, v9, v10"); k.e("v_lshlrev_b32 v9, 4, v9")
        k.e("v_add_u32 v12, v12, v9")
        k.e(f"v_mov_b32 v{RS+1}, v{RS}")
        k.e("v_cmp_gt_u32 vcc, 2048, v11"); k.e(f"v_mov_b32 v9, {OOB}"); k.e("v_cndmask_b32 v12, v9, v12, vcc")
        k.e("v_cmp_gt_u32 vcc, 32, v2"); k.e("v_cndmask_b32 v15, v9, v12, vcc")
        regs = [A(r, c) for c in range(5)]
        for c, a in enumerate(regs):
            for h in (0, 2): k.e(f"v_pk_fma_f32 {p2(a+h)}, {p2(MN)}, {p2(CSa(c)+h)}, {p2(a+h)}")
        for a in regs:
            for h in (0, 2): k.e(f"v_pk_mul_f32 {p2(a+h)}, {p2(a+h)}, {p2(RS)}")
        gen3.gelu_multi(k, regs, [206 + 4 * c for c in range(5)], C1, C2, ONE)
        PK = T + 12 * r
        for c, a in enumerate(regs):
            k.e(f"v_cvt_pk_bf16_f32 v{PK+2*c}, v{a}, v{a+1}"); k.e(f"v_cvt_pk_bf16_f32 v{PK+2*c+1}, v{a+2}, v{a+3}")
        store_t80(k, PK, 12, 15, 72, 88, 228 + 4 * r)
    e = k.label("nv")
    k.e("s_cmp_eq_u32 s79, 0"); k.e(f"s_cbranch_scc1 {e}")
    T = 180
    k.e("s_lshr_b32 s71, s84, 1"); k.e("s_mul_i32 s71, s71, 3072"); k.e("s_and_b32 s46, s84, 1"); k.e("s_lshl_b32 s46, s46, 10"); k.e("s_add_u32 s71, s71, s46")
    k.e(f"s_add_u32 s71, s71, {L.KVF + 1024}")
    k.e("v_and_b32 v9, 1, v14"); k.e("v_lshlrev_b32 v9, 5, v9"); k.e("v_add_u32 v9, v9, v13"); k.e("v_lshlrev_b32 v9, 4, v9")
    k.e("v_lshrrev_b32 v10, 1, v14"); k.e("v_lshlrev_b32 v10, 3, v10"); k.e("v_add_u32 v9, v9, v10")
    a = KVa(0); k.e(f"v_cvt_pk_bf16_f32 v{T}, v{a}, v{a+1}"); k.e(f"v_cvt_pk_bf16_f32 v{T+1}, v{a+2}, v{a+3}")
    k.e(f"buffer_store_dwordx2 v[{T}:{T+1}], v9, s[96:99], s71 offen")
    a = KVa(1); k.e(f"v_cvt_pk_bf16_f32 v{T+2}, v{a}, v{a+1}"); k.e(f"v_cvt_pk_bf16_f32 v{T+3}, v{a+2}, v{a+3}")
    k.e("v_cmp_gt_u32 vcc, 4, v13")
    k.e(f"v_cndmask_b32 v{T+2}, 0, v{T+2}, vcc"); k.e(f"v_cndmask_b32 v{T+3}, 0, v{T+3}, vcc")
    k.e("v_mov_b32 v10, 0x3f803f80")
    k.e("v_and_b32 v11, 11, v13"); k.e("v_cmp_eq_u32 vcc, 8, v11")
    k.e(f"v_cndmask_b32 v{T+2}, v{T+2}, v10, vcc"); k.e(f"v_cndmask_b32 v{T+3}, v{T+3}, v10, vcc")
    k.e("v_cmp_eq_u32 vcc, 9, v13"); k.e(f"v_cndmask_b32 v{T+2}, v{T+2}, v10, vcc")
    k.e("v_lshrrev_b32 v11, 2, v13"); k.e("v_cmp_ne_u32 vcc, 1, v11")
    k.e("v_add_u32 v9, 256, v9"); k.e(f"v_mov_b32 v10, {OOB}"); k.e("v_cndmask_b32 v9, v10, v9, vcc")
    k.e(f"buffer_store_dwordx2 v[{T+2}:{T+3}], v9, s[96:99], s71 offen")
    k.e(f"{e}:")


def assemble_text(ks):
    s = ""
    for (k, vg, nwg, lds, *rest) in ks:
        blk = rest[0] if rest else 256
        s += f"; @launch kernel={k.name} grid=({nwg},1,1) block=({blk},1,1) lds={lds}\n"
    s += '.amdgcn_target "amdgcn-amd-amdhsa--gfx950"\n.text\n'
    for (k, vg, nwg, lds, *rest) in ks: s += kernel_text(k, vg)
    s += "code_end:\n"
    s += TBL_TEXT
    s += '.section .rodata,"a"\n'
    for (k, vg, nwg, lds, *rest) in ks: s += descriptor(k.name, (vg + 7) // 8 * 8, 102)
    return s

def build_all():
    gen4.RAWX = True
    return [gen_k1(), gen4.gen_main()]

if __name__ == "__main__":
    PROF = "--prof" in sys.argv; gen3.PROF = PROF; gen4.PROF = PROF
    for a in sys.argv:
        if a.startswith("--abl="): ABL = a[6:]
    gen4.ADIAG = "--adiag" in sys.argv
    INNER = "--inner" in sys.argv
    if "--nopfk1" in sys.argv: PFK1 = 0
    if "--pfk3" in sys.argv: PFK1 = 3
    if "--pfk4" in sys.argv: PFK1 = 4
    if "--nocodepf" in sys.argv: CODEPF = False
    if "--notlbpf" in sys.argv: TLBPF = False
    LSTAMP = "--lstamp" in sys.argv
    for a in sys.argv:
        if a.startswith("--poll="): gen4.POLL = int(a[7:])
    if "--nosent" in sys.argv: gen4.SENT = False
    if "--noearly4" in sys.argv: gen4.EARLY4 = False
    if "--ovl" in sys.argv: gen4.OVL = True
    for a in sys.argv:
        if a.startswith("--nset4="): gen4.NSET4 = int(a[8:])
        if a.startswith("--ns3="): gen4.NS3_ = int(a[6:])
    if "--x1s" in sys.argv: gen4.X1S = True
    if "--out16" in sys.argv: gen4.OUT16 = True
    if "--outsc" in sys.argv: gen4.OUTSC = " sc1"
    if "--fastst" in sys.argv: gen4.SC = ""
    for a in sys.argv:
        if a.startswith("--apf="): gen4.APF = tuple(int(x) for x in a[6:].split(","))
    if "--step4" in sys.argv: gen4.STEP4 = True
    if "--rot" in sys.argv: gen4.ROT = 1
    if "--rot2" in sys.argv: gen4.ROT = 2
    for a in sys.argv:
        if a.startswith("--expa="): gen4.EXP_A = int(a[7:])
    if "--nomf" in sys.argv: gen4.EXP_NOMF = True
    if "--splitst" in sys.argv: gen4.SPLITST = True
    for a in sys.argv:
        if a.startswith("--nb="): gen4.NB = int(a[5:])
    if "--wolds" in sys.argv: gen4.WOLDS = 1
    if "--wolds2" in sys.argv: gen4.WOLDS = 2
    if "--pfk2" in sys.argv: gen4.PFK2 = True
    if "--rowp2" in sys.argv: gen4.ROWP2 = True
    if "--rowp4" in sys.argv: gen4.ROWP4 = True
    if "--nset2=4" in sys.argv: gen4.NSET2 = 4
    if "--codepf2" in sys.argv: gen4.CODEPF2 = True
    for a in sys.argv:
        if a.startswith("--pace="):
            v = [None if c == "x" else int(c) for c in a[7:]]
            gen4.PACE2, gen4.PACE3, gen4.PACE4 = v
    if "--wt" in sys.argv: WT = " sc1"
    if "--wtq" in sys.argv: WTQ = " sc1"
    for a in sys.argv:
        if a.startswith("--k1s="): K1SCHED = int(a[6:])
    ROWMAP = "--rowmap" in sys.argv
    gen5.WT = "" if "--nowth" in sys.argv else WT
    gen4.FINE = "--fine" in sys.argv
    gen4.NOB = "--nob" in sys.argv; gen4.NOA = "--noa" in sys.argv
    for a in sys.argv:
        if a.startswith("--pa="): gen4.PRIO_A = int(a[5:])
        if a.startswith("--pb="): gen4.PRIO_B = int(a[5:])
        if a.startswith("--pe="): gen4.PRIO_E = int(a[5:])
        if a.startswith("--pp="): gen4.PRIO_P2, gen4.PRIO_P3, gen4.PRIO_P4 = [int(c) for c in a[5:]]
    ks = build_all()
    open(sys.argv[1], "w").write(assemble_text(ks))
    for (k, vg, nwg, lds, *rest) in ks: print(k.name, "vgpr", vg, "wg", nwg, "lds", lds, "lines", len(k.lines))
```
